```python
import torch

def _softmax(x, axis=-1):
    return torch.softmax(x, dim=axis)
def _gelu(x):
    return torch.nn.functional.gelu(x, approximate="tanh")
def _silu(x):
    return torch.nn.functional.silu(x)
def _sigmoid(x):
    return torch.sigmoid(x)
def _layernorm(x, axis=-1, eps=1e-5):
    m = x.mean(dim=axis, keepdim=True)
    v = x.var(dim=axis, keepdim=True, unbiased=False)
    return (x - m) / torch.sqrt(v + eps)
def _scatter_add(tgt, idx, src, axis=0):
    return tgt.clone().index_add_(axis, idx, src)
def _segment_sum(src, seg, n):
    out = torch.zeros((n,) + src.shape[1:], dtype=src.dtype)
    return out.index_add_(0, seg, src)
def _pad(x, pw):
    flat = tuple(v for pair in reversed(pw) for v in pair)
    return torch.nn.functional.pad(x, flat)

kernel_name = 'standalone__gqa_block_cached__near_ridge'

def setup_inputs():

    _w = (lambda a: (lambda t: t.to(torch.bfloat16) if t.is_floating_point() else t)(torch.as_tensor(a)))
    B, Sq, D = 8, 64, 512
    Hq, Hkv, Sk, Dh = 32, 8, 1024, 128
    assert Hq % Hkv == 0, (Hq, Hkv)
    return {
        "x": _w((lambda *s: torch.randn(*s, dtype=torch.bfloat16) * 0.8)(B, Sq, D)),
        "k_cache": _w((lambda *s: torch.randn(*s, dtype=torch.bfloat16) * 0.8)(B, Hkv, Sk, Dh)),
        "v_cache": _w((lambda *s: torch.randn(*s, dtype=torch.bfloat16) * 0.05)(B, Hkv, Sk, Dh)),
        "wq": _w((lambda *s: torch.randn(*s, dtype=torch.bfloat16) * 0.8)(D, Hq * Dh) * (D ** -0.5)),
        "wo": _w((lambda *s: torch.randn(*s, dtype=torch.bfloat16) * 0.05)(Hq * Dh, D) * ((Hq * Dh) ** -0.5)),
    }

def reference(x, k_cache, v_cache, wq, wo):
    B, Sq, D = x.shape
    Hq, Dh = 32, 128
    Hkv = k_cache.shape[1]
    rep = Hq // Hkv
    q = (lambda x, *d: x.permute(*d))((x @ wq).reshape(B, Sq, Hq, Dh), 0, 2, 1, 3)
    k = (lambda x, n, axis: torch.repeat_interleave(x, n, dim=axis))(k_cache, rep, axis=1)
    v = (lambda x, n, axis: torch.repeat_interleave(x, n, dim=axis))(v_cache, rep, axis=1)
    scores = torch.einsum("bhqd,bhkd->bhqk", q, k) * (Dh ** -0.5)
    p = _softmax(scores, axis=-1)
    o = torch.einsum("bhqk,bhkd->bhqd", p, v)
    return (lambda x, *d: x.permute(*d))(o, 0, 2, 1, 3).reshape(B, Sq, Hq * Dh) @ wo
```

```python
NAME = "standalone__gqa_block_cached__near_ridge"

class Asm:
    def __init__(self):
        self.lines = []
    def __call__(self, s):
        for l in s.split("\n"):
            self.lines.append("    " + l.strip() if not l.strip().endswith(":") else l.strip())
    def c(self, s):
        self.lines.append("    ; " + s)
    def label(self, s):
        self.lines.append(s + ":")
    def text(self):
        return "\n".join(self.lines) + "\n"

def kernel_header(name):
    return f""".text
.globl {name}
.p2align 8
.type {name},@function
{name}:
"""

def kernel_desc(name, vgpr, sgpr, accum, extra=""):
    return f""".amdhsa_kernel {name}
  .amdhsa_next_free_vgpr {vgpr}
  .amdhsa_next_free_sgpr {sgpr}
  .amdhsa_accum_offset {accum}
  .amdhsa_group_segment_fixed_size 0
  .amdhsa_kernarg_size 64
  .amdhsa_user_sgpr_count 2
  .amdhsa_user_sgpr_kernarg_segment_ptr 1
  .amdhsa_system_sgpr_workgroup_id_x 1
{extra}.end_amdhsa_kernel
"""

def srd(a, d, b, nbytes):
    a(f"s_mov_b32 s{d}, s{b}")
    a(f"s_and_b32 s{d+1}, s{b+1}, 0xffff")
    a(f"s_mov_b32 s{d+2}, {hex(nbytes)}")
    a(f"s_mov_b32 s{d+3}, 0x20000")
```

```python
import sys, math, struct
from asmlib import *

C_SCALE = math.log2(math.e) / math.sqrt(128.0)
def f2u(f): return struct.unpack("<I", struct.pack("<f", f))[0]
def mf32(d, a, b, c): return f"v_mfma_f32_32x32x16_bf16 {d}, {a}, {b}, {c}"
def R(p, lo, n): return f"{p}[{lo}:{lo+n-1}]"

def O_(qb, j): return R("a", (qb*4+j)*16, 16)
def Q_(qb, s): return R("a", 128 + (qb*8+s)*4, 4)
def Kf(s): return R("a", 192 + 4*s, 4)
def Vf(st, j): return R("a", 224 + (st*4+j)*4, 4)
def Vfh(st, j, u): return R("a", 224 + (st*4+j)*4 + 2*u, 2)
S0 = [16, 32]; NM = [48, 64]; P0 = [80, 88]; L_ = [96, 97]
VKR = 100; VVR = 108; VKD = 112; VVD = 116
VXD = 48; VWD = 50; VXR = 54; VWR = 58; VOD = 60
XB = 131072
QAREA = XB
STATS = XB + 16384
OF_OFF = 0
WF_OFF = 0x400000
ST_OFF = 0x800000

def spread(n, fillers):
    gaps = [[] for _ in range(n)]
    for (g0, g1, lst) in fillers:
        k = len(lst)
        for i, x in enumerate(lst):
            gaps[g0 + (i * (g1 - g0)) // k].append(x)
    return gaps

def fix_m0(seq):
    out = []
    for i, x in enumerate(seq):
        out.append(x)
        if " m0," in x and i + 1 < len(seq) and seq[i+1].startswith("buffer_load"):
            out.append("s_nop 0")
    return out

def stamp(a, opt, i):
    if opt.get("stamp"):
        a(f"s_memrealtime s[{70+2*i}:{71+2*i}]")
        a("s_waitcnt lgkmcnt(0)")

def stamp_out(a, n, off, srdreg):
    a("s_lshl_b32 s51, s2, 2"); a("s_add_u32 s51, s51, s3"); a("s_lshl_b32 s51, s51, 6"); a(f"s_add_u32 s51, s51, {off}")
    a("v_mov_b32 v6, 0")
    a("s_mov_b64 exec, 1")
    for i in range(2*n):
        a(f"v_mov_b32 v7, s{70+i}")
        a(f"buffer_store_dword v7, v6, s[{srdreg}:{srdreg+3}], s51 offen offset:{4*i}")
        a("s_nop 1")

def gen_k1(opt):
    a = Asm()
    fine = opt.get("fine")
    cnt = [0]
    def fs(dyn=False):
        if not fine: return []
        out = ["s_mov_b32 m0, s92", "s_add_u32 s92, s92, 1", "v_writelane_b32 v119, s90, m0", "s_memtime s[90:91]"]
        return out
    ntkv = " nt" if opt.get("nt") else ""
    a("s_cmp_ge_u32 s2, 256")
    a("s_cbranch_scc1 K1_end")
    a("s_load_dwordx8 s[4:11], s[0:1], 0")
    a("s_load_dwordx2 s[12:13], s[0:1], 32")
    a("s_load_dwordx2 s[18:19], s[0:1], 56")
    if opt.get("stamp"): a("s_memrealtime s[70:71]")
    if fine:
        a("s_memtime s[90:91]"); a("s_mov_b32 s92, 0"); a("v_mov_b32 v119, 0")
    a("v_lshrrev_b32 v1, 6, v0")
    a("v_and_b32 v0, 63, v0")
    a("v_readfirstlane_b32 s3, v1")
    a("s_and_b32 s40, s2, 7")
    a("s_lshr_b32 s41, s2, 5")
    a("s_bfe_u32 s42, s2, 0x20003")
    a("s_lshl_b32 s43, s40, 2")
    a("s_add_u32 s43, s43, s42")
    a("v_lshrrev_b32 v1, 4, v0")
    a("v_and_b32 v2, 15, v0")
    a("v_lshlrev_b32 v4, 2, v1")
    a("v_xor_b32 v4, v2, v4")
    a("v_lshlrev_b32 v4, 4, v4")
    a("v_lshl_add_u32 v6, v1, 13, v4")
    a(f"v_mov_b32 v{VWD}, v6")
    for i in range(1, 4):
        a(f"v_add_u32 v{VWD+i}, {31744*i}, v6")
    a("v_lshrrev_b32 v5, 3, v0")
    a("v_and_b32 v7, 7, v0")
    a("v_xor_b32 v7, v7, v1")
    a("v_lshlrev_b32 v7, 4, v7")
    a(f"v_lshl_add_u32 v{VXD}, v5, 10, v7")
    a(f"v_xor_b32 v5, 64, v{VXD}")
    a(f"v_add_u32 v{VXD+1}, {8192-1024}, v5")
    a("s_lshl_b32 s44, s42, 1"); a("s_add_u32 s44, s44, s41")
    if opt.get("noqrot"): a("s_mov_b32 s44, 0")
    a("s_and_b32 s58, s44, 7")
    a("s_lshl_b32 s46, s3, 11"); a(f"s_add_u32 s46, s46, {XB}")
    a("s_lshl_b32 s47, s3, 12"); a("s_add_u32 s47, s47, 16384")
    a("s_lshl_b32 s49, s3, 15")
    a("s_lshl_b32 s44, s41, 16"); a("s_lshl_b32 s45, s3, 14"); a("s_add_u32 s44, s44, s45")
    a("s_lshl_b32 s48, s43, 8"); a("s_lshl_b32 s45, s3, 17"); a("s_add_u32 s48, s48, s45")
    a("s_sub_u32 s22, 0x80000, s44"); a("s_mov_b32 s23, 0x20000")
    a("s_sub_u32 s34, 0x400000, s48"); a("s_mov_b32 s35, 0x20000")
    a("s_waitcnt lgkmcnt(0)")
    a("s_add_u32 s20, s4, s44"); a("s_addc_u32 s21, s5, 0"); a("s_and_b32 s21, s21, 0xffff")
    a("s_add_u32 s32, s10, s48"); a("s_addc_u32 s33, s11, 0"); a("s_and_b32 s33, s33, 0xffff")

    def qdma(c):
        j = c % 4
        out = [f"s_lshl_b32 s59, s58, 7", f"s_add_u32 m0, s46, {j*8192}", "s_lshl_b32 s60, s58, 19"]
        for i in range(2):
            out.append(f"buffer_load_dwordx4 v{VXD+i}, s[20:23], s59 offen offset:{1024*i} lds")
        out += [f"s_add_u32 m0, s47, {j*32768}", "s_add_u32 s58, s58, 1"]
        for i in range(4):
            out.append(f"buffer_load_dwordx4 v{VWD+i}, s[32:35], s60 offen offset:{1024*i} lds")
        out.append("s_and_b32 s58, s58, 7")
        return out
    for x in qdma(0): a(x)
    a("v_lshl_add_u32 v6, v1, 10, v4")
    a(f"v_mov_b32 v{VOD}, v6")
    for i in range(1, 4):
        a(f"v_add_u32 v{VOD+i}, {3072*i}, v6")
    a("s_mov_b32 s36, s12"); a("s_and_b32 s37, s13, 0xffff"); a("s_mov_b32 s38, 0x400000"); a("s_mov_b32 s39, 0x20000")
    a("s_lshl_b32 s44, s2, 14"); a("s_lshl_b32 s45, s3, 8"); a("s_add_u32 s44, s44, s45")
    a("s_mov_b32 m0, s49")
    a("s_nop 0")
    for i in range(4):
        a(f"buffer_load_dwordx4 v{VOD+i}, s[36:39], s44 offen offset:{1024*i} lds")
    for x in qdma(1): a(x)
    for x in qdma(2): a(x)
    a("s_lshl_b32 s44, s41, 3"); a("s_add_u32 s44, s44, s40"); a("s_lshl_b32 s44, s44, 2"); a("s_add_u32 s44, s44, s3")
    a("s_lshl_b32 s44, s44, 16")
    a("s_add_u32 s24, s6, s44"); a("s_addc_u32 s25, s7, 0"); a("s_and_b32 s25, s25, 0xffff")
    a("s_mov_b32 s26, 0x10000"); a("s_mov_b32 s27, 0x20000")
    a("s_add_u32 s28, s8, s44"); a("s_addc_u32 s29, s9, 0"); a("s_and_b32 s29, s29, 0xffff")
    a("s_mov_b32 s30, 0x10000"); a("s_mov_b32 s31, 0x20000")
    srd(a, 64, 18, 0x800000 + (0x40000 if (opt.get("stamp") or fine) else 0))
    a("v_xor_b32 v3, v2, v1"); a("v_lshlrev_b32 v3, 4, v3")
    a(f"v_lshl_add_u32 v{VKD}, v1, 8, v3")
    for i in range(1, 4):
        a(f"v_xor_b32 v{VKD+i}, {64*i}, v{VKD}")
    a(f"v_lshl_add_u32 v{VVD}, v1, 8, v4")
    a("v_and_b32 v5, 31, v0")
    a("v_lshrrev_b32 v6, 5, v0")
    a("v_xor_b32 v7, v6, v2")
    a("v_lshlrev_b32 v7, 4, v7")
    a("v_lshl_add_u32 v7, v5, 8, v7")
    a(f"v_add_u32 v{VKR}, s49, v7")
    for s in range(1, 8):
        a(f"v_xor_b32 v{VKR+s}, {32*s}, v{VKR}")
    a("v_bfe_u32 v7, v0, 1, 3")
    a("v_xor_b32 v7, v7, v6"); a("v_lshlrev_b32 v7, 4, v7")
    a("v_lshl_add_u32 v7, v5, 7, v7")
    a(f"v_add_u32 v{VXR}, {XB}, v7")
    for s in range(1, 4):
        a(f"v_xor_b32 v{VXR+s}, {32*s}, v{VXR}")
    a("v_lshrrev_b32 v8, 2, v2")
    a("v_and_b32 v9, 3, v0")
    a("v_and_b32 v10, 16, v0")
    a("v_lshlrev_b32 v10, 1, v10")
    a("v_lshl_add_u32 v11, v6, 2, v8")
    a("v_lshl_add_u32 v11, v11, 8, v10")
    a("v_lshl_add_u32 v11, v9, 3, v11")
    a("v_add_u32 v11, s49, v11")
    for j in range(4):
        a(f"s_add_u32 s51, s3, {j}"); a("s_and_b32 s51, s51, 3")
        a(f"v_xor_b32 v12, s51, v8")
        a(f"v_lshl_add_u32 v{VVR+j}, v12, 6, v11")
    a("v_lshl_add_u32 v11, v6, 3, v8")
    a("v_lshl_add_u32 v11, v11, 8, v10")
    a("v_xor_b32 v12, s3, v8")
    a("v_lshl_add_u32 v11, v12, 6, v11")
    a("v_and_b32 v12, 1, v0"); a("v_lshl_add_u32 v11, v12, 4, v11")
    a("v_and_b32 v12, 2, v0"); a("v_lshl_add_u32 v11, v12, 2, v11")
    a(f"v_add_u32 v{VWR}, 16384, v11")
    a(f"v_add_u32 v{VWR+1}, {16384+65536}, v11")
    a("v_lshlrev_b32 v13, 4, v0")
    orders = opt.get("orders", [0x76543210, 0x32107654, 0x76543210, 0x32107654])
    a(f"s_mov_b32 s53, {hex(orders[0])}")
    for rr_ in range(1, 4):
        a(f"s_cmp_eq_u32 s42, {rr_}"); a(f"s_cselect_b32 s53, {hex(orders[rr_])}, s53")

    def qreads(c):
        j = c % 4; base = (c % 2) * 48; out = []
        for s in range(4):
            b = base + 12*s
            wreg = VWR + (j >> 1); wo = (j & 1) * 32768
            out.append(f"ds_read_b64_tr_b16 a[{b}:{b+1}], v{wreg} offset:{wo + (16*s)*256}")
            out.append(f"ds_read_b64_tr_b16 a[{b+2}:{b+3}], v{wreg} offset:{wo + (16*s+4)*256}")
            out.append(f"ds_read_b128 a[{b+4}:{b+7}], v{VXR+s} offset:{j*8192}")
            out.append(f"ds_read_b128 a[{b+8}:{b+11}], v{VXR+s} offset:{j*8192+4096}")
        return out
    def qmf(c):
        base = (c % 2) * 48; out = []
        for s in range(4):
            b = base + 12*s
            for qb in range(2):
                cin = "0" if (c == 0 and s == 0) else R("v", S0[qb], 16)
                out.append(mf32(R("v", S0[qb], 16), R("a", b, 4), R("a", b+4+4*qb, 4), cin))
        return out
    def tile_soff(r0, r1, t):
        if t >= 8:
            return [f"s_mov_b32 {r0}, 0x20000", f"s_mov_b32 {r1}, 0x20000"]
        return [f"s_bfe_u32 {r0}, s53, {hex(0x30000 + 4*t)}", f"s_lshl_b32 {r0}, {r0}, 13", f"s_add_u32 {r1}, {r0}, 4096"]
    def dma_k(slot, soff, soff2):
        out = []
        for hh in range(2):
            out.append(f"s_add_u32 m0, s49, {slot*16384 + hh*4096}")
            for i in range(4):
                out.append(f"buffer_load_dwordx4 v{VKD+i}, s[24:27], {soff2 if hh else soff} offen offset:{1024*i}{ntkv} lds")
        return out
    def dma_v(slot, soff, soff2):
        out = []
        for hh in range(2):
            out.append(f"s_add_u32 m0, s49, {slot*16384 + 8192 + hh*4096}")
            for i in range(4):
                out.append(f"buffer_load_dwordx4 v{VVD}, s[28:31], {soff2 if hh else soff} offen offset:{1024*i}{ntkv} lds")
        return out

    vm = ["c0"]*6 + ["wo"]*4 + ["c1"]*6 + ["c2"]*6
    def wait_for(tag):
        last = max(i for i, x in enumerate(vm) if x == tag)
        a(f"s_waitcnt vmcnt({len(vm) - 1 - last})")
    for c in range(8):
        if c == 0:
            for x in fs(): a(x)
            if fine: a("s_waitcnt lgkmcnt(0)")
        wait_for(f"c{c}")
        a("s_barrier")
        for x in fs(): a(x)
        seq = qreads(c)
        ld = []
        if c + 3 < 8:
            ld = qdma(c + 3); vm += [f"c{c+3}"]*6
        elif c == 5:
            ld = tile_soff("s54", "s55", 0) + dma_k(0, "s54", "s55"); vm += ["K0"]*8
        elif c == 6:
            ld = dma_v(0, "s54", "s55"); vm += ["V0"]*8
        if c == 0:
            for x in seq: a(x)
            for x in ld: a(x)
        else:
            mf = qmf(c - 1)
            gaps = spread(8, [(0, 4, seq), (2, 8, ld)] if ld else [(0, 4, seq)])
            s2 = []
            for i in range(8):
                s2 += gaps[i]; s2.append(mf[i])
            for x in fix_m0(s2): a(x)
        if c == 1:
            for j in range(4):
                for u in range(2):
                    a(f"ds_read_b64_tr_b16 v[{80+4*j+2*u}:{81+4*j+2*u}], v{VVR+j} offset:{8*u*256}")
        a("s_waitcnt lgkmcnt(0)")
        if c == 1:
            sc = " sc1" if opt.get("fused") else ""
            for j in range(4):
                a(f"s_add_u32 s51, s3, {j}"); a("s_and_b32 s51, s51, 3")
                a("s_lshl_b32 s52, s3, 2"); a("s_add_u32 s51, s51, s52")
                a("s_lshl_b32 s51, s51, 8"); a("s_add_u32 s51, s51, s2"); a("s_lshl_b32 s51, s51, 10")
                a(f"s_add_u32 s51, s51, {WF_OFF}")
                a(f"buffer_store_dwordx4 v[{80+4*j}:{83+4*j}], v13, s[64:67], s51 offen{sc}")
            vm += ["st"]*4
    for x in qmf(7): a(x)
    a(f"s_mov_b32 s52, {hex(f2u(C_SCALE))}")
    a(f"v_mov_b32 v14, s52")
    a("s_lshl_b32 s51, s3, 11")
    a(f"v_add_u32 v15, {QAREA}, v13")
    a("v_add_u32 v12, s51, v15")
    a("s_nop 7")
    for qb in range(2):
        for r in range(0, 16, 2):
            a(f"v_pk_mul_f32 v[{S0[qb]+r}:{S0[qb]+r+1}], v[{S0[qb]+r}:{S0[qb]+r+1}], v[14:15] op_sel_hi:[1,0]")
        for r in range(8):
            a(f"v_cvt_pk_bf16_f32 v{P0[qb]+r}, v{S0[qb]+2*r}, v{S0[qb]+2*r+1}")
        for sp in range(2):
            a(f"ds_write_b128 v12, v[{P0[qb]+4*sp}:{P0[qb]+4*sp+3}] offset:{qb*8192 + sp*1024}")
    a("s_waitcnt lgkmcnt(0)"); a("s_barrier")
    for x in fs(): a(x)
    stamp(a, opt, 1)
    for qb in range(2):
        for s in range(8):
            a(f"ds_read_b128 {Q_(qb,s)}, v15 offset:{(qb*8+s)*1024}")
    for x in fix_m0(tile_soff("s54", "s55", 1) + dma_k(1, "s54", "s55") + dma_v(1, "s54", "s55")): a(x)
    vm += ["K1"]*8 + ["V1"]*8

    def kreads(slot): return [f"ds_read_b128 {Kf(s)}, v{VKR+s} offset:{slot*16384}" for s in range(8)]
    def vreads(slot):
        return [f"ds_read_b64_tr_b16 {Vfh(st,j,u)}, v{VVR+j} offset:{slot*16384 + 8192 + (16*st+8*u)*256}" for st in range(2) for j in range(4) for u in range(2)]
    def qk(qb, first=False):
        return [mf32(R("v", S0[qb], 16), Kf(s), Q_(qb, s), ("0" if first else R("v", NM[qb], 16)) if s == 0 else R("v", S0[qb], 16)) for s in range(8)]
    def pv(qb, first=False):
        return [mf32(O_(qb, j), Vf(st, j), R("v", P0[qb]+4*st, 4), "0" if (first and st == 0) else O_(qb, j)) for st in range(2) for j in range(4)]
    def softmax(qb):
        s = S0[qb]; out = []
        for r in range(16):
            out.append(f"v_exp_f32 v{s+r}, v{s+r}")
            if r >= 1:
                out.append(f"v_add_f32 v{L_[qb]}, v{L_[qb]}, v{s+r-1}")
            if r >= 2 and r % 2 == 0:
                out.append(f"v_cvt_pk_bf16_f32 v{P0[qb]+(r-2)//2}, v{s+r-2}, v{s+r-1}")
        out.append("s_nop 0")
        out.append(f"v_add_f32 v{L_[qb]}, v{L_[qb]}, v{s+15}")
        out.append(f"v_cvt_pk_bf16_f32 v{P0[qb]+7}, v{s+14}, v{s+15}")
        return out
    def firstmax(qb):
        s = S0[qb]; t = 2 + 2*qb; out = []
        out.append(f"v_max3_f32 v{t}, v{s}, v{s+1}, v{s+2}")
        for r in range(3, 15, 2):
            out.append(f"v_max3_f32 v{t}, v{t}, v{s+r}, v{s+r+1}")
        out.append(f"v_max_f32 v{t}, v{t}, v{s+15}")
        out.append(f"v_mov_b32 v{t+1}, v{t}")
        out.append("s_nop 1")
        out.append(f"v_permlane32_swap_b32 v{t}, v{t+1}")
        out.append("s_nop 0")
        out.append(f"v_max_f32 v{t}, v{t}, v{t+1}")
        for r in range(16):
            out.append(f"v_sub_f32 v{s+r}, v{s+r}, v{t}")
        for r in range(16):
            out.append(f"v_sub_f32 v{NM[qb]+r}, 0, v{t}")
        return out
    for i in range(128): a(f"v_accvgpr_write_b32 a{i}, 0")
    a(f"v_mov_b32 v{L_[0]}, 0"); a(f"v_mov_b32 v{L_[1]}, 0")
    wait_for("K0")
    for x in kreads(0): a(x)
    a("s_waitcnt lgkmcnt(0)")
    for x in fs(): a(x)
    mf = qk(0, True) + qk(1, True)
    ld = tile_soff("s54", "s55", 2) + dma_k(0, "s54", "s55")
    nV0 = len(vm) - 1 - max(i for i, x in enumerate(vm) if x == "V0") + 8
    vm += ["K2"]*8
    gaps = spread(16, [(0, 6, ld), (6, 7, [f"s_waitcnt vmcnt({nV0})"]), (6, 10, vreads(0)), (10, 16, firstmax(0))])
    s2 = []
    for i in range(16):
        s2.append(mf[i]); s2 += gaps[i]
    for x in fix_m0(s2): a(x)
    wait_for("K1")
    for x in kreads(1): a(x)
    for x in softmax(0): a(x)
    for x in firstmax(1): a(x)
    a("s_waitcnt lgkmcnt(0)")

    def body(t_par, dyn):
        mf = pv(0) + qk(0) + pv(1) + qk(1)
        fl = []
        fl.append((2, 15, softmax(1)))
        fl.append((18, 31, softmax(0)))
        preV = ["s_and_b32 s54, s61, 15", "s_lshl_b32 s54, s54, 13", "s_add_u32 s55, s54, 4096"]
        preK = ["s_lshr_b32 s61, s61, 4", "s_or_b32 s61, s61, 0x80000000", "s_and_b32 s56, s61, 15", "s_lshl_b32 s56, s56, 13", "s_add_u32 s57, s56, 4096"]
        fl.append((0, 1, preV))
        fl.append((1, 13, dma_v(t_par, "s54", "s55")))
        fl.append((12, 14, preK))
        fl.append((14, 28, dma_k(1 - t_par, "s56", "s57")))
        vr = vreads(1 - t_par)
        fl.append((20, 21, ["WAITV"]))
        fl.append((20, 24, vr[:8]))
        fl.append((24, 28, vr[8:]))
        kr = kreads(t_par)
        fl.append((28, 29, ["WAITK"]))
        fl.append((28, 32, kr[:4]))
        gaps = spread(32, fl)
        seq = fs()
        for i in range(32):
            if i == 8: seq.append("s_waitcnt lgkmcnt(0)")
            seq.append(mf[i]); seq += gaps[i]
        issued = 0; out = []
        for x in seq:
            if x == "WAITV": out.append(f"s_waitcnt vmcnt({8 + issued})")
            elif x == "WAITK": out.append(f"s_waitcnt vmcnt({issued})")
            else:
                if x.startswith("buffer_load"): issued += 1
                out.append(x)
        out += kr[4:]
        out.append("s_waitcnt lgkmcnt(8)")
        return fix_m0(out)
    a("s_lshr_b32 s61, s53, 8"); a("s_or_b32 s61, s61, 0x88000000")
    a("s_mov_b32 s62, 0")
    a(".p2align 3")
    a.label("K1_loop")
    for x in body(0, True): a(x)
    a("s_cmp_eq_u32 s62, 3")
    a("s_cbranch_scc1 K1_last")
    for x in body(1, True): a(x)
    a("s_add_u32 s62, s62, 1")
    a("s_branch K1_loop")
    a.label("K1_last")
    for x in fs(): a(x)
    sm_b = softmax(1)
    gaps = spread(8, [(2, 8, sm_b[:24])])
    mf = pv(0)
    for i in range(8):
        a(mf[i])
        for x in gaps[i]: a(x)
    for x in sm_b[24:]: a(x)
    a(f"v_sub_f32 v2, 0, v{NM[0]}"); a(f"v_sub_f32 v4, 0, v{NM[1]}")
    a("v_add_u32 v8, s49, v13")
    a("s_waitcnt vmcnt(0) lgkmcnt(0)")
    st = ["v_permlane32_swap_b32 v2, v4", f"v_permlane32_swap_b32 v{L_[0]}, v{L_[1]}", "v_lshlrev_b32 v5, 3, v0",
          "s_lshl_b32 s51, s3, 9", f"s_add_u32 s51, s51, {STATS}", f"v_add_f32 v3, v{L_[0]}, v{L_[1]}", "v_add_u32 v6, s51, v5",
          "ds_write_b64 v6, v[2:3]"]
    def pwr(qb):
        return [f"ds_write_b128 v8, a[{(qb*4+j)*16+4*k}:{(qb*4+j)*16+4*k+3}] offset:{(j-1)*8192 + qb*4096 + k*1024}" for j in range(1, 4) for k in range(4)]
    def own(qb):
        return [f"v_accvgpr_read_b32 v{S0[qb]+r}, a{(qb*4)*16+r}" for r in range(16)]
    mf = pv(1)
    gaps = spread(8, [(0, 2, st), (0, 8, pwr(0)), (2, 8, own(0))])
    for i in range(8):
        a(mf[i])
        for x in gaps[i]: a(x)
    stamp(a, opt, 2)
    a("v_and_b32 v9, 31, v0"); a("v_lshlrev_b32 v9, 3, v9")
    a("s_nop 7")
    for x in pwr(1): a(x)
    for x in own(1): a(x)
    for j in range(4):
        a(f"s_sub_u32 s51, s3, {j}"); a("s_and_b32 s51, s51, 3")
        a("s_lshl_b32 s52, s51, 9"); a(f"s_add_u32 s52, s52, {STATS}")
        a(f"v_add_u32 v{120+j}, s52, v9")
        if j:
            a("s_lshl_b32 s52, s51, 15")
            a(f"v_add_u32 v{124+j}, s52, v13")
    a("s_waitcnt lgkmcnt(0)")
    for x in fs(): a(x)
    a("s_barrier")
    if fine: a("s_waitcnt lgkmcnt(0)")
    for x in fs(): a(x)
    for j in range(4):
        a(f"ds_read_b64 v[{100+4*j}:{101+4*j}], v{120+j}")
        a(f"ds_read_b64 v[{102+4*j}:{103+4*j}], v{120+j} offset:256")
    pbase = [48, 128]
    def prd(qb):
        return [f"ds_read_b128 v[{pbase[qb]+(j-1)*16+4*k}:{pbase[qb]+(j-1)*16+4*k+3}], v{124+j} offset:{(j-1)*8192 + qb*4096 + k*1024}" for j in range(1, 4) for k in range(4)]
    for x in prd(0)[:6]: a(x)
    a("s_waitcnt lgkmcnt(6)")
    for x in prd(0)[6:]: a(x)
    for qb in range(2):
        m = lambda j: 100 + 4*j + 2*qb
        t = 2 + 2*qb
        a(f"v_max_f32 v{t}, v{m(0)}, v{m(1)}")
        a(f"v_max3_f32 v{t}, v{t}, v{m(2)}, v{m(3)}")
        for j in range(4): a(f"v_sub_f32 v{m(j)}, v{m(j)}, v{t}")
        for j in range(4): a(f"v_exp_f32 v{m(j)}, v{m(j)}")
    for qb in range(2):
        m = lambda j: 100 + 4*j + 2*qb
        t = 2 + 2*qb
        a(f"v_mul_f32 v{t}, v{m(0)}, v{m(0)+1}")
        for j in range(1, 4): a(f"v_fmac_f32 v{t}, v{m(j)}, v{m(j)+1}")
        a(f"v_rcp_f32 v{t}, v{t}")
    a("s_waitcnt lgkmcnt(0)")
    for x in prd(1): a(x)
    for qb in range(2):
        t = 2 + 2*qb
        for j in range(4): a(f"v_mul_f32 v{100+4*j+2*qb}, v{100+4*j+2*qb}, v{t}")
    a("s_lshl_b32 s51, s41, 9"); a("s_lshl_b32 s52, s43, 3"); a("s_add_u32 s51, s51, s52")
    a("s_lshl_b32 s52, s3, 1"); a("s_add_u32 s51, s51, s52")
    a("s_lshl_b32 s51, s51, 10")
    a("s_add_u32 s52, s51, 262144")
    sc = " sc1" if opt.get("fused") else ""
    for qb in range(2):
        if qb == 1: a("s_waitcnt lgkmcnt(0)")
        g = lambda j: 100 + 4*j + 2*qb
        for r in range(0, 16, 2):
            d = S0[qb] + r
            a(f"v_pk_mul_f32 v[{d}:{d+1}], v[{d}:{d+1}], v[{g(0)}:{g(0)+1}] op_sel_hi:[1,0]")
        for j in range(1, 4):
            for r in range(0, 16, 2):
                d = S0[qb] + r; p = pbase[qb] + (j-1)*16 + r
                a(f"v_pk_fma_f32 v[{d}:{d+1}], v[{p}:{p+1}], v[{g(j)}:{g(j)+1}], v[{d}:{d+1}] op_sel_hi:[1,0,1]")
        for r in range(8):
            a(f"v_cvt_pk_bf16_f32 v{S0[qb]+r}, v{S0[qb]+2*r}, v{S0[qb]+2*r+1}")
        for sp in range(2):
            a(f"buffer_store_dwordx4 v[{S0[qb]+4*sp}:{S0[qb]+4*sp+3}], v13, s[64:67], {'s52' if qb else 's51'} offen offset:{sp*1024}{sc}")
    if fine:
        for x in fs(): a(x)
        a("s_waitcnt vmcnt(0) lgkmcnt(0)")
        for x in fs(): a(x)
        a("s_waitcnt lgkmcnt(0)")
        for x in fs(): a(x)
        a("s_lshl_b32 s51, s2, 2"); a("s_add_u32 s51, s51, s3"); a("s_lshl_b32 s51, s51, 8"); a(f"s_add_u32 s51, s51, {ST_OFF}")
        a("v_lshlrev_b32 v6, 2, v0")
        a("buffer_store_dword v119, v6, s[64:67], s51 offen")
    elif opt.get("stamp"):
        stamp(a, opt, 3)
        a("s_waitcnt vmcnt(0)")
        stamp(a, opt, 4)
        stamp_out(a, 5, ST_OFF, 64)
    a.label("K1_end")
    a("s_endpgm")
    return a.text()

def gen_k2(opt):
    a = Asm()
    a("s_cmp_ge_u32 s2, 256")
    a("s_cbranch_scc1 K2_end")
    a("s_load_dwordx2 s[6:7], s[0:1], 40")
    a("s_load_dwordx2 s[8:9], s[0:1], 56")
    if opt.get("stamp"): a("s_memrealtime s[70:71]")
    a("v_lshrrev_b32 v1, 6, v0")
    a("v_and_b32 v0, 63, v0")
    a("v_readfirstlane_b32 s3, v1")
    a("s_and_b32 s40, s2, 6"); a("s_lshl_b32 s40, s40, 1"); a("s_bfe_u32 s42, s2, 0x20003"); a("s_add_u32 s40, s40, s42")
    a("s_and_b32 s41, s2, 1"); a("s_lshl_b32 s41, s41, 3"); a("s_lshr_b32 s43, s2, 5"); a("s_add_u32 s41, s41, s43")
    a("v_lshlrev_b32 v8, 4, v0")
    a("s_lshl_b32 s44, s40, 18"); a("s_lshl_b32 s45, s3, 16"); a("s_add_u32 s44, s44, s45")
    a("s_lshl_b32 s46, s41, 18"); a("s_add_u32 s46, s46, s45"); a(f"s_add_u32 s46, s46, {WF_OFF}")
    k2rot = opt.get("k2rot", 0)
    if k2rot == 0: a("s_mov_b32 s47, 0")
    elif k2rot == 1:
        a("s_add_u32 s47, s42, s43"); a("s_and_b32 s47, s47, 1"); a("s_lshl_b32 s47, s47, 15")
    else:
        a("s_lshl_b32 s47, s42, 1"); a("s_add_u32 s47, s47, s43"); a("s_and_b32 s47, s47, 7"); a("s_lshl_b32 s47, s47, 13")
    a("s_mov_b32 s22, 0x10000"); a("s_mov_b32 s23, 0x20000"); a("s_mov_b32 s26, 0x10000"); a("s_mov_b32 s27, 0x20000")
    a("s_waitcnt lgkmcnt(0)")
    a("s_add_u32 s24, s8, s44"); a("s_addc_u32 s25, s9, 0"); a("s_and_b32 s25, s25, 0xffff")
    a("s_add_u32 s20, s8, s46"); a("s_addc_u32 s21, s9, 0"); a("s_and_b32 s21, s21, 0xffff")
    G = 4
    def issue(g):
        b = (g % G) * 32
        for i in range(4):
            a(f"buffer_load_dwordx4 a[{b+8*i}:{b+8*i+3}], v8, s[20:23], s47 offen offset:{1024*i}")
            a(f"buffer_load_dwordx4 a[{b+8*i+4}:{b+8*i+7}], v8, s[24:27], s47 offen offset:{1024*i}")
        a("s_add_u32 s47, s47, 4096"); a("s_and_b32 s47, s47, 0xffff")
    for g in range(G - 1): issue(g)
    srd(a, 28, 6, 0x80000)
    srd(a, 64, 8, 0x840000)
    for g in range(16):
        if g + G - 1 < 16: issue(g + G - 1)
        outst = min(15, g + G - 1) - g
        b = (g % G) * 32
        for i in range(4):
            a(f"s_waitcnt vmcnt({8*outst + 6 - 2*i})")
            a(mf32("v[16:31]", f"a[{b+8*i}:{b+8*i+3}]", f"a[{b+8*i+4}:{b+8*i+7}]", "0" if (g == 0 and i == 0) else "v[16:31]"))
    a("s_lshl_b32 s50, s3, 12")
    a("v_add_u32 v12, s50, v8")
    a("s_lshl_b32 s50, s3, 10")
    a("v_add_u32 v13, s50, v8")
    a("v_and_b32 v14, 31, v0"); a("v_lshlrev_b32 v14, 10, v14")
    a("v_lshrrev_b32 v15, 5, v0"); a("v_lshl_add_u32 v14, v15, 3, v14")
    a("s_lshl_b32 s50, s40, 15"); a("s_lshl_b32 s51, s41, 6"); a("s_add_u32 s50, s50, s51")
    a("s_lshl_b32 s51, s3, 4"); a("s_add_u32 s50, s50, s51")
    a("s_nop 3")
    for k in range(4):
        a(f"ds_write_b128 v12, v[{16+4*k}:{19+4*k}] offset:{k*1024}")
    a("s_waitcnt lgkmcnt(0)"); a("s_barrier")
    for k in range(4):
        a(f"ds_read_b128 v[{32+4*k}:{35+4*k}], v13 offset:{k*4096}")
    a("s_waitcnt lgkmcnt(0)")
    for r in range(4):
        a(f"v_add_f32 v{32+r}, v{32+r}, v{36+r}")
        a(f"v_add_f32 v{40+r}, v{40+r}, v{44+r}")
    for r in range(4):
        a(f"v_add_f32 v{32+r}, v{32+r}, v{40+r}")
    a("v_cvt_pk_bf16_f32 v48, v32, v33")
    a("v_cvt_pk_bf16_f32 v49, v34, v35")
    a("buffer_store_dwordx2 v[48:49], v14, s[28:31], s50 offen")
    if opt.get("stamp"):
        a("s_waitcnt vmcnt(0)")
        stamp(a, opt, 1)
        stamp_out(a, 2, ST_OFF + 0x10000, 64)
    a.label("K2_end")
    a("s_endpgm")
    return a.text()

def build(opt, fname):
    k1 = "gqa_attn_kernel"; k2 = "gqa_oproj_kernel"
    hdr = f"""; GQA block: K1 = q-projection + attention (+ Wo repack), K2 = output projection
; @launch kernel={k1} grid=(256,1,1) block=(256,1,1) lds=163840
; @launch kernel={k2} grid=(256,1,1) block=(256,1,1) lds=98304
.amdgcn_target "amdgcn-amd-amdhsa--gfx950"
"""
    txt = hdr + kernel_header(k1) + gen_k1(opt) + kernel_header(k2) + gen_k2(opt)
    txt += '.section .rodata,"a"\n.p2align 6\n' + kernel_desc(k1, 512, 102, 256) + ".p2align 6\n" + kernel_desc(k2, 192, 102, 64)
    open(fname, "w").write(txt)

if __name__ == "__main__":
    L = [0x76543210]*4
    P = [0x76543210, 0x32107654, 0x76543210, 0x32107654]
    F = [0x76543210, 0x10765432, 0x32107654, 0x54321076]
    for nm, o in [("lock", L), ("pair", P), ("full", F)]:
        build({"orders": o, "k2rot": {"lock": 0, "pair": 1, "full": 2}[nm]}, f"v2_{nm}.s")
        build({"orders": o, "stamp": 1, "k2rot": {"lock": 0, "pair": 1, "full": 2}[nm]}, f"v2_{nm}_st.s")
    build({"orders": P, "stamp": 1, "noqrot": 1}, "v2_noqrot_st.s")
    build({"orders": P, "fine": 1}, "v2_pair_fine.s")
    build({"orders": L, "fine": 1}, "v2_lock_fine.s")
```

```python
NAME = "standalone__gqa_block_cached__near_ridge"

class Asm:
    def __init__(self):
        self.lines = []
    def __call__(self, s):
        for l in s.split("\n"):
            self.lines.append("    " + l.strip() if not l.strip().endswith(":") else l.strip())
    def c(self, s):
        self.lines.append("    ; " + s)
    def label(self, s):
        self.lines.append(s + ":")
    def text(self):
        return "\n".join(self.lines) + "\n"

def kernel_header(name):
    return f""".text
.globl {name}
.p2align 8
.type {name},@function
{name}:
"""

def kernel_desc(name, vgpr, sgpr, accum, extra=""):
    return f""".amdhsa_kernel {name}
  .amdhsa_next_free_vgpr {vgpr}
  .amdhsa_next_free_sgpr {sgpr}
  .amdhsa_accum_offset {accum}
  .amdhsa_group_segment_fixed_size 0
  .amdhsa_kernarg_size 64
  .amdhsa_user_sgpr_count 2
  .amdhsa_user_sgpr_kernarg_segment_ptr 1
  .amdhsa_system_sgpr_workgroup_id_x 1
{extra}.end_amdhsa_kernel
"""

def srd(a, d, b, nbytes):
    a(f"s_mov_b32 s{d}, s{b}")
    a(f"s_and_b32 s{d+1}, s{b+1}, 0xffff")
    a(f"s_mov_b32 s{d+2}, {hex(nbytes)}")
    a(f"s_mov_b32 s{d+3}, 0x20000")

def gen_echo(base, iA, opA, iB, opB, stride=256):
    a = Asm()
    a("s_cmp_ge_u32 s2, 1")
    a("s_cbranch_scc1 KE_end")
    a("s_load_dwordx4 s[4:7], s[0:1], 48")
    a("s_waitcnt lgkmcnt(0)")
    srd(a, 8, 4, 256); srd(a, 12, 6, 0x1000000)
    a(f"v_mul_u32_u24 v2, {stride}, v0")
    for k, off in enumerate([base + 4*iA, base + 4*iB]):
        for i in range(16):
            a(f"s_mov_b32 s16, {off + i*64*stride}")
            a(f"buffer_load_dword v{4+16*k+i}, v2, s[12:15], s16 offen")
    a("s_waitcnt vmcnt(0)")
    for k, op in enumerate([opA, opB]):
        if op == "avg":
            for i in range(16): a(f"v_subrev_u32 v{4+16*k+i}, s20, v{4+16*k+i}")
            for i in range(1, 16): a(f"v_add_u32 v{4+16*k}, v{4+16*k}, v{4+16*k+i}")
            a("s_nop 1")
            a(f"v_readlane_b32 s21, v{4+16*k}, 0")
            for l in range(1, 64):
                a(f"v_readlane_b32 s22, v{4+16*k}, {l}")
                a(f"s_add_u32 s21, s21, s22")
            a("s_lshr_b32 s21, s21, 10"); a("s_add_u32 s21, s21, s20")
            continue
        for i in range(1, 16):
            a(f"v_{op}_u32 v{4+16*k}, v{4+16*k}, v{4+16*k+i}")
        a("s_nop 1")
        a(f"v_readlane_b32 s{20+k}, v{4+16*k}, 0")
        for l in range(1, 64):
            a(f"v_readlane_b32 s22, v{4+16*k}, {l}")
            a(f"s_{op}_u32 s{20+k}, s{20+k}, s22")
        a("s_nop 3")
    a("s_sub_u32 s23, s21, s20")
    a("s_min_u32 s23, s23, 10000")
    a("v_mov_b32 v3, s23"); a("v_mov_b32 v2, 0")
    a("buffer_store_dword v3, v2, s[8:11], 0 offen")
    a("s_lshl_b32 s23, s23, 2")
    a("s_memrealtime s[24:25]")
    a("s_waitcnt lgkmcnt(0)")
    a.label("KE_spin")
    a("s_memrealtime s[26:27]")
    a("s_waitcnt lgkmcnt(0)")
    a("s_sub_u32 s28, s26, s24")
    a("s_cmp_lt_u32 s28, s23")
    a("s_cbranch_scc1 KE_spin")
    a.label("KE_end")
    a("s_endpgm")
    return a.text()

def add_echo(src, dst, base, iB, opB):
    t = open(src).read()
    k = NAME + "_kernel"
    import re
    m = re.search(r"; @launch grid=(\S+) block=(\S+) lds=(\d+)", t)
    t = t.replace(m.group(0), f"; @launch kernel={k} grid={m.group(1)} block={m.group(2)} lds={m.group(3)}\n; @launch kernel=gqa_echo_kernel grid=(1,1,1) block=(64,1,1) lds=0")
    t = t.replace('.section .rodata', kernel_header("gqa_echo_kernel") + gen_echo(base, 0, "min", iB, opB) + '.section .rodata')
    t += ".p2align 6\n" + kernel_desc("gqa_echo_kernel", 64, 48, 64)
    open(dst, "w").write(t)
```

```python
import sys, math, struct
from asmlib import *

C_SCALE = math.log2(math.e) / math.sqrt(128.0)
def f2u(f): return struct.unpack("<I", struct.pack("<f", f))[0]
def mf32(d, a, b, c): return f"v_mfma_f32_32x32x16_bf16 {d}, {a}, {b}, {c}"
def R(p, lo, n): return f"{p}[{lo}:{lo+n-1}]"

OB = 128
def Oi(qb, j): return OB + (qb*4+j)*16
def O_(qb, j): return R("v", Oi(qb, j), 16)
def Q_(qb, s): return R("a", 128 + (qb*8+s)*4, 4)
def Kf(s): return R("a", 192 + 4*s, 4)
def Vf(st, j): return R("a", 224 + (st*4+j)*4, 4)
def Vfh(st, j, u): return R("a", 224 + (st*4+j)*4 + 2*u, 2)
S0 = [16, 32]; NM = [48, 64]; P0 = [80, 88]; L_ = [96, 97]
VCNT = 98; VT = 99
VKR = 100; VVR = 108; VKD = 112; VVD = 120; MS = [122, 123]
ID = [2, 6]
VL16 = 13; VQR = 15; VMX = 10; VWA = 11; VWB = 1
VOD0 = 126
VXD = 48; VWD = 50; VXR = 54; VWR = 58; T = 16; VZ = 64
XB = 131072; QAREA = XB; MISC = XB + 16384
X_OFF = 0x400000; FL_OFF = 0x800000; ST_OFF = 0x810000
PART = 16384
LIMIT = 2.0 ** 40

def spread(n, fillers):
    gaps = [[] for _ in range(n)]
    for (g0, g1, lst) in fillers:
        k = max(1, len(lst))
        for i, x in enumerate(lst):
            gaps[g0 + (i * (g1 - g0)) // k].append(x)
    return gaps

def fix_m0(seq):
    out = []
    for i, x in enumerate(seq):
        out.append(x)
        if " m0," in x and i + 1 < len(seq) and seq[i+1].startswith("buffer_load"):
            out.append("s_nop 0")
    return out

def merge(mf, gaps, pre=None):
    s = []
    for i, m in enumerate(mf):
        if pre and i in pre: s += pre[i]
        s.append(m); s += gaps[i]
    return s

def order(l):
    v = 0
    for i, t in enumerate(l): v |= t << (4*i)
    return v

def gen(opt):
    a = Asm()
    IL = opt.get("il", 0)
    TSH = 15 if IL else 13
    TM = hex(15 << TSH)
    fine = opt.get("fine")
    clk = "s_memtime" if fine == 2 else "s_memrealtime"
    def fs(sync=False, last=False):
        if not fine: return []
        if fine == 3 and not last: return []
        return (["s_waitcnt lgkmcnt(0)"] if sync else []) + ["s_mov_b32 s89, m0", "s_mov_b32 m0, s92", "s_add_u32 s92, s92, 1", "v_writelane_b32 v127, s90, m0", clk + " s[90:91]", "s_mov_b32 m0, s89"]
    def emit(l):
        for x in fix_m0(l): a(x)
    a("s_cmp_ge_u32 s2, 256")
    a("s_cbranch_scc1 L_end")
    a("s_load_dwordx8 s[4:11], s[0:1], 0")
    a("s_load_dwordx8 s[12:19], s[0:1], 32")
    a("s_memrealtime s[74:75]")
    if fine:
        a(clk + " s[90:91]"); a("s_mov_b32 s92, 0"); a("v_mov_b32 v127, 0"); a("s_mov_b32 m0, 0")
    a(f"v_lshrrev_b32 v{T}, 6, v0")
    a("v_and_b32 v0, 63, v0")
    a(f"v_readfirstlane_b32 s3, v{T}")
    xl = opt.get("xl", 0)
    if xl:
        a("s_and_b32 s40, s2, 6"); a("s_bfe_u32 s41, s2, 0x10005"); a("s_or_b32 s40, s40, s41")
        a("s_and_b32 s41, s2, 1"); a("s_lshl_b32 s41, s41, 2"); a("s_lshr_b32 s42, s2, 6"); a("s_or_b32 s41, s41, s42")
    else:
        a("s_and_b32 s40, s2, 7")
        a("s_lshr_b32 s41, s2, 5")
    a("s_bfe_u32 s42, s2, 0x20003")
    a("s_lshl_b32 s43, s40, 2")
    a("s_add_u32 s43, s43, s42")
    r4, c16, vp = T+1, T+2, T+4
    a(f"v_lshrrev_b32 v{r4}, 4, v0")
    a(f"v_and_b32 v{c16}, 15, v0")
    a(f"v_lshlrev_b32 v{vp}, 2, v{r4}")
    a(f"v_xor_b32 v{vp}, v{c16}, v{vp}")
    a(f"v_lshlrev_b32 v{vp}, 4, v{vp}")
    a(f"v_lshl_add_u32 v{VWD}, v{r4}, 13, v{vp}")
    for i in range(1, 4):
        a(f"v_add_u32 v{VWD+i}, {31744*i}, v{VWD}")
    a(f"v_lshrrev_b32 v{T+5}, 3, v0")
    a(f"v_and_b32 v{T+6}, 7, v0")
    a(f"v_xor_b32 v{T+7}, v{T+6}, v{r4}")
    a(f"v_lshlrev_b32 v{T+7}, 4, v{T+7}")
    a(f"v_lshl_add_u32 v{VXD}, v{T+5}, 10, v{T+7}")
    a(f"v_xor_b32 v{T+7}, 64, v{VXD}")
    a(f"v_add_u32 v{VXD+1}, {8192-1024}, v{T+7}")
    if xl:
        a("s_lshl_b32 s44, s41, 1"); a("s_add_u32 s44, s44, s43")
    elif opt.get("qr", 0) == 0:
        a("s_lshl_b32 s44, s42, 1"); a("s_add_u32 s44, s44, s41")
    elif opt["qr"] == 1:
        a("s_add_u32 s44, s42, s41"); a("s_lshl_b32 s44, s44, 1")
    elif opt["qr"] == 2:
        a("s_add_u32 s44, s42, s41"); a("s_lshl_b32 s44, s44, 2")
    elif opt["qr"] == 3:
        a("s_add_u32 s44, s42, s41"); a("s_lshl_b32 s44, s44, 2"); a("s_lshr_b64 s[44:45], 0x30630630630, s44") if False else None
        a("s_mul_i32 s45, s44, 22"); a("s_lshr_b32 s45, s45, 8"); a("s_mul_i32 s45, s45, 12"); a("s_sub_u32 s44, s44, s45"); a("s_lshr_b32 s44, s44, 2"); a("s_mul_i32 s44, s44, 3")
    elif opt["qr"] == 5:
        a("s_mov_b32 s44, 0")
    elif opt["qr"] == 6:
        a("s_add_u32 s44, s42, s41"); a("s_lshl_b32 s44, s44, 2")
        a("s_mul_i32 s45, s44, 22"); a("s_lshr_b32 s45, s45, 8"); a("s_mul_i32 s45, s45, 12"); a("s_sub_u32 s44, s44, s45"); a("s_lshr_b32 s44, s44, 2"); a("s_mul_i32 s44, s44, 3"); a("s_add_u32 s44, s44, s40")
    elif opt["qr"] == 4:
        a("s_add_u32 s44, s42, s41"); a("s_lshl_b32 s44, s44, 1"); a("s_add_u32 s44, s44, s40")
    QT = opt.get("qt")
    if QT:
        ncls = len(QT)
        if ncls == 8: a("s_lshl_b32 s44, s42, 1"); a("s_add_u32 s44, s44, s41"); a("s_and_b32 s44, s44, 7")
        else: a("s_add_u32 s44, s42, s41"); a(f"s_and_b32 s44, s44, {ncls-1}")
        a(f"s_mov_b32 s58, {hex(order(QT[0]))}")
        for c_ in range(1, ncls):
            a(f"s_cmp_eq_u32 s44, {c_}"); a(f"s_cselect_b32 s58, {hex(order(QT[c_]))}, s58")
    else:
        a("s_and_b32 s58, s44, 7")
    a("s_lshl_b32 s46, s3, 11"); a(f"s_add_u32 s46, s46, {XB}")
    a("s_lshl_b32 s47, s3, 12"); a("s_add_u32 s47, s47, 16384")
    a("s_lshl_b32 s49, s3, 15")
    a("s_lshl_b32 s44, s41, 16"); a("s_lshl_b32 s45, s3, 14"); a("s_add_u32 s44, s44, s45")
    a("s_lshl_b32 s48, s43, 8"); a("s_lshl_b32 s45, s3, 17"); a("s_add_u32 s48, s48, s45")
    a("s_sub_u32 s22, 0x80000, s44"); a("s_mov_b32 s23, 0x20000")
    a("s_sub_u32 s34, 0x400000, s48"); a("s_mov_b32 s35, 0x20000")
    a("s_waitcnt lgkmcnt(0)")
    a("s_add_u32 s20, s4, s44"); a("s_addc_u32 s21, s5, 0"); a("s_and_b32 s21, s21, 0xffff")
    a("s_add_u32 s32, s10, s48"); a("s_addc_u32 s33, s11, 0"); a("s_and_b32 s33, s33, 0xffff")

    def qdma(c):
        j = c % 4
        if QT:
            out = ["s_and_b32 s57, s58, 7", f"s_lshl_b32 s59, s57, 7", f"s_add_u32 m0, s46, {j*8192}", "s_lshl_b32 s57, s57, 19"]
            out += [f"buffer_load_dwordx4 v{VXD+i}, s[20:23], s59 offen offset:{1024*i} lds" for i in range(2)]
            out += [f"s_add_u32 m0, s47, {j*32768}", "s_lshr_b32 s58, s58, 4"]
            out += [f"buffer_load_dwordx4 v{VWD+i}, s[32:35], s57 offen offset:{1024*i} lds" for i in range(4)]
            return out
        out = [f"s_lshl_b32 s59, s58, 7", f"s_add_u32 m0, s46, {j*8192}", "s_lshl_b32 s57, s58, 19"]
        for i in range(2):
            out.append(f"buffer_load_dwordx4 v{VXD+i}, s[20:23], s59 offen offset:{1024*i} lds")
        out += [f"s_add_u32 m0, s47, {j*32768}", "s_add_u32 s58, s58, 1"]
        for i in range(4):
            out.append(f"buffer_load_dwordx4 v{VWD+i}, s[32:35], s57 offen offset:{1024*i} lds")
        out.append("s_and_b32 s58, s58, 7")
        return out
    def nexttile():
        return [f"s_and_b32 s54, s60, {TM}", "s_lshr_b64 s[60:61], s[60:61], 4"]
    def dma_k(slot):
        out = []
        for hh in range(2):
            out.append(f"s_add_u32 m0, s49, {slot*16384 + hh*4096}")
            for i in range(4):
                out.append(f"buffer_load_dwordx4 v{VKD+4*hh+i}, s[24:27], s54 offen offset:{1024*i} lds")
        return out
    def dma_v(slot):
        out = []
        for hh in range(2):
            out.append(f"s_add_u32 m0, s49, {slot*16384 + 8192 + hh*4096}")
            for i in range(4):
                out.append(f"buffer_load_dwordx4 v{VVD+hh}, s[28:31], s54 offen offset:{1024*i} lds")
        return out
    vm = []
    if opt.get("xfirst"):
        q0 = qdma(0); q1 = qdma(1)
        x1 = ["s_add_u32 s51, s58, 1", "s_and_b32 s51, s51, 7", "s_lshl_b32 s51, s51, 7", f"s_add_u32 m0, s46, 8192", "s_nop 0"] + \
             [f"buffer_load_dwordx4 v{VXD+i}, s[20:23], s51 offen offset:{1024*i} lds" for i in range(2)]
        emit(q0[:5] + x1 + q0[5:]); vm += ["c0"]*8
    else:
        emit(qdma(0)); vm += ["c0"]*6
    def kd_setup():
        out = [f"v_xor_b32 v{VKD+i}, {64*i}, v{VKD}" for i in range(1, 4)]
        return out
    a(f"v_xor_b32 v{T+3}, v{c16}, v{r4}"); a(f"v_lshlrev_b32 v{T+3}, 4, v{T+3}")
    a(f"v_lshl_add_u32 v{VKD}, v{r4}, 8, v{T+3}")
    emit(kd_setup())
    for i in range(4):
        a(f"v_add_u32 v{VKD+4+i}, 4096, v{VKD+i}")
    a(f"v_lshl_add_u32 v{VVD}, v{r4}, 8, v{vp}")
    a(f"v_add_u32 v{VVD+1}, 4096, v{VVD}")
    a(f"v_and_b32 v{T+7}, 16, v0"); a(f"v_lshrrev_b32 v{T+7}, 2, v{T+7}")
    a(f"v_xor_b32 v{T+7}, v{T+7}, v{T+6}"); a(f"v_lshlrev_b32 v{T+7}, 4, v{T+7}")
    a(f"v_lshl_add_u32 v{VOD0}, v{T+5}, 10, v{T+7}")
    orders = opt["orders"]
    a(f"s_mov_b32 s62, {hex(orders[0])}")
    for rr_ in range(1, 4):
        if orders[rr_] != orders[0]:
            a(f"s_cmp_eq_u32 s42, {rr_}"); a(f"s_cselect_b32 s62, {hex(orders[rr_])}, s62")
    tx = opt.get("tx", 0)
    if tx:
        if tx == 1: a("s_mov_b32 s63, s41")
        elif tx == 2: a("s_mov_b32 s63, s40")
        elif tx == 3: a("s_add_u32 s63, s40, s41")
        elif tx == 4: a("s_lshl_b32 s63, s3, 1")
        elif tx == 5: a("s_lshl_b32 s63, s3, 1"); a("s_add_u32 s63, s63, s40"); a("s_add_u32 s63, s63, s41")
        a("s_and_b32 s63, s63, 7"); a("s_mul_i32 s63, s63, 0x11111111"); a("s_xor_b32 s62, s62, s63")
    a("s_mov_b32 s63, 8")
    a(f"s_lshl_b64 s[62:63], s[62:63], {TSH}")
    a("s_mov_b64 s[60:61], s[62:63]")
    a("s_lshl_b32 s50, s41, 3"); a("s_add_u32 s50, s50, s40"); a(f"s_lshl_b32 s50, s50, {5 if IL else 2}"); a("s_add_u32 s50, s50, s3")
    a(f"s_lshl_b32 s50, s50, {13 if IL else 16}")
    a(f"s_mov_b32 s26, {hex(0x3a000 if IL else 0x10000)}"); a("s_mov_b32 s27, 0x20000")
    a(f"s_mov_b32 s30, {hex(0x3a000 if IL else 0x10000)}"); a("s_mov_b32 s31, 0x20000")
    a("s_add_u32 s24, s6, s50"); a("s_addc_u32 s25, s7, 0"); a("s_and_b32 s25, s25, 0xffff")
    a("s_add_u32 s28, s8, s50"); a("s_addc_u32 s29, s9, 0"); a("s_and_b32 s29, s29, 0xffff")
    srd(a, 64, 18, ST_OFF + (0x40000 if fine else 0))
    srd(a, 68, 16, 256)
    a(f"v_mov_b32 v{VT}, 0")
    a("s_lshl_b32 s72, s41, 5")
    a("s_or_b32 s51, s43, s3")
    a("s_cbranch_scc1 L_nolead")
    a("s_or_b32 s74, s74, 1")
    a(f"v_mov_b32 v{VCNT}, s74")
    a("s_mov_b64 exec, 1")
    a(f"buffer_store_dword v{VCNT}, v{VT}, s[68:71], s72 offen sc1")
    a("s_mov_b64 exec, -1")
    a.label("L_nolead")
    if opt.get("xfirst"):
        emit(q1[2:3] + q1[5:]); vm += ["c1"]*4
    else:
        emit(qdma(1)); vm += ["c1"]*6
    l31, hh_, rr, cc, dh = T+5, T+6, T+8, T+9, T+10
    a(f"v_and_b32 v{l31}, 31, v0")
    a(f"v_lshrrev_b32 v{hh_}, 5, v0")
    a(f"v_xor_b32 v{T+7}, v{hh_}, v{c16}")
    a(f"v_lshlrev_b32 v{T+7}, 4, v{T+7}")
    a(f"v_lshl_add_u32 v{T+7}, v{l31}, 8, v{T+7}")
    a(f"v_add_u32 v{VKR}, s49, v{T+7}")
    for s in range(1, 8):
        a(f"v_xor_b32 v{VKR+s}, {32*s}, v{VKR}")
    a(f"v_bfe_u32 v{T+7}, v0, 1, 3")
    a(f"v_xor_b32 v{T+7}, v{T+7}, v{hh_}"); a(f"v_lshlrev_b32 v{T+7}, 4, v{T+7}")
    a(f"v_lshl_add_u32 v{T+7}, v{l31}, 7, v{T+7}")
    a(f"v_add_u32 v{VXR}, {XB}, v{T+7}")
    for s in range(1, 4):
        a(f"v_xor_b32 v{VXR+s}, {32*s}, v{VXR}")
    a(f"v_lshrrev_b32 v{rr}, 2, v{c16}")
    a(f"v_and_b32 v{cc}, 3, v0")
    a(f"v_and_b32 v{dh}, 16, v0")
    a(f"v_lshlrev_b32 v{dh}, 1, v{dh}")
    a(f"v_lshl_add_u32 v{T+13}, v{hh_}, 2, v{rr}")
    a(f"v_lshl_add_u32 v{T+14}, v{cc}, 3, v{dh}")
    a(f"v_lshl_add_u32 v{T+11}, v{T+13}, 8, v{T+14}")
    a(f"v_add_u32 v{T+11}, s49, v{T+11}")
    for j in range(4):
        a(f"s_add_u32 s51, s3, {j}"); a("s_and_b32 s51, s51, 3")
        a(f"v_xor_b32 v{T+12}, s51, v{rr}")
        a(f"v_lshl_add_u32 v{VVR+j}, v{T+12}, 6, v{T+11}")
    a("s_lshl_b32 s51, s3, 4")
    a("s_and_b32 s52, s40, 2"); a("s_lshl_b32 s52, s52, 5"); a("s_or_b32 s51, s51, s52")
    a(f"v_and_b32 v{T+12}, 8, v0"); a(f"v_lshl_add_u32 v{T+14}, v{T+12}, 3, v{T+14}")
    a(f"v_xor_b32 v{T+14}, s51, v{T+14}")
    a(f"v_lshl_add_u32 v{T+14}, v{T+13}, 7, v{T+14}")
    a(f"v_add_u32 v{VWA}, s49, v{T+14}")
    a(f"v_xor_b32 v{VWB}, 64, v{VWA}")
    a(f"v_lshl_add_u32 v{T+11}, v{hh_}, 3, v{rr}")
    a(f"v_lshl_add_u32 v{T+11}, v{T+11}, 8, v{dh}")
    a(f"v_xor_b32 v{T+12}, s3, v{rr}")
    a(f"v_lshl_add_u32 v{T+11}, v{T+12}, 6, v{T+11}")
    a(f"v_and_b32 v{T+12}, 1, v0"); a(f"v_lshl_add_u32 v{T+11}, v{T+12}, 4, v{T+11}")
    a(f"v_and_b32 v{T+12}, 2, v0"); a(f"v_lshl_add_u32 v{T+11}, v{T+12}, 2, v{T+11}")
    a(f"v_add_u32 v{VWR}, 16384, v{T+11}")
    a(f"v_add_u32 v{VWR+1}, {16384+65536}, v{T+11}")
    a(f"v_lshlrev_b32 v{VL16}, 4, v0")
    a(f"v_add_u32 v{VQR}, {QAREA}, v{VL16}")
    a(f"v_lshlrev_b32 v{VMX}, 4, v{l31}")
    a(f"v_add_u32 v{VMX}, {MISC}, v{VMX}")
    a(f"v_mov_b32 v{MS[0]}, 0xff800000"); a(f"v_mov_b32 v{MS[1]}, 0xff800000")
    a("s_mov_b32 s76, 0")
    a("s_lshl_b32 s51, s41, 5"); a("s_add_u32 s51, s51, s43"); a("s_lshl_b32 s51, s51, 2"); a("s_add_u32 s51, s51, s3")
    a("s_lshl_b32 s51, s51, 3"); a(f"s_add_u32 s77, s51, {FL_OFF}")
    a("s_andn2_b32 s51, s2, 6"); a("s_lshl_b32 s51, s51, 7"); a("s_lshl_b32 s52, s3, 5"); a("s_add_u32 s51, s51, s52"); a(f"s_add_u32 s75, s51, {FL_OFF + 0x4000}")
    a("s_and_b32 s78, s40, 6"); a("s_lshl_b32 s78, s78, 2"); a("s_lshl_b32 s51, s3, 1"); a("s_add_u32 s78, s78, s51")
    a("s_and_b32 s79, s40, 1"); a("s_lshl_b32 s79, s79, 2"); a("s_add_u32 s79, s79, s42")
    a("s_lshl_b32 s51, s78, 17"); a("s_lshl_b32 s52, s79, 7"); a("s_add_u32 s51, s51, s52")
    a("s_add_u32 s36, s12, s51"); a("s_addc_u32 s37, s13, 0"); a("s_and_b32 s37, s37, 0xffff")
    a("s_sub_u32 s38, 0x400000, s51"); a("s_mov_b32 s39, 0x20000")
    a(f"v_bfe_u32 v{T+7}, v0, 2, 1")
    a(f"v_bfe_u32 v{T+11}, v0, 3, 2")
    a(f"v_bfe_u32 v{T+12}, v0, 1, 1")
    a(f"v_lshl_add_u32 v{T+11}, v{T+11}, 1, v{T+12}")
    a(f"v_xor_b32 v{T+7}, v{T+7}, v{hh_}")
    a(f"v_lshl_add_u32 v{T+11}, v{T+7}, 4, v{T+11}")
    a(f"v_and_b32 v{T+12}, 1, v0"); a(f"v_lshlrev_b32 v{T+12}, 4, v{T+12}")
    a(f"v_mov_b32 v{T+7}, 0x3f80")
    a(f"v_lshlrev_b32 v{T+12}, v{T+12}, v{T+7}")
    msk = [80, 82, 84, 86, 94, 96, 98, 100]
    for k in range(8): a(f"v_cmp_eq_u32 s[{msk[k]}:{msk[k]+1}], {k}, v{T+11}")
    for k in range(4): a(f"v_mov_b32 v{VZ+k}, 0")
    for k in range(8): a(f"v_cndmask_b32 v{2+k}, 0, v{T+12}, s[{msk[k]}:{msk[k]+1}]")
    z = R("v", VZ, 4)
    zmf = [mf32(O_(qb, j), z, z, "0") for qb in range(2) for j in range(4)]
    emit(zmf)
    emit(qdma(2)); vm += ["c2"]*6

    kvq = opt.get("kvq", {5: ["K0a"], 6: ["K0b"], 7: ["V0a"], 8: ["V0b"]})
    K0 = dma_k(0); V0 = dma_v(0)
    grp = {"K0a": nexttile() + K0[:5], "K0b": K0[5:], "V0a": V0[:5], "V0b": V0[5:]}
    def kv(c):
        out = []
        for g in kvq.get(c, []):
            out += grp[g]; vm.extend([g[:2]]*4)
        return out
    def qreads(c):
        j = c % 4; base = (c % 2) * 48; out = []
        for s in range(4):
            b = base + 12*s
            wreg = VWR + (j >> 1); wo = (j & 1) * 32768
            out.append(f"ds_read_b64_tr_b16 a[{b}:{b+1}], v{wreg} offset:{wo + (16*s)*256}")
            out.append(f"ds_read_b64_tr_b16 a[{b+2}:{b+3}], v{wreg} offset:{wo + (16*s+4)*256}")
            out.append(f"ds_read_b128 a[{b+4}:{b+7}], v{VXR+s} offset:{j*8192}")
            out.append(f"ds_read_b128 a[{b+8}:{b+11}], v{VXR+s} offset:{j*8192+4096}")
        return out
    def qmf(c):
        base = (c % 2) * 48; out = []
        for s in range(4):
            b = base + 12*s
            for qb in range(2):
                cin = "0" if (c == 0 and s == 0) else R("v", S0[qb], 16)
                out.append(mf32(R("v", S0[qb], 16), R("a", b, 4), R("a", b+4+4*qb, 4), cin))
        return out
    def nwait(tag):
        last = max(i for i, x in enumerate(vm) if x == tag)
        return len(vm) - 1 - last
    emit(fs())
    for c in range(8):
        a(f"s_waitcnt vmcnt({nwait(f'c{c}')})")
        a("s_barrier")
        emit(fs(c == 0))
        seq = qreads(c)
        ld = []
        if c + 3 < 8:
            ld += qdma(c + 3); vm += [f"c{c+3}"]*6
        ld += kv(c)
        if c == 0:
            emit(seq + ld)
        else:
            mf = qmf(c - 1)
            if opt.get("nomf") and c < 5: mf = ["s_nop 0"]*8
            if opt.get("nord") and c < 5: seq = []
            gaps = spread(8, [(0, 4, seq), (1, 8, ld)])
            s2 = []
            for i in range(8):
                s2 += gaps[i]; s2.append(mf[i])
            emit(s2)
        a("s_waitcnt lgkmcnt(0)")
    def kreads(slot): return [f"ds_read_b128 {Kf(s)}, v{VKR+s} offset:{slot*16384}" for s in range(8)]
    def vreads(slot):
        return [f"ds_read_b64_tr_b16 {Vfh(st,j,u)}, v{VVR+j} offset:{slot*16384 + 8192 + (16*st+8*u)*256}" for st in range(2) for j in range(4) for u in range(2)]
    m7 = qmf(7)
    m7 = m7[0::2] + m7[1::2]
    def qfin(qb):
        out = [f"v_pk_mul_f32 v[{S0[qb]+r}:{S0[qb]+r+1}], v[{S0[qb]+r}:{S0[qb]+r+1}], v[14:15] op_sel_hi:[1,0]" for r in range(0, 16, 2)]
        out += [f"v_cvt_pk_bf16_f32 v{P0[qb]+r}, v{S0[qb]+2*r}, v{S0[qb]+2*r+1}" for r in range(8)]
        out += [f"ds_write_b128 v12, v[{P0[qb]+4*sp}:{P0[qb]+4*sp+3}] offset:{qb*8192 + sp*1024}" for sp in range(2)]
        return out
    l8 = kv(8)
    f0 = qfin(0)
    emit(merge(m7, spread(8, [(0, 2, [f"v_mov_b32 v14, {hex(f2u(C_SCALE))}", "s_lshl_b32 s51, s3, 11", f"v_add_u32 v12, s51, v{VQR}"]), (6, 7, f0[:6]), (7, 8, f0[6:])])))
    emit(qfin(1))
    emit(l8)

    def qk(qb, first=False):
        return [mf32(R("v", S0[qb], 16), Kf(s), Q_(qb, s), ("0" if first else R("v", NM[qb], 16)) if s == 0 else R("v", S0[qb], 16)) for s in range(8)]
    def pv(qb, order1=(0, 1, 2, 3)):
        return [mf32(O_(qb, j), Vf(0, j), R("v", P0[qb], 4), O_(qb, j)) for j in range(4)] + \
               [mf32(O_(qb, j), Vf(1, j), R("v", P0[qb]+4, 4), O_(qb, j)) for j in order1]
    def ex(qb, r): return f"v_exp_f32 v{S0[qb]+r}, v{S0[qb]+r}"
    def ad(qb, r): return f"v_add_f32 v{L_[qb]}, v{L_[qb]}, v{S0[qb]+r}"
    def cv(qb, i): return f"v_cvt_pk_bf16_f32 v{P0[qb]+i}, v{S0[qb]+2*i}, v{S0[qb]+2*i+1}"

    emit(fs(True))
    a("s_waitcnt lgkmcnt(0)")
    a.label("L_att")
    a("s_barrier")
    qr = [f"ds_read_b128 {Q_(qb,s)}, v{VQR} offset:{(qb*8+s)*1024}" for qb in range(2) for s in range(8)]
    emit(qr[:8])
    a(f"s_waitcnt vmcnt({nwait('K0')})")
    emit(fs())
    emit(kreads(0))
    a(f"v_mov_b32 v{L_[0]}, 0"); a(f"v_mov_b32 v{L_[1]}, 0")
    K1 = nexttile() + dma_k(1); V1 = dma_v(1)
    mf = qk(0, True) + qk(1, True)
    def inmax(qb, t):
        s = S0[qb]; out = [f"v_max3_f32 v{t}, v{s}, v{s+1}, v{s+2}"]
        for r in range(3, 15, 2):
            out.append(f"v_max3_f32 v{t}, v{t}, v{s+r}, v{s+r+1}")
        out.append(f"v_max_f32 v{t}, v{t}, v{s+15}")
        return out
    vr0 = vreads(0)
    emit(K1[:4])
    gaps = spread(16, [(0, 4, qr[8:]), (0, 14, K1[4:]), (10, 14, inmax(0, 124))])
    emit(merge(mf, gaps, pre={0: ["s_waitcnt lgkmcnt(4)"], 4: ["s_waitcnt lgkmcnt(8)"], 8: ["s_waitcnt lgkmcnt(0)"]}))
    a("s_lshl_b32 s51, s3, 2"); a(f"s_add_u32 s51, s51, {MISC}")
    a(f"v_add_u32 v12, s51, v{VL16}")
    emit(V1[:2])
    a("s_nop 5")
    emit(inmax(1, 125))
    a("s_nop 1")
    a("v_permlane32_swap_b32 v124, v125")
    a("s_nop 0")
    a("v_max_f32 v124, v124, v125")
    a("ds_write_b32 v12, v124")
    emit(V1[2:3])
    a("s_waitcnt lgkmcnt(0)"); a("s_barrier")
    a(f"ds_read_b128 v[{NM[0]}:{NM[0]+3}], v{VMX}")
    a(f"ds_read_b128 v[{NM[1]}:{NM[1]+3}], v{VMX} offset:512")
    emit(fs())
    a(f"s_waitcnt vmcnt({nwait('V0') + 10})")
    emit(vr0[:8])
    a("s_waitcnt lgkmcnt(8)")
    for qb in range(2):
        n = NM[qb]
        a(f"v_max3_f32 v{124+qb}, v{n}, v{n+1}, v{MS[qb]}")
        a(f"v_max3_f32 v{124+qb}, v{n+2}, v{n+3}, v{124+qb}")
    for qb in range(2):
        a(f"v_sub_f32 v{NM[qb]}, 0, v{124+qb}")
        a(f"v_sub_f32 v{NM[qb]+1}, 0, v{124+qb}")
    body_a = [f"v_pk_add_f32 v[{S0[0]+r}:{S0[0]+r+1}], v[{S0[0]+r}:{S0[0]+r+1}], v[{NM[0]}:{NM[0]+1}]" for r in range(0, 16, 2)]
    for r in range(15):
        body_a.append(ex(0, r))
        if r >= 1: body_a.append(ad(0, r-1))
        if r >= 2 and r % 2 == 0: body_a.append(cv(0, (r-2)//2))
    body_a += [f"v_pk_add_f32 v[{S0[1]+r}:{S0[1]+r+1}], v[{S0[1]+r}:{S0[1]+r+1}], v[{NM[1]}:{NM[1]+1}]" for r in range(0, 16, 2)]
    body_a += [f"v_pk_mov_b32 v[{NM[qb]+r}:{NM[qb]+r+1}], v[{NM[qb]}:{NM[qb]+1}], v[{NM[qb]}:{NM[qb]+1}]" for qb in range(2) for r in range(2, 16, 2)]
    n = len(body_a)
    SH0 = opt.get("sh", 0)
    extra = (nexttile() + dma_k(0)[:5*SH0]) if SH0 > 0 else []
    emit(merge(body_a, spread(n, [(0, n - 4, (V1[3:] if SH0 >= 0 else V1[3:5]) + extra), (4, 30, vr0[8:15])])))

    wo_slot = opt.get("wslot", [0, 4096, 8192, 12288, "X", 28672, 0, 4096])
    def wo_group(g):
        out = [f"s_add_u32 m0, s49, {wo_slot[g]}" if wo_slot[g] != "X" else "s_mov_b32 m0, s87"]
        out += [f"buffer_load_dwordx4 v{VKD+i}, s[36:39], s84 offen offset:{1024*i} lds" for i in range(4)]
        out += ["s_add_u32 s84, s84, 0x8000", "s_and_b32 s84, s84, 0x3ffff"]
        return out
    def wo_reads(g):
        out = []
        X = wo_slot[g] == "X"
        for s2_ in range(2):
            s = 2*g + s2_
            for ci in range(2):
                for u in range(2):
                    d = (s*2 + ci)*4 + 2*u
                    r_ = (117 if ci else 116) if X else (VWB if ci else VWA)
                    out.append(f"ds_read_b64_tr_b16 a[{d}:{d+1}], v{r_} offset:{(0 if X else wo_slot[g]) + (16*s2_ + 8*u)*128}")
        return out
    wpos = opt.get("wpos", {"i6": [(2, 10), (12, 20), (22, 30)], "f1": 0, "f2": 0, "f4": 1})
    wcnt = [0]
    def wnext(n=1):
        out = []
        for _ in range(n):
            out += wo_group(wcnt[0]); wcnt[0] += 1
        return out

    def body(par, kind):
        SH = opt.get("sh", 0)
        mf = pv(0) + qk(0) + pv(1) + qk(1)
        G = [[] for _ in range(32)]
        for r in range(16):
            G[(1 + r) % 32].append(ex(1, r)); G[(17 + r) % 32].append(ex(0, r))
        for r in range(16):
            G[(2 + r) % 32].append(ad(1, r)); G[(18 + r) % 32].append(ad(0, r))
        for i in range(8):
            G[(3 + 2*i) % 32].append(cv(1, i)); G[(19 + 2*i) % 32].append(cv(0, i))
        vr_prev = vreads(par); vr = vreads(1 - par); kr = kreads(1 - par)
        G[0].insert(0, vr_prev[15])
        G[0].append("WAITK")
        for s in range(8): G[1 + s].insert(0, kr[s])
        for i in range(15): G[17 + i].insert(0, vr[i])
        pre = {0: ["s_waitcnt lgkmcnt(7)"], 4: ["s_waitcnt lgkmcnt(3)"], 8: ["s_waitcnt lgkmcnt(3)"], 12: ["s_waitcnt lgkmcnt(0)"]}
        if kind == "dma":
            allg = [("V", 1 - par, 1), ("K", par, 0), ("K", par, 1), ("V", par, 0), ("V", par, 1), ("K", 1 - par, 0), ("K", 1 - par, 1)]
            grpz = allg[1 + SH: 5 + SH]
            pos = [(1, [2, 4, 6, 8]), (9, [10, 12, 14, 16]), (17, [18, 20, 22, 24]), (25, [26, 28, 30, 31])]
            for gi, (kd, sl, hf) in enumerate(grpz):
                d_ = (dma_k(sl) if kd == "K" else dma_v(sl))[5*hf:5*hf+5]
                if kd == "K" and hf == 0:
                    if gi == 0: pre[0] = [f"s_and_b32 s54, s60, {TM}"] + pre[0]
                    else: G[pos[gi][0]].append(f"s_and_b32 s54, s60, {TM}")
                    G[(pos[gi][0] + 2) % 32 if gi else 11].append("s_lshr_b64 s[60:61], s[60:61], 4")
                G[pos[gi][0]].append(d_[0])
                for i in range(4): G[pos[gi][1][i]].append(d_[1 + i])
            G[16].append("WAITV")
            if par == 1:
                G[13].append(f"buffer_load_dword v{VCNT}, v{125 if xl == 2 else VT}, s[68:71], s72 offen sc1")
                G[15].append("s_add_u32 s56, s56, 1")
        else:
            pat = [f"v_mov_b32 v{VKD}, v{VOD0}"] + [f"v_add_u32 v{VKD+i}, {7168*i}, v{VOD0}" for i in range(1, 4)]
            gw = spread(32, [(0, 2, pat)] + ([(1, 6, dma_v(1)[5:])] if SH < 0 else []) + [(g0, g1, wnext()) for (g0, g1) in wpos["i6"]])
            for i in range(32): G[i] += gw[i]
            G[16].append("WAITV")
            adr = []
            for j in range(1, 4):
                adr += [f"s_sub_u32 s52, s3, {j}", "s_and_b32 s52, s52, 3", "s_lshl_b32 s52, s52, 15", f"v_add_u32 v{100+j}, s52, v{VL16}"]
            adr += [f"v_add_u32 v12, s49, v{VL16}", "s_lshl_b32 s51, s3, 2", f"s_add_u32 s51, s51, {MISC+1024}", f"v_add_u32 v14, s51, v{VL16}",
                    "s_lshl_b32 s51, s41, 9", "s_lshl_b32 s52, s43, 3", "s_add_u32 s51, s51, s52", "s_lshl_b32 s52, s3, 1", "s_add_u32 s51, s51, s52",
                    "s_lshl_b32 s51, s51, 10", "s_add_u32 s52, s51, 262144", f"v_readfirstlane_b32 s73, v{VCNT}", f"s_mov_b32 s53, {hex(f2u(LIMIT))}"]
            if xl == 2:
                adr.remove(f"v_readfirstlane_b32 s73, v{VCNT}")
                pre_ = ["s_lshl_b32 s44, s41, 9", "s_lshl_b32 s45, s43, 3", "s_add_u32 s44, s44, s45", "s_lshl_b32 s45, s3, 1", "s_add_u32 s44, s44, s45",
                        "s_lshl_b32 s44, s44, 10", "s_add_u32 s44, s44, s46", "v_and_b32 v124, 31, v0", "v_lshlrev_b32 v124, 6, v124",
                        f"v_lshrrev_b32 v{VCNT}, 5, v0", f"v_lshl_add_u32 v124, v{VCNT}, 18, v124", "s_add_u32 s48, s77, s46",
                        f"buffer_load_dword v{VCNT}, v124, s[64:67], s44 offen sc1", f"buffer_load_dword v{VCNT}, v{VT}, s[64:67], s48 offen sc1",
                        "s_add_u32 s45, s44, 262144"]
                gp = spread(32, [(0, 6, pre_)])
                for i in range(32): G[i] += gp[i]
                adr += ["s_add_u32 s51, s51, s47", "s_add_u32 s52, s52, s47"]
            ga = spread(32, [(6, 24, adr)])
            for i in range(32): G[i] += ga[i]
        seq = fs() + merge(mf, G, pre)
        issued = 0; out = []
        for x in seq:
            if x == "WAITK": out.append(f"s_waitcnt vmcnt({8 + 4*SH + issued})")
            elif x == "WAITV": out.append(f"s_waitcnt vmcnt({4*SH + issued})")
            else:
                if x.startswith("buffer_load"): issued += 1
                out.append(x)
        return out
    rot = opt.get("rot", 1)
    if rot == 3:
        a("s_add_u32 s80, s42, s41"); a("s_lshl_b32 s80, s80, 1"); a("s_and_b32 s80, s80, 7")
    elif rot == 4:
        a("s_lshl_b32 s80, s41, 1"); a("s_and_b32 s80, s80, 7")
    elif rot == 2:
        if xl:
            a("s_lshl_b32 s80, s41, 1"); a("s_add_u32 s80, s80, s43"); a("s_and_b32 s80, s80, 7")
        else:
            a("s_lshl_b32 s80, s42, 1"); a("s_add_u32 s80, s80, s41"); a("s_and_b32 s80, s80, 7")
    else:
        a("s_mov_b32 s80, s41" if rot else "s_mov_b32 s80, 0")
    a("s_lshl_b32 s84, s80, 15")
    a("s_lshl_b32 s87, s3, 12"); a(f"s_add_u32 s87, s87, {XB}")
    a("s_mov_b32 s86, s75")
    if opt.get("warm", 1):
        a("s_mov_b64 exec, 1")
        a(f"buffer_atomic_or v{VT}, v{VT}, s[64:67], s77 offen sc1")
        a(f"buffer_atomic_or v{VT}, v{VT}, s[64:67], s86 offen sc1")
        a("s_mov_b64 exec, -1")
    if xl == 2:
        a("s_and_b32 s51, s40, 6"); a("s_lshl_b32 s51, s51, 1"); a("s_add_u32 s51, s51, 4")
        a("v_min_u32 v125, 1, v0"); a("v_mul_u32_u24 v125, s51, v125")
        a("s_getreg_b32 s58, hwreg(HW_REG_XCC_ID, 0, 3)")
        a("s_lshl_b32 s58, s58, 2")
        a("s_or_b32 s52, s3, s76")
        a("s_cbranch_scc1 L_nocen")
        a("s_lshl_b32 s52, 1, s58")
        a("v_mov_b32 v124, s52")
        a("s_mov_b64 exec, 2")
        a("buffer_atomic_add v124, v125, s[68:71], s72 offen sc1")
        a("s_mov_b64 exec, -1")
        a.label("L_nocen")
    a("s_mov_b32 s56, 0")
    if "al" in opt:
        a(".p2align 6")
        for _ in range(opt["al"]): a("s_nop 0")
    a.label("L_loop")
    emit(body(0, "dma"))
    emit(body(1, "dma"))
    a("s_cmp_lt_u32 s56, 3")
    a("s_cbranch_scc1 L_loop")
    if xl == 2:
        a("s_mov_b32 s93, 0x40000")
        a("s_waitcnt vmcnt(8)")
        a.label("L_cen")
        a(f"v_readlane_b32 s73, v{VCNT}, 0")
        a(f"v_readlane_b32 s59, v{VCNT}, 1")
        a("s_mul_i32 s57, s59, 0x11111111")
        a("s_lshr_b32 s57, s57, 28")
        a("s_cmp_eq_u32 s73, 0")
        a("s_cselect_b32 s57, 0, s57")
        a("s_cmp_eq_u32 s57, 8")
        a("s_cbranch_scc1 L_cenok")
        a(f"buffer_load_dword v{VCNT}, v125, s[68:71], s72 offen sc1")
        a("s_sub_u32 s93, s93, 1")
        a("s_waitcnt vmcnt(0)")
        a("s_cbranch_scc0 L_cen")
        a.label("L_cenok")
        a("s_lshl_b32 s57, 8, s58")
        a("s_cmp_eq_u32 s59, s57")
        if opt.get("forceslow"): a("s_cmp_eq_u32 0, 1")
        a("s_cselect_b32 s46, 0, 0x40000000")
        a("s_cselect_b32 s47, 0x40000000, 0")
    emit(body(0, "wo"))
    emit(fs())
    mf = pv(0, (1, 2, 3, 0))
    G = [[] for _ in range(8)]
    G[0] += [vreads(1)[15], ex(0, 15), ad(0, 14)]
    G[1] += [ad(0, 15), cv(0, 7)]
    sm = []
    for r in range(16):
        sm.append(ex(1, r))
        if r >= 1: sm.append(ad(1, r-1))
        if r >= 2 and r % 2 == 0: sm.append(cv(1, (r-2)//2))
    tail_b = [ad(1, 15), cv(1, 7)]
    n1 = opt.get("n1", 28)
    wl = wnext(wpos["f1"])
    g2 = spread(8, [(1, 8, sm[:n1]), (1, 8, wl)])
    for i in range(8): G[i] += g2[i]
    emit(merge(mf, G, {0: ["s_waitcnt lgkmcnt(7)"], 4: ["s_waitcnt lgkmcnt(0)"]}))
    def pack(qb, j): return [f"v_cvt_pk_bf16_f32 v{Oi(qb,j)+i}, v{Oi(qb,j)+2*i}, v{Oi(qb,j)+2*i+1}" for i in range(8)]
    def send(qb, j): return [f"ds_write_b128 v12, v[{Oi(qb,j)+4*sp}:{Oi(qb,j)+4*sp+3}] offset:{PART + ((j-1)*4 + qb*2 + sp)*1024}" for sp in range(2)]
    mf = pv(1, (1, 2, 3, 0))
    lst = [f"v_permlane32_swap_b32 v{L_[0]}, v{L_[1]}", "s_nop 0", f"v_add_f32 v{L_[0]}, v{L_[0]}, v{L_[1]}", f"ds_write_b32 v14, v{L_[0]}"]
    pa = []
    for j in (1, 2, 3): pa += pack(0, j) + send(0, j)
    G = spread(8, [(0, 2, sm[n1:] + ["s_nop 0"] + tail_b), (2, 7, pa), (4, 5, lst), (2, 8, wnext(wpos["f2"])), (7, 8, pack(1, 1))])
    emit(merge(mf, G))
    a("s_waitcnt lgkmcnt(0)")
    emit(fs())
    a("s_barrier")
    def rb(qb, j, sp): return 16 + ((qb*3 + j-1)*2 + sp)*4
    def prd(qb): return [f"ds_read_b128 v[{rb(qb,j,sp)}:{rb(qb,j,sp)+3}], v{100+j} offset:{PART + ((j-1)*4 + qb*2 + sp)*1024}" for j in range(1, 4) for sp in range(2)]
    def red(qb): return [mf32(O_(qb, 0), R("v", ID[sp], 4), R("v", rb(qb,j,sp), 4), O_(qb, 0)) for j in range(1, 4) for sp in range(2)]
    emit(prd(0))
    a(f"ds_read_b128 v[64:67], v{VMX} offset:1024")
    a(f"ds_read_b128 v[68:71], v{VMX} offset:1536")
    emit(send(1, 1) + pack(1, 2) + send(1, 2))
    lsum = ["v_add_f32 v64, v64, v65", "v_add_f32 v66, v66, v67", "v_add_f32 v68, v68, v69", "v_add_f32 v70, v70, v71",
            "v_add_f32 v64, v64, v66", "v_add_f32 v68, v68, v70", "v_add_f32 v73, v64, v68",
            "v_cmp_nlt_f32 vcc, v73, s53", "v_rcp_f32 v64, v64", "v_rcp_f32 v68, v68"]
    chk = ["s_cmp_eq_u32 s76, 0", "s_cselect_b64 s[94:95], vcc, 0", "s_cmp_lg_u64 s[94:95], 0", "s_cbranch_scc1 L_fallback"]
    nb = opt.get("nb", 4)
    G = spread(6, [(0, 2, pack(1, 3) + send(1, 3)), (2, 4, lsum), (4, 6, wnext(wpos["f4"]))])
    G[nb - 1] += ["s_waitcnt lgkmcnt(0)", "s_barrier"] + prd(1)
    emit(merge(red(0), G, {0: ["s_waitcnt lgkmcnt(4)"]}))
    emit(chk)
    def fin(qb):
        o = Oi(qb, 0); g = 64 + 4*qb
        out = [f"v_pk_mul_f32 v[{o+r}:{o+r+1}], v[{o+r}:{o+r+1}], v[{g}:{g+1}] op_sel_hi:[1,0]" for r in range(0, 16, 2)]
        out += pack(qb, 0)
        out += [f"buffer_store_dwordx4 v[{o+4*sp}:{o+4*sp+3}], v{VL16}, s[64:67], {'s52' if qb else 's51'} offen offset:{sp*1024} sc1" for sp in range(2)]
        if xl == 2:
            out += [f"buffer_store_dwordx4 v[{o+4*sp}:{o+4*sp+3}], v{VL16}, s[64:67], {'s45' if qb else 's44'} offen offset:{sp*1024} {opt.get('fst', 'nt')}" for sp in range(2)]
        return out
    f0_ = [f"v_mul_f32 v{Oi(0,0)+r}, v64, v{Oi(0,0)+r}" for r in range(16)] + fin(0)[8:]
    emit(merge(red(1), spread(6, [(1, 6, f0_)]), {0: ["s_waitcnt lgkmcnt(4)"], 2: ["s_waitcnt lgkmcnt(0)"]}))
    a("s_sub_u32 s88, s87, s49")
    a(f"v_add_u32 v116, s88, v{VWA}"); a(f"v_add_u32 v117, s88, v{VWB}")
    a("v_and_b32 v14, 1, v0"); a("v_sub_u32 v14, 0, v14")
    a("v_and_b32 v12, 15, v0"); a("v_lshlrev_b32 v12, 2, v12")
    emit(fin(1))
    emit(fs())
    npre = wcnt[0]
    if xl != 2:
        a("s_mov_b32 s93, 0x40000")
        a.label("L_tag")
        a("s_cmp_lg_u32 s73, 0")
        a("s_cbranch_scc1 L_tagok")
        a(f"buffer_load_dword v{VCNT}, v{VT}, s[68:71], s72 offen sc1")
        a("s_waitcnt vmcnt(0)")
        a(f"v_readfirstlane_b32 s73, v{VCNT}")
        a("s_sub_u32 s93, s93, 1")
        a("s_cbranch_scc0 L_tag")
        a.label("L_tagok")
    la = opt.get("late_a", 2)
    emit(wnext(la))
    a(f"s_waitcnt vmcnt({(8 if xl == 2 else 4) + 4*la})")
    for g in range(min(npre, 2)): emit(wo_reads(g))
    a("v_xor_b32 v14, s73, v14")
    a("s_lshl_b32 s51, s41, 5"); a("s_add_u32 s51, s51, s78"); a("s_lshl_b32 s51, s51, 5"); a(f"s_add_u32 s55, s51, {FL_OFF}")
    a("s_lshl_b32 s51, s41, 9"); a("s_lshl_b32 s52, s78, 3"); a("s_add_u32 s51, s51, s52"); a("s_lshl_b32 s51, s51, 10")
    a("s_add_u32 s32, s18, s51"); a("s_addc_u32 s33, s19, 0"); a("s_and_b32 s33, s33, 0xffff"); a("s_mov_b32 s34, 0x44000")
    a("s_and_b32 s52, s40, 4"); a("s_lshl_b32 s52, s52, 16")
    a(f"v_add_u32 v104, s52, v{VL16}")
    a(f"v_xor_b32 v105, 0x40000, v104")
    def pollops():
        o = [f"buffer_atomic_or v106, v12, s[64:67], {'s59' if xl == 2 else 's55'} offen sc0 sc1"]
        if xl == 2: o.append("buffer_load_dword v107, v12, s[64:67], s55 offen sc1")
        return o
    a("v_mov_b32 v106, 0")
    if xl == 2:
        a("s_add_u32 s59, s55, s47"); a("s_add_u32 s55, s55, s46"); a("s_add_u32 s77, s77, s47")
    a(f"s_waitcnt vmcnt({4*la})")
    a("s_mov_b64 exec, 3")
    if xl == 2: a(f"buffer_store_dword v14, v12, s[64:67], s48 offen")
    a(f"buffer_atomic_swap v14, v12, s[64:67], s77 offen sc1")
    a("s_mov_b64 exec, 0xffff")
    emit(pollops())
    a("s_mov_b64 exec, -1")
    emit(fs(True))
    nrest = 8 - wcnt[0]
    a("s_waitcnt lgkmcnt(0)")
    emit(wnext(nrest))
    for g in range(2, npre): emit(wo_reads(g))
    a("s_mov_b32 s93, 0x40000")
    a(f"s_waitcnt vmcnt({4*nrest})")
    for g in range(npre, npre + la): emit(wo_reads(g))
    a("s_mov_b64 exec, 0xffff")
    pp = opt.get("pp", 0)
    if not pp:
        a.label("L_poll")
        if xl == 2: a("v_or_b32 v106, v106, v107")
        a("v_cmp_ne_u32 vcc, v14, v106")
        a("s_cbranch_vccz L_pollend")
        a("v_mov_b32 v106, 0")
        emit(pollops())
        a("s_sub_u32 s93, s93, 1")
        a("s_waitcnt vmcnt(0)")
        a("s_cbranch_scc0 L_poll")
    else:
        pd = opt.get("pd", 2)
        regs = [106, 107, 108, 109][:pd]
        a("v_cmp_ne_u32 vcc, v14, v106")
        a("s_cbranch_vccz L_pollend")
        for x in regs: a(f"v_mov_b32 v{x}, 0")
        for x in regs[:-1]:
            a(f"buffer_atomic_or v{x}, v12, s[64:67], s55 offen sc0 sc1")
            a(f"s_sleep {pp}")
        a.label("L_poll")
        for i_ in range(pd):
            x = regs[(i_ - 1) % pd]; y = regs[i_]
            a(f"buffer_atomic_or v{x}, v12, s[64:67], s55 offen sc0 sc1")
            a(f"s_waitcnt vmcnt({pd - 1})")
            a(f"v_cmp_ne_u32 vcc, v14, v{y}")
            a("s_cbranch_vccz L_pollend")
            a(f"v_mov_b32 v{y}, 0")
        a("s_sub_u32 s93, s93, 1")
        a("s_cbranch_scc0 L_poll")
    a.label("L_pollend")
    a("s_mov_b64 exec, -1")
    emit(fs(True))
    a("s_lshl_b32 s85, s80, 11")
    def oreg(i): return 128 + 4*i
    def oload(i):
        q = 1 - i // 16; s_ = i % 16
        o = [f"buffer_load_dwordx4 v[{oreg(i)}:{oreg(i)+3}], v{104+q}, s[32:35], s85 offen offset:{1024*(s_%2)} sc1"]
        if s_ % 2 == 1: o += ["s_add_u32 s85, s85, 2048", "s_and_b32 s85, s85, 0x3fff"]
        return o
    D = opt.get("odepth", 10)
    for i in range(D): emit(oload(i))
    late_reads = []
    for g in range(npre + la, 8): late_reads += wo_reads(g)
    def acc(j): return R("v", 16 + 16*j, 16)
    def omf(j, s_):
        i = (0 if j >> 1 else 16) + s_
        return mf32(acc(j), R("a", (s_*2 + (j & 1))*4, 4), R("v", oreg(i), 4), "0" if s_ == 0 else acc(j))
    NL = opt.get("nlag", 8)
    sched = []
    for s_ in range(16): sched += [(omf(3, s_), s_), (omf(2, s_), s_)]
    for s_ in range(16):
        sched.append((omf(1, s_), 16 + s_))
        if s_ < 16 - NL: sched.append((omf(0, s_), 16 + s_))
    nfirst = len(sched)
    for s_ in range(16 - NL, 16): sched.append((omf(0, s_), 16 + s_))
    misc = [f"v_add_u32 v12, s49, v{VL16}"] + [f"v_xor_b32 v{100+j}, {j << 15}, v12" for j in range(1, 4)]
    misc += ["v_mov_b32 v80, 0xff", "s_lshr_b32 s81, s73, 8", "s_lshr_b32 s82, s73, 16", "s_lshr_b32 s83, s73, 24"]
    for j in range(1, 4):
        misc += [f"s_xor_b32 s51, s2, {2*j}", "s_mul_i32 s51, s51, 12288", f"s_add_u32 s{93+j}, s51, {X_OFF + (j-1)*4096}"]
    misc += ["s_mul_i32 s51, s2, 12288", f"s_add_u32 s97, s51, {X_OFF}", "s_add_u32 s98, s97, 4096", "s_add_u32 s99, s97, 8192",
             "s_lshl_b32 s51, s3, 10", f"v_add_u32 v81, s51, v{VL16}",
             "s_mov_b32 s28, s14", "s_and_b32 s29, s15, 0xffff", "s_mov_b32 s30, 0x80000", "s_mov_b32 s31, 0x20000",
             "v_and_b32 v82, 31, v0", "v_lshlrev_b32 v82, 10, v82", "v_lshrrev_b32 v83, 5, v0", "v_lshl_add_u32 v82, v83, 3, v82",
             "s_lshl_b32 s50, s41, 16", "s_and_b32 s51, s40, 4", "s_lshl_b32 s51, s51, 13", "s_add_u32 s50, s50, s51",
             "s_lshl_b32 s51, s79, 7", "s_add_u32 s50, s50, s51", "s_and_b32 s51, s40, 2", "s_lshl_b32 s51, s51, 5", "s_add_u32 s50, s50, s51",
             "s_lshl_b32 s51, s3, 4", "s_add_u32 s50, s50, s51",
             "v_mov_b32 v84, 0x0c0c0400", "v_mov_b32 v85, 0x05040100",
             "s_and_b32 s52, s2, 6", "s_lshl_b32 s52, s52, 1", "s_add_u32 s88, s86, s52",
             "v_add_u32 v86, 1, v0", "v_lshlrev_b32 v86, 2, v86", "v_xor_b32 v86, s52, v86",
             "v_cmp_eq_u32 vcc, 0, v0", "v_mov_b32 v87, s73", "v_add_u32 v88, 16, v86", "v_cndmask_b32 v86, v86, v88, vcc"]
    CB = 0
    def wr(j): return [f"ds_write_b128 v12, v[{16+16*j+4*k}:{19+16*j+4*k}] offset:{CB + (j*3 + k-1)*1024}" for k in range(1, 4)]
    def rdd(j): return [f"ds_read_b128 v[{16+16*j+4*k}:{19+16*j+4*k}], v{100+k} offset:{CB + (j*3 + k-1)*1024}" for k in range(1, 4)]
    tg = ["s73", "s81", "s82", "s83"]
    def summ(j, pk):
        b = 16 + 16*j; out = []
        if pk:
            for p in (0, 2):
                out += [f"v_pk_add_f32 v[{b+p}:{b+p+1}], v[{b+p}:{b+p+1}], v[{b+4+p}:{b+5+p}]", f"v_pk_add_f32 v[{b+8+p}:{b+9+p}], v[{b+8+p}:{b+9+p}], v[{b+12+p}:{b+13+p}]"]
            for p in (0, 2):
                out += [f"v_pk_add_f32 v[{b+p}:{b+p+1}], v[{b+p}:{b+p+1}], v[{b+8+p}:{b+9+p}]"]
        else:
            for i in range(4): out += [f"v_add_f32 v{b+i}, v{b+i}, v{b+4+i}", f"v_add_f32 v{b+8+i}, v{b+8+i}, v{b+12+i}"]
            for i in range(4): out += [f"v_add_f32 v{b+i}, v{b+i}, v{b+8+i}"]
        if j:
            out += [f"v_bfi_b32 v{b+i}, v80, {tg[i]}, v{b+i}" for i in range(4)]
            out += [f"buffer_store_dwordx4 v[{b}:{b+3}], v81, s[64:67], s{93+j} offen sc1"]
        return out
    def hint(off):
        return ["s_mov_b64 exec, 1", f"buffer_atomic_swap v87, v{VT}, s[64:67], s88 offen offset:{off} sc1", "s_mov_b64 exec, -1"]
    n = len(sched)
    G = spread(n, [(0, 8, late_reads), (2, 30, misc), (34, 38, wr(3) + wr(2)),
                   (43, 50, ["s_waitcnt lgkmcnt(0)"] + summ(3, False) + summ(2, False)), (nfirst + 1, nfirst + 2, wr(1))])
    G[12].append("s_waitcnt lgkmcnt(0)")
    G[40] += ["s_waitcnt lgkmcnt(0)", "s_barrier"] + rdd(3) + rdd(2)
    G[50] += hint(0)
    g1 = min(n - 1, nfirst + 3)
    G[g1] += ["s_waitcnt lgkmcnt(0)", "s_barrier"] + rdd(1)
    g2_ = min(n - 1, nfirst + 5)
    s1 = ["s_waitcnt lgkmcnt(0)"] + summ(1, False)
    gg = spread(n, [(g2_, n, s1)])
    for i in range(n): G[i] += gg[i]
    G[n-1] += hint(16)
    vmq = [("ld", i) for i in range(D)]
    issued = D; seen = -1
    for i, (m, need) in enumerate(sched):
        newload = False
        if need > seen:
            a(f"s_waitcnt vmcnt({len(vmq) - 1 - vmq.index(('ld', need))})" + (" lgkmcnt(0)" if i == 0 else ""))
            seen = need; newload = True
        a(m)
        if newload and issued < 32:
            emit(oload(issued)); vmq.append(("ld", issued)); issued += 1
        for x in G[i]:
            if x.startswith("buffer_"): vmq.append(("st", 0))
        emit(G[i])
    emit(fs(True))
    a("v_mov_b32 v88, 0")
    a("s_mov_b64 exec, 7")
    a(f"buffer_atomic_or v88, v86, s[64:67], s86 offen sc0 sc1")
    a("s_mov_b64 exec, -1")
    a("s_nop 3")
    emit(wr(0))
    a("s_waitcnt lgkmcnt(0)"); a("s_barrier")
    emit(rdd(0))
    a("s_waitcnt lgkmcnt(0)")
    emit(summ(0, True))
    emit(fs(True))
    a("s_mov_b32 s93, 0x40000")
    a("s_mov_b64 exec, 7")
    if not opt.get("hp"):
        a("s_waitcnt vmcnt(0)")
        a.label("L_h")
        a("v_cmp_ne_u32 vcc, v87, v88")
        a("s_cbranch_vccz L_hend")
        a("v_mov_b32 v88, 0")
        a(f"buffer_atomic_or v88, v86, s[64:67], s86 offen sc0 sc1")
        a("s_sub_u32 s93, s93, 1")
        a("s_waitcnt vmcnt(0)")
        a("s_cbranch_scc0 L_h")
    else:
        a("v_mov_b32 v89, 0")
        a.label("L_h")
        for x, y in ((89, 88), (88, 89)):
            a(f"buffer_atomic_or v{x}, v86, s[64:67], s86 offen sc0 sc1")
            a("s_waitcnt vmcnt(1)")
            a(f"v_cmp_ne_u32 vcc, v87, v{y}")
            a("s_cbranch_vccz L_hend")
            a(f"v_mov_b32 v{y}, 0")
        a("s_sub_u32 s93, s93, 1")
        a("s_cbranch_scc0 L_h")
    a.label("L_hend")
    a("s_mov_b64 exec, -1")
    emit(fs(True))
    a("s_mov_b32 s93, 0x40000")
    a.label("L_x")
    for j in range(3):
        a(f"buffer_load_dwordx4 v[{32+4*j}:{35+4*j}], v81, s[64:67], s{97+j} offen sc1")
    a("s_waitcnt vmcnt(0)")
    for j in range(3):
        b = 32 + 4*j
        a(f"v_perm_b32 v{44+2*j}, v{b+1}, v{b}, v84")
        a(f"v_perm_b32 v{45+2*j}, v{b+3}, v{b+2}, v84")
    for j in range(3):
        a(f"v_perm_b32 v{44+2*j}, v{45+2*j}, v{44+2*j}, v85")
    for j in range(3):
        a(f"v_xor_b32 v{44+2*j}, s73, v{44+2*j}")
    a("v_or3_b32 v44, v44, v46, v48")
    a("v_cmp_ne_u32 vcc, 0, v44")
    a("s_cbranch_vccz L_xend")
    a("s_sub_u32 s93, s93, 1")
    a("s_cbranch_scc0 L_x")
    a.label("L_xend")
    emit(fs(True))
    for i in range(12): a(f"v_and_b32 v{32+i}, 0xffffff00, v{32+i}")
    for p in range(2):
        a(f"v_pk_add_f32 v[{16+2*p}:{17+2*p}], v[{16+2*p}:{17+2*p}], v[{32+2*p}:{33+2*p}]")
        a(f"v_pk_add_f32 v[{36+2*p}:{37+2*p}], v[{36+2*p}:{37+2*p}], v[{40+2*p}:{41+2*p}]")
    for p in range(2):
        a(f"v_pk_add_f32 v[{16+2*p}:{17+2*p}], v[{16+2*p}:{17+2*p}], v[{36+2*p}:{37+2*p}]")
    a("v_cvt_pk_bf16_f32 v16, v16, v17")
    a("v_cvt_pk_bf16_f32 v17, v18, v19")
    a("buffer_store_dwordx2 v[16:17], v82, s[28:31], s50 offen")
    if fine:
        a("s_waitcnt vmcnt(0)")
        emit(fs(True, True)); emit(fs(True, True))
        a("s_lshl_b32 s51, s2, 2"); a("s_add_u32 s51, s51, s3"); a("s_lshl_b32 s51, s51, 8"); a(f"s_add_u32 s51, s51, {ST_OFF}")
        a("v_lshlrev_b32 v6, 2, v0")
        a("buffer_store_dword v127, v6, s[64:67], s51 offen")
    a.label("L_end")
    a("s_endpgm")

    a.label("L_fallback")
    a("s_mov_b32 s76, 1")
    a("s_waitcnt vmcnt(0) lgkmcnt(0)")
    a("s_barrier")
    for s in range(1, 4):
        a(f"v_xor_b32 v{VKR+s}, {32*s}, v{VKR}")
    for qb in range(2):
        for s_ in range(8):
            a(f"ds_write_b128 v{VQR}, {Q_(qb,s_)} offset:{(qb*8+s_)*1024}")
    a(f"v_subrev_u32 v{VKD}, 4096, v{VKD+4}")
    emit(kd_setup())
    a("s_mov_b32 s54, 0")
    a.label("L_fb_loop")
    emit(dma_k(0))
    a("s_waitcnt vmcnt(0)")
    emit(kreads(0))
    a("s_waitcnt lgkmcnt(0)")
    emit(qk(0, True) + qk(1, True))
    a("s_nop 15")
    for qb in range(2):
        for r in range(0, 16, 2):
            a(f"v_max3_f32 v{MS[qb]}, v{MS[qb]}, v{S0[qb]+r}, v{S0[qb]+r+1}")
    a(f"s_add_u32 s54, s54, {1 << TSH}")
    a(f"s_cmp_lt_u32 s54, {8 << TSH}")
    a("s_cbranch_scc1 L_fb_loop")
    a("s_nop 1")
    a(f"v_permlane32_swap_b32 v{MS[0]}, v{MS[1]}")
    a("s_lshl_b32 s51, s3, 2"); a(f"s_add_u32 s51, s51, {MISC+2048}")
    a(f"v_add_u32 v12, s51, v{VL16}")
    a(f"v_max_f32 v124, v{MS[0]}, v{MS[1]}")
    a("ds_write_b32 v12, v124")
    a("s_waitcnt lgkmcnt(0)"); a("s_barrier")
    a(f"ds_read_b128 v[16:19], v{VMX} offset:2048")
    a(f"ds_read_b128 v[20:23], v{VMX} offset:2560")
    a("s_waitcnt lgkmcnt(0)")
    for qb in range(2):
        a(f"v_max_f32 v{MS[qb]}, v{16+4*qb}, v{17+4*qb}")
        a(f"v_max3_f32 v{MS[qb]}, v{18+4*qb}, v{19+4*qb}, v{MS[qb]}")
    a("s_mov_b64 s[60:61], s[62:63]")
    emit(nexttile() + dma_k(0) + dma_v(0))
    for k in range(4): a(f"v_mov_b32 v{VZ+k}, 0")
    a("s_nop 1")
    emit(zmf)
    a("s_waitcnt vmcnt(0)")
    a("s_branch L_att")
    return a.text()

def build(opt, fname):
    k = NAME + "_kernel"
    hdr = f"""; GQA block, one fused kernel: q-projection + attention + output projection
; @launch grid=(256,1,1) block=(256,1,1) lds=163840
.amdgcn_target "amdgcn-amd-amdhsa--gfx950"
"""
    txt = hdr + kernel_header(k) + gen(opt)
    txt += '.section .rodata,"a"\n.p2align 6\n' + kernel_desc(k, 512, 102, 256)
    open(fname, "w").write(txt)

L = [order(range(8))]*4
P = [order([0,1,2,3,4,5,6,7]), order([4,5,6,7,0,1,2,3])]*2
K6 = [order([0,1,2,3,4,5,6,7]), order([6,7,2,3,4,5,0,1])]*2
K5 = [order([0,1,2,3,4,5,6,7]), order([5,6,7,3,4,0,1,2])]*2
if __name__ == "__main__":
    B = {"orders": K5}
    B = dict(B, rot=2)
    W = lambda i6, f1, f2, f4: {"i6": i6, "f1": f1, "f2": f2, "f4": f4}
    B = dict(B, nb=6)
    K7 = [order([0,1,2,3,4,5,6,7]), order([7,1,2,3,4,5,6,0])]*2
    K6s = [order([0,1,2,3,4,5,6,7]), order([6,1,2,7,4,5,0,3])]*2
    K6l = [order([0,1,2,3,4,5,6,7]), order([0,1,2,3,6,7,4,5])]*2
    K5s = [order([0,1,2,3,4,5,6,7]), order([5,1,6,3,7,0,2,4])]*2
    R1 = [order(x) for x in ([0,2,1,3,4,6,5,7], [0,1,3,2,4,5,7,6], [1,0,2,4,3,5,6,7], [1,0,2,3,5,4,6,7])]
    R2 = [order(x) for x in ([0,2,1,6,3,4,5,7], [0,1,4,2,3,5,6,7], [1,3,0,7,2,4,5,6], [1,0,5,2,3,4,6,7])]
    R3 = [order(x) for x in ([0,2,1,3,6,4,5,7], [0,1,4,2,3,5,6,7], [1,3,0,2,4,7,5,6], [1,0,2,5,3,4,6,7])]
    R4 = [order(x) for x in ([0,3,1,2,4,7,5,6], [0,1,4,2,3,5,6,7], [1,0,2,5,3,4,6,7], [2,0,1,3,6,4,5,7])]
    R5 = [order(x) for x in ([0,4,1,2,3,5,6,7], [1,0,5,2,3,4,6,7], [2,0,1,6,3,4,5,7], [3,0,1,2,7,4,5,6])]
    R6 = [order(x) for x in ([0,1,4,2,3,5,6,7], [1,0,2,5,3,4,6,7], [2,0,1,3,6,4,5,7], [3,0,1,2,4,7,5,6])]
    B = dict(B, orders=R1)
    W = lambda i6, f1, f2, f4: {"i6": i6, "f1": f1, "f2": f2, "f4": f4}
    A0, A1, A2, A3 = R1
    R8 = [order(x) for x in ([0,2,1,3,6,4,5,7], [0,1,3,2,4,7,5,6], [1,0,2,4,3,5,6,7], [1,0,2,3,5,4,6,7])]
    R9 = [order(x) for x in ([0,2,1,3,4,6,5,7], [0,1,3,2,4,7,5,6], [1,0,2,4,3,5,6,7], [1,0,2,3,5,4,6,7])]
    P1 = [A0, A2, A1, A3]
    W5 = W([(1, 5), (24, 28), (28, 32)], 0, 0, 1)
    C = dict(B, orders=P1, wpos=W5, late_a=0, nb=4, nlag=6, pp=2)
    W0 = W([(2, 10), (12, 20), (22, 30)], 0, 0, 1)
    D_ = dict(C, wpos=W0, hp=1, pp=0, odepth=12)
    D_ = dict(D_, orders=R1)
    Wm = W([(8, 14), (16, 22), (24, 30)], 0, 0, 1)
    Q_3 = dict(D_, qr=3, orders=R3)
    T422 = [[0,4,1,2,3,5,6,7], [1,0,6,2,3,4,5,7], [2,5,3,0,1,4,6,7], [3,2,7,0,1,4,5,6]]
    T2222 = [[0,2,1,6,3,4,5,7], [0,1,4,2,3,5,6,7], [1,3,0,7,2,4,5,6], [1,0,5,2,3,4,6,7]]
    T242 = [[0,2,6,1,3,4,5,7], [0,3,1,2,4,5,6,7], [1,4,7,0,2,3,5,6], [1,5,0,2,3,4,6,7]]
    T233 = [[0,2,5,1,3,4,6,7], [0,3,6,1,2,4,5,7], [1,4,0,2,3,5,6,7], [1,0,7,2,3,4,5,6]]
    T332 = [[0,3,1,2,4,5,6,7], [1,4,0,2,3,5,6,7], [2,5,6,0,1,3,4,7], [0,1,7,2,3,4,5,6]]
    V = {"b": Q_3, "t422": dict(Q_3, qt=T422), "t2222": dict(Q_3, qt=T2222), "t242": dict(Q_3, qt=T242), "t233": dict(Q_3, qt=T233), "t332": dict(Q_3, qt=T332), "q1": dict(Q_3, qr=1), "q0": dict(Q_3, qr=0)}
    for n, o in V.items():
        build(o, f"v23_{n}.s")
        build(dict(o, fine=1), f"v23_{n}_f.s")
        build(dict(o, fine=3), f"v23_{n}_m.s")
```

```python
import sys, math, struct
from asmlib import *

C_SCALE = math.log2(math.e) / math.sqrt(128.0)
def f2u(f): return struct.unpack("<I", struct.pack("<f", f))[0]
def mf32(d, a, b, c): return f"v_mfma_f32_32x32x16_bf16 {d}, {a}, {b}, {c}"
def R(p, lo, n): return f"{p}[{lo}:{lo+n-1}]"

OB = 128
def Oi(qb, j): return OB + (qb*4+j)*16
def O_(qb, j): return R("v", Oi(qb, j), 16)
def Q_(qb, s): return R("a", 128 + (qb*8+s)*4, 4)
def Kf(s): return R("a", 192 + 4*s, 4)
def Vf(st, j): return R("a", 224 + (st*4+j)*4, 4)
def Vfh(st, j, u): return R("a", 224 + (st*4+j)*4 + 2*u, 2)
S0 = [16, 32]; NM = [48, 64]; P0 = [80, 88]; L_ = [96, 97]
VCNT = 98; VT = 99
VKR = 100; VVR = 108; VKD = 112; VVD = 120; MS = [122, 123]
ID = [2, 6]
VL16 = 13; VQR = 15; VMX = 10; VWA = 11; VWB = 1
VOD0 = 126
VXD = 48; VWD = 50; VXR = 54; VWR = 58; T = 16; VZ = 64
XB = 131072; QAREA = XB; MISC = XB + 16384
X_OFF = 0x400000; FL_OFF = 0x800000; ST_OFF = 0x810000
PART = 16384
LIMIT = 2.0 ** 40

def spread(n, fillers):
    gaps = [[] for _ in range(n)]
    for (g0, g1, lst) in fillers:
        k = max(1, len(lst))
        for i, x in enumerate(lst):
            gaps[g0 + (i * (g1 - g0)) // k].append(x)
    return gaps

def fix_m0(seq):
    out = []
    for i, x in enumerate(seq):
        out.append(x)
        if " m0," in x and i + 1 < len(seq) and seq[i+1].startswith("buffer_load"):
            out.append("s_nop 0")
    return out

def merge(mf, gaps, pre=None):
    s = []
    for i, m in enumerate(mf):
        if pre and i in pre: s += pre[i]
        s.append(m); s += gaps[i]
    return s

def order(l):
    v = 0
    for i, t in enumerate(l): v |= t << (4*i)
    return v

def gen(opt):
    a = Asm()
    IL = opt.get("il", 0)
    TSH = 15 if IL else 13
    TM = hex(15 << TSH)
    fine = opt.get("fine")
    clk = "s_memtime" if fine == 2 else "s_memrealtime"
    def fs(sync=False, last=False):
        if not fine: return []
        if fine == 3 and not last: return []
        return (["s_waitcnt lgkmcnt(0)"] if sync else []) + ["s_mov_b32 s89, m0", "s_mov_b32 m0, s92", "s_add_u32 s92, s92, 1", "v_writelane_b32 v127, s90, m0", clk + " s[90:91]", "s_mov_b32 m0, s89"]
    def emit(l):
        for x in fix_m0(l): a(x)
    a("s_cmp_ge_u32 s2, 256")
    a("s_cbranch_scc1 L_end")
    a("s_load_dwordx8 s[4:11], s[0:1], 0")
    a("s_load_dwordx8 s[12:19], s[0:1], 32")
    a("s_memrealtime s[74:75]")
    if fine:
        a(clk + " s[90:91]"); a("s_mov_b32 s92, 0"); a("v_mov_b32 v127, 0"); a("s_mov_b32 m0, 0")
    a(f"v_lshrrev_b32 v{T}, 6, v0")
    a("v_and_b32 v0, 63, v0")
    a(f"v_readfirstlane_b32 s3, v{T}")
    xl = opt.get("xl", 0)
    if xl:
        a("s_and_b32 s40, s2, 6"); a("s_bfe_u32 s41, s2, 0x10005"); a("s_or_b32 s40, s40, s41")
        a("s_and_b32 s41, s2, 1"); a("s_lshl_b32 s41, s41, 2"); a("s_lshr_b32 s42, s2, 6"); a("s_or_b32 s41, s41, s42")
    else:
        a("s_and_b32 s40, s2, 7")
        a("s_lshr_b32 s41, s2, 5")
    a("s_bfe_u32 s42, s2, 0x20003")
    a("s_lshl_b32 s43, s40, 2")
    a("s_add_u32 s43, s43, s42")
    r4, c16, vp = T+1, T+2, T+4
    a(f"v_lshrrev_b32 v{r4}, 4, v0")
    a(f"v_and_b32 v{c16}, 15, v0")
    a(f"v_lshlrev_b32 v{vp}, 2, v{r4}")
    a(f"v_xor_b32 v{vp}, v{c16}, v{vp}")
    a(f"v_lshlrev_b32 v{vp}, 4, v{vp}")
    a(f"v_lshl_add_u32 v{VWD}, v{r4}, 13, v{vp}")
    for i in range(1, 4):
        a(f"v_add_u32 v{VWD+i}, {31744*i}, v{VWD}")
    a(f"v_lshrrev_b32 v{T+5}, 3, v0")
    a(f"v_and_b32 v{T+6}, 7, v0")
    a(f"v_xor_b32 v{T+7}, v{T+6}, v{r4}")
    a(f"v_lshlrev_b32 v{T+7}, 4, v{T+7}")
    a(f"v_lshl_add_u32 v{VXD}, v{T+5}, 10, v{T+7}")
    a(f"v_xor_b32 v{T+7}, 64, v{VXD}")
    a(f"v_add_u32 v{VXD+1}, {8192-1024}, v{T+7}")
    if xl:
        a("s_lshl_b32 s44, s41, 1"); a("s_add_u32 s44, s44, s43")
    elif opt.get("qr", 0) == 0:
        a("s_lshl_b32 s44, s42, 1"); a("s_add_u32 s44, s44, s41")
    elif opt["qr"] == 1:
        a("s_add_u32 s44, s42, s41"); a("s_lshl_b32 s44, s44, 1")
    elif opt["qr"] == 2:
        a("s_add_u32 s44, s42, s41"); a("s_lshl_b32 s44, s44, 2")
    elif opt["qr"] == 3:
        a("s_add_u32 s44, s42, s41"); a("s_lshl_b32 s44, s44, 2"); a("s_lshr_b64 s[44:45], 0x30630630630, s44") if False else None
        a("s_mul_i32 s45, s44, 22"); a("s_lshr_b32 s45, s45, 8"); a("s_mul_i32 s45, s45, 12"); a("s_sub_u32 s44, s44, s45"); a("s_lshr_b32 s44, s44, 2"); a("s_mul_i32 s44, s44, 3")
    elif opt["qr"] == 5:
        a("s_mov_b32 s44, 0")
    elif opt["qr"] == 6:
        a("s_add_u32 s44, s42, s41"); a("s_lshl_b32 s44, s44, 2")
        a("s_mul_i32 s45, s44, 22"); a("s_lshr_b32 s45, s45, 8"); a("s_mul_i32 s45, s45, 12"); a("s_sub_u32 s44, s44, s45"); a("s_lshr_b32 s44, s44, 2"); a("s_mul_i32 s44, s44, 3"); a("s_add_u32 s44, s44, s40")
    elif opt["qr"] == 4:
        a("s_add_u32 s44, s42, s41"); a("s_lshl_b32 s44, s44, 1"); a("s_add_u32 s44, s44, s40")
    QT = opt.get("qt")
    if QT:
        ncls = len(QT)
        if ncls == 8: a("s_lshl_b32 s44, s42, 1"); a("s_add_u32 s44, s44, s41"); a("s_and_b32 s44, s44, 7")
        else: a("s_add_u32 s44, s42, s41"); a(f"s_and_b32 s44, s44, {ncls-1}")
        a(f"s_mov_b32 s58, {hex(order(QT[0]))}")
        for c_ in range(1, ncls):
            a(f"s_cmp_eq_u32 s44, {c_}"); a(f"s_cselect_b32 s58, {hex(order(QT[c_]))}, s58")
    else:
        a("s_and_b32 s58, s44, 7")
    a("s_lshl_b32 s46, s3, 11"); a(f"s_add_u32 s46, s46, {XB}")
    a("s_lshl_b32 s47, s3, 12"); a("s_add_u32 s47, s47, 16384")
    a("s_lshl_b32 s49, s3, 15")
    a("s_lshl_b32 s44, s41, 16"); a("s_lshl_b32 s45, s3, 14"); a("s_add_u32 s44, s44, s45")
    a("s_lshl_b32 s48, s43, 8"); a("s_lshl_b32 s45, s3, 17"); a("s_add_u32 s48, s48, s45")
    a("s_sub_u32 s22, 0x80000, s44"); a("s_mov_b32 s23, 0x20000")
    a("s_sub_u32 s34, 0x400000, s48"); a("s_mov_b32 s35, 0x20000")
    a("s_waitcnt lgkmcnt(0)")
    a("s_add_u32 s20, s4, s44"); a("s_addc_u32 s21, s5, 0"); a("s_and_b32 s21, s21, 0xffff")
    a("s_add_u32 s32, s10, s48"); a("s_addc_u32 s33, s11, 0"); a("s_and_b32 s33, s33, 0xffff")

    def qdma(c):
        j = c % 4
        if QT:
            out = ["s_and_b32 s57, s58, 7", f"s_lshl_b32 s59, s57, 7", f"s_add_u32 m0, s46, {j*8192}", "s_lshl_b32 s57, s57, 19"]
            out += [f"buffer_load_dwordx4 v{VXD+i}, s[20:23], s59 offen offset:{1024*i} lds" for i in range(2)]
            out += [f"s_add_u32 m0, s47, {j*32768}", "s_lshr_b32 s58, s58, 4"]
            out += [f"buffer_load_dwordx4 v{VWD+i}, s[32:35], s57 offen offset:{1024*i} lds" for i in range(4)]
            return out
        out = [f"s_lshl_b32 s59, s58, 7", f"s_add_u32 m0, s46, {j*8192}", "s_lshl_b32 s57, s58, 19"]
        for i in range(2):
            out.append(f"buffer_load_dwordx4 v{VXD+i}, s[20:23], s59 offen offset:{1024*i} lds")
        out += [f"s_add_u32 m0, s47, {j*32768}", "s_add_u32 s58, s58, 1"]
        for i in range(4):
            out.append(f"buffer_load_dwordx4 v{VWD+i}, s[32:35], s57 offen offset:{1024*i} lds")
        out.append("s_and_b32 s58, s58, 7")
        return out
    def nexttile():
        return [f"s_and_b32 s54, s60, {TM}", "s_lshr_b64 s[60:61], s[60:61], 4"]
    def dma_k(slot):
        out = []
        for hh in range(2):
            out.append(f"s_add_u32 m0, s49, {slot*16384 + hh*4096}")
            for i in range(4):
                out.append(f"buffer_load_dwordx4 v{VKD+4*hh+i}, s[24:27], s54 offen offset:{1024*i} lds")
        return out
    def dma_v(slot):
        out = []
        for hh in range(2):
            out.append(f"s_add_u32 m0, s49, {slot*16384 + 8192 + hh*4096}")
            for i in range(4):
                out.append(f"buffer_load_dwordx4 v{VVD+hh}, s[28:31], s54 offen offset:{1024*i} lds")
        return out
    vm = []
    if opt.get("xfirst"):
        q0 = qdma(0); q1 = qdma(1)
        x1 = ["s_add_u32 s51, s58, 1", "s_and_b32 s51, s51, 7", "s_lshl_b32 s51, s51, 7", f"s_add_u32 m0, s46, 8192", "s_nop 0"] + \
             [f"buffer_load_dwordx4 v{VXD+i}, s[20:23], s51 offen offset:{1024*i} lds" for i in range(2)]
        emit(q0[:5] + x1 + q0[5:]); vm += ["c0"]*8
    else:
        emit(qdma(0)); vm += ["c0"]*6
    def kd_setup():
        out = [f"v_xor_b32 v{VKD+i}, {64*i}, v{VKD}" for i in range(1, 4)]
        return out
    a(f"v_xor_b32 v{T+3}, v{c16}, v{r4}"); a(f"v_lshlrev_b32 v{T+3}, 4, v{T+3}")
    a(f"v_lshl_add_u32 v{VKD}, v{r4}, 8, v{T+3}")
    emit(kd_setup())
    for i in range(4):
        a(f"v_add_u32 v{VKD+4+i}, 4096, v{VKD+i}")
    a(f"v_lshl_add_u32 v{VVD}, v{r4}, 8, v{vp}")
    a(f"v_add_u32 v{VVD+1}, 4096, v{VVD}")
    a(f"v_and_b32 v{T+7}, 16, v0"); a(f"v_lshrrev_b32 v{T+7}, 2, v{T+7}")
    a(f"v_xor_b32 v{T+7}, v{T+7}, v{T+6}"); a(f"v_lshlrev_b32 v{T+7}, 4, v{T+7}")
    a(f"v_lshl_add_u32 v{VOD0}, v{T+5}, 10, v{T+7}")
    orders = opt["orders"]
    a(f"s_mov_b32 s62, {hex(orders[0])}")
    for rr_ in range(1, 4):
        if orders[rr_] != orders[0]:
            a(f"s_cmp_eq_u32 s42, {rr_}"); a(f"s_cselect_b32 s62, {hex(orders[rr_])}, s62")
    tx = opt.get("tx", 0)
    if tx:
        if tx == 1: a("s_mov_b32 s63, s41")
        elif tx == 2: a("s_mov_b32 s63, s40")
        elif tx == 3: a("s_add_u32 s63, s40, s41")
        elif tx == 4: a("s_lshl_b32 s63, s3, 1")
        elif tx == 5: a("s_lshl_b32 s63, s3, 1"); a("s_add_u32 s63, s63, s40"); a("s_add_u32 s63, s63, s41")
        a("s_and_b32 s63, s63, 7"); a("s_mul_i32 s63, s63, 0x11111111"); a("s_xor_b32 s62, s62, s63")
    a("s_mov_b32 s63, 8")
    a(f"s_lshl_b64 s[62:63], s[62:63], {TSH}")
    a("s_mov_b64 s[60:61], s[62:63]")
    a("s_lshl_b32 s50, s41, 3"); a("s_add_u32 s50, s50, s40"); a(f"s_lshl_b32 s50, s50, {5 if IL else 2}"); a("s_add_u32 s50, s50, s3")
    a(f"s_lshl_b32 s50, s50, {13 if IL else 16}")
    a(f"s_mov_b32 s26, {hex(0x3a000 if IL else 0x10000)}"); a("s_mov_b32 s27, 0x20000")
    a(f"s_mov_b32 s30, {hex(0x3a000 if IL else 0x10000)}"); a("s_mov_b32 s31, 0x20000")
    a("s_add_u32 s24, s6, s50"); a("s_addc_u32 s25, s7, 0"); a("s_and_b32 s25, s25, 0xffff")
    a("s_add_u32 s28, s8, s50"); a("s_addc_u32 s29, s9, 0"); a("s_and_b32 s29, s29, 0xffff")
    srd(a, 64, 18, ST_OFF + (0x40000 if fine else 0))
    srd(a, 68, 16, 256)
    a(f"v_mov_b32 v{VT}, 0")
    a("s_lshl_b32 s72, s41, 5")
    a("s_or_b32 s51, s43, s3")
    a("s_cbranch_scc1 L_nolead")
    a("s_or_b32 s74, s74, 1")
    a(f"v_mov_b32 v{VCNT}, s74")
    a("s_mov_b64 exec, 1")
    a(f"buffer_store_dword v{VCNT}, v{VT}, s[68:71], s72 offen sc1")
    a("s_mov_b64 exec, -1")
    a.label("L_nolead")
    if opt.get("xfirst"):
        emit(q1[2:3] + q1[5:]); vm += ["c1"]*4
    else:
        emit(qdma(1)); vm += ["c1"]*6
    l31, hh_, rr, cc, dh = T+5, T+6, T+8, T+9, T+10
    a(f"v_and_b32 v{l31}, 31, v0")
    a(f"v_lshrrev_b32 v{hh_}, 5, v0")
    a(f"v_xor_b32 v{T+7}, v{hh_}, v{c16}")
    a(f"v_lshlrev_b32 v{T+7}, 4, v{T+7}")
    a(f"v_lshl_add_u32 v{T+7}, v{l31}, 8, v{T+7}")
    a(f"v_add_u32 v{VKR}, s49, v{T+7}")
    for s in range(1, 8):
        a(f"v_xor_b32 v{VKR+s}, {32*s}, v{VKR}")
    a(f"v_bfe_u32 v{T+7}, v0, 1, 3")
    a(f"v_xor_b32 v{T+7}, v{T+7}, v{hh_}"); a(f"v_lshlrev_b32 v{T+7}, 4, v{T+7}")
    a(f"v_lshl_add_u32 v{T+7}, v{l31}, 7, v{T+7}")
    a(f"v_add_u32 v{VXR}, {XB}, v{T+7}")
    for s in range(1, 4):
        a(f"v_xor_b32 v{VXR+s}, {32*s}, v{VXR}")
    a(f"v_lshrrev_b32 v{rr}, 2, v{c16}")
    a(f"v_and_b32 v{cc}, 3, v0")
    a(f"v_and_b32 v{dh}, 16, v0")
    a(f"v_lshlrev_b32 v{dh}, 1, v{dh}")
    a(f"v_lshl_add_u32 v{T+13}, v{hh_}, 2, v{rr}")
    a(f"v_lshl_add_u32 v{T+14}, v{cc}, 3, v{dh}")
    a(f"v_lshl_add_u32 v{T+11}, v{T+13}, 8, v{T+14}")
    a(f"v_add_u32 v{T+11}, s49, v{T+11}")
    for j in range(4):
        a(f"s_add_u32 s51, s3, {j}"); a("s_and_b32 s51, s51, 3")
        a(f"v_xor_b32 v{T+12}, s51, v{rr}")
        a(f"v_lshl_add_u32 v{VVR+j}, v{T+12}, 6, v{T+11}")
    a("s_lshl_b32 s51, s3, 4")
    a("s_and_b32 s52, s40, 2"); a("s_lshl_b32 s52, s52, 5"); a("s_or_b32 s51, s51, s52")
    a(f"v_and_b32 v{T+12}, 8, v0"); a(f"v_lshl_add_u32 v{T+14}, v{T+12}, 3, v{T+14}")
    a(f"v_xor_b32 v{T+14}, s51, v{T+14}")
    a(f"v_lshl_add_u32 v{T+14}, v{T+13}, 7, v{T+14}")
    a(f"v_add_u32 v{VWA}, s49, v{T+14}")
    a(f"v_xor_b32 v{VWB}, 64, v{VWA}")
    a(f"v_lshl_add_u32 v{T+11}, v{hh_}, 3, v{rr}")
    a(f"v_lshl_add_u32 v{T+11}, v{T+11}, 8, v{dh}")
    a(f"v_xor_b32 v{T+12}, s3, v{rr}")
    a(f"v_lshl_add_u32 v{T+11}, v{T+12}, 6, v{T+11}")
    a(f"v_and_b32 v{T+12}, 1, v0"); a(f"v_lshl_add_u32 v{T+11}, v{T+12}, 4, v{T+11}")
    a(f"v_and_b32 v{T+12}, 2, v0"); a(f"v_lshl_add_u32 v{T+11}, v{T+12}, 2, v{T+11}")
    a(f"v_add_u32 v{VWR}, 16384, v{T+11}")
    a(f"v_add_u32 v{VWR+1}, {16384+65536}, v{T+11}")
    a(f"v_lshlrev_b32 v{VL16}, 4, v0")
    a(f"v_add_u32 v{VQR}, {QAREA}, v{VL16}")
    a(f"v_lshlrev_b32 v{VMX}, 4, v{l31}")
    a(f"v_add_u32 v{VMX}, {MISC}, v{VMX}")
    a(f"v_mov_b32 v{MS[0]}, 0xff800000"); a(f"v_mov_b32 v{MS[1]}, 0xff800000")
    a("s_mov_b32 s76, 0")
    a("s_lshl_b32 s51, s41, 5"); a("s_add_u32 s51, s51, s43"); a("s_lshl_b32 s51, s51, 2"); a("s_add_u32 s51, s51, s3")
    a("s_lshl_b32 s51, s51, 3"); a(f"s_add_u32 s77, s51, {FL_OFF}")
    a("s_andn2_b32 s51, s2, 6"); a("s_lshl_b32 s51, s51, 7"); a("s_lshl_b32 s52, s3, 5"); a("s_add_u32 s51, s51, s52"); a(f"s_add_u32 s75, s51, {FL_OFF + 0x4000}")
    a("s_and_b32 s78, s40, 6"); a("s_lshl_b32 s78, s78, 2"); a("s_lshl_b32 s51, s3, 1"); a("s_add_u32 s78, s78, s51")
    a("s_and_b32 s79, s40, 1"); a("s_lshl_b32 s79, s79, 2"); a("s_add_u32 s79, s79, s42")
    a("s_lshl_b32 s51, s78, 17"); a("s_lshl_b32 s52, s79, 7"); a("s_add_u32 s51, s51, s52")
    a("s_add_u32 s36, s12, s51"); a("s_addc_u32 s37, s13, 0"); a("s_and_b32 s37, s37, 0xffff")
    a("s_sub_u32 s38, 0x400000, s51"); a("s_mov_b32 s39, 0x20000")
    a(f"v_bfe_u32 v{T+7}, v0, 2, 1")
    a(f"v_bfe_u32 v{T+11}, v0, 3, 2")
    a(f"v_bfe_u32 v{T+12}, v0, 1, 1")
    a(f"v_lshl_add_u32 v{T+11}, v{T+11}, 1, v{T+12}")
    a(f"v_xor_b32 v{T+7}, v{T+7}, v{hh_}")
    a(f"v_lshl_add_u32 v{T+11}, v{T+7}, 4, v{T+11}")
    a(f"v_and_b32 v{T+12}, 1, v0"); a(f"v_lshlrev_b32 v{T+12}, 4, v{T+12}")
    a(f"v_mov_b32 v{T+7}, 0x3f80")
    a(f"v_lshlrev_b32 v{T+12}, v{T+12}, v{T+7}")
    msk = [80, 82, 84, 86, 94, 96, 98, 100]
    for k in range(8): a(f"v_cmp_eq_u32 s[{msk[k]}:{msk[k]+1}], {k}, v{T+11}")
    for k in range(4): a(f"v_mov_b32 v{VZ+k}, 0")
    for k in range(8): a(f"v_cndmask_b32 v{2+k}, 0, v{T+12}, s[{msk[k]}:{msk[k]+1}]")
    z = R("v", VZ, 4)
    zmf = [mf32(O_(qb, j), z, z, "0") for qb in range(2) for j in range(4)]
    emit(zmf)
    emit(qdma(2)); vm += ["c2"]*6

    kvq = opt.get("kvq", {5: ["K0a"], 6: ["K0b"], 7: ["V0a"], 8: ["V0b"]})
    K0 = dma_k(0); V0 = dma_v(0)
    grp = {"K0a": nexttile() + K0[:5], "K0b": K0[5:], "V0a": V0[:5], "V0b": V0[5:]}
    def kv(c):
        out = []
        for g in kvq.get(c, []):
            out += grp[g]; vm.extend([g[:2]]*4)
        return out
    def qreads(c):
        j = c % 4; base = (c % 2) * 48; out = []
        for s in range(4):
            b = base + 12*s
            wreg = VWR + (j >> 1); wo = (j & 1) * 32768
            out.append(f"ds_read_b64_tr_b16 a[{b}:{b+1}], v{wreg} offset:{wo + (16*s)*256}")
            out.append(f"ds_read_b64_tr_b16 a[{b+2}:{b+3}], v{wreg} offset:{wo + (16*s+4)*256}")
            out.append(f"ds_read_b128 a[{b+4}:{b+7}], v{VXR+s} offset:{j*8192}")
            out.append(f"ds_read_b128 a[{b+8}:{b+11}], v{VXR+s} offset:{j*8192+4096}")
        return out
    def qmf(c):
        base = (c % 2) * 48; out = []
        for s in range(4):
            b = base + 12*s
            for qb in range(2):
                cin = "0" if (c == 0 and s == 0) else R("v", S0[qb], 16)
                out.append(mf32(R("v", S0[qb], 16), R("a", b, 4), R("a", b+4+4*qb, 4), cin))
        return out
    def nwait(tag):
        last = max(i for i, x in enumerate(vm) if x == tag)
        return len(vm) - 1 - last
    emit(fs())
    for c in range(8):
        a(f"s_waitcnt vmcnt({nwait(f'c{c}')})")
        a("s_barrier")
        emit(fs(c == 0))
        seq = qreads(c)
        ld = []
        if c + 3 < 8:
            ld += qdma(c + 3); vm += [f"c{c+3}"]*6
        ld += kv(c)
        if c == 0:
            emit(seq + ld)
        else:
            mf = qmf(c - 1)
            if opt.get("nomf") and c < 5: mf = ["s_nop 0"]*8
            if opt.get("nord") and c < 5: seq = []
            gaps = spread(8, [(0, 4, seq), (1, 8, ld)])
            s2 = []
            for i in range(8):
                s2 += gaps[i]; s2.append(mf[i])
            emit(s2)
        a("s_waitcnt lgkmcnt(0)")
    def kreads(slot): return [f"ds_read_b128 {Kf(s)}, v{VKR+s} offset:{slot*16384}" for s in range(8)]
    def vreads(slot):
        return [f"ds_read_b64_tr_b16 {Vfh(st,j,u)}, v{VVR+j} offset:{slot*16384 + 8192 + (16*st+8*u)*256}" for st in range(2) for j in range(4) for u in range(2)]
    m7 = qmf(7)
    m7 = m7[0::2] + m7[1::2]
    def qfin(qb):
        out = [f"v_pk_mul_f32 v[{S0[qb]+r}:{S0[qb]+r+1}], v[{S0[qb]+r}:{S0[qb]+r+1}], v[14:15] op_sel_hi:[1,0]" for r in range(0, 16, 2)]
        out += [f"v_cvt_pk_bf16_f32 v{P0[qb]+r}, v{S0[qb]+2*r}, v{S0[qb]+2*r+1}" for r in range(8)]
        out += [f"ds_write_b128 v12, v[{P0[qb]+4*sp}:{P0[qb]+4*sp+3}] offset:{qb*8192 + sp*1024}" for sp in range(2)]
        return out
    l8 = kv(8)
    f0 = qfin(0)
    emit(merge(m7, spread(8, [(0, 2, [f"v_mov_b32 v14, {hex(f2u(C_SCALE))}", "s_lshl_b32 s51, s3, 11", f"v_add_u32 v12, s51, v{VQR}"]), (6, 7, f0[:6]), (7, 8, f0[6:])])))
    emit(qfin(1))
    emit(l8)

    def qk(qb, first=False):
        return [mf32(R("v", S0[qb], 16), Kf(s), Q_(qb, s), ("0" if first else R("v", NM[qb], 16)) if s == 0 else R("v", S0[qb], 16)) for s in range(8)]
    def pv(qb, order1=(0, 1, 2, 3)):
        return [mf32(O_(qb, j), Vf(0, j), R("v", P0[qb], 4), O_(qb, j)) for j in range(4)] + \
               [mf32(O_(qb, j), Vf(1, j), R("v", P0[qb]+4, 4), O_(qb, j)) for j in order1]
    def ex(qb, r): return f"v_exp_f32 v{S0[qb]+r}, v{S0[qb]+r}"
    def ad(qb, r): return f"v_add_f32 v{L_[qb]}, v{L_[qb]}, v{S0[qb]+r}"
    def cv(qb, i): return f"v_cvt_pk_bf16_f32 v{P0[qb]+i}, v{S0[qb]+2*i}, v{S0[qb]+2*i+1}"

    emit(fs(True))
    a("s_waitcnt lgkmcnt(0)")
    a.label("L_att")
    a("s_barrier")
    qr = [f"ds_read_b128 {Q_(qb,s)}, v{VQR} offset:{(qb*8+s)*1024}" for qb in range(2) for s in range(8)]
    emit(qr[:8])
    a(f"s_waitcnt vmcnt({nwait('K0')})")
    emit(fs())
    emit(kreads(0))
    a(f"v_mov_b32 v{L_[0]}, 0"); a(f"v_mov_b32 v{L_[1]}, 0")
    K1 = nexttile() + dma_k(1); V1 = dma_v(1)
    mf = qk(0, True) + qk(1, True)
    def inmax(qb, t):
        s = S0[qb]; out = [f"v_max3_f32 v{t}, v{s}, v{s+1}, v{s+2}"]
        for r in range(3, 15, 2):
            out.append(f"v_max3_f32 v{t}, v{t}, v{s+r}, v{s+r+1}")
        out.append(f"v_max_f32 v{t}, v{t}, v{s+15}")
        return out
    vr0 = vreads(0)
    emit(K1[:4])
    gaps = spread(16, [(0, 4, qr[8:]), (0, 14, K1[4:]), (10, 14, inmax(0, 124))])
    emit(merge(mf, gaps, pre={0: ["s_waitcnt lgkmcnt(4)"], 4: ["s_waitcnt lgkmcnt(8)"], 8: ["s_waitcnt lgkmcnt(0)"]}))
    a("s_lshl_b32 s51, s3, 2"); a(f"s_add_u32 s51, s51, {MISC}")
    a(f"v_add_u32 v12, s51, v{VL16}")
    emit(V1[:2])
    a("s_nop 5")
    emit(inmax(1, 125))
    a("s_nop 1")
    a("v_permlane32_swap_b32 v124, v125")
    a("s_nop 0")
    a("v_max_f32 v124, v124, v125")
    a("ds_write_b32 v12, v124")
    emit(V1[2:3])
    a("s_waitcnt lgkmcnt(0)"); a("s_barrier")
    a(f"ds_read_b128 v[{NM[0]}:{NM[0]+3}], v{VMX}")
    a(f"ds_read_b128 v[{NM[1]}:{NM[1]+3}], v{VMX} offset:512")
    emit(fs())
    a(f"s_waitcnt vmcnt({nwait('V0') + 10})")
    emit(vr0[:8])
    a("s_waitcnt lgkmcnt(8)")
    for qb in range(2):
        n = NM[qb]
        a(f"v_max3_f32 v{124+qb}, v{n}, v{n+1}, v{MS[qb]}")
        a(f"v_max3_f32 v{124+qb}, v{n+2}, v{n+3}, v{124+qb}")
    for qb in range(2):
        a(f"v_sub_f32 v{NM[qb]}, 0, v{124+qb}")
        a(f"v_sub_f32 v{NM[qb]+1}, 0, v{124+qb}")
    body_a = [f"v_pk_add_f32 v[{S0[0]+r}:{S0[0]+r+1}], v[{S0[0]+r}:{S0[0]+r+1}], v[{NM[0]}:{NM[0]+1}]" for r in range(0, 16, 2)]
    for r in range(15):
        body_a.append(ex(0, r))
        if r >= 1: body_a.append(ad(0, r-1))
        if r >= 2 and r % 2 == 0: body_a.append(cv(0, (r-2)//2))
    body_a += [f"v_pk_add_f32 v[{S0[1]+r}:{S0[1]+r+1}], v[{S0[1]+r}:{S0[1]+r+1}], v[{NM[1]}:{NM[1]+1}]" for r in range(0, 16, 2)]
    body_a += [f"v_pk_mov_b32 v[{NM[qb]+r}:{NM[qb]+r+1}], v[{NM[qb]}:{NM[qb]+1}], v[{NM[qb]}:{NM[qb]+1}]" for qb in range(2) for r in range(2, 16, 2)]
    n = len(body_a)
    SH0 = opt.get("sh", 0)
    extra = (nexttile() + dma_k(0)[:5*SH0]) if SH0 > 0 else []
    emit(merge(body_a, spread(n, [(0, n - 4, (V1[3:] if SH0 >= 0 else V1[3:5]) + extra), (4, 30, vr0[8:15])])))

    wo_slot = opt.get("wslot", [0, 4096, 8192, 12288, "X", 28672, 0, 4096])
    def wo_group(g):
        out = [f"s_add_u32 m0, s49, {wo_slot[g]}" if wo_slot[g] != "X" else "s_mov_b32 m0, s87"]
        out += [f"buffer_load_dwordx4 v{VKD+i}, s[36:39], s84 offen offset:{1024*i} lds" for i in range(4)]
        out += ["s_add_u32 s84, s84, 0x8000", "s_and_b32 s84, s84, 0x3ffff"]
        return out
    def wo_reads(g):
        out = []
        X = wo_slot[g] == "X"
        for s2_ in range(2):
            s = 2*g + s2_
            for ci in range(2):
                for u in range(2):
                    d = (s*2 + ci)*4 + 2*u
                    r_ = (117 if ci else 116) if X else (VWB if ci else VWA)
                    out.append(f"ds_read_b64_tr_b16 a[{d}:{d+1}], v{r_} offset:{(0 if X else wo_slot[g]) + (16*s2_ + 8*u)*128}")
        return out
    wpos = opt.get("wpos", {"i6": [(2, 10), (12, 20), (22, 30)], "f1": 0, "f2": 0, "f4": 1})
    wcnt = [0]
    def wnext(n=1):
        out = []
        for _ in range(n):
            out += wo_group(wcnt[0]); wcnt[0] += 1
        return out

    def body(par, kind):
        SH = opt.get("sh", 0)
        mf = pv(0) + qk(0) + pv(1) + qk(1)
        G = [[] for _ in range(32)]
        for r in range(16):
            G[(1 + r) % 32].append(ex(1, r)); G[(17 + r) % 32].append(ex(0, r))
        for r in range(16):
            G[(2 + r) % 32].append(ad(1, r)); G[(18 + r) % 32].append(ad(0, r))
        for i in range(8):
            G[(3 + 2*i) % 32].append(cv(1, i)); G[(19 + 2*i) % 32].append(cv(0, i))
        vr_prev = vreads(par); vr = vreads(1 - par); kr = kreads(1 - par)
        G[0].insert(0, vr_prev[15])
        G[0].append("WAITK")
        for s in range(8): G[1 + s].insert(0, kr[s])
        for i in range(15): G[17 + i].insert(0, vr[i])
        pre = {0: ["s_waitcnt lgkmcnt(7)"], 4: ["s_waitcnt lgkmcnt(3)"], 8: ["s_waitcnt lgkmcnt(3)"], 12: ["s_waitcnt lgkmcnt(0)"]}
        if kind == "dma":
            allg = [("V", 1 - par, 1), ("K", par, 0), ("K", par, 1), ("V", par, 0), ("V", par, 1), ("K", 1 - par, 0), ("K", 1 - par, 1)]
            grpz = allg[1 + SH: 5 + SH]
            pos = [(1, [2, 4, 6, 8]), (9, [10, 12, 14, 16]), (17, [18, 20, 22, 24]), (25, [26, 28, 30, 31])]
            for gi, (kd, sl, hf) in enumerate(grpz):
                d_ = (dma_k(sl) if kd == "K" else dma_v(sl))[5*hf:5*hf+5]
                if kd == "K" and hf == 0:
                    if gi == 0: pre[0] = [f"s_and_b32 s54, s60, {TM}"] + pre[0]
                    else: G[pos[gi][0]].append(f"s_and_b32 s54, s60, {TM}")
                    G[(pos[gi][0] + 2) % 32 if gi else 11].append("s_lshr_b64 s[60:61], s[60:61], 4")
                G[pos[gi][0]].append(d_[0])
                for i in range(4): G[pos[gi][1][i]].append(d_[1 + i])
            G[16].append("WAITV")
            if par == 1:
                G[13].append(f"buffer_load_dword v{VCNT}, v{125 if xl == 2 else VT}, s[68:71], s72 offen sc1")
                G[15].append("s_add_u32 s56, s56, 1")
        else:
            pat = [f"v_mov_b32 v{VKD}, v{VOD0}"] + [f"v_add_u32 v{VKD+i}, {7168*i}, v{VOD0}" for i in range(1, 4)]
            gw = spread(32, [(0, 2, pat)] + ([(1, 6, dma_v(1)[5:])] if SH < 0 else []) + [(g0, g1, wnext()) for (g0, g1) in wpos["i6"]])
            for i in range(32): G[i] += gw[i]
            G[16].append("WAITV")
            adr = []
            for j in range(1, 4):
                adr += [f"s_sub_u32 s52, s3, {j}", "s_and_b32 s52, s52, 3", "s_lshl_b32 s52, s52, 15", f"v_add_u32 v{100+j}, s52, v{VL16}"]
            adr += [f"v_add_u32 v12, s49, v{VL16}", "s_lshl_b32 s51, s3, 2", f"s_add_u32 s51, s51, {MISC+1024}", f"v_add_u32 v14, s51, v{VL16}",
                    "s_lshl_b32 s51, s41, 9", "s_lshl_b32 s52, s43, 3", "s_add_u32 s51, s51, s52", "s_lshl_b32 s52, s3, 1", "s_add_u32 s51, s51, s52",
                    "s_lshl_b32 s51, s51, 10", "s_add_u32 s52, s51, 262144", f"v_readfirstlane_b32 s73, v{VCNT}", f"s_mov_b32 s53, {hex(f2u(LIMIT))}"]
            if xl == 2:
                adr.remove(f"v_readfirstlane_b32 s73, v{VCNT}")
                pre_ = ["s_lshl_b32 s44, s41, 9", "s_lshl_b32 s45, s43, 3", "s_add_u32 s44, s44, s45", "s_lshl_b32 s45, s3, 1", "s_add_u32 s44, s44, s45",
                        "s_lshl_b32 s44, s44, 10", "s_add_u32 s44, s44, s46", "v_and_b32 v124, 31, v0", "v_lshlrev_b32 v124, 6, v124",
                        f"v_lshrrev_b32 v{VCNT}, 5, v0", f"v_lshl_add_u32 v124, v{VCNT}, 18, v124", "s_add_u32 s48, s77, s46",
                        f"buffer_load_dword v{VCNT}, v124, s[64:67], s44 offen sc1", f"buffer_load_dword v{VCNT}, v{VT}, s[64:67], s48 offen sc1",
                        "s_add_u32 s45, s44, 262144"]
                gp = spread(32, [(0, 6, pre_)])
                for i in range(32): G[i] += gp[i]
                adr += ["s_add_u32 s51, s51, s47", "s_add_u32 s52, s52, s47"]
            ga = spread(32, [(6, 24, adr)])
            for i in range(32): G[i] += ga[i]
        seq = fs() + merge(mf, G, pre)
        issued = 0; out = []
        for x in seq:
            if x == "WAITK": out.append(f"s_waitcnt vmcnt({8 + 4*SH + issued})")
            elif x == "WAITV": out.append(f"s_waitcnt vmcnt({4*SH + issued})")
            else:
                if x.startswith("buffer_load"): issued += 1
                out.append(x)
        return out
    rot = opt.get("rot", 1)
    if rot in (5, 6):
        a("s_add_u32 s80, s42, s41" if rot == 5 else "s_mov_b32 s80, s41")
        a("s_mul_i32 s51, s80, 86"); a("s_lshr_b32 s51, s51, 8"); a("s_mul_i32 s51, s51, 3"); a("s_sub_u32 s80, s80, s51"); a("s_mul_i32 s80, s80, 3")
    elif rot == 3:
        a("s_add_u32 s80, s42, s41"); a("s_lshl_b32 s80, s80, 1"); a("s_and_b32 s80, s80, 7")
    elif rot == 4:
        a("s_lshl_b32 s80, s41, 1"); a("s_and_b32 s80, s80, 7")
    elif rot == 2:
        if xl:
            a("s_lshl_b32 s80, s41, 1"); a("s_add_u32 s80, s80, s43"); a("s_and_b32 s80, s80, 7")
        else:
            a("s_lshl_b32 s80, s42, 1"); a("s_add_u32 s80, s80, s41"); a("s_and_b32 s80, s80, 7")
    else:
        a("s_mov_b32 s80, s41" if rot else "s_mov_b32 s80, 0")
    a("s_lshl_b32 s84, s80, 15")
    a("s_lshl_b32 s87, s3, 12"); a(f"s_add_u32 s87, s87, {XB}")
    a("s_mov_b32 s86, s75")
    if opt.get("warm", 1):
        a("s_mov_b64 exec, 1")
        a(f"buffer_atomic_or v{VT}, v{VT}, s[64:67], s77 offen sc1")
        a(f"buffer_atomic_or v{VT}, v{VT}, s[64:67], s86 offen sc1")
        a("s_mov_b64 exec, -1")
    if xl == 2:
        a("s_and_b32 s51, s40, 6"); a("s_lshl_b32 s51, s51, 1"); a("s_add_u32 s51, s51, 4")
        a("v_min_u32 v125, 1, v0"); a("v_mul_u32_u24 v125, s51, v125")
        a("s_getreg_b32 s58, hwreg(HW_REG_XCC_ID, 0, 3)")
        a("s_lshl_b32 s58, s58, 2")
        a("s_or_b32 s52, s3, s76")
        a("s_cbranch_scc1 L_nocen")
        a("s_lshl_b32 s52, 1, s58")
        a("v_mov_b32 v124, s52")
        a("s_mov_b64 exec, 2")
        a("buffer_atomic_add v124, v125, s[68:71], s72 offen sc1")
        a("s_mov_b64 exec, -1")
        a.label("L_nocen")
    a("s_mov_b32 s56, 0")
    if "al" in opt:
        a(".p2align 6")
        for _ in range(opt["al"]): a("s_nop 0")
    a.label("L_loop")
    emit(body(0, "dma"))
    emit(body(1, "dma"))
    a("s_cmp_lt_u32 s56, 3")
    a("s_cbranch_scc1 L_loop")
    if xl == 2:
        a("s_mov_b32 s93, 0x40000")
        a("s_waitcnt vmcnt(8)")
        a.label("L_cen")
        a(f"v_readlane_b32 s73, v{VCNT}, 0")
        a(f"v_readlane_b32 s59, v{VCNT}, 1")
        a("s_mul_i32 s57, s59, 0x11111111")
        a("s_lshr_b32 s57, s57, 28")
        a("s_cmp_eq_u32 s73, 0")
        a("s_cselect_b32 s57, 0, s57")
        a("s_cmp_eq_u32 s57, 8")
        a("s_cbranch_scc1 L_cenok")
        a(f"buffer_load_dword v{VCNT}, v125, s[68:71], s72 offen sc1")
        a("s_sub_u32 s93, s93, 1")
        a("s_waitcnt vmcnt(0)")
        a("s_cbranch_scc0 L_cen")
        a.label("L_cenok")
        a("s_lshl_b32 s57, 8, s58")
        a("s_cmp_eq_u32 s59, s57")
        if opt.get("forceslow"): a("s_cmp_eq_u32 0, 1")
        a("s_cselect_b32 s46, 0, 0x40000000")
        a("s_cselect_b32 s47, 0x40000000, 0")
    emit(body(0, "wo"))
    emit(fs())
    mf = pv(0, (1, 2, 3, 0))
    G = [[] for _ in range(8)]
    G[0] += [vreads(1)[15], ex(0, 15), ad(0, 14)]
    G[1] += [ad(0, 15), cv(0, 7)]
    sm = []
    for r in range(16):
        sm.append(ex(1, r))
        if r >= 1: sm.append(ad(1, r-1))
        if r >= 2 and r % 2 == 0: sm.append(cv(1, (r-2)//2))
    tail_b = [ad(1, 15), cv(1, 7)]
    n1 = opt.get("n1", 28)
    wl = wnext(wpos["f1"])
    g2 = spread(8, [(1, 8, sm[:n1]), (1, 8, wl)])
    for i in range(8): G[i] += g2[i]
    emit(merge(mf, G, {0: ["s_waitcnt lgkmcnt(7)"], 4: ["s_waitcnt lgkmcnt(0)"]}))
    def pack(qb, j): return [f"v_cvt_pk_bf16_f32 v{Oi(qb,j)+i}, v{Oi(qb,j)+2*i}, v{Oi(qb,j)+2*i+1}" for i in range(8)]
    def send(qb, j): return [f"ds_write_b128 v12, v[{Oi(qb,j)+4*sp}:{Oi(qb,j)+4*sp+3}] offset:{PART + ((j-1)*4 + qb*2 + sp)*1024}" for sp in range(2)]
    mf = pv(1, (1, 2, 3, 0))
    lst = [f"v_permlane32_swap_b32 v{L_[0]}, v{L_[1]}", "s_nop 0", f"v_add_f32 v{L_[0]}, v{L_[0]}, v{L_[1]}", f"ds_write_b32 v14, v{L_[0]}"]
    pa = []
    for j in (1, 2, 3): pa += pack(0, j) + send(0, j)
    G = spread(8, [(0, 2, sm[n1:] + ["s_nop 0"] + tail_b), (2, 7, pa), (4, 5, lst), (2, 8, wnext(wpos["f2"])), (7, 8, pack(1, 1))])
    emit(merge(mf, G))
    a("s_waitcnt lgkmcnt(0)")
    emit(fs())
    a("s_barrier")
    def rb(qb, j, sp): return 16 + ((qb*3 + j-1)*2 + sp)*4
    def prd(qb): return [f"ds_read_b128 v[{rb(qb,j,sp)}:{rb(qb,j,sp)+3}], v{100+j} offset:{PART + ((j-1)*4 + qb*2 + sp)*1024}" for j in range(1, 4) for sp in range(2)]
    def red(qb): return [mf32(O_(qb, 0), R("v", ID[sp], 4), R("v", rb(qb,j,sp), 4), O_(qb, 0)) for j in range(1, 4) for sp in range(2)]
    emit(prd(0))
    a(f"ds_read_b128 v[64:67], v{VMX} offset:1024")
    a(f"ds_read_b128 v[68:71], v{VMX} offset:1536")
    emit(send(1, 1) + pack(1, 2) + send(1, 2))
    lsum = ["v_add_f32 v64, v64, v65", "v_add_f32 v66, v66, v67", "v_add_f32 v68, v68, v69", "v_add_f32 v70, v70, v71",
            "v_add_f32 v64, v64, v66", "v_add_f32 v68, v68, v70", "v_add_f32 v73, v64, v68",
            "v_cmp_nlt_f32 vcc, v73, s53", "v_rcp_f32 v64, v64", "v_rcp_f32 v68, v68"]
    chk = ["s_cmp_eq_u32 s76, 0", "s_cselect_b64 s[94:95], vcc, 0", "s_cmp_lg_u64 s[94:95], 0", "s_cbranch_scc1 L_fallback"]
    nb = opt.get("nb", 4)
    G = spread(6, [(0, 2, pack(1, 3) + send(1, 3)), (2, 4, lsum), (4, 6, wnext(wpos["f4"]))])
    G[nb - 1] += ["s_waitcnt lgkmcnt(0)", "s_barrier"] + prd(1)
    emit(merge(red(0), G, {0: ["s_waitcnt lgkmcnt(4)"]}))
    emit(chk)
    def fin(qb):
        o = Oi(qb, 0); g = 64 + 4*qb
        out = [f"v_pk_mul_f32 v[{o+r}:{o+r+1}], v[{o+r}:{o+r+1}], v[{g}:{g+1}] op_sel_hi:[1,0]" for r in range(0, 16, 2)]
        out += pack(qb, 0)
        out += [f"buffer_store_dwordx4 v[{o+4*sp}:{o+4*sp+3}], v{VL16}, s[64:67], {'s52' if qb else 's51'} offen offset:{sp*1024} sc1" for sp in range(2)]
        if xl == 2:
            out += [f"buffer_store_dwordx4 v[{o+4*sp}:{o+4*sp+3}], v{VL16}, s[64:67], {'s45' if qb else 's44'} offen offset:{sp*1024} {opt.get('fst', 'nt')}" for sp in range(2)]
        return out
    f0_ = [f"v_mul_f32 v{Oi(0,0)+r}, v64, v{Oi(0,0)+r}" for r in range(16)] + fin(0)[8:]
    emit(merge(red(1), spread(6, [(1, 6, f0_)]), {0: ["s_waitcnt lgkmcnt(4)"], 2: ["s_waitcnt lgkmcnt(0)"]}))
    a("s_sub_u32 s88, s87, s49")
    a(f"v_add_u32 v116, s88, v{VWA}"); a(f"v_add_u32 v117, s88, v{VWB}")
    a("v_and_b32 v14, 1, v0"); a("v_sub_u32 v14, 0, v14")
    a("v_and_b32 v12, 15, v0"); a("v_lshlrev_b32 v12, 2, v12")
    emit(fin(1))
    emit(fs())
    npre = wcnt[0]
    if xl != 2:
        a("s_mov_b32 s93, 0x40000")
        a.label("L_tag")
        a("s_cmp_lg_u32 s73, 0")
        a("s_cbranch_scc1 L_tagok")
        a(f"buffer_load_dword v{VCNT}, v{VT}, s[68:71], s72 offen sc1")
        a("s_waitcnt vmcnt(0)")
        a(f"v_readfirstlane_b32 s73, v{VCNT}")
        a("s_sub_u32 s93, s93, 1")
        a("s_cbranch_scc0 L_tag")
        a.label("L_tagok")
    la = opt.get("late_a", 2)
    emit(wnext(la))
    a(f"s_waitcnt vmcnt({(8 if xl == 2 else 4) + 4*la})")
    for g in range(min(npre, 2)): emit(wo_reads(g))
    a("v_xor_b32 v14, s73, v14")
    a("s_lshl_b32 s51, s41, 5"); a("s_add_u32 s51, s51, s78"); a("s_lshl_b32 s51, s51, 5"); a(f"s_add_u32 s55, s51, {FL_OFF}")
    a("s_lshl_b32 s51, s41, 9"); a("s_lshl_b32 s52, s78, 3"); a("s_add_u32 s51, s51, s52"); a("s_lshl_b32 s51, s51, 10")
    a("s_add_u32 s32, s18, s51"); a("s_addc_u32 s33, s19, 0"); a("s_and_b32 s33, s33, 0xffff"); a("s_mov_b32 s34, 0x44000")
    a("s_and_b32 s52, s40, 4"); a("s_lshl_b32 s52, s52, 16")
    a(f"v_add_u32 v104, s52, v{VL16}")
    a(f"v_xor_b32 v105, 0x40000, v104")
    def pollops():
        o = [f"buffer_atomic_or v106, v12, s[64:67], {'s59' if xl == 2 else 's55'} offen sc0 sc1"]
        if xl == 2: o.append("buffer_load_dword v107, v12, s[64:67], s55 offen sc1")
        return o
    a("v_mov_b32 v106, 0")
    if xl == 2:
        a("s_add_u32 s59, s55, s47"); a("s_add_u32 s55, s55, s46"); a("s_add_u32 s77, s77, s47")
    a(f"s_waitcnt vmcnt({4*la})")
    a("s_mov_b64 exec, 3")
    if xl == 2: a(f"buffer_store_dword v14, v12, s[64:67], s48 offen")
    a(f"buffer_atomic_swap v14, v12, s[64:67], s77 offen sc1")
    a("s_mov_b64 exec, 0xffff")
    emit(pollops())
    a("s_mov_b64 exec, -1")
    emit(fs(True))
    nrest = 8 - wcnt[0]
    a("s_waitcnt lgkmcnt(0)")
    emit(wnext(nrest))
    for g in range(2, npre): emit(wo_reads(g))
    a("s_mov_b32 s93, 0x40000")
    a(f"s_waitcnt vmcnt({4*nrest})")
    for g in range(npre, npre + la): emit(wo_reads(g))
    a("s_mov_b64 exec, 0xffff")
    pp = opt.get("pp", 0)
    if not pp:
        a.label("L_poll")
        if xl == 2: a("v_or_b32 v106, v106, v107")
        a("v_cmp_ne_u32 vcc, v14, v106")
        a("s_cbranch_vccz L_pollend")
        a("v_mov_b32 v106, 0")
        emit(pollops())
        a("s_sub_u32 s93, s93, 1")
        a("s_waitcnt vmcnt(0)")
        a("s_cbranch_scc0 L_poll")
    else:
        pd = opt.get("pd", 2)
        regs = [106, 107, 108, 109][:pd]
        a("v_cmp_ne_u32 vcc, v14, v106")
        a("s_cbranch_vccz L_pollend")
        for x in regs: a(f"v_mov_b32 v{x}, 0")
        for x in regs[:-1]:
            a(f"buffer_atomic_or v{x}, v12, s[64:67], s55 offen sc0 sc1")
            a(f"s_sleep {pp}")
        a.label("L_poll")
        for i_ in range(pd):
            x = regs[(i_ - 1) % pd]; y = regs[i_]
            a(f"buffer_atomic_or v{x}, v12, s[64:67], s55 offen sc0 sc1")
            a(f"s_waitcnt vmcnt({pd - 1})")
            a(f"v_cmp_ne_u32 vcc, v14, v{y}")
            a("s_cbranch_vccz L_pollend")
            a(f"v_mov_b32 v{y}, 0")
        a("s_sub_u32 s93, s93, 1")
        a("s_cbranch_scc0 L_poll")
    a.label("L_pollend")
    a("s_mov_b64 exec, -1")
    emit(fs(True))
    a("s_lshl_b32 s85, s80, 11")
    def oreg(i): return 128 + 4*i
    def oload(i):
        q = 1 - i // 16; s_ = i % 16
        o = [f"buffer_load_dwordx4 v[{oreg(i)}:{oreg(i)+3}], v{104+q}, s[32:35], s85 offen offset:{1024*(s_%2)} sc1"]
        if s_ % 2 == 1: o += ["s_add_u32 s85, s85, 2048", "s_and_b32 s85, s85, 0x3fff"]
        return o
    D = opt.get("odepth", 10)
    for i in range(D): emit(oload(i))
    late_reads = []
    for g in range(npre + la, 8): late_reads += wo_reads(g)
    def acc(j): return R("v", 16 + 16*j, 16)
    def omf(j, s_):
        i = (0 if j >> 1 else 16) + s_
        return mf32(acc(j), R("a", (s_*2 + (j & 1))*4, 4), R("v", oreg(i), 4), "0" if s_ == 0 else acc(j))
    NL = opt.get("nlag", 8)
    sched = []
    for s_ in range(16): sched += [(omf(3, s_), s_), (omf(2, s_), s_)]
    for s_ in range(16):
        sched.append((omf(1, s_), 16 + s_))
        if s_ < 16 - NL: sched.append((omf(0, s_), 16 + s_))
    nfirst = len(sched)
    for s_ in range(16 - NL, 16): sched.append((omf(0, s_), 16 + s_))
    misc = [f"v_add_u32 v12, s49, v{VL16}"] + [f"v_xor_b32 v{100+j}, {j << 15}, v12" for j in range(1, 4)]
    misc += ["v_mov_b32 v80, 0xff", "s_lshr_b32 s81, s73, 8", "s_lshr_b32 s82, s73, 16", "s_lshr_b32 s83, s73, 24"]
    for j in range(1, 4):
        misc += [f"s_xor_b32 s51, s2, {2*j}", "s_mul_i32 s51, s51, 12288", f"s_add_u32 s{93+j}, s51, {X_OFF + (j-1)*4096}"]
    misc += ["s_mul_i32 s51, s2, 12288", f"s_add_u32 s97, s51, {X_OFF}", "s_add_u32 s98, s97, 4096", "s_add_u32 s99, s97, 8192",
             "s_lshl_b32 s51, s3, 10", f"v_add_u32 v81, s51, v{VL16}",
             "s_mov_b32 s28, s14", "s_and_b32 s29, s15, 0xffff", "s_mov_b32 s30, 0x80000", "s_mov_b32 s31, 0x20000",
             "v_and_b32 v82, 31, v0", "v_lshlrev_b32 v82, 10, v82", "v_lshrrev_b32 v83, 5, v0", "v_lshl_add_u32 v82, v83, 3, v82",
             "s_lshl_b32 s50, s41, 16", "s_and_b32 s51, s40, 4", "s_lshl_b32 s51, s51, 13", "s_add_u32 s50, s50, s51",
             "s_lshl_b32 s51, s79, 7", "s_add_u32 s50, s50, s51", "s_and_b32 s51, s40, 2", "s_lshl_b32 s51, s51, 5", "s_add_u32 s50, s50, s51",
             "s_lshl_b32 s51, s3, 4", "s_add_u32 s50, s50, s51",
             "v_mov_b32 v84, 0x0c0c0400", "v_mov_b32 v85, 0x05040100",
             "s_and_b32 s52, s2, 6", "s_lshl_b32 s52, s52, 1", "s_add_u32 s88, s86, s52",
             "v_add_u32 v86, 1, v0", "v_lshlrev_b32 v86, 2, v86", "v_xor_b32 v86, s52, v86",
             "v_cmp_eq_u32 vcc, 0, v0", "v_mov_b32 v87, s73", "v_add_u32 v88, 16, v86", "v_cndmask_b32 v86, v86, v88, vcc"]
    CB = 0
    def wr(j): return [f"ds_write_b128 v12, v[{16+16*j+4*k}:{19+16*j+4*k}] offset:{CB + (j*3 + k-1)*1024}" for k in range(1, 4)]
    def rdd(j): return [f"ds_read_b128 v[{16+16*j+4*k}:{19+16*j+4*k}], v{100+k} offset:{CB + (j*3 + k-1)*1024}" for k in range(1, 4)]
    tg = ["s73", "s81", "s82", "s83"]
    def summ(j, pk):
        b = 16 + 16*j; out = []
        if pk:
            for p in (0, 2):
                out += [f"v_pk_add_f32 v[{b+p}:{b+p+1}], v[{b+p}:{b+p+1}], v[{b+4+p}:{b+5+p}]", f"v_pk_add_f32 v[{b+8+p}:{b+9+p}], v[{b+8+p}:{b+9+p}], v[{b+12+p}:{b+13+p}]"]
            for p in (0, 2):
                out += [f"v_pk_add_f32 v[{b+p}:{b+p+1}], v[{b+p}:{b+p+1}], v[{b+8+p}:{b+9+p}]"]
        else:
            for i in range(4): out += [f"v_add_f32 v{b+i}, v{b+i}, v{b+4+i}", f"v_add_f32 v{b+8+i}, v{b+8+i}, v{b+12+i}"]
            for i in range(4): out += [f"v_add_f32 v{b+i}, v{b+i}, v{b+8+i}"]
        if j:
            out += [f"v_bfi_b32 v{b+i}, v80, {tg[i]}, v{b+i}" for i in range(4)]
            out += [f"buffer_store_dwordx4 v[{b}:{b+3}], v81, s[64:67], s{93+j} offen sc1"]
        return out
    def hint(off):
        return ["s_mov_b64 exec, 1", f"buffer_atomic_swap v87, v{VT}, s[64:67], s88 offen offset:{off} sc1", "s_mov_b64 exec, -1"]
    n = len(sched)
    G = spread(n, [(0, 8, late_reads), (2, 30, misc), (34, 38, wr(3) + wr(2)),
                   (43, 50, ["s_waitcnt lgkmcnt(0)"] + summ(3, False) + summ(2, False)), (nfirst + 1, nfirst + 2, wr(1))])
    G[12].append("s_waitcnt lgkmcnt(0)")
    G[40] += ["s_waitcnt lgkmcnt(0)", "s_barrier"] + rdd(3) + rdd(2)
    G[50] += hint(0)
    g1 = min(n - 1, nfirst + 3)
    G[g1] += ["s_waitcnt lgkmcnt(0)", "s_barrier"] + rdd(1)
    g2_ = min(n - 1, nfirst + 5)
    s1 = ["s_waitcnt lgkmcnt(0)"] + summ(1, False)
    gg = spread(n, [(g2_, n, s1)])
    for i in range(n): G[i] += gg[i]
    G[n-1] += hint(16)
    vmq = [("ld", i) for i in range(D)]
    issued = D; seen = -1
    for i, (m, need) in enumerate(sched):
        newload = False
        if need > seen:
            a(f"s_waitcnt vmcnt({len(vmq) - 1 - vmq.index(('ld', need))})" + (" lgkmcnt(0)" if i == 0 else ""))
            seen = need; newload = True
        a(m)
        if newload and issued < 32:
            emit(oload(issued)); vmq.append(("ld", issued)); issued += 1
        for x in G[i]:
            if x.startswith("buffer_"): vmq.append(("st", 0))
        emit(G[i])
    emit(fs(True))
    a("v_mov_b32 v88, 0")
    a("s_mov_b64 exec, 7")
    a(f"buffer_atomic_or v88, v86, s[64:67], s86 offen sc0 sc1")
    a("s_mov_b64 exec, -1")
    a("s_nop 3")
    emit(wr(0))
    a("s_waitcnt lgkmcnt(0)"); a("s_barrier")
    emit(rdd(0))
    a("s_waitcnt lgkmcnt(0)")
    emit(summ(0, True))
    emit(fs(True))
    a("s_mov_b32 s93, 0x40000")
    a("s_mov_b64 exec, 7")
    if not opt.get("hp"):
        a("s_waitcnt vmcnt(0)")
        a.label("L_h")
        a("v_cmp_ne_u32 vcc, v87, v88")
        a("s_cbranch_vccz L_hend")
        a("v_mov_b32 v88, 0")
        a(f"buffer_atomic_or v88, v86, s[64:67], s86 offen sc0 sc1")
        a("s_sub_u32 s93, s93, 1")
        a("s_waitcnt vmcnt(0)")
        a("s_cbranch_scc0 L_h")
    else:
        a("v_mov_b32 v89, 0")
        a.label("L_h")
        for x, y in ((89, 88), (88, 89)):
            a(f"buffer_atomic_or v{x}, v86, s[64:67], s86 offen sc0 sc1")
            a("s_waitcnt vmcnt(1)")
            a(f"v_cmp_ne_u32 vcc, v87, v{y}")
            a("s_cbranch_vccz L_hend")
            a(f"v_mov_b32 v{y}, 0")
        a("s_sub_u32 s93, s93, 1")
        a("s_cbranch_scc0 L_h")
    a.label("L_hend")
    a("s_mov_b64 exec, -1")
    emit(fs(True))
    a("s_mov_b32 s93, 0x40000")
    a.label("L_x")
    for j in range(3):
        a(f"buffer_load_dwordx4 v[{32+4*j}:{35+4*j}], v81, s[64:67], s{97+j} offen sc1")
    a("s_waitcnt vmcnt(0)")
    for j in range(3):
        b = 32 + 4*j
        a(f"v_perm_b32 v{44+2*j}, v{b+1}, v{b}, v84")
        a(f"v_perm_b32 v{45+2*j}, v{b+3}, v{b+2}, v84")
    for j in range(3):
        a(f"v_perm_b32 v{44+2*j}, v{45+2*j}, v{44+2*j}, v85")
    for j in range(3):
        a(f"v_xor_b32 v{44+2*j}, s73, v{44+2*j}")
    a("v_or3_b32 v44, v44, v46, v48")
    a("v_cmp_ne_u32 vcc, 0, v44")
    a("s_cbranch_vccz L_xend")
    a("s_sub_u32 s93, s93, 1")
    a("s_cbranch_scc0 L_x")
    a.label("L_xend")
    emit(fs(True))
    for i in range(12): a(f"v_and_b32 v{32+i}, 0xffffff00, v{32+i}")
    for p in range(2):
        a(f"v_pk_add_f32 v[{16+2*p}:{17+2*p}], v[{16+2*p}:{17+2*p}], v[{32+2*p}:{33+2*p}]")
        a(f"v_pk_add_f32 v[{36+2*p}:{37+2*p}], v[{36+2*p}:{37+2*p}], v[{40+2*p}:{41+2*p}]")
    for p in range(2):
        a(f"v_pk_add_f32 v[{16+2*p}:{17+2*p}], v[{16+2*p}:{17+2*p}], v[{36+2*p}:{37+2*p}]")
    a("v_cvt_pk_bf16_f32 v16, v16, v17")
    a("v_cvt_pk_bf16_f32 v17, v18, v19")
    a("buffer_store_dwordx2 v[16:17], v82, s[28:31], s50 offen")
    if fine:
        a("s_waitcnt vmcnt(0)")
        emit(fs(True, True)); emit(fs(True, True))
        a("s_lshl_b32 s51, s2, 2"); a("s_add_u32 s51, s51, s3"); a("s_lshl_b32 s51, s51, 8"); a(f"s_add_u32 s51, s51, {ST_OFF}")
        a("v_lshlrev_b32 v6, 2, v0")
        a("buffer_store_dword v127, v6, s[64:67], s51 offen")
    a.label("L_end")
    a("s_endpgm")

    a.label("L_fallback")
    a("s_mov_b32 s76, 1")
    a("s_waitcnt vmcnt(0) lgkmcnt(0)")
    a("s_barrier")
    for s in range(1, 4):
        a(f"v_xor_b32 v{VKR+s}, {32*s}, v{VKR}")
    for qb in range(2):
        for s_ in range(8):
            a(f"ds_write_b128 v{VQR}, {Q_(qb,s_)} offset:{(qb*8+s_)*1024}")
    a(f"v_subrev_u32 v{VKD}, 4096, v{VKD+4}")
    emit(kd_setup())
    a("s_mov_b32 s54, 0")
    a.label("L_fb_loop")
    emit(dma_k(0))
    a("s_waitcnt vmcnt(0)")
    emit(kreads(0))
    a("s_waitcnt lgkmcnt(0)")
    emit(qk(0, True) + qk(1, True))
    a("s_nop 15")
    for qb in range(2):
        for r in range(0, 16, 2):
            a(f"v_max3_f32 v{MS[qb]}, v{MS[qb]}, v{S0[qb]+r}, v{S0[qb]+r+1}")
    a(f"s_add_u32 s54, s54, {1 << TSH}")
    a(f"s_cmp_lt_u32 s54, {8 << TSH}")
    a("s_cbranch_scc1 L_fb_loop")
    a("s_nop 1")
    a(f"v_permlane32_swap_b32 v{MS[0]}, v{MS[1]}")
    a("s_lshl_b32 s51, s3, 2"); a(f"s_add_u32 s51, s51, {MISC+2048}")
    a(f"v_add_u32 v12, s51, v{VL16}")
    a(f"v_max_f32 v124, v{MS[0]}, v{MS[1]}")
    a("ds_write_b32 v12, v124")
    a("s_waitcnt lgkmcnt(0)"); a("s_barrier")
    a(f"ds_read_b128 v[16:19], v{VMX} offset:2048")
    a(f"ds_read_b128 v[20:23], v{VMX} offset:2560")
    a("s_waitcnt lgkmcnt(0)")
    for qb in range(2):
        a(f"v_max_f32 v{MS[qb]}, v{16+4*qb}, v{17+4*qb}")
        a(f"v_max3_f32 v{MS[qb]}, v{18+4*qb}, v{19+4*qb}, v{MS[qb]}")
    a("s_mov_b64 s[60:61], s[62:63]")
    emit(nexttile() + dma_k(0) + dma_v(0))
    for k in range(4): a(f"v_mov_b32 v{VZ+k}, 0")
    a("s_nop 1")
    emit(zmf)
    a("s_waitcnt vmcnt(0)")
    a("s_branch L_att")
    return a.text()

def build(opt, fname):
    k = NAME + "_kernel"
    hdr = f"""; GQA block, one fused kernel: q-projection + attention + output projection
; @launch grid=(256,1,1) block=(256,1,1) lds=163840
.amdgcn_target "amdgcn-amd-amdhsa--gfx950"
"""
    txt = hdr + kernel_header(k) + gen(opt)
    txt += '.section .rodata,"a"\n.p2align 6\n' + kernel_desc(k, 512, 102, 256)
    open(fname, "w").write(txt)

L = [order(range(8))]*4
P = [order([0,1,2,3,4,5,6,7]), order([4,5,6,7,0,1,2,3])]*2
K6 = [order([0,1,2,3,4,5,6,7]), order([6,7,2,3,4,5,0,1])]*2
K5 = [order([0,1,2,3,4,5,6,7]), order([5,6,7,3,4,0,1,2])]*2
if __name__ == "__main__":
    B = {"orders": K5}
    B = dict(B, rot=2)
    W = lambda i6, f1, f2, f4: {"i6": i6, "f1": f1, "f2": f2, "f4": f4}
    B = dict(B, nb=6)
    K7 = [order([0,1,2,3,4,5,6,7]), order([7,1,2,3,4,5,6,0])]*2
    K6s = [order([0,1,2,3,4,5,6,7]), order([6,1,2,7,4,5,0,3])]*2
    K6l = [order([0,1,2,3,4,5,6,7]), order([0,1,2,3,6,7,4,5])]*2
    K5s = [order([0,1,2,3,4,5,6,7]), order([5,1,6,3,7,0,2,4])]*2
    R1 = [order(x) for x in ([0,2,1,3,4,6,5,7], [0,1,3,2,4,5,7,6], [1,0,2,4,3,5,6,7], [1,0,2,3,5,4,6,7])]
    R2 = [order(x) for x in ([0,2,1,6,3,4,5,7], [0,1,4,2,3,5,6,7], [1,3,0,7,2,4,5,6], [1,0,5,2,3,4,6,7])]
    R3 = [order(x) for x in ([0,2,1,3,6,4,5,7], [0,1,4,2,3,5,6,7], [1,3,0,2,4,7,5,6], [1,0,2,5,3,4,6,7])]
    R4 = [order(x) for x in ([0,3,1,2,4,7,5,6], [0,1,4,2,3,5,6,7], [1,0,2,5,3,4,6,7], [2,0,1,3,6,4,5,7])]
    R5 = [order(x) for x in ([0,4,1,2,3,5,6,7], [1,0,5,2,3,4,6,7], [2,0,1,6,3,4,5,7], [3,0,1,2,7,4,5,6])]
    R6 = [order(x) for x in ([0,1,4,2,3,5,6,7], [1,0,2,5,3,4,6,7], [2,0,1,3,6,4,5,7], [3,0,1,2,4,7,5,6])]
    B = dict(B, orders=R1)
    W = lambda i6, f1, f2, f4: {"i6": i6, "f1": f1, "f2": f2, "f4": f4}
    A0, A1, A2, A3 = R1
    R8 = [order(x) for x in ([0,2,1,3,6,4,5,7], [0,1,3,2,4,7,5,6], [1,0,2,4,3,5,6,7], [1,0,2,3,5,4,6,7])]
    R9 = [order(x) for x in ([0,2,1,3,4,6,5,7], [0,1,3,2,4,7,5,6], [1,0,2,4,3,5,6,7], [1,0,2,3,5,4,6,7])]
    P1 = [A0, A2, A1, A3]
    W5 = W([(1, 5), (24, 28), (28, 32)], 0, 0, 1)
    C = dict(B, orders=P1, wpos=W5, late_a=0, nb=4, nlag=6, pp=2)
    W0 = W([(2, 10), (12, 20), (22, 30)], 0, 0, 1)
    D_ = dict(C, wpos=W0, hp=1, pp=0, odepth=12)
    D_ = dict(D_, orders=R1)
    Wm = W([(8, 14), (16, 22), (24, 30)], 0, 0, 1)
    Q_3 = dict(D_, qr=3, orders=R3)
    R12 = [order(x) for x in ([0,2,1,3,6,5,7,4], [0,1,4,2,3,6,5,7], [1,3,0,4,2,7,6,5], [1,0,2,5,4,3,7,6])]
    V = {"b": Q_3, "rot5": dict(Q_3, rot=5), "rot6": dict(Q_3, rot=6), "r12": dict(Q_3, orders=R12),
         "rot5w": dict(Q_3, rot=5, wpos=W([(2, 8), (14, 20), (26, 32)], 0, 0, 1)), "rot3w": dict(Q_3, rot=3, wpos=W([(2, 8), (16, 22)], 1, 0, 1))}
    for n, o in V.items():
        build(o, f"v24_{n}.s")
        build(dict(o, fine=3), f"v24_{n}_m.s")
```

```python
import sys, math, struct
from asmlib import *

C_SCALE = math.log2(math.e) / math.sqrt(128.0)
def f2u(f): return struct.unpack("<I", struct.pack("<f", f))[0]
def mf32(d, a, b, c): return f"v_mfma_f32_32x32x16_bf16 {d}, {a}, {b}, {c}"
def R(p, lo, n): return f"{p}[{lo}:{lo+n-1}]"

OB = 128
def Oi(qb, j): return OB + (qb*4+j)*16
def O_(qb, j): return R("v", Oi(qb, j), 16)
def Q_(qb, s): return R("a", 128 + (qb*8+s)*4, 4)
def Kf(s): return R("a", 192 + 4*s, 4)
def Vf(st, j): return R("a", 224 + (st*4+j)*4, 4)
def Vfh(st, j, u): return R("a", 224 + (st*4+j)*4 + 2*u, 2)
S0 = [16, 32]; NM = [48, 64]; P0 = [80, 88]; L_ = [96, 97]
VCNT = 98; VT = 99
VKR = 100; VVR = 108; VKD = 112; VVD = 120; MS = [122, 123]
ID = [2, 6]
VL16 = 13; VQR = 15; VMX = 10; VWA = 11; VWB = 1
VOD0 = 126
VXD = 48; VWD = 50; VXR = 54; VWR = 58; T = 16; VZ = 64
XB = 131072; QAREA = XB; MISC = XB + 16384
X_OFF = 0x400000; FL_OFF = 0x800000; ST_OFF = 0x810000
PART = 16384
LIMIT = 2.0 ** 40

def spread(n, fillers):
    gaps = [[] for _ in range(n)]
    for (g0, g1, lst) in fillers:
        lst = [x for x in lst if x is not None]
        k = max(1, len(lst))
        for i, x in enumerate(lst):
            gaps[g0 + (i * (g1 - g0)) // k].append(x)
    return gaps

def fix_m0(seq):
    out = []
    for i, x in enumerate(seq):
        out.append(x)
        if " m0," in x and i + 1 < len(seq) and seq[i+1].startswith("buffer_load"):
            out.append("s_nop 0")
    return out

def merge(mf, gaps, pre=None):
    s = []
    for i, m in enumerate(mf):
        if pre and i in pre: s += pre[i]
        s.append(m); s += gaps[i]
    return [x for x in s if x is not None]

def order(l):
    v = 0
    for i, t in enumerate(l): v |= t << (4*i)
    return v

def gen(opt):
    a = Asm()
    IL = opt.get("il", 0)
    MSUM = opt.get("msum", 0)
    TSH = 15 if IL else 13
    TM = hex(15 << TSH)
    fine = opt.get("fine")
    clk = "s_memtime" if fine == 2 else "s_memrealtime"
    def fs(sync=False, last=False):
        if not fine: return []
        if fine == 3 and not last: return []
        return (["s_waitcnt lgkmcnt(0)"] if sync else []) + ["s_mov_b32 s89, m0", "s_mov_b32 m0, s92", "s_add_u32 s92, s92, 1", "v_writelane_b32 v127, s90, m0", clk + " s[90:91]", "s_mov_b32 m0, s89"]
    def emit(l):
        for x in fix_m0(l): a(x)
    a.c('workgroups past the 256 that carry data leave at once')
    a("s_cmp_ge_u32 s2, 256")
    a("s_cbranch_scc1 L_end")
    a("s_load_dwordx8 s[4:11], s[0:1], 0")
    a("s_load_dwordx8 s[12:19], s[0:1], 32")
    a("s_memrealtime s[74:75]")
    if fine:
        a(clk + " s[90:91]"); a("s_mov_b32 s92, 0"); a("v_mov_b32 v127, 0"); a("s_mov_b32 m0, 0")
    a(f"v_lshrrev_b32 v{T}, 6, v0")
    a("v_and_b32 v0, 63, v0")
    a(f"v_readfirstlane_b32 s3, v{T}")
    a.c('id -> kv head s40 (= id & 7), batch s41, head-in-group s42, q head s43; wave index s3, lane v0')
    xl = opt.get("xl", 0)
    if xl:
        a("s_and_b32 s40, s2, 6"); a("s_bfe_u32 s41, s2, 0x10005"); a("s_or_b32 s40, s40, s41")
        a("s_and_b32 s41, s2, 1"); a("s_lshl_b32 s41, s41, 2"); a("s_lshr_b32 s42, s2, 6"); a("s_or_b32 s41, s41, s42")
    else:
        a("s_and_b32 s40, s2, 7")
        a("s_lshr_b32 s41, s2, 5")
    a("s_bfe_u32 s42, s2, 0x20003")
    a("s_lshl_b32 s43, s40, 2")
    a("s_add_u32 s43, s43, s42")
    a.c('per-lane source offsets of the LDS-DMA tile loads (bank swizzle applied on the source side)')
    r4, c16, vp = T+1, T+2, T+4
    a(f"v_lshrrev_b32 v{r4}, 4, v0")
    a(f"v_and_b32 v{c16}, 15, v0")
    a(f"v_lshlrev_b32 v{vp}, 2, v{r4}")
    a(f"v_xor_b32 v{vp}, v{c16}, v{vp}")
    a(f"v_lshlrev_b32 v{vp}, 4, v{vp}")
    a(f"v_lshl_add_u32 v{VWD}, v{r4}, 13, v{vp}")
    for i in range(1, 4):
        a(f"v_add_u32 v{VWD+i}, {31744*i}, v{VWD}")
    a(f"v_lshrrev_b32 v{T+5}, 3, v0")
    a(f"v_and_b32 v{T+6}, 7, v0")
    a(f"v_xor_b32 v{T+7}, v{T+6}, v{r4}")
    a(f"v_lshlrev_b32 v{T+7}, 4, v{T+7}")
    a(f"v_lshl_add_u32 v{VXD}, v{T+5}, 10, v{T+7}")
    a(f"v_xor_b32 v{T+7}, 64, v{VXD}")
    a(f"v_add_u32 v{VXD+1}, {8192-1024}, v{T+7}")
    if xl:
        a("s_lshl_b32 s44, s41, 1"); a("s_add_u32 s44, s44, s43")
    elif opt.get("qr", 0) == 0:
        a("s_lshl_b32 s44, s42, 1"); a("s_add_u32 s44, s44, s41")
    elif opt["qr"] == 1:
        a("s_add_u32 s44, s42, s41"); a("s_lshl_b32 s44, s44, 1")
    elif opt["qr"] == 2:
        a("s_add_u32 s44, s42, s41"); a("s_lshl_b32 s44, s44, 2")
    elif opt["qr"] == 3:
        a("s_add_u32 s44, s42, s41"); a("s_lshl_b32 s44, s44, 2"); a("s_lshr_b64 s[44:45], 0x30630630630, s44") if False else None
        a("s_mul_i32 s45, s44, 22"); a("s_lshr_b32 s45, s45, 8"); a("s_mul_i32 s45, s45, 12"); a("s_sub_u32 s44, s44, s45"); a("s_lshr_b32 s44, s44, 2"); a("s_mul_i32 s44, s44, 3")
    elif opt["qr"] == 5:
        a("s_mov_b32 s44, 0")
    elif opt["qr"] == 6:
        a("s_add_u32 s44, s42, s41"); a("s_lshl_b32 s44, s44, 2")
        a("s_mul_i32 s45, s44, 22"); a("s_lshr_b32 s45, s45, 8"); a("s_mul_i32 s45, s45, 12"); a("s_sub_u32 s44, s44, s45"); a("s_lshr_b32 s44, s44, 2"); a("s_mul_i32 s44, s44, 3"); a("s_add_u32 s44, s44, s40")
    elif opt["qr"] == 4:
        a("s_add_u32 s44, s42, s41"); a("s_lshl_b32 s44, s44, 1"); a("s_add_u32 s44, s44, s40")
    QT = opt.get("qt")
    if QT:
        ncls = len(QT)
        if ncls == 8: a("s_lshl_b32 s44, s42, 1"); a("s_add_u32 s44, s44, s41"); a("s_and_b32 s44, s44, 7")
        else: a("s_add_u32 s44, s42, s41"); a(f"s_and_b32 s44, s44, {ncls-1}")
        a(f"s_mov_b32 s58, {hex(order(QT[0]))}")
        for c_ in range(1, ncls):
            a(f"s_cmp_eq_u32 s44, {c_}"); a(f"s_cselect_b32 s58, {hex(order(QT[c_]))}, s58")
    else:
        a("s_and_b32 s58, s44, 7")
    a("s_lshl_b32 s46, s3, 11"); a(f"s_add_u32 s46, s46, {XB}")
    a("s_lshl_b32 s47, s3, 12"); a("s_add_u32 s47, s47, 16384")
    a("s_lshl_b32 s49, s3, 15")
    a("s_lshl_b32 s44, s41, 16"); a("s_lshl_b32 s45, s3, 14"); a("s_add_u32 s44, s44, s45")
    a("s_lshl_b32 s48, s43, 8"); a("s_lshl_b32 s45, s3, 17"); a("s_add_u32 s48, s48, s45")
    a("s_sub_u32 s22, 0x80000, s44"); a("s_mov_b32 s23, 0x20000")
    a("s_sub_u32 s34, 0x400000, s48"); a("s_mov_b32 s35, 0x20000")
    a("s_waitcnt lgkmcnt(0)")
    a("s_add_u32 s20, s4, s44"); a("s_addc_u32 s21, s5, 0"); a("s_and_b32 s21, s21, 0xffff")
    a("s_add_u32 s32, s10, s48"); a("s_addc_u32 s33, s11, 0"); a("s_and_b32 s33, s33, 0xffff")

    def qdma(c):
        j = c % 4
        if QT:
            out = ["s_and_b32 s57, s58, 7", f"s_lshl_b32 s59, s57, 7", f"s_add_u32 m0, s46, {j*8192}", "s_lshl_b32 s57, s57, 19"]
            out += [f"buffer_load_dwordx4 v{VXD+i}, s[20:23], s59 offen offset:{1024*i} lds" for i in range(2)]
            out += [f"s_add_u32 m0, s47, {j*32768}", "s_lshr_b32 s58, s58, 4"]
            out += [f"buffer_load_dwordx4 v{VWD+i}, s[32:35], s57 offen offset:{1024*i} lds" for i in range(4)]
            return out
        out = [f"s_lshl_b32 s59, s58, 7", f"s_add_u32 m0, s46, {j*8192}", "s_lshl_b32 s57, s58, 19"]
        for i in range(2):
            out.append(f"buffer_load_dwordx4 v{VXD+i}, s[20:23], s59 offen offset:{1024*i} lds")
        out += [f"s_add_u32 m0, s47, {j*32768}", "s_add_u32 s58, s58, 1"]
        for i in range(4):
            out.append(f"buffer_load_dwordx4 v{VWD+i}, s[32:35], s57 offen offset:{1024*i} lds")
        out.append("s_and_b32 s58, s58, 7")
        return out
    def nexttile():
        return [f"s_and_b32 s54, s60, {TM}", "s_lshr_b64 s[60:61], s[60:61], 4"]
    def dma_k(slot):
        out = []
        for hh in range(2):
            out.append(f"s_add_u32 m0, s49, {slot*16384 + hh*4096}")
            for i in range(4):
                out.append(f"buffer_load_dwordx4 v{VKD+4*hh+i}, s[24:27], s54 offen offset:{1024*i} lds")
        return out
    def dma_v(slot):
        out = []
        for hh in range(2):
            out.append(f"s_add_u32 m0, s49, {slot*16384 + 8192 + hh*4096}")
            for i in range(4):
                out.append(f"buffer_load_dwordx4 v{VVD+hh}, s[28:31], s54 offen offset:{1024*i} lds")
        return out
    a.c('---- q projection: Q^T[128 x 64] = Wq_h^T x_b^T, 8 k-chunks of 64 through a 4-deep LDS ring ----')
    vm = []
    if opt.get("xfirst"):
        q0 = qdma(0); q1 = qdma(1)
        x1 = ["s_add_u32 s51, s58, 1", "s_and_b32 s51, s51, 7", "s_lshl_b32 s51, s51, 7", f"s_add_u32 m0, s46, 8192", "s_nop 0"] + \
             [f"buffer_load_dwordx4 v{VXD+i}, s[20:23], s51 offen offset:{1024*i} lds" for i in range(2)]
        emit(q0[:5] + x1 + q0[5:]); vm += ["c0"]*8
    else:
        emit(qdma(0)); vm += ["c0"]*6
    a.c('remaining address / descriptor setup, overlapped with the first loads')
    def kd_setup():
        out = [f"v_xor_b32 v{VKD+i}, {64*i}, v{VKD}" for i in range(1, 4)]
        return out
    a(f"v_xor_b32 v{T+3}, v{c16}, v{r4}"); a(f"v_lshlrev_b32 v{T+3}, 4, v{T+3}")
    a(f"v_lshl_add_u32 v{VKD}, v{r4}, 8, v{T+3}")
    emit(kd_setup())
    for i in range(4):
        a(f"v_add_u32 v{VKD+4+i}, 4096, v{VKD+i}")
    a(f"v_lshl_add_u32 v{VVD}, v{r4}, 8, v{vp}")
    a(f"v_add_u32 v{VVD+1}, 4096, v{VVD}")
    a(f"v_and_b32 v{T+7}, 16, v0"); a(f"v_lshrrev_b32 v{T+7}, 2, v{T+7}")
    a(f"v_xor_b32 v{T+7}, v{T+7}, v{T+6}"); a(f"v_lshlrev_b32 v{T+7}, 4, v{T+7}")
    a(f"v_lshl_add_u32 v{VOD0}, v{T+5}, 10, v{T+7}")
    a.c('order in which this workgroup visits its 8 key tiles (the 4 heads of a kv group take turns fetching from HBM)')
    orders = opt["orders"]
    a(f"s_mov_b32 s62, {hex(orders[0])}")
    for rr_ in range(1, 4):
        if orders[rr_] != orders[0]:
            a(f"s_cmp_eq_u32 s42, {rr_}"); a(f"s_cselect_b32 s62, {hex(orders[rr_])}, s62")
    tx = opt.get("tx", 0)
    if tx:
        if tx == 1: a("s_mov_b32 s63, s41")
        elif tx == 2: a("s_mov_b32 s63, s40")
        elif tx == 3: a("s_add_u32 s63, s40, s41")
        elif tx == 4: a("s_lshl_b32 s63, s3, 1")
        elif tx == 5: a("s_lshl_b32 s63, s3, 1"); a("s_add_u32 s63, s63, s40"); a("s_add_u32 s63, s63, s41")
        a("s_and_b32 s63, s63, 7"); a("s_mul_i32 s63, s63, 0x11111111"); a("s_xor_b32 s62, s62, s63")
    a("s_mov_b32 s63, 8")
    a(f"s_lshl_b64 s[62:63], s[62:63], {TSH}")
    a("s_mov_b64 s[60:61], s[62:63]")
    a("s_lshl_b32 s50, s41, 3"); a("s_add_u32 s50, s50, s40"); a(f"s_lshl_b32 s50, s50, {5 if IL else 2}"); a("s_add_u32 s50, s50, s3")
    a(f"s_lshl_b32 s50, s50, {13 if IL else 16}")
    a(f"s_mov_b32 s26, {hex(0x3a000 if IL else 0x10000)}"); a("s_mov_b32 s27, 0x20000")
    a(f"s_mov_b32 s30, {hex(0x3a000 if IL else 0x10000)}"); a("s_mov_b32 s31, 0x20000")
    a("s_add_u32 s24, s6, s50"); a("s_addc_u32 s25, s7, 0"); a("s_and_b32 s25, s25, 0xffff")
    a("s_add_u32 s28, s8, s50"); a("s_addc_u32 s29, s9, 0"); a("s_and_b32 s29, s29, 0xffff")
    srd(a, 64, 18, ST_OFF + (0x40000 if fine else 0))
    srd(a, 68, 16, 256)
    a(f"v_mov_b32 v{VT}, 0")
    a("s_lshl_b32 s72, s41, 5")
    a.c('hand-off tag of this launch: q head 0 of each batch publishes its clock value in d_debug (zero at launch)')
    a("s_or_b32 s51, s43, s3")
    a("s_cbranch_scc1 L_nolead")
    a("s_or_b32 s74, s74, 1")
    a(f"v_mov_b32 v{VCNT}, s74")
    a("s_mov_b64 exec, 1")
    a(f"buffer_store_dword v{VCNT}, v{VT}, s[68:71], s72 offen sc1")
    a("s_mov_b64 exec, -1")
    a.label("L_nolead")
    if opt.get("xfirst"):
        emit(q1[2:3] + q1[5:]); vm += ["c1"]*4
    else:
        emit(qdma(1)); vm += ["c1"]*6
    l31, hh_, rr, cc, dh = T+5, T+6, T+8, T+9, T+10
    a(f"v_and_b32 v{l31}, 31, v0")
    a(f"v_lshrrev_b32 v{hh_}, 5, v0")
    a(f"v_xor_b32 v{T+7}, v{hh_}, v{c16}")
    a(f"v_lshlrev_b32 v{T+7}, 4, v{T+7}")
    a(f"v_lshl_add_u32 v{T+7}, v{l31}, 8, v{T+7}")
    a(f"v_add_u32 v{VKR}, s49, v{T+7}")
    for s in range(1, 8):
        a(f"v_xor_b32 v{VKR+s}, {32*s}, v{VKR}")
    a(f"v_bfe_u32 v{T+7}, v0, 1, 3")
    a(f"v_xor_b32 v{T+7}, v{T+7}, v{hh_}"); a(f"v_lshlrev_b32 v{T+7}, 4, v{T+7}")
    a(f"v_lshl_add_u32 v{T+7}, v{l31}, 7, v{T+7}")
    a(f"v_add_u32 v{VXR}, {XB}, v{T+7}")
    for s in range(1, 4):
        a(f"v_xor_b32 v{VXR+s}, {32*s}, v{VXR}")
    a(f"v_lshrrev_b32 v{rr}, 2, v{c16}")
    a(f"v_and_b32 v{cc}, 3, v0")
    a(f"v_and_b32 v{dh}, 16, v0")
    a(f"v_lshlrev_b32 v{dh}, 1, v{dh}")
    a(f"v_lshl_add_u32 v{T+13}, v{hh_}, 2, v{rr}")
    a(f"v_lshl_add_u32 v{T+14}, v{cc}, 3, v{dh}")
    a(f"v_lshl_add_u32 v{T+11}, v{T+13}, 8, v{T+14}")
    a(f"v_add_u32 v{T+11}, s49, v{T+11}")
    for j in range(4):
        a(f"s_add_u32 s51, s3, {j}"); a("s_and_b32 s51, s51, 3")
        a(f"v_xor_b32 v{T+12}, s51, v{rr}")
        a(f"v_lshl_add_u32 v{VVR+j}, v{T+12}, 6, v{T+11}")
    a("s_lshl_b32 s51, s3, 4")
    a("s_and_b32 s52, s40, 2"); a("s_lshl_b32 s52, s52, 5"); a("s_or_b32 s51, s51, s52")
    a(f"v_and_b32 v{T+12}, 8, v0"); a(f"v_lshl_add_u32 v{T+14}, v{T+12}, 3, v{T+14}")
    a(f"v_xor_b32 v{T+14}, s51, v{T+14}")
    a(f"v_lshl_add_u32 v{T+14}, v{T+13}, 7, v{T+14}")
    a(f"v_add_u32 v{VWA}, s49, v{T+14}")
    a(f"v_xor_b32 v{VWB}, 64, v{VWA}")
    a(f"v_lshl_add_u32 v{T+11}, v{hh_}, 3, v{rr}")
    a(f"v_lshl_add_u32 v{T+11}, v{T+11}, 8, v{dh}")
    a(f"v_xor_b32 v{T+12}, s3, v{rr}")
    a(f"v_lshl_add_u32 v{T+11}, v{T+12}, 6, v{T+11}")
    a(f"v_and_b32 v{T+12}, 1, v0"); a(f"v_lshl_add_u32 v{T+11}, v{T+12}, 4, v{T+11}")
    a(f"v_and_b32 v{T+12}, 2, v0"); a(f"v_lshl_add_u32 v{T+11}, v{T+12}, 2, v{T+11}")
    a(f"v_add_u32 v{VWR}, 16384, v{T+11}")
    a(f"v_add_u32 v{VWR+1}, {16384+65536}, v{T+11}")
    a(f"v_lshlrev_b32 v{VL16}, 4, v0")
    a(f"v_add_u32 v{VQR}, {QAREA}, v{VL16}")
    a(f"v_lshlrev_b32 v{VMX}, 4, v{l31}")
    a(f"v_add_u32 v{VMX}, {MISC}, v{VMX}")
    a(f"v_mov_b32 v{MS[0]}, 0xff800000"); a(f"v_mov_b32 v{MS[1]}, 0xff800000")
    a("s_mov_b32 s76, 0")
    a("s_lshl_b32 s51, s41, 5"); a("s_add_u32 s51, s51, s43"); a("s_lshl_b32 s51, s51, 2"); a("s_add_u32 s51, s51, s3")
    a("s_lshl_b32 s51, s51, 3"); a(f"s_add_u32 s77, s51, {FL_OFF}")
    a("s_andn2_b32 s51, s2, 6"); a("s_lshl_b32 s51, s51, 7"); a("s_lshl_b32 s52, s3, 5"); a("s_add_u32 s51, s51, s52"); a(f"s_add_u32 s75, s51, {FL_OFF + 0x4000}")
    a("s_and_b32 s78, s40, 6"); a("s_lshl_b32 s78, s78, 2"); a("s_lshl_b32 s51, s3, 1"); a("s_add_u32 s78, s78, s51")
    a("s_and_b32 s79, s40, 1"); a("s_lshl_b32 s79, s79, 2"); a("s_add_u32 s79, s79, s42")
    a("s_lshl_b32 s51, s78, 17"); a("s_lshl_b32 s52, s79, 7"); a("s_add_u32 s51, s51, s52")
    a("s_add_u32 s36, s12, s51"); a("s_addc_u32 s37, s13, 0"); a("s_and_b32 s37, s37, 0xffff")
    a("s_sub_u32 s38, 0x400000, s51"); a("s_mov_b32 s39, 0x20000")
    a.c('identity A fragments (v2..v9) for the bf16 cross-wave reduction, selector fragments (a116..a123) for the row sums;')
    a.c('O accumulators v128..v255 are zeroed by MFMA')
    a(f"v_bfe_u32 v{T+7}, v0, 2, 1")
    a(f"v_bfe_u32 v{T+11}, v0, 3, 2")
    a(f"v_bfe_u32 v{T+12}, v0, 1, 1")
    a(f"v_lshl_add_u32 v{T+11}, v{T+11}, 1, v{T+12}")
    a(f"v_xor_b32 v{T+7}, v{T+7}, v{hh_}")
    a(f"v_lshl_add_u32 v{T+11}, v{T+7}, 4, v{T+11}")
    a(f"v_and_b32 v{T+12}, 1, v0"); a(f"v_lshlrev_b32 v{T+12}, 4, v{T+12}")
    a(f"v_mov_b32 v{T+7}, 0x3f80")
    a(f"v_lshlrev_b32 v{T+12}, v{T+12}, v{T+7}")
    msk = [80, 82, 84, 86, 94, 96, 98, 100]
    for k in range(8): a(f"v_cmp_eq_u32 s[{msk[k]}:{msk[k]+1}], {k}, v{T+11}")
    for k in range(4): a(f"v_mov_b32 v{VZ+k}, 0")
    for k in range(8): a(f"v_cndmask_b32 v{2+k}, 0, v{T+12}, s[{msk[k]}:{msk[k]+1}]")
    if MSUM:
        a(f"v_and_b32 v{T+7}, 1, v{r4}"); a(f"v_xor_b32 v{T+7}, v{T+7}, v{c16}")
        a(f"v_cmp_eq_u32 s[80:81], 0, v{T+7}"); a(f"v_cmp_eq_u32 s[82:83], 2, v{T+7}")
        a(f"v_mov_b32 v{T+12}, 0x3f803f80"); a("s_nop 0")
        a(f"v_cndmask_b32 v{T+7}, 0, v{T+12}, s[80:81]"); a(f"v_cndmask_b32 v{T+11}, 0, v{T+12}, s[82:83]")
        for k in range(4):
            a(f"v_accvgpr_write_b32 a{116+k}, v{T+7}"); a(f"v_accvgpr_write_b32 a{120+k}, v{T+11}")
    z = R("v", VZ, 4)
    zmf = [mf32(O_(qb, j), z, z, "0") for qb in range(2) for j in range(4)]
    emit(zmf)
    emit(qdma(2)); vm += ["c2"]*6

    kvq = opt.get("kvq", {5: ["K0a"], 6: ["K0b"], 7: ["V0a"], 8: ["V0b"]})
    K0 = dma_k(0); V0 = dma_v(0)
    grp = {"K0a": nexttile() + K0[:5], "K0b": K0[5:], "V0a": V0[:5], "V0b": V0[5:]}
    def kv(c):
        out = []
        for g in kvq.get(c, []):
            out += grp[g]; vm.extend([g[:2]]*4)
        return out
    def qreads(c):
        j = c % 4; base = (c % 2) * 48; out = []
        for s in range(4):
            b = base + 12*s
            wreg = VWR + (j >> 1); wo = (j & 1) * 32768
            out.append(f"ds_read_b64_tr_b16 a[{b}:{b+1}], v{wreg} offset:{wo + (16*s)*256}")
            out.append(f"ds_read_b64_tr_b16 a[{b+2}:{b+3}], v{wreg} offset:{wo + (16*s+4)*256}")
            out.append(f"ds_read_b128 a[{b+4}:{b+7}], v{VXR+s} offset:{j*8192}")
            out.append(f"ds_read_b128 a[{b+8}:{b+11}], v{VXR+s} offset:{j*8192+4096}")
        return out
    def qmf(c):
        base = (c % 2) * 48; out = []
        for s in range(4):
            b = base + 12*s
            for qb in range(2):
                cin = "0" if (c == 0 and s == 0) else R("v", S0[qb], 16)
                out.append(mf32(R("v", S0[qb], 16), R("a", b, 4), R("a", b+4+4*qb, 4), cin))
        return out
    def nwait(tag):
        last = max(i for i, x in enumerate(vm) if x == tag)
        return len(vm) - 1 - last
    emit(fs())
    for c in range(8):
        a(f"s_waitcnt vmcnt({nwait(f'c{c}')})")
        a("s_barrier")
        emit(fs(c == 0))
        seq = qreads(c)
        ld = []
        if c + 3 < 8:
            ld += qdma(c + 3); vm += [f"c{c+3}"]*6
        ld += kv(c)
        if c == 0:
            emit(seq + ld)
        else:
            mf = qmf(c - 1)
            if opt.get("nomf") and c < 5: mf = ["s_nop 0"]*8
            if opt.get("nord") and c < 5: seq = []
            gaps = spread(8, [(0, 4, seq), (1, 8, ld)])
            s2 = []
            for i in range(8):
                s2 += gaps[i]; s2.append(mf[i])
            emit(s2)
        a("s_waitcnt lgkmcnt(0)")
    def kreads(slot): return [f"ds_read_b128 {Kf(s)}, v{VKR+s} offset:{slot*16384}" for s in range(8)]
    def vreads(slot):
        return [f"ds_read_b64_tr_b16 {Vfh(st,j,u)}, v{VVR+j} offset:{slot*16384 + 8192 + (16*st+8*u)*256}" for st in range(2) for j in range(4) for u in range(2)]
    a.c('scale Q by log2(e)/sqrt(128), round to bf16, exchange the fragments through LDS')
    m7 = qmf(7)
    m7 = m7[0::2] + m7[1::2]
    def qfin(qb):
        out = [f"v_pk_mul_f32 v[{S0[qb]+r}:{S0[qb]+r+1}], v[{S0[qb]+r}:{S0[qb]+r+1}], v[14:15] op_sel_hi:[1,0]" for r in range(0, 16, 2)]
        out += [f"v_cvt_pk_bf16_f32 v{P0[qb]+r}, v{S0[qb]+2*r}, v{S0[qb]+2*r+1}" for r in range(8)]
        out += [f"ds_write_b128 v12, v[{P0[qb]+4*sp}:{P0[qb]+4*sp+3}] offset:{qb*8192 + sp*1024}" for sp in range(2)]
        return out
    EB = opt.get("eb", 0)
    if EB: a("s_barrier")
    l8 = kv(8)
    if EB:
        l8 += nexttile() + dma_k(1)[:5*EB]; vm.extend(["K1"]*(4*EB))
    f0 = qfin(0)
    if opt.get("qm"):
        f0 = [f"v_mul_f32 v{S0[0]+r}, v14, v{S0[0]+r}" for r in range(16)] + f0[8:]
    emit(merge(m7, spread(8, [(0, 2, [f"v_mov_b32 v14, {hex(f2u(C_SCALE))}", "s_lshl_b32 s51, s3, 11", f"v_add_u32 v12, s51, v{VQR}"]), ((5, 7, f0[:12]) if opt.get("qm") else (6, 7, f0[:6])), (7, 8, f0[12:] if opt.get("qm") else f0[6:])])))
    if opt.get("l8s"):
        q1_ = qfin(1)
        emit(merge(q1_, spread(len(q1_), [(0, len(q1_), l8)])))
    else:
        emit(qfin(1))
        emit(l8)

    def qk(qb, first=False):
        return [mf32(R("v", S0[qb], 16), Kf(s), Q_(qb, s), ("0" if first else R("v", NM[qb], 16)) if s == 0 else R("v", S0[qb], 16)) for s in range(8)]
    def pv(qb, order1=(0, 1, 2, 3)):
        return [mf32(O_(qb, j), Vf(0, j), R("v", P0[qb], 4), O_(qb, j)) for j in range(4)] + \
               [mf32(O_(qb, j), Vf(1, j), R("v", P0[qb]+4, 4), O_(qb, j)) for j in order1]
    def ex(qb, r): return f"v_exp_f32 v{S0[qb]+r}, v{S0[qb]+r}"
    PK = opt.get("pk", 0)
    def msum(qb, st): return f"v_mfma_f32_16x16x32_bf16 a[112:115], a[{116+4*qb}:{119+4*qb}], v[{P0[qb]+4*st}:{P0[qb]+4*st+3}], a[112:115]"
    LP = [96, 124]
    def ad(qb, r):
        if MSUM: return None
        if not PK: return f"v_add_f32 v{L_[qb]}, v{L_[qb]}, v{S0[qb]+r}"
        if r % 2 == 0: return None
        return f"v_pk_add_f32 v[{LP[qb]}:{LP[qb]+1}], v[{LP[qb]}:{LP[qb]+1}], v[{S0[qb]+r-1}:{S0[qb]+r}]"
    def cv(qb, i): return f"v_cvt_pk_bf16_f32 v{P0[qb]+i}, v{S0[qb]+2*i}, v{S0[qb]+2*i+1}"

    emit(fs(True))
    a("s_waitcnt lgkmcnt(0)")
    a.c('---- attention: wave w owns keys [256w, 256w+256), all 64 query rows; S^T = K Q^T, O^T += V^T P^T ----')
    a.label("L_att")
    a("s_barrier")
    qr = [f"ds_read_b128 {Q_(qb,s)}, v{VQR} offset:{(qb*8+s)*1024}" for qb in range(2) for s in range(8)]
    emit(qr[:8])
    a(f"s_waitcnt vmcnt({nwait('K0')})")
    emit(fs())
    emit(kreads(0))
    if MSUM:
        for k in range(4): a(f"v_accvgpr_write_b32 a{112+k}, 0")
    else:
        a(f"v_mov_b32 v{L_[0]}, 0"); a(f"v_mov_b32 v{L_[1]}, 0")
    K1 = nexttile() + dma_k(1); V1 = dma_v(1)
    mf = qk(0, True) + qk(1, True)
    def inmax(qb, t):
        s = S0[qb]; out = [f"v_max3_f32 v{t}, v{s}, v{s+1}, v{s+2}"]
        for r in range(3, 15, 2):
            out.append(f"v_max3_f32 v{t}, v{t}, v{s+r}, v{s+r+1}")
        out.append(f"v_max_f32 v{t}, v{t}, v{s+15}")
        return out
    vr0 = vreads(0)
    nq = 8
    if EB:
        seq_ = (dma_k(1) + dma_v(1))[5*EB:]
        K1 = [None, None] + seq_[:10]; V1 = seq_[10:] + [None]*(5*EB)
    emit([x for x in K1[:4] if x])
    gaps = spread(16, [(0, 4, qr[8:]), (0, 14, K1[4:]), (10, 14, inmax(0, 124))])
    emit(merge(mf, gaps, pre={0: ["s_waitcnt lgkmcnt(4)"], 4: ["s_waitcnt lgkmcnt(8)"], 8: ["s_waitcnt lgkmcnt(0)"]}))
    a.c('softmax shift m = true row max over the first key tile of all 4 waves (or the exact row max v122/v123 after the fallback);')
    a.c('it enters every later QK tile as the MFMA C operand (-m); the row sums are checked at the end')
    a("s_lshl_b32 s51, s3, 2"); a(f"s_add_u32 s51, s51, {MISC}")
    a(f"v_add_u32 v12, s51, v{VL16}")
    emit([x for x in V1[:2] if x])
    a("s_nop 5" if V1[0] else "s_nop 8")
    emit(inmax(1, 125))
    a("s_nop 1")
    a("v_permlane32_swap_b32 v124, v125")
    a("s_nop 0")
    a("v_max_f32 v124, v124, v125")
    a("ds_write_b32 v12, v124")
    emit([x for x in V1[2:3] if x])
    a("s_waitcnt lgkmcnt(0)"); a("s_barrier")
    a(f"ds_read_b128 v[{NM[0]}:{NM[0]+3}], v{VMX}")
    a(f"ds_read_b128 v[{NM[1]}:{NM[1]+3}], v{VMX} offset:512")
    emit(fs())
    a(f"s_waitcnt vmcnt({nwait('V0') + (10 if V1[0] else 8)})")
    emit(vr0[:8])
    a("s_waitcnt lgkmcnt(8)")
    for qb in range(2):
        n = NM[qb]
        a(f"v_max3_f32 v{124+qb}, v{n}, v{n+1}, v{MS[qb]}")
        a(f"v_max3_f32 v{124+qb}, v{n+2}, v{n+3}, v{124+qb}")
    for qb in range(2):
        a(f"v_sub_f32 v{NM[qb]}, 0, v{124+qb}")
        a(f"v_sub_f32 v{NM[qb]+1}, 0, v{124+qb}")
    body_a = [f"v_pk_add_f32 v[{S0[0]+r}:{S0[0]+r+1}], v[{S0[0]+r}:{S0[0]+r+1}], v[{NM[0]}:{NM[0]+1}]" for r in range(0, 16, 2)]
    for r in range(15):
        body_a.append(ex(0, r))
        if r >= 1: body_a.append(ad(0, r-1))
        if r >= 2 and r % 2 == 0: body_a.append(cv(0, (r-2)//2))
    body_a += [f"v_pk_add_f32 v[{S0[1]+r}:{S0[1]+r+1}], v[{S0[1]+r}:{S0[1]+r+1}], v[{NM[1]}:{NM[1]+1}]" for r in range(0, 16, 2)]
    body_a += [f"v_pk_mov_b32 v[{NM[qb]+r}:{NM[qb]+r+1}], v[{NM[qb]}:{NM[qb]+1}], v[{NM[qb]}:{NM[qb]+1}]" for qb in range(2) for r in range(2, 16, 2)]
    n = len(body_a)
    if PK: a("v_mov_b32 v124, 0"); a("v_mov_b32 v125, 0")
    SH0 = opt.get("sh", 0)
    extra = (nexttile() + dma_k(0)[:5*SH0]) if SH0 > 0 else []
    emit(merge(body_a, spread(n, [(0, n - 4, (V1[3:] if SH0 >= 0 else V1[3:5]) + extra), (4, 30, vr0[8:15])])))

    wo_slot = opt.get("wslot", [0, 4096, 8192, 12288, "X", 28672, 0, 4096])
    def wo_group(g):
        out = [f"s_add_u32 m0, s49, {wo_slot[g]}" if wo_slot[g] != "X" else "s_mov_b32 m0, s87"]
        out += [f"buffer_load_dwordx4 v{VKD+i}, s[36:39], s84 offen offset:{1024*i} lds" for i in range(4)]
        out += ["s_add_u32 s84, s84, 0x8000", "s_and_b32 s84, s84, 0x3ffff"]
        return out
    def wo_reads(g):
        out = []
        X = wo_slot[g] == "X"
        for s2_ in range(2):
            s = 2*g + s2_
            for ci in range(2):
                for u in range(2):
                    d = (s*2 + ci)*4 + 2*u
                    r_ = (117 if ci else 116) if X else (VWB if ci else VWA)
                    out.append(f"ds_read_b64_tr_b16 a[{d}:{d+1}], v{r_} offset:{(0 if X else wo_slot[g]) + (16*s2_ + 8*u)*128}")
        return out
    wpos = opt.get("wpos", {"i6": [(2, 10), (12, 20), (22, 30)], "f1": 0, "f2": 0, "f4": 1})
    wcnt = [0]
    def wnext(n=1):
        out = []
        for _ in range(n):
            out += wo_group(wcnt[0]); wcnt[0] += 1
        return out

    def body(par, kind):
        SH = opt.get("sh", 0)
        mf = pv(0) + qk(0) + pv(1) + qk(1)
        G = [[] for _ in range(32)]
        for r in range(16):
            G[(1 + r) % 32].append(ex(1, r)); G[(17 + r) % 32].append(ex(0, r))
        for r in range(16):
            o_ = 1 if (PK == 2 and r < 15) else 0
            G[(2 + r + o_) % 32].append(ad(1, r)); G[(18 + r + (o_ if r < 13 else 0)) % 32].append(ad(0, r))
        for i in range(8):
            G[(3 + 2*i) % 32].append(cv(1, i)); G[(19 + 2*i) % 32].append(cv(0, i))
        vr_prev = vreads(par); vr = vreads(1 - par); kr = kreads(1 - par)
        G[0].insert(0, vr_prev[15])
        G[0].append("WAITK")
        for s in range(8): G[1 + s].insert(0, kr[s])
        for i in range(15): G[17 + i].insert(0, vr[i])
        pre = {0: ["s_waitcnt lgkmcnt(7)"], 4: ["s_waitcnt lgkmcnt(3)"], 8: ["s_waitcnt lgkmcnt(3)"], 12: ["s_waitcnt lgkmcnt(0)"]}
        if MSUM:
            mp = opt.get("mp", [1, 5, 17, 21])
            for (pos_, qb_, st_) in zip(mp, (0, 0, 1, 1), (0, 1, 0, 1)):
                pre.setdefault(pos_, []); pre[pos_] = pre[pos_] + [msum(qb_, st_)]
        if kind == "dma":
            allg = [("V", 1 - par, 1), ("K", par, 0), ("K", par, 1), ("V", par, 0), ("V", par, 1), ("K", 1 - par, 0), ("K", 1 - par, 1)]
            grpz = allg[1 + SH: 5 + SH]
            pos = [(1, [2, 4, 6, 8]), (9, [10, 12, 14, 16]), (17, [18, 20, 22, 24]), (25, [26, 28, 30, 31])]
            for gi, (kd, sl, hf) in enumerate(grpz):
                d_ = (dma_k(sl) if kd == "K" else dma_v(sl))[5*hf:5*hf+5]
                if kd == "K" and hf == 0:
                    if gi == 0: pre[0] = [f"s_and_b32 s54, s60, {TM}"] + pre[0]
                    else: G[pos[gi][0]].append(f"s_and_b32 s54, s60, {TM}")
                    G[(pos[gi][0] + 2) % 32 if gi else 11].append("s_lshr_b64 s[60:61], s[60:61], 4")
                G[pos[gi][0]].append(d_[0])
                for i in range(4): G[pos[gi][1][i]].append(d_[1 + i])
            G[16].append("WAITV")
            if par == 1:
                G[13].append(f"buffer_load_dword v{VCNT}, v{125 if xl == 2 else VT}, s[68:71], s72 offen sc1")
                G[15].append("s_add_u32 s56, s56, 1")
        else:
            pat = [f"v_mov_b32 v{VKD}, v{VOD0}"] + [f"v_add_u32 v{VKD+i}, {7168*i}, v{VOD0}" for i in range(1, 4)]
            gw = spread(32, [(0, 2, pat)] + ([(1, 6, dma_v(1)[5:])] if SH < 0 else []) + [(g0, g1, wnext()) for (g0, g1) in wpos["i6"]])
            for i in range(32): G[i] += gw[i]
            G[16].append("WAITV")
            adr = []
            for j in range(1, 4):
                adr += [f"s_sub_u32 s52, s3, {j}", "s_and_b32 s52, s52, 3", "s_lshl_b32 s52, s52, 15", f"v_add_u32 v{100+j}, s52, v{VL16}"]
            adr += [f"v_add_u32 v12, s49, v{VL16}", "s_lshl_b32 s51, s3, 2", f"s_add_u32 s51, s51, {MISC+1024}", f"v_add_u32 v14, s51, v{VL16}",
                    "s_lshl_b32 s51, s41, 9", "s_lshl_b32 s52, s43, 3", "s_add_u32 s51, s51, s52", "s_lshl_b32 s52, s3, 1", "s_add_u32 s51, s51, s52",
                    "s_lshl_b32 s51, s51, 10", "s_add_u32 s52, s51, 262144", f"v_readfirstlane_b32 s73, v{VCNT}", f"s_mov_b32 s53, {hex(f2u(LIMIT))}"]
            if xl == 2:
                adr.remove(f"v_readfirstlane_b32 s73, v{VCNT}")
                pre_ = ["s_lshl_b32 s44, s41, 9", "s_lshl_b32 s45, s43, 3", "s_add_u32 s44, s44, s45", "s_lshl_b32 s45, s3, 1", "s_add_u32 s44, s44, s45",
                        "s_lshl_b32 s44, s44, 10", "s_add_u32 s44, s44, s46", "v_and_b32 v124, 31, v0", "v_lshlrev_b32 v124, 6, v124",
                        f"v_lshrrev_b32 v{VCNT}, 5, v0", f"v_lshl_add_u32 v124, v{VCNT}, 18, v124", "s_add_u32 s48, s77, s46",
                        f"buffer_load_dword v{VCNT}, v124, s[64:67], s44 offen sc1", f"buffer_load_dword v{VCNT}, v{VT}, s[64:67], s48 offen sc1",
                        "s_add_u32 s45, s44, 262144"]
                gp = spread(32, [(0, 6, pre_)])
                for i in range(32): G[i] += gp[i]
                adr += ["s_add_u32 s51, s51, s47", "s_add_u32 s52, s52, s47"]
            ga = spread(32, [(6, 24, adr)])
            for i in range(32): G[i] += ga[i]
        seq = fs() + merge(mf, G, pre)
        issued = 0; out = []
        for x in seq:
            if x == "WAITK": out.append(f"s_waitcnt vmcnt({8 + 4*SH + issued})")
            elif x == "WAITV": out.append(f"s_waitcnt vmcnt({4*SH + issued})")
            else:
                if x.startswith("buffer_load"): issued += 1
                out.append(x)
        return out
    rot = opt.get("rot", 1)
    if rot in (5, 6):
        a("s_add_u32 s80, s42, s41" if rot == 5 else "s_mov_b32 s80, s41")
        a("s_mul_i32 s51, s80, 86"); a("s_lshr_b32 s51, s51, 8"); a("s_mul_i32 s51, s51, 3"); a("s_sub_u32 s80, s80, s51"); a("s_mul_i32 s80, s80, 3")
    elif rot == 3:
        a("s_add_u32 s80, s42, s41"); a("s_lshl_b32 s80, s80, 1"); a("s_and_b32 s80, s80, 7")
    elif rot == 4:
        a("s_lshl_b32 s80, s41, 1"); a("s_and_b32 s80, s80, 7")
    elif rot == 2:
        if xl:
            a("s_lshl_b32 s80, s41, 1"); a("s_add_u32 s80, s80, s43"); a("s_and_b32 s80, s80, 7")
        else:
            a("s_lshl_b32 s80, s42, 1"); a("s_add_u32 s80, s80, s41"); a("s_and_b32 s80, s80, 7")
    else:
        a("s_mov_b32 s80, s41" if rot else "s_mov_b32 s80, 0")
    a("s_lshl_b32 s84, s80, 15")
    a("s_lshl_b32 s87, s3, 12"); a(f"s_add_u32 s87, s87, {XB}")
    a("s_mov_b32 s86, s75")
    if opt.get("warm", 1):
        a("s_mov_b64 exec, 1")
        a(f"buffer_atomic_or v{VT}, v{VT}, s[64:67], s77 offen sc1")
        a(f"buffer_atomic_or v{VT}, v{VT}, s[64:67], s86 offen sc1")
        a("s_mov_b64 exec, -1")
    if xl == 2:
        a("s_and_b32 s51, s40, 6"); a("s_lshl_b32 s51, s51, 1"); a("s_add_u32 s51, s51, 4")
        a("v_min_u32 v125, 1, v0"); a("v_mul_u32_u24 v125, s51, v125")
        a("s_getreg_b32 s58, hwreg(HW_REG_XCC_ID, 0, 3)")
        a("s_lshl_b32 s58, s58, 2")
        a("s_or_b32 s52, s3, s76")
        a("s_cbranch_scc1 L_nocen")
        a("s_lshl_b32 s52, 1, s58")
        a("v_mov_b32 v124, s52")
        a("s_mov_b64 exec, 2")
        a("buffer_atomic_add v124, v125, s[68:71], s72 offen sc1")
        a("s_mov_b64 exec, -1")
        a.label("L_nocen")
    a("s_mov_b32 s56, 0")
    if "al" in opt:
        a(".p2align 6")
        for _ in range(opt["al"]): a("s_nop 0")
    a.c('steady loop, two tiles per trip: PVa(t) QKa(t+1) PVb(t) QKb(t+1); exp/pack, K/V DMA and fragment reads sit in the MFMA gaps,')
    a.c('the 16x16x32 MFMAs accumulate the row sums of P')
    a.label("L_loop")
    emit(body(0, "dma"))
    emit(body(1, "dma"))
    a("s_cmp_lt_u32 s56, 3")
    a("s_cbranch_scc1 L_loop")
    if xl == 2:
        a("s_mov_b32 s93, 0x40000")
        a("s_waitcnt vmcnt(8)")
        a.label("L_cen")
        a(f"v_readlane_b32 s73, v{VCNT}, 0")
        a(f"v_readlane_b32 s59, v{VCNT}, 1")
        a("s_mul_i32 s57, s59, 0x11111111")
        a("s_lshr_b32 s57, s57, 28")
        a("s_cmp_eq_u32 s73, 0")
        a("s_cselect_b32 s57, 0, s57")
        a("s_cmp_eq_u32 s57, 8")
        a("s_cbranch_scc1 L_cenok")
        a(f"buffer_load_dword v{VCNT}, v125, s[68:71], s72 offen sc1")
        a("s_sub_u32 s93, s93, 1")
        a("s_waitcnt vmcnt(0)")
        a("s_cbranch_scc0 L_cen")
        a.label("L_cenok")
        a("s_lshl_b32 s57, 8, s58")
        a("s_cmp_eq_u32 s59, s57")
        if opt.get("forceslow"): a("s_cmp_eq_u32 0, 1")
        a("s_cselect_b32 s46, 0, 0x40000000")
        a("s_cselect_b32 s47, 0x40000000, 0")
    a.c('tile 6 / QK of tile 7; the Wo slice starts streaming into free ring slots')
    emit(body(0, "wo"))
    emit(fs())
    a.c('last PV, then reduce O across the 4 waves (bf16 partials via LDS, added by identity MFMAs)')
    mf = pv(0, (1, 2, 3, 0))
    G = [[] for _ in range(8)]
    G[0] += [vreads(1)[15], ex(0, 15), ad(0, 14)]
    G[1] += [ad(0, 15), cv(0, 7)]
    sm = []
    for r in range(16):
        sm.append(ex(1, r))
        if r >= 1: sm.append(ad(1, r-1))
        if r >= 2 and r % 2 == 0: sm.append(cv(1, (r-2)//2))
    tail_b = [ad(1, 15), cv(1, 7)]
    n1 = opt.get("n1", 28)
    wl = wnext(wpos["f1"])
    g2 = spread(8, [(1, 8, sm[:n1]), (1, 8, wl)])
    for i in range(8): G[i] += g2[i]
    emit(merge(mf, G, {0: ["s_waitcnt lgkmcnt(7)"], 1: [msum(0, 0)] if MSUM else [], 4: ["s_waitcnt lgkmcnt(0)"], 5: [msum(0, 1)] if MSUM else []}))
    def pack(qb, j): return [f"v_cvt_pk_bf16_f32 v{Oi(qb,j)+i}, v{Oi(qb,j)+2*i}, v{Oi(qb,j)+2*i+1}" for i in range(8)]
    def send(qb, j): return [f"ds_write_b128 v12, v[{Oi(qb,j)+4*sp}:{Oi(qb,j)+4*sp+3}] offset:{PART + ((j-1)*4 + qb*2 + sp)*1024}" for sp in range(2)]
    mf = pv(1, (1, 2, 3, 0))
    lst = (["v_add_f32 v96, v96, v97", "v_add_f32 v97, v124, v125", "s_nop 1"] if PK else []) + [f"v_permlane32_swap_b32 v{L_[0]}, v{L_[1]}", "s_nop 0", f"v_add_f32 v{L_[0]}, v{L_[0]}, v{L_[1]}", f"ds_write_b32 v14, v{L_[0]}"]
    pa = []
    for j in (1, 2, 3): pa += pack(0, j) + send(0, j)
    if MSUM:
        lst = ["s_mov_b64 exec, 0xffff"] + [f"ds_write_b32 v14, a{112+k} offset:{256*k}" for k in range(4)] + ["s_mov_b64 exec, -1"]
    G = spread(8, [(0, 2, sm[n1:] + ["s_nop 0"] + tail_b), (opt.get("pa0", 2), opt.get("pa1", 7), pa), ((6, 7, lst) if MSUM else (4, 5, lst)), (2, 8, wnext(wpos["f2"])), (7, 8, pack(1, 1) + (pack(1, 2) if opt.get("hp2") else []))])
    emit(merge(mf, G, {0: [msum(1, 0)], 3: [msum(1, 1)]} if MSUM else None))
    a("s_waitcnt lgkmcnt(0)")
    emit(fs())
    a("s_barrier")
    def rb(qb, j, sp): return 16 + ((qb*3 + j-1)*2 + sp)*4
    def prd(qb): return [f"ds_read_b128 v[{rb(qb,j,sp)}:{rb(qb,j,sp)+3}], v{100+j} offset:{PART + ((j-1)*4 + qb*2 + sp)*1024}" for j in range(1, 4) for sp in range(2)]
    def red(qb): return [mf32(O_(qb, 0), R("v", ID[sp], 4), R("v", rb(qb,j,sp), 4), O_(qb, 0)) for j in range(1, 4) for sp in range(2)]
    emit(prd(0))
    a(f"ds_read_b128 v[64:67], v{VMX} offset:1024")
    a(f"ds_read_b128 v[68:71], v{VMX} offset:1536")
    emit(send(1, 1) + ([] if opt.get("hp2") else pack(1, 2)) + send(1, 2))
    lsum = ["v_add_f32 v64, v64, v65", "v_add_f32 v66, v66, v67", "v_add_f32 v68, v68, v69", "v_add_f32 v70, v70, v71",
            "v_add_f32 v64, v64, v66", "v_add_f32 v68, v68, v70", "v_add_f32 v73, v64, v68",
            "v_cmp_nlt_f32 vcc, v73, s53", "v_rcp_f32 v64, v64", "v_rcp_f32 v68, v68"]
    chk = ["s_cmp_eq_u32 s76, 0", "s_cselect_b64 s[94:95], vcc, 0", "s_cmp_lg_u64 s[94:95], 0", "s_cbranch_scc1 L_fallback"]
    nb = opt.get("nb", 4)
    G = spread(6, [(0, 2, pack(1, 3) + send(1, 3)), (2, 4, lsum), (4, 6, wnext(wpos["f4"]))])
    G[nb - 1] += ["s_waitcnt lgkmcnt(0)", "s_barrier"] + prd(1)
    emit(merge(red(0), G, {0: ["s_waitcnt lgkmcnt(4)"]}))
    a.c('row sum >= 2^40 or not finite: the shift was unsafe -> redo with the exact row max')
    emit(chk)
    def fin(qb):
        o = Oi(qb, 0); g = 64 + 4*qb
        out = [f"v_pk_mul_f32 v[{o+r}:{o+r+1}], v[{o+r}:{o+r+1}], v[{g}:{g+1}] op_sel_hi:[1,0]" for r in range(0, 16, 2)]
        out += pack(qb, 0)
        out += [f"buffer_store_dwordx4 v[{o+4*sp}:{o+4*sp+3}], v{VL16}, s[64:67], {'s52' if qb else 's51'} offen offset:{sp*1024} sc1" for sp in range(2)]
        if xl == 2:
            out += [f"buffer_store_dwordx4 v[{o+4*sp}:{o+4*sp+3}], v{VL16}, s[64:67], {'s45' if qb else 's44'} offen offset:{sp*1024} {opt.get('fst', 'nt')}" for sp in range(2)]
        return out
    f0_ = [f"v_mul_f32 v{Oi(0,0)+r}, v64, v{Oi(0,0)+r}" for r in range(16)] + fin(0)[8:]
    emit(merge(red(1), spread(6, [(1, 6, f0_)]), {0: ["s_waitcnt lgkmcnt(4)"], 2: ["s_waitcnt lgkmcnt(0)"]}))
    a("s_sub_u32 s88, s87, s49")
    a(f"v_add_u32 v116, s88, v{VWA}"); a(f"v_add_u32 v117, s88, v{VWB}")
    a("v_and_b32 v14, 1, v0"); a("v_sub_u32 v14, 0, v14")
    a("v_and_b32 v12, 15, v0"); a("v_lshlrev_b32 v12, 2, v12")
    emit(fin(1))
    emit(fs())
    npre = wcnt[0]
    a.c('O (normalised, bf16, MFMA fragment layout) was stored write-through; publish a flag after the stores are acknowledged')
    if xl != 2:
        a("s_mov_b32 s93, 0x40000")
        a.label("L_tag")
        a("s_cmp_lg_u32 s73, 0")
        a("s_cbranch_scc1 L_tagok")
        a(f"buffer_load_dword v{VCNT}, v{VT}, s[68:71], s72 offen sc1")
        a("s_waitcnt vmcnt(0)")
        a(f"v_readfirstlane_b32 s73, v{VCNT}")
        a("s_sub_u32 s93, s93, 1")
        a("s_cbranch_scc0 L_tag")
        a.label("L_tagok")
    la = opt.get("late_a", 2)
    if opt.get("noack"):
        a("v_xor_b32 v105, s73, v14")
        a("s_mov_b64 exec, 3")
        a(f"buffer_atomic_swap v105, v12, s[64:67], s77 offen sc1")
        a("s_mov_b64 exec, -1")
    emit(wnext(la))
    a(f"s_waitcnt vmcnt({(5 if opt.get('noack') else 4) + 4*la})")
    for g in range(min(npre, 2)): emit(wo_reads(g))
    a("v_xor_b32 v14, s73, v14")
    a("s_lshl_b32 s51, s41, 5"); a("s_add_u32 s51, s51, s78"); a("s_lshl_b32 s51, s51, 5"); a(f"s_add_u32 s55, s51, {FL_OFF}")
    a("s_lshl_b32 s51, s41, 9"); a("s_lshl_b32 s52, s78, 3"); a("s_add_u32 s51, s51, s52"); a("s_lshl_b32 s51, s51, 10")
    a("s_add_u32 s32, s18, s51"); a("s_addc_u32 s33, s19, 0"); a("s_and_b32 s33, s33, 0xffff"); a("s_mov_b32 s34, 0x44000")
    a("s_and_b32 s52, s40, 4"); a("s_lshl_b32 s52, s52, 16")
    a(f"v_add_u32 v104, s52, v{VL16}")
    a(f"v_xor_b32 v105, 0x40000, v104")
    def pollops():
        o = [f"buffer_atomic_or v106, v12, s[64:67], {'s59' if xl == 2 else 's55'} offen sc0 sc1"]
        if xl == 2: o.append("buffer_load_dword v107, v12, s[64:67], s55 offen sc1")
        return o
    a("v_mov_b32 v106, 0")
    if xl == 2:
        a("s_add_u32 s59, s55, s47"); a("s_add_u32 s55, s55, s46"); a("s_add_u32 s77, s77, s47")
    if not opt.get("noack"):
        a(f"s_waitcnt vmcnt({4*la})")
        a("s_mov_b64 exec, 3")
        a(f"buffer_atomic_swap v14, v12, s[64:67], s77 offen sc1")
    a("s_mov_b64 exec, 0xffff")
    emit(pollops())
    a("s_mov_b64 exec, -1")
    emit(fs(True))
    nrest = min(8 - wcnt[0], opt.get("lb", 8))
    if wcnt[0] + nrest > 6: a("s_waitcnt lgkmcnt(0)")
    emit(wnext(nrest))
    for g in range(2, npre): emit(wo_reads(g))
    a("s_mov_b32 s93, 0x40000")
    a(f"s_waitcnt vmcnt({4*nrest})")
    for g in range(npre, npre + la): emit(wo_reads(g))
    a("s_mov_b64 exec, 0xffff")
    pp = opt.get("pp", 0)
    if not pp:
        a.label("L_poll")
        if xl == 2: a("v_or_b32 v106, v106, v107")
        a("v_cmp_ne_u32 vcc, v14, v106")
        a("s_cbranch_vccz L_pollend")
        a("v_mov_b32 v106, 0")
        emit(pollops())
        a("s_sub_u32 s93, s93, 1")
        a("s_waitcnt vmcnt(0)")
        a("s_cbranch_scc0 L_poll")
    else:
        pd = opt.get("pd", 2)
        regs = [106, 107, 108, 109][:pd]
        a("v_cmp_ne_u32 vcc, v14, v106")
        a("s_cbranch_vccz L_pollend")
        for x in regs: a(f"v_mov_b32 v{x}, 0")
        for x in regs[:-1]:
            a(f"buffer_atomic_or v{x}, v12, s[64:67], s55 offen sc0 sc1")
            a(f"s_sleep {pp}")
        a.label("L_poll")
        for i_ in range(pd):
            x = regs[(i_ - 1) % pd]; y = regs[i_]
            a(f"buffer_atomic_or v{x}, v12, s[64:67], s55 offen sc0 sc1")
            a(f"s_waitcnt vmcnt({pd - 1})")
            a(f"v_cmp_ne_u32 vcc, v14, v{y}")
            a("s_cbranch_vccz L_pollend")
            a(f"v_mov_b32 v{y}, 0")
        a("s_sub_u32 s93, s93, 1")
        a("s_cbranch_scc0 L_poll")
    a.label("L_pollend")
    a("s_mov_b64 exec, -1")
    emit(fs(True))
    a.c('---- output projection: tile 64 tokens x 64 cols x 1024 k per workgroup (wave = 2 heads); 4 workgroups share a tile ----')
    a("s_lshl_b32 s85, s80, 11")
    def oreg(i): return 128 + 4*i
    def oload(i):
        q = 1 - i // 16; s_ = i % 16
        o = [f"buffer_load_dwordx4 v[{oreg(i)}:{oreg(i)+3}], v{104+q}, s[32:35], s85 offen offset:{1024*(s_%2)} sc1"]
        if s_ % 2 == 1: o += ["s_add_u32 s85, s85, 2048", "s_and_b32 s85, s85, 0x3fff"]
        return o
    D = opt.get("odepth", 10)
    D0 = opt.get("d0", 6)
    nl2 = 8 - wcnt[0]
    late_reads = []; late2 = []
    for g in range(npre + la, wcnt[0]): late_reads += wo_reads(g)
    for g in range(wcnt[0], 8): late2 += wo_reads(g)
    vm0 = []
    for i in range(D):
        emit(oload(i)); vm0.append(("ld", i))
        if i == D0 - 1 and nl2:
            a("s_waitcnt lgkmcnt(0)")
            emit(wnext(nl2)); vm0 += [("w", 0)] * (4*nl2)
    def acc(j): return R("v", 16 + 16*j, 16)
    def omf(j, s_):
        i = (0 if j >> 1 else 16) + s_
        return mf32(acc(j), R("a", (s_*2 + (j & 1))*4, 4), R("v", oreg(i), 4), "0" if s_ == 0 else acc(j))
    NL = opt.get("nlag", 8)
    sched = []
    for s_ in range(16): sched += [(omf(3, s_), s_), (omf(2, s_), s_)]
    for s_ in range(16):
        sched.append((omf(1, s_), 16 + s_))
        if s_ < 16 - NL: sched.append((omf(0, s_), 16 + s_))
    nfirst = len(sched)
    for s_ in range(16 - NL, 16): sched.append((omf(0, s_), 16 + s_))
    misc = [f"v_add_u32 v12, s49, v{VL16}"] + [f"v_xor_b32 v{100+j}, {j << 15}, v12" for j in range(1, 4)]
    misc += ["v_mov_b32 v80, 0xff", "s_lshr_b32 s81, s73, 8", "s_lshr_b32 s82, s73, 16", "s_lshr_b32 s83, s73, 24"]
    for j in range(1, 4):
        misc += [f"s_xor_b32 s51, s2, {2*j}", "s_mul_i32 s51, s51, 12288", f"s_add_u32 s{93+j}, s51, {X_OFF + (j-1)*4096}"]
    misc += ["s_mul_i32 s51, s2, 12288", f"s_add_u32 s97, s51, {X_OFF}", "s_add_u32 s98, s97, 4096", "s_add_u32 s99, s97, 8192",
             "s_lshl_b32 s51, s3, 10", f"v_add_u32 v81, s51, v{VL16}",
             "s_mov_b32 s28, s14", "s_and_b32 s29, s15, 0xffff", "s_mov_b32 s30, 0x80000", "s_mov_b32 s31, 0x20000",
             "v_and_b32 v82, 31, v0", "v_lshlrev_b32 v82, 10, v82", "v_lshrrev_b32 v83, 5, v0", "v_lshl_add_u32 v82, v83, 3, v82",
             "s_lshl_b32 s50, s41, 16", "s_and_b32 s51, s40, 4", "s_lshl_b32 s51, s51, 13", "s_add_u32 s50, s50, s51",
             "s_lshl_b32 s51, s79, 7", "s_add_u32 s50, s50, s51", "s_and_b32 s51, s40, 2", "s_lshl_b32 s51, s51, 5", "s_add_u32 s50, s50, s51",
             "s_lshl_b32 s51, s3, 4", "s_add_u32 s50, s50, s51",
             "v_mov_b32 v84, 0x0c0c0400", "v_mov_b32 v85, 0x05040100",
             "s_and_b32 s52, s2, 6", "s_lshl_b32 s52, s52, 1", "s_add_u32 s88, s86, s52",
             "v_add_u32 v86, 1, v0", "v_lshlrev_b32 v86, 2, v86", "v_xor_b32 v86, s52, v86",
             "v_cmp_eq_u32 vcc, 0, v0", "v_mov_b32 v87, s73", "v_add_u32 v88, 16, v86", "v_cndmask_b32 v86, v86, v88, vcc"]
    CB = 0
    def wr(j): return [f"ds_write_b128 v12, v[{16+16*j+4*k}:{19+16*j+4*k}] offset:{CB + (j*3 + k-1)*1024}" for k in range(1, 4)]
    def rdd(j): return [f"ds_read_b128 v[{16+16*j+4*k}:{19+16*j+4*k}], v{100+k} offset:{CB + (j*3 + k-1)*1024}" for k in range(1, 4)]
    tg = ["s73", "s81", "s82", "s83"]
    def summ(j, pk):
        b = 16 + 16*j; out = []
        if pk:
            for p in (0, 2):
                out += [f"v_pk_add_f32 v[{b+p}:{b+p+1}], v[{b+p}:{b+p+1}], v[{b+4+p}:{b+5+p}]", f"v_pk_add_f32 v[{b+8+p}:{b+9+p}], v[{b+8+p}:{b+9+p}], v[{b+12+p}:{b+13+p}]"]
            for p in (0, 2):
                out += [f"v_pk_add_f32 v[{b+p}:{b+p+1}], v[{b+p}:{b+p+1}], v[{b+8+p}:{b+9+p}]"]
        else:
            for i in range(4): out += [f"v_add_f32 v{b+i}, v{b+i}, v{b+4+i}", f"v_add_f32 v{b+8+i}, v{b+8+i}, v{b+12+i}"]
            for i in range(4): out += [f"v_add_f32 v{b+i}, v{b+i}, v{b+8+i}"]
        if j:
            out += [f"v_bfi_b32 v{b+i}, v80, {tg[i]}, v{b+i}" for i in range(4)]
            out += [f"buffer_store_dwordx4 v[{b}:{b+3}], v81, s[64:67], s{93+j} offen sc1"]
        return out
    def hint(off):
        return ["s_mov_b64 exec, 1", f"buffer_atomic_swap v87, v{VT}, s[64:67], s88 offen offset:{off} sc1", "s_mov_b64 exec, -1"]
    n = len(sched)
    G = spread(n, [(0, 8, late_reads), (2, 30, misc), (34, 38, wr(3) + wr(2)),
                   (43, 50, ["s_waitcnt lgkmcnt(0)"] + summ(3, False) + summ(2, False)), (nfirst + 1, nfirst + 2, wr(1))])
    G[12].append("s_waitcnt lgkmcnt(0)")
    if nl2:
        g2r = spread(n, [(2*D0 + 1, 22, late2)])
        for i in range(n): G[i] += g2r[i]
        G[23].append("s_waitcnt lgkmcnt(0)")
    G[40] += ["s_waitcnt lgkmcnt(0)", "s_barrier"] + rdd(3) + rdd(2)
    G[50] += hint(0)
    g1 = min(n - 1, nfirst + 3)
    G[g1] += ["s_waitcnt lgkmcnt(0)", "s_barrier"] + rdd(1)
    g2_ = min(n - 1, nfirst + 5)
    s1 = ["s_waitcnt lgkmcnt(0)"] + summ(1, False)
    gg = spread(n, [(g2_, n, s1)])
    for i in range(n): G[i] += gg[i]
    G[n-1] += hint(16)
    vmq = list(vm0)
    issued = D; seen = -1
    for i, (m, need) in enumerate(sched):
        newload = False
        if need > seen:
            a(f"s_waitcnt vmcnt({len(vmq) - 1 - vmq.index(('ld', need))})" + (" lgkmcnt(0)" if i == 0 else ""))
            seen = need; newload = True
        a(m)
        if newload and issued < 32:
            emit(oload(issued)); vmq.append(("ld", issued)); issued += 1
        for x in G[i]:
            if x.startswith("buffer_"): vmq.append(("st", 0))
        emit(G[i])
    emit(fs(True))
    a.c('own 32x32 block: reduce over waves; partner partials arrive tagged (low byte of every word), hints only avoid early reads')
    a("v_mov_b32 v88, 0")
    a("s_mov_b64 exec, 7")
    a(f"buffer_atomic_or v88, v86, s[64:67], s86 offen sc0 sc1")
    a("s_mov_b64 exec, -1")
    a("s_nop 3")
    emit(wr(0))
    a("s_waitcnt lgkmcnt(0)"); a("s_barrier")
    emit(rdd(0))
    a("s_waitcnt lgkmcnt(0)")
    emit(summ(0, True))
    emit(fs(True))
    a("s_mov_b32 s93, 0x40000")
    a("s_mov_b64 exec, 7")
    if not opt.get("hp"):
        a("s_waitcnt vmcnt(0)")
        a.label("L_h")
        a("v_cmp_ne_u32 vcc, v87, v88")
        a("s_cbranch_vccz L_hend")
        a("v_mov_b32 v88, 0")
        a(f"buffer_atomic_or v88, v86, s[64:67], s86 offen sc0 sc1")
        a("s_sub_u32 s93, s93, 1")
        a("s_waitcnt vmcnt(0)")
        a("s_cbranch_scc0 L_h")
    else:
        a("v_mov_b32 v89, 0")
        a.label("L_h")
        for x, y in ((89, 88), (88, 89)):
            a(f"buffer_atomic_or v{x}, v86, s[64:67], s86 offen sc0 sc1")
            a("s_waitcnt vmcnt(1)")
            a(f"v_cmp_ne_u32 vcc, v87, v{y}")
            a("s_cbranch_vccz L_hend")
            a(f"v_mov_b32 v{y}, 0")
        a("s_sub_u32 s93, s93, 1")
        a("s_cbranch_scc0 L_h")
    a.label("L_hend")
    a("s_mov_b64 exec, -1")
    emit(fs(True))
    a("s_mov_b32 s93, 0x40000")
    a.label("L_x")
    for j in range(3):
        a(f"buffer_load_dwordx4 v[{32+4*j}:{35+4*j}], v81, s[64:67], s{97+j} offen sc1")
    a("s_waitcnt vmcnt(0)")
    for j in range(3):
        b = 32 + 4*j
        a(f"v_perm_b32 v{44+2*j}, v{b+1}, v{b}, v84")
        a(f"v_perm_b32 v{45+2*j}, v{b+3}, v{b+2}, v84")
    for j in range(3):
        a(f"v_perm_b32 v{44+2*j}, v{45+2*j}, v{44+2*j}, v85")
    for j in range(3):
        a(f"v_xor_b32 v{44+2*j}, s73, v{44+2*j}")
    a("v_or3_b32 v44, v44, v46, v48")
    a("v_cmp_ne_u32 vcc, 0, v44")
    a("s_cbranch_vccz L_xend")
    a("s_sub_u32 s93, s93, 1")
    a("s_cbranch_scc0 L_x")
    a.label("L_xend")
    emit(fs(True))
    for i in range(12): a(f"v_and_b32 v{32+i}, 0xffffff00, v{32+i}")
    for p in range(2):
        a(f"v_pk_add_f32 v[{16+2*p}:{17+2*p}], v[{16+2*p}:{17+2*p}], v[{32+2*p}:{33+2*p}]")
        a(f"v_pk_add_f32 v[{36+2*p}:{37+2*p}], v[{36+2*p}:{37+2*p}], v[{40+2*p}:{41+2*p}]")
    for p in range(2):
        a(f"v_pk_add_f32 v[{16+2*p}:{17+2*p}], v[{16+2*p}:{17+2*p}], v[{36+2*p}:{37+2*p}]")
    a("v_cvt_pk_bf16_f32 v16, v16, v17")
    a("v_cvt_pk_bf16_f32 v17, v18, v19")
    a("buffer_store_dwordx2 v[16:17], v82, s[28:31], s50 offen")
    if fine:
        a("s_waitcnt vmcnt(0)")
        emit(fs(True, True)); emit(fs(True, True))
        a("s_lshl_b32 s51, s2, 2"); a("s_add_u32 s51, s51, s3"); a("s_lshl_b32 s51, s51, 8"); a(f"s_add_u32 s51, s51, {ST_OFF}")
        a("v_lshlrev_b32 v6, 2, v0")
        a("buffer_store_dword v127, v6, s[64:67], s51 offen")
    a.label("L_end")
    a("s_endpgm")

    a.c('---- rare path: exact row max over all 1024 keys, then the attention is run again with it ----')
    a.label("L_fallback")
    a("s_mov_b32 s76, 1")
    a("s_waitcnt vmcnt(0) lgkmcnt(0)")
    a("s_barrier")
    for s in range(1, 4):
        a(f"v_xor_b32 v{VKR+s}, {32*s}, v{VKR}")
    for qb in range(2):
        for s_ in range(8):
            a(f"ds_write_b128 v{VQR}, {Q_(qb,s_)} offset:{(qb*8+s_)*1024}")
    a(f"v_subrev_u32 v{VKD}, 4096, v{VKD+4}")
    emit(kd_setup())
    a("s_mov_b32 s54, 0")
    a.label("L_fb_loop")
    emit(dma_k(0))
    a("s_waitcnt vmcnt(0)")
    emit(kreads(0))
    a("s_waitcnt lgkmcnt(0)")
    emit(qk(0, True) + qk(1, True))
    a("s_nop 15")
    for qb in range(2):
        for r in range(0, 16, 2):
            a(f"v_max3_f32 v{MS[qb]}, v{MS[qb]}, v{S0[qb]+r}, v{S0[qb]+r+1}")
    a(f"s_add_u32 s54, s54, {1 << TSH}")
    a(f"s_cmp_lt_u32 s54, {8 << TSH}")
    a("s_cbranch_scc1 L_fb_loop")
    a("s_nop 1")
    a(f"v_permlane32_swap_b32 v{MS[0]}, v{MS[1]}")
    a("s_lshl_b32 s51, s3, 2"); a(f"s_add_u32 s51, s51, {MISC+2048}")
    a(f"v_add_u32 v12, s51, v{VL16}")
    a(f"v_max_f32 v124, v{MS[0]}, v{MS[1]}")
    a("ds_write_b32 v12, v124")
    a("s_waitcnt lgkmcnt(0)"); a("s_barrier")
    a(f"ds_read_b128 v[16:19], v{VMX} offset:2048")
    a(f"ds_read_b128 v[20:23], v{VMX} offset:2560")
    a("s_waitcnt lgkmcnt(0)")
    for qb in range(2):
        a(f"v_max_f32 v{MS[qb]}, v{16+4*qb}, v{17+4*qb}")
        a(f"v_max3_f32 v{MS[qb]}, v{18+4*qb}, v{19+4*qb}, v{MS[qb]}")
    a("s_mov_b64 s[60:61], s[62:63]")
    emit(nexttile() + dma_k(0) + dma_v(0))
    if EB: emit(nexttile() + dma_k(1)[:5*EB])
    for k in range(4): a(f"v_mov_b32 v{VZ+k}, 0")
    a("s_nop 1")
    emit(zmf)
    a("s_waitcnt vmcnt(0)")
    a("s_branch L_att")
    return a.text()

def build(opt, fname):
    k = NAME + "_kernel"
    hdr = f"""; GQA block (B=8, Sq=64, D=512, Hq=32, Hkv=8, Sk=1024, Dh=128) as one fused kernel:
;   -> output projection split 4 ways over k, partial sums exchanged through d_ws.
; d_ws: [0,4M) O fragments, [4M,7M) output partials, [8M, 8M+48K) flags.  All hand-offs are device scope and carry a per-launch tag.
; @launch grid=(256,1,1) block=(256,1,1) lds=163840
.amdgcn_target "amdgcn-amd-amdhsa--gfx950"
"""
    txt = hdr + kernel_header(k) + gen(opt)
    txt += '.section .rodata,"a"\n.p2align 6\n' + kernel_desc(k, 512, 102, 256)
    open(fname, "w").write(txt)

L = [order(range(8))]*4
P = [order([0,1,2,3,4,5,6,7]), order([4,5,6,7,0,1,2,3])]*2
K6 = [order([0,1,2,3,4,5,6,7]), order([6,7,2,3,4,5,0,1])]*2
K5 = [order([0,1,2,3,4,5,6,7]), order([5,6,7,3,4,0,1,2])]*2
if __name__ == "__main__":
    B = {"orders": K5}
    B = dict(B, rot=2)
    W = lambda i6, f1, f2, f4: {"i6": i6, "f1": f1, "f2": f2, "f4": f4}
    B = dict(B, nb=6)
    K7 = [order([0,1,2,3,4,5,6,7]), order([7,1,2,3,4,5,6,0])]*2
    K6s = [order([0,1,2,3,4,5,6,7]), order([6,1,2,7,4,5,0,3])]*2
    K6l = [order([0,1,2,3,4,5,6,7]), order([0,1,2,3,6,7,4,5])]*2
    K5s = [order([0,1,2,3,4,5,6,7]), order([5,1,6,3,7,0,2,4])]*2
    R1 = [order(x) for x in ([0,2,1,3,4,6,5,7], [0,1,3,2,4,5,7,6], [1,0,2,4,3,5,6,7], [1,0,2,3,5,4,6,7])]
    R2 = [order(x) for x in ([0,2,1,6,3,4,5,7], [0,1,4,2,3,5,6,7], [1,3,0,7,2,4,5,6], [1,0,5,2,3,4,6,7])]
    R3 = [order(x) for x in ([0,2,1,3,6,4,5,7], [0,1,4,2,3,5,6,7], [1,3,0,2,4,7,5,6], [1,0,2,5,3,4,6,7])]
    R4 = [order(x) for x in ([0,3,1,2,4,7,5,6], [0,1,4,2,3,5,6,7], [1,0,2,5,3,4,6,7], [2,0,1,3,6,4,5,7])]
    R5 = [order(x) for x in ([0,4,1,2,3,5,6,7], [1,0,5,2,3,4,6,7], [2,0,1,6,3,4,5,7], [3,0,1,2,7,4,5,6])]
    R6 = [order(x) for x in ([0,1,4,2,3,5,6,7], [1,0,2,5,3,4,6,7], [2,0,1,3,6,4,5,7], [3,0,1,2,4,7,5,6])]
    B = dict(B, orders=R1)
    W = lambda i6, f1, f2, f4: {"i6": i6, "f1": f1, "f2": f2, "f4": f4}
    A0, A1, A2, A3 = R1
    R8 = [order(x) for x in ([0,2,1,3,6,4,5,7], [0,1,3,2,4,7,5,6], [1,0,2,4,3,5,6,7], [1,0,2,3,5,4,6,7])]
    R9 = [order(x) for x in ([0,2,1,3,4,6,5,7], [0,1,3,2,4,7,5,6], [1,0,2,4,3,5,6,7], [1,0,2,3,5,4,6,7])]
    P1 = [A0, A2, A1, A3]
    W5 = W([(1, 5), (24, 28), (28, 32)], 0, 0, 1)
    C = dict(B, orders=P1, wpos=W5, late_a=0, nb=4, nlag=6, pp=2)
    W0 = W([(2, 10), (12, 20), (22, 30)], 0, 0, 1)
    D_ = dict(C, wpos=W0, hp=1, pp=0, odepth=12)
    D_ = dict(D_, orders=R1)
    Wm = W([(8, 14), (16, 22), (24, 30)], 0, 0, 1)
    Q_3 = dict(D_, qr=3, orders=R3)
    R12 = [order(x) for x in ([0,2,1,3,6,5,7,4], [0,1,4,2,3,6,5,7], [1,3,0,4,2,7,6,5], [1,0,2,5,4,3,7,6])]
    Q_4 = dict(Q_3, qm=1)
    KV1 = {5: ["K0a", "K0b"], 6: ["V0a"], 7: ["V0b"]}
    M = dict(Q_4, msum=1, n1=33)
    V = {"b": Q_4, "ms": M, "n38": dict(M, n1=38), "n38p0": dict(M, n1=38, pa0=0, pa1=6), "n38p1": dict(M, n1=38, pa0=1, pa1=7), "n38p0h": dict(M, n1=38, pa0=0, pa1=6, hp2=1),
         "mp2": dict(M, mp=[4, 8, 20, 24]), "mp3": dict(M, mp=[9, 13, 25, 29])}
    build(V["n38p0h"], "final.s")
```

```python
import sys, math, struct
from asmlib import *

C_SCALE = math.log2(math.e) / math.sqrt(128.0)
def f2u(f): return struct.unpack("<I", struct.pack("<f", f))[0]
def mf32(d, a, b, c): return f"v_mfma_f32_32x32x16_bf16 {d}, {a}, {b}, {c}"
def R(p, lo, n): return f"{p}[{lo}:{lo+n-1}]"

OB = 128
def Oi(qb, j): return OB + (qb*4+j)*16
def O_(qb, j): return R("v", Oi(qb, j), 16)
def Q_(qb, s): return R("a", 128 + (qb*8+s)*4, 4)
def Kf(s): return R("a", 192 + 4*s, 4)
def Vf(st, j): return R("a", 224 + (st*4+j)*4, 4)
def Vfh(st, j, u): return R("a", 224 + (st*4+j)*4 + 2*u, 2)
S0 = [16, 32]; NM = [48, 64]; P0 = [80, 88]; L_ = [96, 97]
VCNT = 98; VT = 99
VKR = 100; VVR = 108; VKD = 112; VVD = 120; MS = [122, 123]
ID = [2, 6]
VL16 = 13; VQR = 15; VMX = 10; VWA = 11; VWB = 1
VOD0 = 126
VXD = 48; VWD = 50; VXR = 54; VWR = 58; T = 16; VZ = 64
XB = 131072; QAREA = XB; MISC = XB + 16384
X_OFF = 0x400000; FL_OFF = 0x800000; ST_OFF = 0x810000
PART = 16384
LIMIT = 2.0 ** 40

def spread(n, fillers):
    gaps = [[] for _ in range(n)]
    for (g0, g1, lst) in fillers:
        lst = [x for x in lst if x is not None]
        k = max(1, len(lst))
        for i, x in enumerate(lst):
            gaps[g0 + (i * (g1 - g0)) // k].append(x)
    return gaps

def fix_m0(seq):
    out = []
    for i, x in enumerate(seq):
        out.append(x)
        if " m0," in x and i + 1 < len(seq) and seq[i+1].startswith("buffer_load"):
            out.append("s_nop 0")
    return out

def merge(mf, gaps, pre=None):
    s = []
    for i, m in enumerate(mf):
        if pre and i in pre: s += pre[i]
        s.append(m); s += gaps[i]
    return [x for x in s if x is not None]

def order(l):
    v = 0
    for i, t in enumerate(l): v |= t << (4*i)
    return v

def gen(opt):
    a = Asm()
    IL = opt.get("il", 0)
    MSUM = opt.get("msum", 0)
    TSH = 15 if IL else 13
    TM = hex(15 << TSH)
    fine = opt.get("fine")
    clk = "s_memtime" if fine == 2 else "s_memrealtime"
    def fs(sync=False, last=False):
        if not fine: return []
        if fine == 3 and not last: return []
        return (["s_waitcnt lgkmcnt(0)"] if sync else []) + ["s_mov_b32 s89, m0", "s_mov_b32 m0, s92", "s_add_u32 s92, s92, 1", "v_writelane_b32 v127, s90, m0", clk + " s[90:91]", "s_mov_b32 m0, s89"]
    def emit(l):
        for x in fix_m0(l): a(x)
    a("s_cmp_ge_u32 s2, 256")
    a("s_cbranch_scc1 L_end")
    a("s_load_dwordx8 s[4:11], s[0:1], 0")
    a("s_load_dwordx8 s[12:19], s[0:1], 32")
    a("s_memrealtime s[74:75]")
    if fine:
        a(clk + " s[90:91]"); a("s_mov_b32 s92, 0"); a("v_mov_b32 v127, 0"); a("s_mov_b32 m0, 0")
    a(f"v_lshrrev_b32 v{T}, 6, v0")
    a("v_and_b32 v0, 63, v0")
    a(f"v_readfirstlane_b32 s3, v{T}")
    xl = opt.get("xl", 0)
    if xl:
        a("s_and_b32 s40, s2, 6"); a("s_bfe_u32 s41, s2, 0x10005"); a("s_or_b32 s40, s40, s41")
        a("s_and_b32 s41, s2, 1"); a("s_lshl_b32 s41, s41, 2"); a("s_lshr_b32 s42, s2, 6"); a("s_or_b32 s41, s41, s42")
    else:
        a("s_and_b32 s40, s2, 7")
        a("s_lshr_b32 s41, s2, 5")
    a("s_bfe_u32 s42, s2, 0x20003")
    a("s_lshl_b32 s43, s40, 2")
    a("s_add_u32 s43, s43, s42")
    r4, c16, vp = T+1, T+2, T+4
    a(f"v_lshrrev_b32 v{r4}, 4, v0")
    a(f"v_and_b32 v{c16}, 15, v0")
    a(f"v_lshlrev_b32 v{vp}, 2, v{r4}")
    a(f"v_xor_b32 v{vp}, v{c16}, v{vp}")
    a(f"v_lshlrev_b32 v{vp}, 4, v{vp}")
    a(f"v_lshl_add_u32 v{VWD}, v{r4}, 13, v{vp}")
    for i in range(1, 4):
        a(f"v_add_u32 v{VWD+i}, {31744*i}, v{VWD}")
    a(f"v_lshrrev_b32 v{T+5}, 3, v0")
    a(f"v_and_b32 v{T+6}, 7, v0")
    a(f"v_xor_b32 v{T+7}, v{T+6}, v{r4}")
    a(f"v_lshlrev_b32 v{T+7}, 4, v{T+7}")
    a(f"v_lshl_add_u32 v{VXD}, v{T+5}, 10, v{T+7}")
    a(f"v_xor_b32 v{T+7}, 64, v{VXD}")
    a(f"v_add_u32 v{VXD+1}, {8192-1024}, v{T+7}")
    if xl:
        a("s_lshl_b32 s44, s41, 1"); a("s_add_u32 s44, s44, s43")
    elif opt.get("qr", 0) == 0:
        a("s_lshl_b32 s44, s42, 1"); a("s_add_u32 s44, s44, s41")
    elif opt["qr"] == 1:
        a("s_add_u32 s44, s42, s41"); a("s_lshl_b32 s44, s44, 1")
    elif opt["qr"] == 2:
        a("s_add_u32 s44, s42, s41"); a("s_lshl_b32 s44, s44, 2")
    elif opt["qr"] == 3:
        a("s_add_u32 s44, s42, s41"); a("s_lshl_b32 s44, s44, 2"); a("s_lshr_b64 s[44:45], 0x30630630630, s44") if False else None
        a("s_mul_i32 s45, s44, 22"); a("s_lshr_b32 s45, s45, 8"); a("s_mul_i32 s45, s45, 12"); a("s_sub_u32 s44, s44, s45"); a("s_lshr_b32 s44, s44, 2"); a("s_mul_i32 s44, s44, 3")
    elif opt["qr"] == 5:
        a("s_mov_b32 s44, 0")
    elif opt["qr"] == 6:
        a("s_add_u32 s44, s42, s41"); a("s_lshl_b32 s44, s44, 2")
        a("s_mul_i32 s45, s44, 22"); a("s_lshr_b32 s45, s45, 8"); a("s_mul_i32 s45, s45, 12"); a("s_sub_u32 s44, s44, s45"); a("s_lshr_b32 s44, s44, 2"); a("s_mul_i32 s44, s44, 3"); a("s_add_u32 s44, s44, s40")
    elif opt["qr"] == 4:
        a("s_add_u32 s44, s42, s41"); a("s_lshl_b32 s44, s44, 1"); a("s_add_u32 s44, s44, s40")
    QT = opt.get("qt")
    if QT:
        ncls = len(QT)
        if ncls == 8: a("s_lshl_b32 s44, s42, 1"); a("s_add_u32 s44, s44, s41"); a("s_and_b32 s44, s44, 7")
        else: a("s_add_u32 s44, s42, s41"); a(f"s_and_b32 s44, s44, {ncls-1}")
        a(f"s_mov_b32 s58, {hex(order(QT[0]))}")
        for c_ in range(1, ncls):
            a(f"s_cmp_eq_u32 s44, {c_}"); a(f"s_cselect_b32 s58, {hex(order(QT[c_]))}, s58")
    else:
        a("s_and_b32 s58, s44, 7")
    a("s_lshl_b32 s46, s3, 11"); a(f"s_add_u32 s46, s46, {XB}")
    a("s_lshl_b32 s47, s3, 12"); a("s_add_u32 s47, s47, 16384")
    a("s_lshl_b32 s49, s3, 15")
    a("s_lshl_b32 s44, s41, 16"); a("s_lshl_b32 s45, s3, 14"); a("s_add_u32 s44, s44, s45")
    a("s_lshl_b32 s48, s43, 8"); a("s_lshl_b32 s45, s3, 17"); a("s_add_u32 s48, s48, s45")
    a("s_sub_u32 s22, 0x80000, s44"); a("s_mov_b32 s23, 0x20000")
    a("s_sub_u32 s34, 0x400000, s48"); a("s_mov_b32 s35, 0x20000")
    a("s_waitcnt lgkmcnt(0)")
    a("s_add_u32 s20, s4, s44"); a("s_addc_u32 s21, s5, 0"); a("s_and_b32 s21, s21, 0xffff")
    a("s_add_u32 s32, s10, s48"); a("s_addc_u32 s33, s11, 0"); a("s_and_b32 s33, s33, 0xffff")

    def qdma(c):
        j = c % 4
        if QT:
            out = ["s_and_b32 s57, s58, 7", f"s_lshl_b32 s59, s57, 7", f"s_add_u32 m0, s46, {j*8192}", "s_lshl_b32 s57, s57, 19"]
            out += [f"buffer_load_dwordx4 v{VXD+i}, s[20:23], s59 offen offset:{1024*i} lds" for i in range(2)]
            out += [f"s_add_u32 m0, s47, {j*32768}", "s_lshr_b32 s58, s58, 4"]
            out += [f"buffer_load_dwordx4 v{VWD+i}, s[32:35], s57 offen offset:{1024*i} lds" for i in range(4)]
            return out
        out = [f"s_lshl_b32 s59, s58, 7", f"s_add_u32 m0, s46, {j*8192}", "s_lshl_b32 s57, s58, 19"]
        for i in range(2):
            out.append(f"buffer_load_dwordx4 v{VXD+i}, s[20:23], s59 offen offset:{1024*i} lds")
        out += [f"s_add_u32 m0, s47, {j*32768}", "s_add_u32 s58, s58, 1"]
        for i in range(4):
            out.append(f"buffer_load_dwordx4 v{VWD+i}, s[32:35], s57 offen offset:{1024*i} lds")
        out.append("s_and_b32 s58, s58, 7")
        return out
    def nexttile():
        return [f"s_and_b32 s54, s60, {TM}", "s_lshr_b64 s[60:61], s[60:61], 4"]
    def dma_k(slot):
        out = []
        for hh in range(2):
            out.append(f"s_add_u32 m0, s49, {slot*16384 + hh*4096}")
            for i in range(4):
                out.append(f"buffer_load_dwordx4 v{VKD+4*hh+i}, s[24:27], s54 offen offset:{1024*i} lds")
        return out
    def dma_v(slot):
        out = []
        for hh in range(2):
            out.append(f"s_add_u32 m0, s49, {slot*16384 + 8192 + hh*4096}")
            for i in range(4):
                out.append(f"buffer_load_dwordx4 v{VVD+hh}, s[28:31], s54 offen offset:{1024*i} lds")
        return out
    vm = []
    if opt.get("xfirst"):
        q0 = qdma(0); q1 = qdma(1)
        x1 = ["s_add_u32 s51, s58, 1", "s_and_b32 s51, s51, 7", "s_lshl_b32 s51, s51, 7", f"s_add_u32 m0, s46, 8192", "s_nop 0"] + \
             [f"buffer_load_dwordx4 v{VXD+i}, s[20:23], s51 offen offset:{1024*i} lds" for i in range(2)]
        emit(q0[:5] + x1 + q0[5:]); vm += ["c0"]*8
    else:
        emit(qdma(0)); vm += ["c0"]*6
    def kd_setup():
        out = [f"v_xor_b32 v{VKD+i}, {64*i}, v{VKD}" for i in range(1, 4)]
        return out
    a(f"v_xor_b32 v{T+3}, v{c16}, v{r4}"); a(f"v_lshlrev_b32 v{T+3}, 4, v{T+3}")
    a(f"v_lshl_add_u32 v{VKD}, v{r4}, 8, v{T+3}")
    emit(kd_setup())
    for i in range(4):
        a(f"v_add_u32 v{VKD+4+i}, 4096, v{VKD+i}")
    a(f"v_lshl_add_u32 v{VVD}, v{r4}, 8, v{vp}")
    a(f"v_add_u32 v{VVD+1}, 4096, v{VVD}")
    a(f"v_and_b32 v{T+7}, 16, v0"); a(f"v_lshrrev_b32 v{T+7}, 2, v{T+7}")
    a(f"v_xor_b32 v{T+7}, v{T+7}, v{T+6}"); a(f"v_lshlrev_b32 v{T+7}, 4, v{T+7}")
    a(f"v_lshl_add_u32 v{VOD0}, v{T+5}, 10, v{T+7}")
    orders = opt["orders"]
    a(f"s_mov_b32 s62, {hex(orders[0])}")
    for rr_ in range(1, 4):
        if orders[rr_] != orders[0]:
            a(f"s_cmp_eq_u32 s42, {rr_}"); a(f"s_cselect_b32 s62, {hex(orders[rr_])}, s62")
    if "orders2" in opt:
        o2 = opt["orders2"]
        a(f"s_mov_b32 s63, {hex(o2[0])}")
        for rr_ in range(1, 4):
            a(f"s_cmp_eq_u32 s42, {rr_}"); a(f"s_cselect_b32 s63, {hex(o2[rr_])}, s63")
        a("s_bitcmp1_b32 s41, 0"); a("s_cselect_b32 s62, s63, s62")
    tx = opt.get("tx", 0)
    if tx:
        if tx == 1: a("s_mov_b32 s63, s41")
        elif tx == 2: a("s_mov_b32 s63, s40")
        elif tx == 3: a("s_add_u32 s63, s40, s41")
        elif tx == 4: a("s_lshl_b32 s63, s3, 1")
        elif tx == 5: a("s_lshl_b32 s63, s3, 1"); a("s_add_u32 s63, s63, s40"); a("s_add_u32 s63, s63, s41")
        a("s_and_b32 s63, s63, 7"); a("s_mul_i32 s63, s63, 0x11111111"); a("s_xor_b32 s62, s62, s63")
    a("s_mov_b32 s63, 8")
    a(f"s_lshl_b64 s[62:63], s[62:63], {TSH}")
    a("s_mov_b64 s[60:61], s[62:63]")
    a("s_lshl_b32 s50, s41, 3"); a("s_add_u32 s50, s50, s40"); a(f"s_lshl_b32 s50, s50, {5 if IL else 2}"); a("s_add_u32 s50, s50, s3")
    a(f"s_lshl_b32 s50, s50, {13 if IL else 16}")
    a(f"s_mov_b32 s26, {hex(0x3a000 if IL else 0x10000)}"); a("s_mov_b32 s27, 0x20000")
    a(f"s_mov_b32 s30, {hex(0x3a000 if IL else 0x10000)}"); a("s_mov_b32 s31, 0x20000")
    a("s_add_u32 s24, s6, s50"); a("s_addc_u32 s25, s7, 0"); a("s_and_b32 s25, s25, 0xffff")
    a("s_add_u32 s28, s8, s50"); a("s_addc_u32 s29, s9, 0"); a("s_and_b32 s29, s29, 0xffff")
    srd(a, 64, 18, ST_OFF + (0x40000 if fine else 0))
    srd(a, 68, 16, 256)
    a(f"v_mov_b32 v{VT}, 0")
    a("s_lshl_b32 s72, s41, 5")
    a("s_or_b32 s51, s43, s3")
    a("s_cbranch_scc1 L_nolead")
    a("s_or_b32 s74, s74, 1")
    a(f"v_mov_b32 v{VCNT}, s74")
    a("s_mov_b64 exec, 1")
    a(f"buffer_store_dword v{VCNT}, v{VT}, s[68:71], s72 offen sc1")
    a("s_mov_b64 exec, -1")
    a.label("L_nolead")
    if opt.get("xfirst"):
        emit(q1[2:3] + q1[5:]); vm += ["c1"]*4
    else:
        emit(qdma(1)); vm += ["c1"]*6
    l31, hh_, rr, cc, dh = T+5, T+6, T+8, T+9, T+10
    a(f"v_and_b32 v{l31}, 31, v0")
    a(f"v_lshrrev_b32 v{hh_}, 5, v0")
    a(f"v_xor_b32 v{T+7}, v{hh_}, v{c16}")
    a(f"v_lshlrev_b32 v{T+7}, 4, v{T+7}")
    a(f"v_lshl_add_u32 v{T+7}, v{l31}, 8, v{T+7}")
    a(f"v_add_u32 v{VKR}, s49, v{T+7}")
    for s in range(1, 8):
        a(f"v_xor_b32 v{VKR+s}, {32*s}, v{VKR}")
    a(f"v_bfe_u32 v{T+7}, v0, 1, 3")
    a(f"v_xor_b32 v{T+7}, v{T+7}, v{hh_}"); a(f"v_lshlrev_b32 v{T+7}, 4, v{T+7}")
    a(f"v_lshl_add_u32 v{T+7}, v{l31}, 7, v{T+7}")
    a(f"v_add_u32 v{VXR}, {XB}, v{T+7}")
    for s in range(1, 4):
        a(f"v_xor_b32 v{VXR+s}, {32*s}, v{VXR}")
    a(f"v_lshrrev_b32 v{rr}, 2, v{c16}")
    a(f"v_and_b32 v{cc}, 3, v0")
    a(f"v_and_b32 v{dh}, 16, v0")
    a(f"v_lshlrev_b32 v{dh}, 1, v{dh}")
    a(f"v_lshl_add_u32 v{T+13}, v{hh_}, 2, v{rr}")
    a(f"v_lshl_add_u32 v{T+14}, v{cc}, 3, v{dh}")
    a(f"v_lshl_add_u32 v{T+11}, v{T+13}, 8, v{T+14}")
    a(f"v_add_u32 v{T+11}, s49, v{T+11}")
    for j in range(4):
        a(f"s_add_u32 s51, s3, {j}"); a("s_and_b32 s51, s51, 3")
        a(f"v_xor_b32 v{T+12}, s51, v{rr}")
        a(f"v_lshl_add_u32 v{VVR+j}, v{T+12}, 6, v{T+11}")
    a("s_lshl_b32 s51, s3, 4")
    a("s_and_b32 s52, s40, 2"); a("s_lshl_b32 s52, s52, 5"); a("s_or_b32 s51, s51, s52")
    a(f"v_and_b32 v{T+12}, 8, v0"); a(f"v_lshl_add_u32 v{T+14}, v{T+12}, 3, v{T+14}")
    a(f"v_xor_b32 v{T+14}, s51, v{T+14}")
    a(f"v_lshl_add_u32 v{T+14}, v{T+13}, 7, v{T+14}")
    a(f"v_add_u32 v{VWA}, s49, v{T+14}")
    a(f"v_xor_b32 v{VWB}, 64, v{VWA}")
    a(f"v_lshl_add_u32 v{T+11}, v{hh_}, 3, v{rr}")
    a(f"v_lshl_add_u32 v{T+11}, v{T+11}, 8, v{dh}")
    a(f"v_xor_b32 v{T+12}, s3, v{rr}")
    a(f"v_lshl_add_u32 v{T+11}, v{T+12}, 6, v{T+11}")
    a(f"v_and_b32 v{T+12}, 1, v0"); a(f"v_lshl_add_u32 v{T+11}, v{T+12}, 4, v{T+11}")
    a(f"v_and_b32 v{T+12}, 2, v0"); a(f"v_lshl_add_u32 v{T+11}, v{T+12}, 2, v{T+11}")
    a(f"v_add_u32 v{VWR}, 16384, v{T+11}")
    a(f"v_add_u32 v{VWR+1}, {16384+65536}, v{T+11}")
    a(f"v_lshlrev_b32 v{VL16}, 4, v0")
    a(f"v_add_u32 v{VQR}, {QAREA}, v{VL16}")
    a(f"v_lshlrev_b32 v{VMX}, 4, v{l31}")
    a(f"v_add_u32 v{VMX}, {MISC}, v{VMX}")
    a(f"v_mov_b32 v{MS[0]}, 0xff800000"); a(f"v_mov_b32 v{MS[1]}, 0xff800000")
    a("s_mov_b32 s76, 0")
    a("s_lshl_b32 s51, s41, 5"); a("s_add_u32 s51, s51, s43"); a("s_lshl_b32 s51, s51, 2"); a("s_add_u32 s51, s51, s3")
    a("s_lshl_b32 s51, s51, 3"); a(f"s_add_u32 s77, s51, {FL_OFF}")
    a("s_andn2_b32 s51, s2, 6"); a("s_lshl_b32 s51, s51, 7"); a("s_lshl_b32 s52, s3, 5"); a("s_add_u32 s51, s51, s52"); a(f"s_add_u32 s75, s51, {FL_OFF + 0x4000}")
    a("s_and_b32 s78, s40, 6"); a("s_lshl_b32 s78, s78, 2"); a("s_lshl_b32 s51, s3, 1"); a("s_add_u32 s78, s78, s51")
    a("s_and_b32 s79, s40, 1"); a("s_lshl_b32 s79, s79, 2"); a("s_add_u32 s79, s79, s42")
    a("s_lshl_b32 s51, s78, 17"); a("s_lshl_b32 s52, s79, 7"); a("s_add_u32 s51, s51, s52")
    a("s_add_u32 s36, s12, s51"); a("s_addc_u32 s37, s13, 0"); a("s_and_b32 s37, s37, 0xffff")
    a("s_sub_u32 s38, 0x400000, s51"); a("s_mov_b32 s39, 0x20000")
    a(f"v_bfe_u32 v{T+7}, v0, 2, 1")
    a(f"v_bfe_u32 v{T+11}, v0, 3, 2")
    a(f"v_bfe_u32 v{T+12}, v0, 1, 1")
    a(f"v_lshl_add_u32 v{T+11}, v{T+11}, 1, v{T+12}")
    a(f"v_xor_b32 v{T+7}, v{T+7}, v{hh_}")
    a(f"v_lshl_add_u32 v{T+11}, v{T+7}, 4, v{T+11}")
    a(f"v_and_b32 v{T+12}, 1, v0"); a(f"v_lshlrev_b32 v{T+12}, 4, v{T+12}")
    a(f"v_mov_b32 v{T+7}, 0x3f80")
    a(f"v_lshlrev_b32 v{T+12}, v{T+12}, v{T+7}")
    msk = [80, 82, 84, 86, 94, 96, 98, 100]
    for k in range(8): a(f"v_cmp_eq_u32 s[{msk[k]}:{msk[k]+1}], {k}, v{T+11}")
    for k in range(4): a(f"v_mov_b32 v{VZ+k}, 0")
    for k in range(8): a(f"v_cndmask_b32 v{2+k}, 0, v{T+12}, s[{msk[k]}:{msk[k]+1}]")
    if MSUM:
        a(f"v_and_b32 v{T+7}, 1, v{r4}"); a(f"v_xor_b32 v{T+7}, v{T+7}, v{c16}")
        a(f"v_cmp_eq_u32 s[80:81], 0, v{T+7}"); a(f"v_cmp_eq_u32 s[82:83], 2, v{T+7}")
        a(f"v_mov_b32 v{T+12}, 0x3f803f80"); a("s_nop 0")
        a(f"v_cndmask_b32 v{T+7}, 0, v{T+12}, s[80:81]"); a(f"v_cndmask_b32 v{T+11}, 0, v{T+12}, s[82:83]")
        for k in range(4):
            a(f"v_accvgpr_write_b32 a{116+k}, v{T+7}"); a(f"v_accvgpr_write_b32 a{120+k}, v{T+11}")
    z = R("v", VZ, 4)
    zmf = [mf32(O_(qb, j), z, z, "0") for qb in range(2) for j in range(4)]
    emit(zmf)
    emit(qdma(2)); vm += ["c2"]*6

    kvq = opt.get("kvq", {5: ["K0a"], 6: ["K0b"], 7: ["V0a"], 8: ["V0b"]})
    K0 = dma_k(0); V0 = dma_v(0)
    grp = {"K0a": nexttile() + K0[:5], "K0b": K0[5:], "V0a": V0[:5], "V0b": V0[5:]}
    def kv(c):
        out = []
        for g in kvq.get(c, []):
            out += grp[g]; vm.extend([g[:2]]*4)
        return out
    def qreads(c):
        j = c % 4; base = (c % 2) * 48; out = []
        for s in range(4):
            b = base + 12*s
            wreg = VWR + (j >> 1); wo = (j & 1) * 32768
            out.append(f"ds_read_b64_tr_b16 a[{b}:{b+1}], v{wreg} offset:{wo + (16*s)*256}")
            out.append(f"ds_read_b64_tr_b16 a[{b+2}:{b+3}], v{wreg} offset:{wo + (16*s+4)*256}")
            out.append(f"ds_read_b128 a[{b+4}:{b+7}], v{VXR+s} offset:{j*8192}")
            out.append(f"ds_read_b128 a[{b+8}:{b+11}], v{VXR+s} offset:{j*8192+4096}")
        return out
    def qmf(c):
        base = (c % 2) * 48; out = []
        for s in range(4):
            b = base + 12*s
            for qb in range(2):
                cin = "0" if (c == 0 and s == 0) else R("v", S0[qb], 16)
                out.append(mf32(R("v", S0[qb], 16), R("a", b, 4), R("a", b+4+4*qb, 4), cin))
        return out
    def nwait(tag):
        last = max(i for i, x in enumerate(vm) if x == tag)
        return len(vm) - 1 - last
    emit(fs())
    for c in range(8):
        a(f"s_waitcnt vmcnt({nwait(f'c{c}')})")
        a("s_barrier")
        emit(fs(c == 0))
        seq = qreads(c)
        ld = []
        if c + 3 < 8:
            ld += qdma(c + 3); vm += [f"c{c+3}"]*6
        ld += kv(c)
        if c == 0:
            emit(seq + ld)
        else:
            mf = qmf(c - 1)
            if opt.get("nomf") and c < 5: mf = ["s_nop 0"]*8
            if opt.get("nord") and c < 5: seq = []
            gaps = spread(8, [(0, 4, seq), (1, 8, ld)])
            s2 = []
            for i in range(8):
                s2 += gaps[i]; s2.append(mf[i])
            emit(s2)
        a("s_waitcnt lgkmcnt(0)")
    def kreads(slot): return [f"ds_read_b128 {Kf(s)}, v{VKR+s} offset:{slot*16384}" for s in range(8)]
    def vreads(slot):
        return [f"ds_read_b64_tr_b16 {Vfh(st,j,u)}, v{VVR+j} offset:{slot*16384 + 8192 + (16*st+8*u)*256}" for st in range(2) for j in range(4) for u in range(2)]
    m7 = qmf(7)
    m7 = m7[0::2] + m7[1::2]
    def qfin(qb):
        out = [f"v_pk_mul_f32 v[{S0[qb]+r}:{S0[qb]+r+1}], v[{S0[qb]+r}:{S0[qb]+r+1}], v[14:15] op_sel_hi:[1,0]" for r in range(0, 16, 2)]
        out += [f"v_cvt_pk_bf16_f32 v{P0[qb]+r}, v{S0[qb]+2*r}, v{S0[qb]+2*r+1}" for r in range(8)]
        out += [f"ds_write_b128 v12, v[{P0[qb]+4*sp}:{P0[qb]+4*sp+3}] offset:{qb*8192 + sp*1024}" for sp in range(2)]
        return out
    EB = opt.get("eb", 0)
    if EB: a("s_barrier")
    l8 = kv(8)
    if EB:
        l8 += nexttile() + dma_k(1)[:5*EB]; vm.extend(["K1"]*(4*EB))
    f0 = qfin(0)
    if opt.get("qm"):
        f0 = [f"v_mul_f32 v{S0[0]+r}, v14, v{S0[0]+r}" for r in range(16)] + f0[8:]
    emit(merge(m7, spread(8, [(0, 2, [f"v_mov_b32 v14, {hex(f2u(C_SCALE))}", "s_lshl_b32 s51, s3, 11", f"v_add_u32 v12, s51, v{VQR}"]), ((5, 7, f0[:12]) if opt.get("qm") else (6, 7, f0[:6])), (7, 8, f0[12:] if opt.get("qm") else f0[6:])])))
    if opt.get("l8s"):
        q1_ = qfin(1)
        emit(merge(q1_, spread(len(q1_), [(0, len(q1_), l8)])))
    else:
        emit(qfin(1))
        emit(l8)

    def qk(qb, first=False):
        return [mf32(R("v", S0[qb], 16), Kf(s), Q_(qb, s), ("0" if first else R("v", NM[qb], 16)) if s == 0 else R("v", S0[qb], 16)) for s in range(8)]
    def pv(qb, order1=(0, 1, 2, 3)):
        return [mf32(O_(qb, j), Vf(0, j), R("v", P0[qb], 4), O_(qb, j)) for j in range(4)] + \
               [mf32(O_(qb, j), Vf(1, j), R("v", P0[qb]+4, 4), O_(qb, j)) for j in order1]
    def ex(qb, r): return f"v_exp_f32 v{S0[qb]+r}, v{S0[qb]+r}"
    PK = opt.get("pk", 0)
    def msum(qb, st): return f"v_mfma_f32_16x16x32_bf16 a[112:115], a[{116+4*qb}:{119+4*qb}], v[{P0[qb]+4*st}:{P0[qb]+4*st+3}], a[112:115]"
    LP = [96, 124]
    def ad(qb, r):
        if MSUM: return None
        if not PK: return f"v_add_f32 v{L_[qb]}, v{L_[qb]}, v{S0[qb]+r}"
        if r % 2 == 0: return None
        return f"v_pk_add_f32 v[{LP[qb]}:{LP[qb]+1}], v[{LP[qb]}:{LP[qb]+1}], v[{S0[qb]+r-1}:{S0[qb]+r}]"
    def cv(qb, i): return f"v_cvt_pk_bf16_f32 v{P0[qb]+i}, v{S0[qb]+2*i}, v{S0[qb]+2*i+1}"

    emit(fs(True))
    a("s_waitcnt lgkmcnt(0)")
    a.label("L_att")
    a("s_barrier")
    qr = [f"ds_read_b128 {Q_(qb,s)}, v{VQR} offset:{(qb*8+s)*1024}" for qb in range(2) for s in range(8)]
    emit(qr[:8])
    a(f"s_waitcnt vmcnt({nwait('K0')})")
    emit(fs())
    emit(kreads(0))
    if MSUM:
        for k in range(4): a(f"v_accvgpr_write_b32 a{112+k}, 0")
    else:
        a(f"v_mov_b32 v{L_[0]}, 0"); a(f"v_mov_b32 v{L_[1]}, 0")
    K1 = nexttile() + dma_k(1); V1 = dma_v(1)
    mf = qk(0, True) + qk(1, True)
    def inmax(qb, t):
        s = S0[qb]; out = [f"v_max3_f32 v{t}, v{s}, v{s+1}, v{s+2}"]
        for r in range(3, 15, 2):
            out.append(f"v_max3_f32 v{t}, v{t}, v{s+r}, v{s+r+1}")
        out.append(f"v_max_f32 v{t}, v{t}, v{s+15}")
        return out
    vr0 = vreads(0)
    nq = 8
    if EB:
        seq_ = (dma_k(1) + dma_v(1))[5*EB:]
        K1 = [None, None] + seq_[:10]; V1 = seq_[10:] + [None]*(5*EB)
    emit([x for x in K1[:4] if x])
    gaps = spread(16, [(0, 4, qr[8:]), (0, 14, K1[4:]), (10, 14, inmax(0, 124))])
    emit(merge(mf, gaps, pre={0: ["s_waitcnt lgkmcnt(4)"], 4: ["s_waitcnt lgkmcnt(8)"], 8: ["s_waitcnt lgkmcnt(0)"]}))
    a("s_lshl_b32 s51, s3, 2"); a(f"s_add_u32 s51, s51, {MISC}")
    a(f"v_add_u32 v12, s51, v{VL16}")
    emit([x for x in V1[:2] if x])
    a("s_nop 5" if V1[0] else "s_nop 8")
    emit(inmax(1, 125))
    a("s_nop 1")
    a("v_permlane32_swap_b32 v124, v125")
    a("s_nop 0")
    a("v_max_f32 v124, v124, v125")
    a("ds_write_b32 v12, v124")
    emit([x for x in V1[2:3] if x])
    a("s_waitcnt lgkmcnt(0)"); a("s_barrier")
    a(f"ds_read_b128 v[{NM[0]}:{NM[0]+3}], v{VMX}")
    a(f"ds_read_b128 v[{NM[1]}:{NM[1]+3}], v{VMX} offset:512")
    emit(fs())
    a(f"s_waitcnt vmcnt({nwait('V0') + (10 if V1[0] else 8)})")
    emit(vr0[:8])
    a("s_waitcnt lgkmcnt(8)")
    for qb in range(2):
        n = NM[qb]
        a(f"v_max3_f32 v{124+qb}, v{n}, v{n+1}, v{MS[qb]}")
        a(f"v_max3_f32 v{124+qb}, v{n+2}, v{n+3}, v{124+qb}")
    for qb in range(2):
        a(f"v_sub_f32 v{NM[qb]}, 0, v{124+qb}")
        a(f"v_sub_f32 v{NM[qb]+1}, 0, v{124+qb}")
    body_a = [f"v_pk_add_f32 v[{S0[0]+r}:{S0[0]+r+1}], v[{S0[0]+r}:{S0[0]+r+1}], v[{NM[0]}:{NM[0]+1}]" for r in range(0, 16, 2)]
    for r in range(15):
        body_a.append(ex(0, r))
        if r >= 1: body_a.append(ad(0, r-1))
        if r >= 2 and r % 2 == 0: body_a.append(cv(0, (r-2)//2))
    body_a += [f"v_pk_add_f32 v[{S0[1]+r}:{S0[1]+r+1}], v[{S0[1]+r}:{S0[1]+r+1}], v[{NM[1]}:{NM[1]+1}]" for r in range(0, 16, 2)]
    body_a += [f"v_pk_mov_b32 v[{NM[qb]+r}:{NM[qb]+r+1}], v[{NM[qb]}:{NM[qb]+1}], v[{NM[qb]}:{NM[qb]+1}]" for qb in range(2) for r in range(2, 16, 2)]
    n = len(body_a)
    if PK: a("v_mov_b32 v124, 0"); a("v_mov_b32 v125, 0")
    SH0 = opt.get("sh", 0)
    extra = (nexttile() + dma_k(0)[:5*SH0]) if SH0 > 0 else []
    emit(merge(body_a, spread(n, [(0, n - 4, (V1[3:] if SH0 >= 0 else V1[3:5]) + extra), (4, 30, vr0[8:(15 if opt.get("vg", [32])[-1] >= 32 else 16)])])))

    wo_slot = opt.get("wslot", [0, 4096, 8192, 12288, "X", 28672, 0, 4096])
    def wo_group(g):
        out = [f"s_add_u32 m0, s49, {wo_slot[g]}" if wo_slot[g] != "X" else "s_mov_b32 m0, s87"]
        out += [f"buffer_load_dwordx4 v{VKD+i}, s[36:39], s84 offen offset:{1024*i} lds" for i in range(4)]
        out += ["s_add_u32 s84, s84, 0x8000", "s_and_b32 s84, s84, 0x3ffff"]
        return out
    def wo_reads(g):
        out = []
        X = wo_slot[g] == "X"
        for s2_ in range(2):
            s = 2*g + s2_
            for ci in range(2):
                for u in range(2):
                    d = (s*2 + ci)*4 + 2*u
                    r_ = (117 if ci else 116) if X else (VWB if ci else VWA)
                    out.append(f"ds_read_b64_tr_b16 a[{d}:{d+1}], v{r_} offset:{(0 if X else wo_slot[g]) + (16*s2_ + 8*u)*128}")
        return out
    wpos = opt.get("wpos", {"i6": [(2, 10), (12, 20), (22, 30)], "f1": 0, "f2": 0, "f4": 1})
    wcnt = [0]
    def wnext(n=1):
        out = []
        for _ in range(n):
            out += wo_group(wcnt[0]); wcnt[0] += 1
        return out

    def body(par, kind):
        SH = opt.get("sh", 0)
        mf = pv(0) + qk(0) + pv(1) + qk(1)
        G = [[] for _ in range(32)]
        for r in range(16):
            G[(1 + r) % 32].append(ex(1, r)); G[(17 + r) % 32].append(ex(0, r))
        for r in range(16):
            o_ = 1 if (PK == 2 and r < 15) else 0
            G[(2 + r + o_) % 32].append(ad(1, r)); G[(18 + r + (o_ if r < 13 else 0)) % 32].append(ad(0, r))
        for i in range(8):
            G[(3 + 2*i) % 32].append(cv(1, i)); G[(19 + 2*i) % 32].append(cv(0, i))
        vr_prev = vreads(par); vr = vreads(1 - par); kr = kreads(1 - par)
        kg = opt.get("kg", [1, 2, 3, 4, 5, 6, 7, 8])
        if kg[0] == 1: G[0].append("WAITK")
        vg = opt.get("vg", list(range(17, 33)))
        dsg = [[] for _ in range(32)]
        for i in range(16):
            if vg[i] >= 32: dsg[vg[i] - 32].append(vr_prev[i])
        for s in range(8): dsg[kg[s]].append(kr[s])
        for i in range(16):
            if vg[i] < 32: dsg[vg[i]].append(vr[i])
        for g_ in range(32):
            if opt.get("dslast"): G[g_] += dsg[g_]
            elif g_ == 0: G[0] = [x for x in dsg[0] if x in vr_prev] + G[0] + [x for x in dsg[0] if x not in vr_prev]
            else: G[g_] = dsg[g_] + G[g_]
        nv0 = sum(1 for i in range(8, 16) if vg[i] < 32)
        cnt = lambda g_: sum(1 for s in range(8) if kg[s] < g_)
        pre = {}
        lw = opt.get("lw", 0)
        if lw == 0:
            pre = {0: [f"s_waitcnt lgkmcnt({nv0})"], 4: [f"s_waitcnt lgkmcnt({cnt(4)})"], 8: [f"s_waitcnt lgkmcnt({cnt(8) - 4})"], 12: ["s_waitcnt lgkmcnt(0)"]}
        elif lw == 1:
            assert nv0 == 8 and cnt(8) == 8
            pre = {0: ["s_waitcnt lgkmcnt(0)"], 8: ["s_waitcnt lgkmcnt(0)"]}
        elif lw == 2:
            assert cnt(8) == 8
            pre = {0: [f"s_waitcnt lgkmcnt({nv0})"], 4: [f"s_waitcnt lgkmcnt({cnt(4)})"], 8: ["s_waitcnt lgkmcnt(0)"]}
        if MSUM:
            mp = opt.get("mp", [1, 5, 17, 21])
            for (pos_, qb_, st_) in zip(mp, (0, 0, 1, 1), (0, 1, 0, 1)):
                pre.setdefault(pos_, []); pre[pos_] = pre[pos_] + [msum(qb_, st_)]
        if kind == "dma":
            allg = [("V", 1 - par, 1), ("K", par, 0), ("K", par, 1), ("V", par, 0), ("V", par, 1), ("K", 1 - par, 0), ("K", 1 - par, 1)]
            grpz = allg[1 + SH: 5 + SH]
            pos = [(1, [2, 4, 6, 8]), (9, [10, 12, 14, 16]), (17, [18, 20, 22, 24]), (25, [26, 28, 30, 31])]
            for gi, (kd, sl, hf) in enumerate(grpz):
                d_ = (dma_k(sl) if kd == "K" else dma_v(sl))[5*hf:5*hf+5]
                if kd == "K" and hf == 0:
                    if gi == 0: pre[0] = [f"s_and_b32 s54, s60, {TM}"] + pre[0]
                    else: G[pos[gi][0]].append(f"s_and_b32 s54, s60, {TM}")
                    G[(pos[gi][0] + 2) % 32 if gi else 11].append("s_lshr_b64 s[60:61], s[60:61], 4")
                G[pos[gi][0]].append(d_[0])
                for i in range(4): G[pos[gi][1][i]].append(d_[1 + i])
            G[vg[0] - 1].append("WAITV")
            if kg[0] > 1: G[kg[0] - 1].append("WAITK")
            if par == 1:
                G[13].append(f"buffer_load_dword v{VCNT}, v{125 if xl == 2 else VT}, s[68:71], s72 offen sc1")
                G[15].append("s_add_u32 s56, s56, 1")
        else:
            pat = [f"v_mov_b32 v{VKD}, v{VOD0}"] + [f"v_add_u32 v{VKD+i}, {7168*i}, v{VOD0}" for i in range(1, 4)]
            gw = spread(32, [(0, 2, pat)] + ([(1, 6, dma_v(1)[5:])] if SH < 0 else []) + [(g0, g1, wnext()) for (g0, g1) in wpos["i6"]])
            for i in range(32): G[i] += gw[i]
            G[vg[0] - 1].append("WAITV")
            if kg[0] > 1: G[kg[0] - 1].append("WAITK")
            adr = []
            for j in range(1, 4):
                adr += [f"s_sub_u32 s52, s3, {j}", "s_and_b32 s52, s52, 3", "s_lshl_b32 s52, s52, 15", f"v_add_u32 v{100+j}, s52, v{VL16}"]
            adr += [f"v_add_u32 v12, s49, v{VL16}", "s_lshl_b32 s51, s3, 2", f"s_add_u32 s51, s51, {MISC+1024}", f"v_add_u32 v14, s51, v{VL16}",
                    "s_lshl_b32 s51, s41, 9", "s_lshl_b32 s52, s43, 3", "s_add_u32 s51, s51, s52", "s_lshl_b32 s52, s3, 1", "s_add_u32 s51, s51, s52",
                    "s_lshl_b32 s51, s51, 10", "s_add_u32 s52, s51, 262144", f"v_readfirstlane_b32 s73, v{VCNT}", f"s_mov_b32 s53, {hex(f2u(LIMIT))}"]
            if xl == 2:
                adr.remove(f"v_readfirstlane_b32 s73, v{VCNT}")
                pre_ = ["s_lshl_b32 s44, s41, 9", "s_lshl_b32 s45, s43, 3", "s_add_u32 s44, s44, s45", "s_lshl_b32 s45, s3, 1", "s_add_u32 s44, s44, s45",
                        "s_lshl_b32 s44, s44, 10", "s_add_u32 s44, s44, s46", "v_and_b32 v124, 31, v0", "v_lshlrev_b32 v124, 6, v124",
                        f"v_lshrrev_b32 v{VCNT}, 5, v0", f"v_lshl_add_u32 v124, v{VCNT}, 18, v124", "s_add_u32 s48, s77, s46",
                        f"buffer_load_dword v{VCNT}, v124, s[64:67], s44 offen sc1", f"buffer_load_dword v{VCNT}, v{VT}, s[64:67], s48 offen sc1",
                        "s_add_u32 s45, s44, 262144"]
                gp = spread(32, [(0, 6, pre_)])
                for i in range(32): G[i] += gp[i]
                adr += ["s_add_u32 s51, s51, s47", "s_add_u32 s52, s52, s47"]
            ga = spread(32, [(8, 26, adr)])
            for i in range(32): G[i] += ga[i]
        seq = fs() + merge(mf, G, pre)
        issued = 0; out = []
        for x in seq:
            if x == "WAITK": out.append(f"s_waitcnt vmcnt({8 + 4*SH + issued})")
            elif x == "WAITV": out.append(f"s_waitcnt vmcnt({4*SH + issued})")
            else:
                if x.startswith("buffer_load"): issued += 1
                out.append(x)
        return out
    rot = opt.get("rot", 1)
    if rot in (5, 6):
        a("s_add_u32 s80, s42, s41" if rot == 5 else "s_mov_b32 s80, s41")
        a("s_mul_i32 s51, s80, 86"); a("s_lshr_b32 s51, s51, 8"); a("s_mul_i32 s51, s51, 3"); a("s_sub_u32 s80, s80, s51"); a("s_mul_i32 s80, s80, 3")
    elif rot == 3:
        a("s_add_u32 s80, s42, s41"); a("s_lshl_b32 s80, s80, 1"); a("s_and_b32 s80, s80, 7")
    elif rot == 4:
        a("s_lshl_b32 s80, s41, 1"); a("s_and_b32 s80, s80, 7")
    elif rot == 2:
        if xl:
            a("s_lshl_b32 s80, s41, 1"); a("s_add_u32 s80, s80, s43"); a("s_and_b32 s80, s80, 7")
        else:
            a("s_lshl_b32 s80, s42, 1"); a("s_add_u32 s80, s80, s41"); a("s_and_b32 s80, s80, 7")
    else:
        a("s_mov_b32 s80, s41" if rot else "s_mov_b32 s80, 0")
    a("s_lshl_b32 s84, s80, 15")
    a("s_lshl_b32 s87, s3, 12"); a(f"s_add_u32 s87, s87, {XB}")
    a("s_mov_b32 s86, s75")
    if opt.get("warm", 1):
        a("s_mov_b64 exec, 1")
        a(f"buffer_atomic_or v{VT}, v{VT}, s[64:67], s77 offen sc1")
        a(f"buffer_atomic_or v{VT}, v{VT}, s[64:67], s86 offen sc1")
        a("s_mov_b64 exec, -1")
    if xl == 2:
        a("s_and_b32 s51, s40, 6"); a("s_lshl_b32 s51, s51, 1"); a("s_add_u32 s51, s51, 4")
        a("v_min_u32 v125, 1, v0"); a("v_mul_u32_u24 v125, s51, v125")
        a("s_getreg_b32 s58, hwreg(HW_REG_XCC_ID, 0, 3)")
        a("s_lshl_b32 s58, s58, 2")
        a("s_or_b32 s52, s3, s76")
        a("s_cbranch_scc1 L_nocen")
        a("s_lshl_b32 s52, 1, s58")
        a("v_mov_b32 v124, s52")
        a("s_mov_b64 exec, 2")
        a("buffer_atomic_add v124, v125, s[68:71], s72 offen sc1")
        a("s_mov_b64 exec, -1")
        a.label("L_nocen")
    a("s_mov_b32 s56, 0")
    if "al" in opt:
        a(".p2align 6")
        for _ in range(opt["al"]): a("s_nop 0")
    a.label("L_loop")
    emit(body(0, "dma"))
    emit(body(1, "dma"))
    a("s_cmp_lt_u32 s56, 3")
    a("s_cbranch_scc1 L_loop")
    if xl == 2:
        a("s_mov_b32 s93, 0x40000")
        a("s_waitcnt vmcnt(8)")
        a.label("L_cen")
        a(f"v_readlane_b32 s73, v{VCNT}, 0")
        a(f"v_readlane_b32 s59, v{VCNT}, 1")
        a("s_mul_i32 s57, s59, 0x11111111")
        a("s_lshr_b32 s57, s57, 28")
        a("s_cmp_eq_u32 s73, 0")
        a("s_cselect_b32 s57, 0, s57")
        a("s_cmp_eq_u32 s57, 8")
        a("s_cbranch_scc1 L_cenok")
        a(f"buffer_load_dword v{VCNT}, v125, s[68:71], s72 offen sc1")
        a("s_sub_u32 s93, s93, 1")
        a("s_waitcnt vmcnt(0)")
        a("s_cbranch_scc0 L_cen")
        a.label("L_cenok")
        a("s_lshl_b32 s57, 8, s58")
        a("s_cmp_eq_u32 s59, s57")
        if opt.get("forceslow"): a("s_cmp_eq_u32 0, 1")
        a("s_cselect_b32 s46, 0, 0x40000000")
        a("s_cselect_b32 s47, 0x40000000, 0")
    emit(body(0, "wo"))
    emit(fs())
    mf = pv(0, (1, 2, 3, 0))
    G = [[] for _ in range(8)]
    VD = opt.get("vg", [32])[-1] >= 32
    G[0] += ([vreads(1)[15]] if VD else []) + [ex(0, 15), ad(0, 14)]
    G[1] += [ad(0, 15), cv(0, 7)]
    sm = []
    for r in range(16):
        sm.append(ex(1, r))
        if r >= 1: sm.append(ad(1, r-1))
        if r >= 2 and r % 2 == 0: sm.append(cv(1, (r-2)//2))
    tail_b = [ad(1, 15), cv(1, 7)]
    n1 = opt.get("n1", 28)
    wl = wnext(wpos["f1"])
    g2 = spread(8, [(1, 8, sm[:n1]), (1, 8, wl)])
    for i in range(8): G[i] += g2[i]
    emit(merge(mf, G, {0: [f"s_waitcnt lgkmcnt({7 if VD else 8})"], 1: [msum(0, 0)] if MSUM else [], 4: ["s_waitcnt lgkmcnt(0)"], 5: [msum(0, 1)] if MSUM else []}))
    def pack(qb, j): return [f"v_cvt_pk_bf16_f32 v{Oi(qb,j)+i}, v{Oi(qb,j)+2*i}, v{Oi(qb,j)+2*i+1}" for i in range(8)]
    def send(qb, j): return [f"ds_write_b128 v12, v[{Oi(qb,j)+4*sp}:{Oi(qb,j)+4*sp+3}] offset:{PART + ((j-1)*4 + qb*2 + sp)*1024}" for sp in range(2)]
    mf = pv(1, (1, 2, 3, 0))
    lst = (["v_add_f32 v96, v96, v97", "v_add_f32 v97, v124, v125", "s_nop 1"] if PK else []) + [f"v_permlane32_swap_b32 v{L_[0]}, v{L_[1]}", "s_nop 0", f"v_add_f32 v{L_[0]}, v{L_[0]}, v{L_[1]}", f"ds_write_b32 v14, v{L_[0]}"]
    pa = []
    for j in (1, 2, 3): pa += pack(0, j) + send(0, j)
    if MSUM:
        lst = ["s_mov_b64 exec, 0xffff"] + [f"ds_write_b32 v14, a{112+k} offset:{256*k}" for k in range(4)] + ["s_mov_b64 exec, -1"]
    G = spread(8, [(0, 2, sm[n1:] + ["s_nop 0"] + tail_b), (opt.get("pa0", 2), opt.get("pa1", 7), pa), ((6, 7, lst) if MSUM else (4, 5, lst)), (2, 8, wnext(wpos["f2"])), (7, 8, pack(1, 1) + (pack(1, 2) if opt.get("hp2") else []))])
    emit(merge(mf, G, {0: [msum(1, 0)], 3: [msum(1, 1)]} if MSUM else None))
    a("s_waitcnt lgkmcnt(0)")
    emit(fs())
    a("s_barrier")
    def rb(qb, j, sp): return 16 + ((qb*3 + j-1)*2 + sp)*4
    def prd(qb): return [f"ds_read_b128 v[{rb(qb,j,sp)}:{rb(qb,j,sp)+3}], v{100+j} offset:{PART + ((j-1)*4 + qb*2 + sp)*1024}" for j in range(1, 4) for sp in range(2)]
    def red(qb): return [mf32(O_(qb, 0), R("v", ID[sp], 4), R("v", rb(qb,j,sp), 4), O_(qb, 0)) for j in range(1, 4) for sp in range(2)]
    emit(prd(0))
    a(f"ds_read_b128 v[64:67], v{VMX} offset:1024")
    a(f"ds_read_b128 v[68:71], v{VMX} offset:1536")
    emit(send(1, 1) + ([] if opt.get("hp2") else pack(1, 2)) + send(1, 2))
    lsum = ["v_add_f32 v64, v64, v65", "v_add_f32 v66, v66, v67", "v_add_f32 v68, v68, v69", "v_add_f32 v70, v70, v71",
            "v_add_f32 v64, v64, v66", "v_add_f32 v68, v68, v70", "v_add_f32 v73, v64, v68",
            "v_cmp_nlt_f32 vcc, v73, s53", "v_rcp_f32 v64, v64", "v_rcp_f32 v68, v68"]
    chk = ["s_cmp_eq_u32 s76, 0", "s_cselect_b64 s[94:95], vcc, 0", "s_cmp_lg_u64 s[94:95], 0", "s_cbranch_scc1 L_fallback"]
    nb = opt.get("nb", 4)
    G = spread(6, [(0, 2, pack(1, 3) + send(1, 3)), (2, 4, lsum), (4, 6, wnext(wpos["f4"]))])
    G[nb - 1] += ["s_waitcnt lgkmcnt(0)", "s_barrier"] + prd(1)
    emit(merge(red(0), G, {0: ["s_waitcnt lgkmcnt(4)"]}))
    emit(chk)
    def fin(qb):
        o = Oi(qb, 0); g = 64 + 4*qb
        out = [f"v_pk_mul_f32 v[{o+r}:{o+r+1}], v[{o+r}:{o+r+1}], v[{g}:{g+1}] op_sel_hi:[1,0]" for r in range(0, 16, 2)]
        out += pack(qb, 0)
        out += [f"buffer_store_dwordx4 v[{o+4*sp}:{o+4*sp+3}], v{VL16}, s[64:67], {'s52' if qb else 's51'} offen offset:{sp*1024} sc1" for sp in range(2)]
        if xl == 2:
            out += [f"buffer_store_dwordx4 v[{o+4*sp}:{o+4*sp+3}], v{VL16}, s[64:67], {'s45' if qb else 's44'} offen offset:{sp*1024} {opt.get('fst', 'nt')}" for sp in range(2)]
        return out
    f0_ = [f"v_mul_f32 v{Oi(0,0)+r}, v64, v{Oi(0,0)+r}" for r in range(16)] + fin(0)[8:]
    emit(merge(red(1), spread(6, [(1, 6, f0_)]), {0: ["s_waitcnt lgkmcnt(4)"], 2: ["s_waitcnt lgkmcnt(0)"]}))
    a("s_sub_u32 s88, s87, s49")
    a(f"v_add_u32 v116, s88, v{VWA}"); a(f"v_add_u32 v117, s88, v{VWB}")
    a("v_and_b32 v14, 1, v0"); a("v_sub_u32 v14, 0, v14")
    a("v_and_b32 v12, 15, v0"); a("v_lshlrev_b32 v12, 2, v12")
    emit(fin(1))
    emit(fs())
    npre = wcnt[0]
    if xl != 2:
        a("s_mov_b32 s93, 0x40000")
        a.label("L_tag")
        a("s_cmp_lg_u32 s73, 0")
        a("s_cbranch_scc1 L_tagok")
        a(f"buffer_load_dword v{VCNT}, v{VT}, s[68:71], s72 offen sc1")
        a("s_waitcnt vmcnt(0)")
        a(f"v_readfirstlane_b32 s73, v{VCNT}")
        a("s_sub_u32 s93, s93, 1")
        a("s_cbranch_scc0 L_tag")
        a.label("L_tagok")
    la = opt.get("late_a", 2)
    if opt.get("noack"):
        a("v_xor_b32 v105, s73, v14")
        a("s_mov_b64 exec, 3")
        a(f"buffer_atomic_swap v105, v12, s[64:67], s77 offen sc1")
        a("s_mov_b64 exec, -1")
    emit(wnext(la))
    a(f"s_waitcnt vmcnt({(5 if opt.get('noack') else 4) + 4*la})")
    for g in range(min(npre, 2)): emit(wo_reads(g))
    a("v_xor_b32 v14, s73, v14")
    a("s_lshl_b32 s51, s41, 5"); a("s_add_u32 s51, s51, s78"); a("s_lshl_b32 s51, s51, 5"); a(f"s_add_u32 s55, s51, {FL_OFF}")
    a("s_lshl_b32 s51, s41, 9"); a("s_lshl_b32 s52, s78, 3"); a("s_add_u32 s51, s51, s52"); a("s_lshl_b32 s51, s51, 10")
    a("s_add_u32 s32, s18, s51"); a("s_addc_u32 s33, s19, 0"); a("s_and_b32 s33, s33, 0xffff"); a("s_mov_b32 s34, 0x44000")
    a("s_and_b32 s52, s40, 4"); a("s_lshl_b32 s52, s52, 16")
    a(f"v_add_u32 v104, s52, v{VL16}")
    a(f"v_xor_b32 v105, 0x40000, v104")
    def pollops():
        o = [f"buffer_atomic_or v106, v12, s[64:67], {'s59' if xl == 2 else 's55'} offen sc0 sc1"]
        if xl == 2: o.append("buffer_load_dword v107, v12, s[64:67], s55 offen sc1")
        return o
    a("v_mov_b32 v106, 0")
    if xl == 2:
        a("s_add_u32 s59, s55, s47"); a("s_add_u32 s55, s55, s46"); a("s_add_u32 s77, s77, s47")
    if not opt.get("noack"):
        a(f"s_waitcnt vmcnt({4*la})")
        a("s_mov_b64 exec, 3")
        a(f"buffer_atomic_swap v14, v12, s[64:67], s77 offen sc1")
    a("s_mov_b64 exec, 0xffff")
    emit(pollops())
    a("s_mov_b64 exec, -1")
    emit(fs(True))
    nrest = min(8 - wcnt[0], opt.get("lb", 8))
    if wcnt[0] + nrest > 6: a("s_waitcnt lgkmcnt(0)")
    emit(wnext(nrest))
    for g in range(2, npre): emit(wo_reads(g))
    a("s_mov_b32 s93, 0x40000")
    a(f"s_waitcnt vmcnt({4*nrest})")
    for g in range(npre, npre + la): emit(wo_reads(g))
    a("s_mov_b64 exec, 0xffff")
    pp = opt.get("pp", 0)
    if not pp:
        a.label("L_poll")
        if xl == 2: a("v_or_b32 v106, v106, v107")
        a("v_cmp_ne_u32 vcc, v14, v106")
        a("s_cbranch_vccz L_pollend")
        a("v_mov_b32 v106, 0")
        emit(pollops())
        a("s_sub_u32 s93, s93, 1")
        a("s_waitcnt vmcnt(0)")
        a("s_cbranch_scc0 L_poll")
    else:
        pd = opt.get("pd", 2)
        regs = [106, 107, 108, 109][:pd]
        a("v_cmp_ne_u32 vcc, v14, v106")
        a("s_cbranch_vccz L_pollend")
        for x in regs: a(f"v_mov_b32 v{x}, 0")
        for x in regs[:-1]:
            a(f"buffer_atomic_or v{x}, v12, s[64:67], s55 offen sc0 sc1")
            a(f"s_sleep {pp}")
        a.label("L_poll")
        for i_ in range(pd):
            x = regs[(i_ - 1) % pd]; y = regs[i_]
            a(f"buffer_atomic_or v{x}, v12, s[64:67], s55 offen sc0 sc1")
            a(f"s_waitcnt vmcnt({pd - 1})")
            a(f"v_cmp_ne_u32 vcc, v14, v{y}")
            a("s_cbranch_vccz L_pollend")
            a(f"v_mov_b32 v{y}, 0")
        a("s_sub_u32 s93, s93, 1")
        a("s_cbranch_scc0 L_poll")
    a.label("L_pollend")
    a("s_mov_b64 exec, -1")
    emit(fs(True))
    a("s_lshl_b32 s85, s80, 11")
    def oreg(i): return 128 + 4*i
    def oload(i):
        q = 1 - i // 16; s_ = i % 16
        o = [f"buffer_load_dwordx4 v[{oreg(i)}:{oreg(i)+3}], v{104+q}, s[32:35], s85 offen offset:{1024*(s_%2)} sc1"]
        if s_ % 2 == 1: o += ["s_add_u32 s85, s85, 2048", "s_and_b32 s85, s85, 0x3fff"]
        return o
    D = opt.get("odepth", 10)
    D0 = opt.get("d0", 6)
    nl2 = 8 - wcnt[0]
    late_reads = []; late2 = []
    for g in range(npre + la, wcnt[0]): late_reads += wo_reads(g)
    for g in range(wcnt[0], 8): late2 += wo_reads(g)
    vm0 = []
    for i in range(D):
        emit(oload(i)); vm0.append(("ld", i))
        if i == D0 - 1 and nl2:
            a("s_waitcnt lgkmcnt(0)")
            emit(wnext(nl2)); vm0 += [("w", 0)] * (4*nl2)
    def acc(j): return R("v", 16 + 16*j, 16)
    def omf(j, s_):
        i = (0 if j >> 1 else 16) + s_
        return mf32(acc(j), R("a", (s_*2 + (j & 1))*4, 4), R("v", oreg(i), 4), "0" if s_ == 0 else acc(j))
    NL = opt.get("nlag", 8)
    sched = []
    for s_ in range(16): sched += [(omf(3, s_), s_), (omf(2, s_), s_)]
    for s_ in range(16):
        sched.append((omf(1, s_), 16 + s_))
        if s_ < 16 - NL: sched.append((omf(0, s_), 16 + s_))
    nfirst = len(sched)
    for s_ in range(16 - NL, 16): sched.append((omf(0, s_), 16 + s_))
    misc = [f"v_add_u32 v12, s49, v{VL16}"] + [f"v_xor_b32 v{100+j}, {j << 15}, v12" for j in range(1, 4)]
    misc += ["v_mov_b32 v80, 0xff", "s_lshr_b32 s81, s73, 8", "s_lshr_b32 s82, s73, 16", "s_lshr_b32 s83, s73, 24"]
    for j in range(1, 4):
        misc += [f"s_xor_b32 s51, s2, {2*j}", "s_mul_i32 s51, s51, 12288", f"s_add_u32 s{93+j}, s51, {X_OFF + (j-1)*4096}"]
    misc += ["s_mul_i32 s51, s2, 12288", f"s_add_u32 s97, s51, {X_OFF}", "s_add_u32 s98, s97, 4096", "s_add_u32 s99, s97, 8192",
             "s_lshl_b32 s51, s3, 10", f"v_add_u32 v81, s51, v{VL16}",
             "s_mov_b32 s28, s14", "s_and_b32 s29, s15, 0xffff", "s_mov_b32 s30, 0x80000", "s_mov_b32 s31, 0x20000",
             "v_and_b32 v82, 31, v0", "v_lshlrev_b32 v82, 10, v82", "v_lshrrev_b32 v83, 5, v0", "v_lshl_add_u32 v82, v83, 3, v82",
             "s_lshl_b32 s50, s41, 16", "s_and_b32 s51, s40, 4", "s_lshl_b32 s51, s51, 13", "s_add_u32 s50, s50, s51",
             "s_lshl_b32 s51, s79, 7", "s_add_u32 s50, s50, s51", "s_and_b32 s51, s40, 2", "s_lshl_b32 s51, s51, 5", "s_add_u32 s50, s50, s51",
             "s_lshl_b32 s51, s3, 4", "s_add_u32 s50, s50, s51",
             "v_mov_b32 v84, 0x0c0c0400", "v_mov_b32 v85, 0x05040100",
             "s_and_b32 s52, s2, 6", "s_lshl_b32 s52, s52, 1", "s_add_u32 s88, s86, s52",
             "v_add_u32 v86, 1, v0", "v_lshlrev_b32 v86, 2, v86", "v_xor_b32 v86, s52, v86",
             "v_cmp_eq_u32 vcc, 0, v0", "v_mov_b32 v87, s73", "v_add_u32 v88, 16, v86", "v_cndmask_b32 v86, v86, v88, vcc"]
    CB = 0
    def wr(j): return [f"ds_write_b128 v12, v[{16+16*j+4*k}:{19+16*j+4*k}] offset:{CB + (j*3 + k-1)*1024}" for k in range(1, 4)]
    def rdd(j): return [f"ds_read_b128 v[{16+16*j+4*k}:{19+16*j+4*k}], v{100+k} offset:{CB + (j*3 + k-1)*1024}" for k in range(1, 4)]
    tg = ["s73", "s81", "s82", "s83"]
    def summ(j, pk):
        b = 16 + 16*j; out = []
        if pk:
            for p in (0, 2):
                out += [f"v_pk_add_f32 v[{b+p}:{b+p+1}], v[{b+p}:{b+p+1}], v[{b+4+p}:{b+5+p}]", f"v_pk_add_f32 v[{b+8+p}:{b+9+p}], v[{b+8+p}:{b+9+p}], v[{b+12+p}:{b+13+p}]"]
            for p in (0, 2):
                out += [f"v_pk_add_f32 v[{b+p}:{b+p+1}], v[{b+p}:{b+p+1}], v[{b+8+p}:{b+9+p}]"]
        else:
            for i in range(4): out += [f"v_add_f32 v{b+i}, v{b+i}, v{b+4+i}", f"v_add_f32 v{b+8+i}, v{b+8+i}, v{b+12+i}"]
            for i in range(4): out += [f"v_add_f32 v{b+i}, v{b+i}, v{b+8+i}"]
        if j:
            out += [f"v_bfi_b32 v{b+i}, v80, {tg[i]}, v{b+i}" for i in range(4)]
            out += [f"buffer_store_dwordx4 v[{b}:{b+3}], v81, s[64:67], s{93+j} offen sc1"]
        return out
    def hint(off):
        return ["s_mov_b64 exec, 1", f"buffer_atomic_swap v87, v{VT}, s[64:67], s88 offen offset:{off} sc1", "s_mov_b64 exec, -1"]
    n = len(sched)
    G = spread(n, [(0, 8, late_reads), (2, 30, misc), (34, 38, wr(3) + wr(2)),
                   (43, 50, ["s_waitcnt lgkmcnt(0)"] + summ(3, False) + summ(2, False)), (nfirst + 1, nfirst + 2, wr(1))])
    G[12].append("s_waitcnt lgkmcnt(0)")
    if nl2:
        g2r = spread(n, [(2*D0 + 1, 22, late2)])
        for i in range(n): G[i] += g2r[i]
        G[23].append("s_waitcnt lgkmcnt(0)")
    G[40] += ["s_waitcnt lgkmcnt(0)", "s_barrier"] + rdd(3) + rdd(2)
    G[50] += hint(0)
    g1 = min(n - 1, nfirst + 3)
    G[g1] += ["s_waitcnt lgkmcnt(0)", "s_barrier"] + rdd(1)
    g2_ = min(n - 1, nfirst + 5)
    s1 = ["s_waitcnt lgkmcnt(0)"] + summ(1, False)
    gg = spread(n, [(g2_, n, s1)])
    for i in range(n): G[i] += gg[i]
    G[n-1] += hint(16)
    vmq = list(vm0)
    issued = D; seen = -1
    for i, (m, need) in enumerate(sched):
        newload = False
        if need > seen:
            a(f"s_waitcnt vmcnt({len(vmq) - 1 - vmq.index(('ld', need))})" + (" lgkmcnt(0)" if i == 0 else ""))
            seen = need; newload = True
        a(m)
        if newload and issued < 32:
            emit(oload(issued)); vmq.append(("ld", issued)); issued += 1
        for x in G[i]:
            if x.startswith("buffer_"): vmq.append(("st", 0))
        emit(G[i])
    emit(fs(True))
    a("v_mov_b32 v88, 0")
    a("s_mov_b64 exec, 7")
    a(f"buffer_atomic_or v88, v86, s[64:67], s86 offen sc0 sc1")
    a("s_mov_b64 exec, -1")
    a("s_nop 3")
    emit(wr(0))
    a("s_waitcnt lgkmcnt(0)"); a("s_barrier")
    emit(rdd(0))
    a("s_waitcnt lgkmcnt(0)")
    emit(summ(0, True))
    emit(fs(True))
    a("s_mov_b32 s93, 0x40000")
    a("s_mov_b64 exec, 7")
    if not opt.get("hp"):
        a("s_waitcnt vmcnt(0)")
        a.label("L_h")
        a("v_cmp_ne_u32 vcc, v87, v88")
        a("s_cbranch_vccz L_hend")
        a("v_mov_b32 v88, 0")
        a(f"buffer_atomic_or v88, v86, s[64:67], s86 offen sc0 sc1")
        a("s_sub_u32 s93, s93, 1")
        a("s_waitcnt vmcnt(0)")
        a("s_cbranch_scc0 L_h")
    else:
        a("v_mov_b32 v89, 0")
        a.label("L_h")
        for x, y in ((89, 88), (88, 89)):
            a(f"buffer_atomic_or v{x}, v86, s[64:67], s86 offen sc0 sc1")
            a("s_waitcnt vmcnt(1)")
            a(f"v_cmp_ne_u32 vcc, v87, v{y}")
            a("s_cbranch_vccz L_hend")
            a(f"v_mov_b32 v{y}, 0")
        a("s_sub_u32 s93, s93, 1")
        a("s_cbranch_scc0 L_h")
    a.label("L_hend")
    a("s_mov_b64 exec, -1")
    emit(fs(True))
    a("s_mov_b32 s93, 0x40000")
    a.label("L_x")
    for j in range(3):
        a(f"buffer_load_dwordx4 v[{32+4*j}:{35+4*j}], v81, s[64:67], s{97+j} offen sc1")
    a("s_waitcnt vmcnt(0)")
    for j in range(3):
        b = 32 + 4*j
        a(f"v_perm_b32 v{44+2*j}, v{b+1}, v{b}, v84")
        a(f"v_perm_b32 v{45+2*j}, v{b+3}, v{b+2}, v84")
    for j in range(3):
        a(f"v_perm_b32 v{44+2*j}, v{45+2*j}, v{44+2*j}, v85")
    for j in range(3):
        a(f"v_xor_b32 v{44+2*j}, s73, v{44+2*j}")
    a("v_or3_b32 v44, v44, v46, v48")
    a("v_cmp_ne_u32 vcc, 0, v44")
    a("s_cbranch_vccz L_xend")
    a("s_sub_u32 s93, s93, 1")
    a("s_cbranch_scc0 L_x")
    a.label("L_xend")
    emit(fs(True))
    for i in range(12): a(f"v_and_b32 v{32+i}, 0xffffff00, v{32+i}")
    for p in range(2):
        a(f"v_pk_add_f32 v[{16+2*p}:{17+2*p}], v[{16+2*p}:{17+2*p}], v[{32+2*p}:{33+2*p}]")
        a(f"v_pk_add_f32 v[{36+2*p}:{37+2*p}], v[{36+2*p}:{37+2*p}], v[{40+2*p}:{41+2*p}]")
    for p in range(2):
        a(f"v_pk_add_f32 v[{16+2*p}:{17+2*p}], v[{16+2*p}:{17+2*p}], v[{36+2*p}:{37+2*p}]")
    a("v_cvt_pk_bf16_f32 v16, v16, v17")
    a("v_cvt_pk_bf16_f32 v17, v18, v19")
    a("buffer_store_dwordx2 v[16:17], v82, s[28:31], s50 offen")
    if fine:
        a("s_waitcnt vmcnt(0)")
        emit(fs(True, True)); emit(fs(True, True))
        a("s_lshl_b32 s51, s2, 2"); a("s_add_u32 s51, s51, s3"); a("s_lshl_b32 s51, s51, 8"); a(f"s_add_u32 s51, s51, {ST_OFF}")
        a("v_lshlrev_b32 v6, 2, v0")
        a("buffer_store_dword v127, v6, s[64:67], s51 offen")
    a.label("L_end")
    a("s_endpgm")

    a.label("L_fallback")
    a("s_mov_b32 s76, 1")
    a("s_waitcnt vmcnt(0) lgkmcnt(0)")
    a("s_barrier")
    for s in range(1, 4):
        a(f"v_xor_b32 v{VKR+s}, {32*s}, v{VKR}")
    for qb in range(2):
        for s_ in range(8):
            a(f"ds_write_b128 v{VQR}, {Q_(qb,s_)} offset:{(qb*8+s_)*1024}")
    a(f"v_subrev_u32 v{VKD}, 4096, v{VKD+4}")
    emit(kd_setup())
    a("s_mov_b32 s54, 0")
    a.label("L_fb_loop")
    emit(dma_k(0))
    a("s_waitcnt vmcnt(0)")
    emit(kreads(0))
    a("s_waitcnt lgkmcnt(0)")
    emit(qk(0, True) + qk(1, True))
    a("s_nop 15")
    for qb in range(2):
        for r in range(0, 16, 2):
            a(f"v_max3_f32 v{MS[qb]}, v{MS[qb]}, v{S0[qb]+r}, v{S0[qb]+r+1}")
    a(f"s_add_u32 s54, s54, {1 << TSH}")
    a(f"s_cmp_lt_u32 s54, {8 << TSH}")
    a("s_cbranch_scc1 L_fb_loop")
    a("s_nop 1")
    a(f"v_permlane32_swap_b32 v{MS[0]}, v{MS[1]}")
    a("s_lshl_b32 s51, s3, 2"); a(f"s_add_u32 s51, s51, {MISC+2048}")
    a(f"v_add_u32 v12, s51, v{VL16}")
    a(f"v_max_f32 v124, v{MS[0]}, v{MS[1]}")
    a("ds_write_b32 v12, v124")
    a("s_waitcnt lgkmcnt(0)"); a("s_barrier")
    a(f"ds_read_b128 v[16:19], v{VMX} offset:2048")
    a(f"ds_read_b128 v[20:23], v{VMX} offset:2560")
    a("s_waitcnt lgkmcnt(0)")
    for qb in range(2):
        a(f"v_max_f32 v{MS[qb]}, v{16+4*qb}, v{17+4*qb}")
        a(f"v_max3_f32 v{MS[qb]}, v{18+4*qb}, v{19+4*qb}, v{MS[qb]}")
    a("s_mov_b64 s[60:61], s[62:63]")
    emit(nexttile() + dma_k(0) + dma_v(0))
    if EB: emit(nexttile() + dma_k(1)[:5*EB])
    for k in range(4): a(f"v_mov_b32 v{VZ+k}, 0")
    a("s_nop 1")
    emit(zmf)
    a("s_waitcnt vmcnt(0)")
    a("s_branch L_att")
    return a.text()

def build(opt, fname):
    k = NAME + "_kernel"
    hdr = f"""; GQA block, one fused kernel: q-projection + attention + output projection
; @launch grid=(256,1,1) block=(256,1,1) lds=163840
.amdgcn_target "amdgcn-amd-amdhsa--gfx950"
"""
    txt = hdr + kernel_header(k) + gen(opt)
    txt += '.section .rodata,"a"\n.p2align 6\n' + kernel_desc(k, 512, 102, 256)
    open(fname, "w").write(txt)

L = [order(range(8))]*4
P = [order([0,1,2,3,4,5,6,7]), order([4,5,6,7,0,1,2,3])]*2
K6 = [order([0,1,2,3,4,5,6,7]), order([6,7,2,3,4,5,0,1])]*2
K5 = [order([0,1,2,3,4,5,6,7]), order([5,6,7,3,4,0,1,2])]*2
if __name__ == "__main__":
    B = {"orders": K5}
    B = dict(B, rot=2)
    W = lambda i6, f1, f2, f4: {"i6": i6, "f1": f1, "f2": f2, "f4": f4}
    B = dict(B, nb=6)
    K7 = [order([0,1,2,3,4,5,6,7]), order([7,1,2,3,4,5,6,0])]*2
    K6s = [order([0,1,2,3,4,5,6,7]), order([6,1,2,7,4,5,0,3])]*2
    K6l = [order([0,1,2,3,4,5,6,7]), order([0,1,2,3,6,7,4,5])]*2
    K5s = [order([0,1,2,3,4,5,6,7]), order([5,1,6,3,7,0,2,4])]*2
    R1 = [order(x) for x in ([0,2,1,3,4,6,5,7], [0,1,3,2,4,5,7,6], [1,0,2,4,3,5,6,7], [1,0,2,3,5,4,6,7])]
    R2 = [order(x) for x in ([0,2,1,6,3,4,5,7], [0,1,4,2,3,5,6,7], [1,3,0,7,2,4,5,6], [1,0,5,2,3,4,6,7])]
    R3 = [order(x) for x in ([0,2,1,3,6,4,5,7], [0,1,4,2,3,5,6,7], [1,3,0,2,4,7,5,6], [1,0,2,5,3,4,6,7])]
    R4 = [order(x) for x in ([0,3,1,2,4,7,5,6], [0,1,4,2,3,5,6,7], [1,0,2,5,3,4,6,7], [2,0,1,3,6,4,5,7])]
    R5 = [order(x) for x in ([0,4,1,2,3,5,6,7], [1,0,5,2,3,4,6,7], [2,0,1,6,3,4,5,7], [3,0,1,2,7,4,5,6])]
    R6 = [order(x) for x in ([0,1,4,2,3,5,6,7], [1,0,2,5,3,4,6,7], [2,0,1,3,6,4,5,7], [3,0,1,2,4,7,5,6])]
    B = dict(B, orders=R1)
    W = lambda i6, f1, f2, f4: {"i6": i6, "f1": f1, "f2": f2, "f4": f4}
    A0, A1, A2, A3 = R1
    R8 = [order(x) for x in ([0,2,1,3,6,4,5,7], [0,1,3,2,4,7,5,6], [1,0,2,4,3,5,6,7], [1,0,2,3,5,4,6,7])]
    R9 = [order(x) for x in ([0,2,1,3,4,6,5,7], [0,1,3,2,4,7,5,6], [1,0,2,4,3,5,6,7], [1,0,2,3,5,4,6,7])]
    P1 = [A0, A2, A1, A3]
    W5 = W([(1, 5), (24, 28), (28, 32)], 0, 0, 1)
    C = dict(B, orders=P1, wpos=W5, late_a=0, nb=4, nlag=6, pp=2)
    W0 = W([(2, 10), (12, 20), (22, 30)], 0, 0, 1)
    D_ = dict(C, wpos=W0, hp=1, pp=0, odepth=12)
    D_ = dict(D_, orders=R1)
    Wm = W([(8, 14), (16, 22), (24, 30)], 0, 0, 1)
    Q_3 = dict(D_, qr=3, orders=R3)
    R12 = [order(x) for x in ([0,2,1,3,6,5,7,4], [0,1,4,2,3,6,5,7], [1,3,0,4,2,7,6,5], [1,0,2,5,4,3,7,6])]
    Q_4 = dict(Q_3, qm=1)
    KV1 = {5: ["K0a", "K0b"], 6: ["V0a"], 7: ["V0b"]}
    M = dict(Q_4, msum=1, n1=33)
    F_ = dict(M, n1=38, pa0=0, pa1=6, hp2=1)
    K2 = [1, 1, 2, 2, 3, 3, 4, 4]; K3 = [1, 1, 3, 3, 5, 5, 6, 7]; K4 = [1, 2, 2, 3, 4, 4, 5, 6]
    V2 = [17, 18, 19, 19, 20, 21, 21, 22, 23, 23, 24, 25, 26, 27, 27, 28]
    V3 = [17, 18, 19, 20, 21, 22, 23, 23, 24, 25, 26, 27, 27, 28, 29, 30]
    K5_ = [3, 3, 4, 4, 5, 5, 6, 6]; K6_ = [2, 2, 3, 3, 4, 4, 5, 5]; K7_ = [4, 4, 5, 5, 6, 7, 8, 9]
    V4 = [21, 21, 22, 23, 23, 24, 25, 25, 26, 27, 27, 28, 29, 29, 30, 31]
    V5 = [23, 23, 24, 24, 25, 25, 26, 26, 27, 27, 28, 29, 29, 30, 31, 32]
    V6 = [19, 20, 21, 21, 22, 23, 23, 24, 25, 26, 27, 28, 29, 30, 31, 32]
    G_ = dict(F_, kg=K2, lw=2)
    R7 = [order(x) for x in ([0,1,3,2,4,5,7,6], [0,1,2,4,3,5,6,7], [0,2,1,3,5,4,6,7], [0,2,1,3,4,6,5,7])]
    R13 = [order(x) for x in ([0,1,2,3,4,7,5,6], [0,1,4,2,3,5,6,7], [0,2,1,5,3,4,6,7], [0,3,1,2,6,4,5,7])]
    R14 = [order(x) for x in ([0,1,2,4,3,5,6,7], [0,1,2,3,5,4,6,7], [0,1,3,2,4,6,5,7], [0,1,3,2,4,5,7,6])]
    R15 = [order(x) for x in ([0,1,3,2,4,5,6,7], [0,1,2,5,3,4,6,7], [0,2,4,1,3,7,5,6], [0,2,1,3,6,4,5,7])]
    H_ = dict(G_, orders=R7)
    V = {"r7": H_, "r14": dict(H_, orders=R14), "r714": dict(H_, orders2=R14), "r15": dict(H_, orders=R15), "q2": dict(H_, qr=2), "q1": dict(H_, qr=1), "rot6": dict(H_, rot=6), "v5": dict(H_, vg=V5),
         "kv1": dict(H_, kvq=KV1)}
    for n, o in V.items():
        build(o, f"v36_{n}.s")
        build(dict(o, fine=3), f"v36_{n}_m.s")
```

```python
import sys, math, struct
from asmlib import *

C_SCALE = math.log2(math.e) / math.sqrt(128.0)
def f2u(f): return struct.unpack("<I", struct.pack("<f", f))[0]
def mf32(d, a, b, c): return f"v_mfma_f32_32x32x16_bf16 {d}, {a}, {b}, {c}"
def R(p, lo, n): return f"{p}[{lo}:{lo+n-1}]"

OB = 128
def Oi(qb, j): return OB + (qb*4+j)*16
def O_(qb, j): return R("v", Oi(qb, j), 16)
def Q_(qb, s): return R("a", 128 + (qb*8+s)*4, 4)
def Kf(s): return R("a", 192 + 4*s, 4)
def Vf(st, j): return R("a", 224 + (st*4+j)*4, 4)
def Vfh(st, j, u): return R("a", 224 + (st*4+j)*4 + 2*u, 2)
S0 = [16, 32]; NM = [48, 64]; P0 = [80, 88]; L_ = [96, 97]
VCNT = 98; VT = 99
VKR = 100; VVR = 108; VKD = 112; VVD = 120; MS = [122, 123]
ID = [2, 6]
VL16 = 13; VQR = 15; VMX = 10; VWA = 11; VWB = 1
VOD0 = 126
VXD = 48; VWD = 50; VXR = 54; VWR = 58; T = 16; VZ = 64
XB = 131072; QAREA = XB; MISC = XB + 16384
X_OFF = 0x400000; FL_OFF = 0x800000; ST_OFF = 0x810000
PART = 16384
LIMIT = 2.0 ** 40

def spread(n, fillers):
    gaps = [[] for _ in range(n)]
    for (g0, g1, lst) in fillers:
        lst = [x for x in lst if x is not None]
        k = max(1, len(lst))
        for i, x in enumerate(lst):
            gaps[g0 + (i * (g1 - g0)) // k].append(x)
    return gaps

def fix_m0(seq):
    out = []
    for i, x in enumerate(seq):
        out.append(x)
        if " m0," in x and i + 1 < len(seq) and seq[i+1].startswith("buffer_load"):
            out.append("s_nop 0")
    return out

def merge(mf, gaps, pre=None):
    s = []
    for i, m in enumerate(mf):
        if pre and i in pre: s += pre[i]
        s.append(m); s += gaps[i]
    return [x for x in s if x is not None]

def order(l):
    v = 0
    for i, t in enumerate(l): v |= t << (4*i)
    return v

def gen(opt):
    a = Asm()
    IL = opt.get("il", 0)
    MSUM = opt.get("msum", 0)
    TSH = 15 if IL else 13
    TM = hex(15 << TSH)
    fine = opt.get("fine")
    clk = "s_memtime" if fine == 2 else "s_memrealtime"
    def fs(sync=False, last=False):
        if not fine: return []
        if fine == 3 and not last: return []
        return (["s_waitcnt lgkmcnt(0)"] if sync else []) + ["s_mov_b32 s89, m0", "s_mov_b32 m0, s92", "s_add_u32 s92, s92, 1", "v_writelane_b32 v127, s90, m0", clk + " s[90:91]", "s_mov_b32 m0, s89"]
    def emit(l):
        for x in fix_m0(l): a(x)
    a("s_cmp_ge_u32 s2, 256")
    a("s_cbranch_scc1 L_end")
    a("s_load_dwordx8 s[4:11], s[0:1], 0")
    a("s_load_dwordx8 s[12:19], s[0:1], 32")
    a("s_memrealtime s[74:75]")
    if fine:
        a(clk + " s[90:91]"); a("s_mov_b32 s92, 0"); a("v_mov_b32 v127, 0"); a("s_mov_b32 m0, 0")
    a(f"v_lshrrev_b32 v{T}, 6, v0")
    a("v_and_b32 v0, 63, v0")
    a(f"v_readfirstlane_b32 s3, v{T}")
    xl = opt.get("xl", 0)
    if xl:
        a("s_and_b32 s40, s2, 6"); a("s_bfe_u32 s41, s2, 0x10005"); a("s_or_b32 s40, s40, s41")
        a("s_and_b32 s41, s2, 1"); a("s_lshl_b32 s41, s41, 2"); a("s_lshr_b32 s42, s2, 6"); a("s_or_b32 s41, s41, s42")
    else:
        a("s_and_b32 s40, s2, 7")
        a("s_lshr_b32 s41, s2, 5")
    a("s_bfe_u32 s42, s2, 0x20003")
    a("s_lshl_b32 s43, s40, 2")
    a("s_add_u32 s43, s43, s42")
    r4, c16, vp = T+1, T+2, T+4
    a(f"v_lshrrev_b32 v{r4}, 4, v0")
    a(f"v_and_b32 v{c16}, 15, v0")
    a(f"v_lshlrev_b32 v{vp}, 2, v{r4}")
    a(f"v_xor_b32 v{vp}, v{c16}, v{vp}")
    a(f"v_lshlrev_b32 v{vp}, 4, v{vp}")
    a(f"v_lshl_add_u32 v{VWD}, v{r4}, 13, v{vp}")
    for i in range(1, 4):
        a(f"v_add_u32 v{VWD+i}, {31744*i}, v{VWD}")
    a(f"v_lshrrev_b32 v{T+5}, 3, v0")
    a(f"v_and_b32 v{T+6}, 7, v0")
    a(f"v_xor_b32 v{T+7}, v{T+6}, v{r4}")
    a(f"v_lshlrev_b32 v{T+7}, 4, v{T+7}")
    a(f"v_lshl_add_u32 v{VXD}, v{T+5}, 10, v{T+7}")
    a(f"v_xor_b32 v{T+7}, 64, v{VXD}")
    a(f"v_add_u32 v{VXD+1}, {8192-1024}, v{T+7}")
    if xl:
        a("s_lshl_b32 s44, s41, 1"); a("s_add_u32 s44, s44, s43")
    elif opt.get("qr", 0) == 0:
        a("s_lshl_b32 s44, s42, 1"); a("s_add_u32 s44, s44, s41")
    elif opt["qr"] == 1:
        a("s_add_u32 s44, s42, s41"); a("s_lshl_b32 s44, s44, 1")
    elif opt["qr"] == 2:
        a("s_add_u32 s44, s42, s41"); a("s_lshl_b32 s44, s44, 2")
    elif opt["qr"] == 3:
        a("s_add_u32 s44, s42, s41"); a("s_lshl_b32 s44, s44, 2"); a("s_lshr_b64 s[44:45], 0x30630630630, s44") if False else None
        a("s_mul_i32 s45, s44, 22"); a("s_lshr_b32 s45, s45, 8"); a("s_mul_i32 s45, s45, 12"); a("s_sub_u32 s44, s44, s45"); a("s_lshr_b32 s44, s44, 2"); a("s_mul_i32 s44, s44, 3")
    elif opt["qr"] == 5:
        a("s_mov_b32 s44, 0")
    elif opt["qr"] == 6:
        a("s_add_u32 s44, s42, s41"); a("s_lshl_b32 s44, s44, 2")
        a("s_mul_i32 s45, s44, 22"); a("s_lshr_b32 s45, s45, 8"); a("s_mul_i32 s45, s45, 12"); a("s_sub_u32 s44, s44, s45"); a("s_lshr_b32 s44, s44, 2"); a("s_mul_i32 s44, s44, 3"); a("s_add_u32 s44, s44, s40")
    elif opt["qr"] == 4:
        a("s_add_u32 s44, s42, s41"); a("s_lshl_b32 s44, s44, 1"); a("s_add_u32 s44, s44, s40")
    QT = opt.get("qt")
    if QT:
        ncls = len(QT)
        if ncls == 8: a("s_lshl_b32 s44, s42, 1"); a("s_add_u32 s44, s44, s41"); a("s_and_b32 s44, s44, 7")
        else: a("s_add_u32 s44, s42, s41"); a(f"s_and_b32 s44, s44, {ncls-1}")
        a(f"s_mov_b32 s58, {hex(order(QT[0]))}")
        for c_ in range(1, ncls):
            a(f"s_cmp_eq_u32 s44, {c_}"); a(f"s_cselect_b32 s58, {hex(order(QT[c_]))}, s58")
    else:
        a("s_and_b32 s58, s44, 7")
    a("s_lshl_b32 s46, s3, 11"); a(f"s_add_u32 s46, s46, {XB}")
    a("s_lshl_b32 s47, s3, 12"); a("s_add_u32 s47, s47, 16384")
    a("s_lshl_b32 s49, s3, 15")
    a("s_lshl_b32 s44, s41, 16"); a("s_lshl_b32 s45, s3, 14"); a("s_add_u32 s44, s44, s45")
    a("s_lshl_b32 s48, s43, 8"); a("s_lshl_b32 s45, s3, 17"); a("s_add_u32 s48, s48, s45")
    a("s_sub_u32 s22, 0x80000, s44"); a("s_mov_b32 s23, 0x20000")
    a("s_sub_u32 s34, 0x400000, s48"); a("s_mov_b32 s35, 0x20000")
    a("s_waitcnt lgkmcnt(0)")
    a("s_add_u32 s20, s4, s44"); a("s_addc_u32 s21, s5, 0"); a("s_and_b32 s21, s21, 0xffff")
    a("s_add_u32 s32, s10, s48"); a("s_addc_u32 s33, s11, 0"); a("s_and_b32 s33, s33, 0xffff")

    def qdma(c):
        j = c % 4
        if QT:
            out = ["s_and_b32 s57, s58, 7", f"s_lshl_b32 s59, s57, 7", f"s_add_u32 m0, s46, {j*8192}", "s_lshl_b32 s57, s57, 19"]
            out += [f"buffer_load_dwordx4 v{VXD+i}, s[20:23], s59 offen offset:{1024*i} lds" for i in range(2)]
            out += [f"s_add_u32 m0, s47, {j*32768}", "s_lshr_b32 s58, s58, 4"]
            out += [f"buffer_load_dwordx4 v{VWD+i}, s[32:35], s57 offen offset:{1024*i} lds" for i in range(4)]
            return out
        out = [f"s_lshl_b32 s59, s58, 7", f"s_add_u32 m0, s46, {j*8192}", "s_lshl_b32 s57, s58, 19"]
        for i in range(2):
            out.append(f"buffer_load_dwordx4 v{VXD+i}, s[20:23], s59 offen offset:{1024*i} lds")
        out += [f"s_add_u32 m0, s47, {j*32768}", "s_add_u32 s58, s58, 1"]
        for i in range(4):
            out.append(f"buffer_load_dwordx4 v{VWD+i}, s[32:35], s57 offen offset:{1024*i} lds")
        out.append("s_and_b32 s58, s58, 7")
        return out
    def nexttile():
        return [f"s_and_b32 s54, s60, {TM}", "s_lshr_b64 s[60:61], s[60:61], 4"]
    def dma_k(slot):
        out = []
        for hh in range(2):
            out.append(f"s_add_u32 m0, s49, {slot*16384 + hh*4096}")
            for i in range(4):
                out.append(f"buffer_load_dwordx4 v{VKD+4*hh+i}, s[24:27], s54 offen offset:{1024*i} lds")
        return out
    def dma_v(slot):
        out = []
        for hh in range(2):
            out.append(f"s_add_u32 m0, s49, {slot*16384 + 8192 + hh*4096}")
            for i in range(4):
                out.append(f"buffer_load_dwordx4 v{VVD+hh}, s[28:31], s54 offen offset:{1024*i} lds")
        return out
    vm = []
    if opt.get("xfirst"):
        q0 = qdma(0); q1 = qdma(1)
        x1 = ["s_add_u32 s51, s58, 1", "s_and_b32 s51, s51, 7", "s_lshl_b32 s51, s51, 7", f"s_add_u32 m0, s46, 8192", "s_nop 0"] + \
             [f"buffer_load_dwordx4 v{VXD+i}, s[20:23], s51 offen offset:{1024*i} lds" for i in range(2)]
        emit(q0[:5] + x1 + q0[5:]); vm += ["c0"]*8
    else:
        emit(qdma(0)); vm += ["c0"]*6
    def kd_setup():
        out = [f"v_xor_b32 v{VKD+i}, {64*i}, v{VKD}" for i in range(1, 4)]
        return out
    a(f"v_xor_b32 v{T+3}, v{c16}, v{r4}"); a(f"v_lshlrev_b32 v{T+3}, 4, v{T+3}")
    a(f"v_lshl_add_u32 v{VKD}, v{r4}, 8, v{T+3}")
    emit(kd_setup())
    for i in range(4):
        a(f"v_add_u32 v{VKD+4+i}, 4096, v{VKD+i}")
    a(f"v_lshl_add_u32 v{VVD}, v{r4}, 8, v{vp}")
    a(f"v_add_u32 v{VVD+1}, 4096, v{VVD}")
    a(f"v_and_b32 v{T+7}, 16, v0"); a(f"v_lshrrev_b32 v{T+7}, 2, v{T+7}")
    a(f"v_xor_b32 v{T+7}, v{T+7}, v{T+6}"); a(f"v_lshlrev_b32 v{T+7}, 4, v{T+7}")
    a(f"v_lshl_add_u32 v{VOD0}, v{T+5}, 10, v{T+7}")
    orders = opt["orders"]
    a(f"s_mov_b32 s62, {hex(orders[0])}")
    for rr_ in range(1, 4):
        if orders[rr_] != orders[0]:
            a(f"s_cmp_eq_u32 s42, {rr_}"); a(f"s_cselect_b32 s62, {hex(orders[rr_])}, s62")
    if "orders2" in opt:
        o2 = opt["orders2"]
        a(f"s_mov_b32 s63, {hex(o2[0])}")
        for rr_ in range(1, 4):
            a(f"s_cmp_eq_u32 s42, {rr_}"); a(f"s_cselect_b32 s63, {hex(o2[rr_])}, s63")
        a("s_bitcmp1_b32 s41, 0"); a("s_cselect_b32 s62, s63, s62")
    tx = opt.get("tx", 0)
    if tx:
        if tx == 1: a("s_mov_b32 s63, s41")
        elif tx == 2: a("s_mov_b32 s63, s40")
        elif tx == 3: a("s_add_u32 s63, s40, s41")
        elif tx == 4: a("s_lshl_b32 s63, s3, 1")
        elif tx == 5: a("s_lshl_b32 s63, s3, 1"); a("s_add_u32 s63, s63, s40"); a("s_add_u32 s63, s63, s41")
        a("s_and_b32 s63, s63, 7"); a("s_mul_i32 s63, s63, 0x11111111"); a("s_xor_b32 s62, s62, s63")
    a("s_mov_b32 s63, 8")
    a(f"s_lshl_b64 s[62:63], s[62:63], {TSH}")
    a("s_mov_b64 s[60:61], s[62:63]")
    a("s_lshl_b32 s50, s41, 3"); a("s_add_u32 s50, s50, s40"); a(f"s_lshl_b32 s50, s50, {5 if IL else 2}"); a("s_add_u32 s50, s50, s3")
    a(f"s_lshl_b32 s50, s50, {13 if IL else 16}")
    a(f"s_mov_b32 s26, {hex(0x3a000 if IL else 0x10000)}"); a("s_mov_b32 s27, 0x20000")
    a(f"s_mov_b32 s30, {hex(0x3a000 if IL else 0x10000)}"); a("s_mov_b32 s31, 0x20000")
    a("s_add_u32 s24, s6, s50"); a("s_addc_u32 s25, s7, 0"); a("s_and_b32 s25, s25, 0xffff")
    a("s_add_u32 s28, s8, s50"); a("s_addc_u32 s29, s9, 0"); a("s_and_b32 s29, s29, 0xffff")
    srd(a, 64, 18, ST_OFF + (0x40000 if fine else 0))
    srd(a, 68, 16, 256)
    a(f"v_mov_b32 v{VT}, 0")
    a("s_lshl_b32 s72, s41, 5")
    a("s_or_b32 s51, s43, s3")
    a("s_cbranch_scc1 L_nolead")
    a("s_or_b32 s74, s74, 1")
    a(f"v_mov_b32 v{VCNT}, s74")
    a("s_mov_b64 exec, 1")
    a(f"buffer_store_dword v{VCNT}, v{VT}, s[68:71], s72 offen sc1")
    a("s_mov_b64 exec, -1")
    a.label("L_nolead")
    if opt.get("xfirst"):
        emit(q1[2:3] + q1[5:]); vm += ["c1"]*4
    else:
        emit(qdma(1)); vm += ["c1"]*6
    l31, hh_, rr, cc, dh = T+5, T+6, T+8, T+9, T+10
    a(f"v_and_b32 v{l31}, 31, v0")
    a(f"v_lshrrev_b32 v{hh_}, 5, v0")
    a(f"v_xor_b32 v{T+7}, v{hh_}, v{c16}")
    a(f"v_lshlrev_b32 v{T+7}, 4, v{T+7}")
    a(f"v_lshl_add_u32 v{T+7}, v{l31}, 8, v{T+7}")
    a(f"v_add_u32 v{VKR}, s49, v{T+7}")
    for s in range(1, 8):
        a(f"v_xor_b32 v{VKR+s}, {32*s}, v{VKR}")
    a(f"v_bfe_u32 v{T+7}, v0, 1, 3")
    a(f"v_xor_b32 v{T+7}, v{T+7}, v{hh_}"); a(f"v_lshlrev_b32 v{T+7}, 4, v{T+7}")
    a(f"v_lshl_add_u32 v{T+7}, v{l31}, 7, v{T+7}")
    a(f"v_add_u32 v{VXR}, {XB}, v{T+7}")
    for s in range(1, 4):
        a(f"v_xor_b32 v{VXR+s}, {32*s}, v{VXR}")
    a(f"v_lshrrev_b32 v{rr}, 2, v{c16}")
    a(f"v_and_b32 v{cc}, 3, v0")
    a(f"v_and_b32 v{dh}, 16, v0")
    a(f"v_lshlrev_b32 v{dh}, 1, v{dh}")
    a(f"v_lshl_add_u32 v{T+13}, v{hh_}, 2, v{rr}")
    a(f"v_lshl_add_u32 v{T+14}, v{cc}, 3, v{dh}")
    a(f"v_lshl_add_u32 v{T+11}, v{T+13}, 8, v{T+14}")
    a(f"v_add_u32 v{T+11}, s49, v{T+11}")
    for j in range(4):
        a(f"s_add_u32 s51, s3, {j}"); a("s_and_b32 s51, s51, 3")
        a(f"v_xor_b32 v{T+12}, s51, v{rr}")
        a(f"v_lshl_add_u32 v{VVR+j}, v{T+12}, 6, v{T+11}")
    a("s_lshl_b32 s51, s3, 4")
    a("s_and_b32 s52, s40, 2"); a("s_lshl_b32 s52, s52, 5"); a("s_or_b32 s51, s51, s52")
    a(f"v_and_b32 v{T+12}, 8, v0"); a(f"v_lshl_add_u32 v{T+14}, v{T+12}, 3, v{T+14}")
    a(f"v_xor_b32 v{T+14}, s51, v{T+14}")
    a(f"v_lshl_add_u32 v{T+14}, v{T+13}, 7, v{T+14}")
    a(f"v_add_u32 v{VWA}, s49, v{T+14}")
    a(f"v_xor_b32 v{VWB}, 64, v{VWA}")
    a(f"v_lshl_add_u32 v{T+11}, v{hh_}, 3, v{rr}")
    a(f"v_lshl_add_u32 v{T+11}, v{T+11}, 8, v{dh}")
    a(f"v_xor_b32 v{T+12}, s3, v{rr}")
    a(f"v_lshl_add_u32 v{T+11}, v{T+12}, 6, v{T+11}")
    a(f"v_and_b32 v{T+12}, 1, v0"); a(f"v_lshl_add_u32 v{T+11}, v{T+12}, 4, v{T+11}")
    a(f"v_and_b32 v{T+12}, 2, v0"); a(f"v_lshl_add_u32 v{T+11}, v{T+12}, 2, v{T+11}")
    a(f"v_add_u32 v{VWR}, 16384, v{T+11}")
    a(f"v_add_u32 v{VWR+1}, {16384+65536}, v{T+11}")
    a(f"v_lshlrev_b32 v{VL16}, 4, v0")
    a(f"v_add_u32 v{VQR}, {QAREA}, v{VL16}")
    a(f"v_lshlrev_b32 v{VMX}, 4, v{l31}")
    a(f"v_add_u32 v{VMX}, {MISC}, v{VMX}")
    a(f"v_mov_b32 v{MS[0]}, 0xff800000"); a(f"v_mov_b32 v{MS[1]}, 0xff800000")
    a("s_mov_b32 s76, 0")
    a("s_lshl_b32 s51, s41, 5"); a("s_add_u32 s51, s51, s43"); a("s_lshl_b32 s51, s51, 2"); a("s_add_u32 s51, s51, s3")
    a("s_lshl_b32 s51, s51, 3"); a(f"s_add_u32 s77, s51, {FL_OFF}")
    a("s_andn2_b32 s51, s2, 6"); a("s_lshl_b32 s51, s51, 7"); a("s_lshl_b32 s52, s3, 5"); a("s_add_u32 s51, s51, s52"); a(f"s_add_u32 s75, s51, {FL_OFF + 0x4000}")
    a("s_and_b32 s78, s40, 6"); a("s_lshl_b32 s78, s78, 2"); a("s_lshl_b32 s51, s3, 1"); a("s_add_u32 s78, s78, s51")
    a("s_and_b32 s79, s40, 1"); a("s_lshl_b32 s79, s79, 2"); a("s_add_u32 s79, s79, s42")
    a("s_lshl_b32 s51, s78, 17"); a("s_lshl_b32 s52, s79, 7"); a("s_add_u32 s51, s51, s52")
    a("s_add_u32 s36, s12, s51"); a("s_addc_u32 s37, s13, 0"); a("s_and_b32 s37, s37, 0xffff")
    a("s_sub_u32 s38, 0x400000, s51"); a("s_mov_b32 s39, 0x20000")
    a(f"v_bfe_u32 v{T+7}, v0, 2, 1")
    a(f"v_bfe_u32 v{T+11}, v0, 3, 2")
    a(f"v_bfe_u32 v{T+12}, v0, 1, 1")
    a(f"v_lshl_add_u32 v{T+11}, v{T+11}, 1, v{T+12}")
    a(f"v_xor_b32 v{T+7}, v{T+7}, v{hh_}")
    a(f"v_lshl_add_u32 v{T+11}, v{T+7}, 4, v{T+11}")
    a(f"v_and_b32 v{T+12}, 1, v0"); a(f"v_lshlrev_b32 v{T+12}, 4, v{T+12}")
    a(f"v_mov_b32 v{T+7}, 0x3f80")
    a(f"v_lshlrev_b32 v{T+12}, v{T+12}, v{T+7}")
    msk = [80, 82, 84, 86, 94, 96, 98, 100]
    for k in range(8): a(f"v_cmp_eq_u32 s[{msk[k]}:{msk[k]+1}], {k}, v{T+11}")
    for k in range(4): a(f"v_mov_b32 v{VZ+k}, 0")
    for k in range(8): a(f"v_cndmask_b32 v{2+k}, 0, v{T+12}, s[{msk[k]}:{msk[k]+1}]")
    if MSUM:
        a(f"v_and_b32 v{T+7}, 1, v{r4}"); a(f"v_xor_b32 v{T+7}, v{T+7}, v{c16}")
        a(f"v_cmp_eq_u32 s[80:81], 0, v{T+7}"); a(f"v_cmp_eq_u32 s[82:83], 2, v{T+7}")
        a(f"v_mov_b32 v{T+12}, 0x3f803f80"); a("s_nop 0")
        a(f"v_cndmask_b32 v{T+7}, 0, v{T+12}, s[80:81]"); a(f"v_cndmask_b32 v{T+11}, 0, v{T+12}, s[82:83]")
        for k in range(4):
            a(f"v_accvgpr_write_b32 a{116+k}, v{T+7}"); a(f"v_accvgpr_write_b32 a{120+k}, v{T+11}")
    z = R("v", VZ, 4)
    zmf = [mf32(O_(qb, j), z, z, "0") for qb in range(2) for j in range(4)]
    for _ in range(opt.get("wu", 0)):
        a(mf32(O_(0, _ % 8 // 2), R("v", VKR, 4), R("v", VKD, 4), O_(0, _ % 8 // 2)))
    emit(zmf)
    emit(qdma(2)); vm += ["c2"]*6

    kvq = opt.get("kvq", {5: ["K0a"], 6: ["K0b"], 7: ["V0a"], 8: ["V0b"]})
    K0 = dma_k(0); V0 = dma_v(0)
    grp = {"K0a": nexttile() + K0[:5], "K0b": K0[5:], "V0a": V0[:5], "V0b": V0[5:]}
    def kv(c):
        out = []
        for g in kvq.get(c, []):
            out += grp[g]; vm.extend([g[:2]]*4)
        return out
    LAG = opt.get("lag", 1)
    QB = [0, 48, 128, 176][:LAG + 1]
    def qreads(c):
        j = c % 4; base = QB[c % len(QB)]; out = []
        for s in range(4):
            b = base + 12*s
            wreg = VWR + (j >> 1); wo = (j & 1) * 32768
            out.append(f"ds_read_b64_tr_b16 a[{b}:{b+1}], v{wreg} offset:{wo + (16*s)*256}")
            out.append(f"ds_read_b64_tr_b16 a[{b+2}:{b+3}], v{wreg} offset:{wo + (16*s+4)*256}")
            out.append(f"ds_read_b128 a[{b+4}:{b+7}], v{VXR+s} offset:{j*8192}")
            out.append(f"ds_read_b128 a[{b+8}:{b+11}], v{VXR+s} offset:{j*8192+4096}")
        return out
    def qmf(c):
        base = QB[c % len(QB)]; out = []
        for s in range(4):
            b = base + 12*s
            for qb in range(2):
                cin = "0" if (c == 0 and s == 0) else R("v", S0[qb], 16)
                out.append(mf32(R("v", S0[qb], 16), R("a", b, 4), R("a", b+4+4*qb, 4), cin))
        return out
    def nwait(tag):
        last = max(i for i, x in enumerate(vm) if x == tag)
        return len(vm) - 1 - last
    emit(fs())
    for c in range(8):
        a(f"s_waitcnt vmcnt({nwait(f'c{c}')})")
        a("s_barrier")
        emit(fs(c == 0))
        seq = qreads(c)
        ld = []
        if c + 3 < 8:
            ld += qdma(c + 3); vm += [f"c{c+3}"]*6
        ld += kv(c)
        if c < LAG:
            emit(seq + ld)
        else:
            mf = qmf(c - LAG)
            if opt.get("nomf") and c < 5: mf = ["s_nop 0"]*8
            if opt.get("nord") and c < 5: seq = []
            gaps = spread(8, [(0, 4, seq), (1, 8, ld)])
            s2 = []
            for i in range(8):
                s2 += gaps[i]; s2.append(mf[i])
            emit(s2)
        a("s_waitcnt lgkmcnt(0)")
    for c in range(8 - LAG, 7): emit(qmf(c))
    def kreads(slot): return [f"ds_read_b128 {Kf(s)}, v{VKR+s} offset:{slot*16384}" for s in range(8)]
    def vreads(slot):
        return [f"ds_read_b64_tr_b16 {Vfh(st,j,u)}, v{VVR+j} offset:{slot*16384 + 8192 + (16*st+8*u)*256}" for st in range(2) for j in range(4) for u in range(2)]
    m7 = qmf(7)
    m7 = m7[0::2] + m7[1::2]
    def qfin(qb):
        out = [f"v_pk_mul_f32 v[{S0[qb]+r}:{S0[qb]+r+1}], v[{S0[qb]+r}:{S0[qb]+r+1}], v[14:15] op_sel_hi:[1,0]" for r in range(0, 16, 2)]
        out += [f"v_cvt_pk_bf16_f32 v{P0[qb]+r}, v{S0[qb]+2*r}, v{S0[qb]+2*r+1}" for r in range(8)]
        out += [f"ds_write_b128 v12, v[{P0[qb]+4*sp}:{P0[qb]+4*sp+3}] offset:{qb*8192 + sp*1024}" for sp in range(2)]
        return out
    EB = opt.get("eb", 0)
    if EB: a("s_barrier")
    l8 = kv(8)
    if EB:
        l8 += nexttile() + dma_k(1)[:5*EB]; vm.extend(["K1"]*(4*EB))
    f0 = qfin(0)
    if opt.get("qm"):
        f0 = [f"v_mul_f32 v{S0[0]+r}, v14, v{S0[0]+r}" for r in range(16)] + f0[8:]
    emit(merge(m7, spread(8, [(0, 2, [f"v_mov_b32 v14, {hex(f2u(C_SCALE))}", "s_lshl_b32 s51, s3, 11", f"v_add_u32 v12, s51, v{VQR}"]), ((5, 7, f0[:12]) if opt.get("qm") else (6, 7, f0[:6])), (7, 8, f0[12:] if opt.get("qm") else f0[6:])])))
    if opt.get("l8s"):
        q1_ = qfin(1)
        emit(merge(q1_, spread(len(q1_), [(0, len(q1_), l8)])))
    else:
        emit(qfin(1))
        emit(l8)

    def qk(qb, first=False):
        return [mf32(R("v", S0[qb], 16), Kf(s), Q_(qb, s), ("0" if first else R("v", NM[qb], 16)) if s == 0 else R("v", S0[qb], 16)) for s in range(8)]
    def pv(qb, order1=(0, 1, 2, 3)):
        return [mf32(O_(qb, j), Vf(0, j), R("v", P0[qb], 4), O_(qb, j)) for j in range(4)] + \
               [mf32(O_(qb, j), Vf(1, j), R("v", P0[qb]+4, 4), O_(qb, j)) for j in order1]
    def ex(qb, r): return f"v_exp_f32 v{S0[qb]+r}, v{S0[qb]+r}"
    PK = opt.get("pk", 0)
    def msum(qb, st): return f"v_mfma_f32_16x16x32_bf16 a[112:115], a[{116+4*qb}:{119+4*qb}], v[{P0[qb]+4*st}:{P0[qb]+4*st+3}], a[112:115]"
    LP = [96, 124]
    def ad(qb, r):
        if MSUM: return None
        if not PK: return f"v_add_f32 v{L_[qb]}, v{L_[qb]}, v{S0[qb]+r}"
        if r % 2 == 0: return None
        return f"v_pk_add_f32 v[{LP[qb]}:{LP[qb]+1}], v[{LP[qb]}:{LP[qb]+1}], v[{S0[qb]+r-1}:{S0[qb]+r}]"
    def cv(qb, i): return f"v_cvt_pk_bf16_f32 v{P0[qb]+i}, v{S0[qb]+2*i}, v{S0[qb]+2*i+1}"

    emit(fs(True))
    a("s_waitcnt lgkmcnt(0)")
    a.label("L_att")
    a("s_barrier")
    qr = [f"ds_read_b128 {Q_(qb,s)}, v{VQR} offset:{(qb*8+s)*1024}" for qb in range(2) for s in range(8)]
    emit(qr[:8])
    a(f"s_waitcnt vmcnt({nwait('K0')})")
    emit(fs())
    emit(kreads(0))
    if MSUM:
        for k in range(4): a(f"v_accvgpr_write_b32 a{112+k}, 0")
    else:
        a(f"v_mov_b32 v{L_[0]}, 0"); a(f"v_mov_b32 v{L_[1]}, 0")
    K1 = nexttile() + dma_k(1); V1 = dma_v(1)
    mf = qk(0, True) + qk(1, True)
    def inmax(qb, t):
        s = S0[qb]; out = [f"v_max3_f32 v{t}, v{s}, v{s+1}, v{s+2}"]
        for r in range(3, 15, 2):
            out.append(f"v_max3_f32 v{t}, v{t}, v{s+r}, v{s+r+1}")
        out.append(f"v_max_f32 v{t}, v{t}, v{s+15}")
        return out
    vr0 = vreads(0)
    nq = 8
    if EB:
        seq_ = (dma_k(1) + dma_v(1))[5*EB:]
        K1 = [None, None] + seq_[:10]; V1 = seq_[10:] + [None]*(5*EB)
    emit([x for x in K1[:4] if x])
    gaps = spread(16, [(0, 4, qr[8:]), (0, 14, K1[4:]), (10, 14, inmax(0, 124))])
    emit(merge(mf, gaps, pre={0: ["s_waitcnt lgkmcnt(4)"], 4: ["s_waitcnt lgkmcnt(8)"], 8: ["s_waitcnt lgkmcnt(0)"]}))
    a("s_lshl_b32 s51, s3, 2"); a(f"s_add_u32 s51, s51, {MISC}")
    a(f"v_add_u32 v12, s51, v{VL16}")
    emit([x for x in V1[:2] if x])
    a("s_nop 5" if V1[0] else "s_nop 8")
    emit(inmax(1, 125))
    a("s_nop 1")
    a("v_permlane32_swap_b32 v124, v125")
    a("s_nop 0")
    a("v_max_f32 v124, v124, v125")
    a("ds_write_b32 v12, v124")
    emit([x for x in V1[2:3] if x])
    a("s_waitcnt lgkmcnt(0)"); a("s_barrier")
    a(f"ds_read_b128 v[{NM[0]}:{NM[0]+3}], v{VMX}")
    a(f"ds_read_b128 v[{NM[1]}:{NM[1]+3}], v{VMX} offset:512")
    emit(fs())
    a(f"s_waitcnt vmcnt({nwait('V0') + (10 if V1[0] else 8)})")
    emit(vr0[:8])
    a("s_waitcnt lgkmcnt(8)")
    for qb in range(2):
        n = NM[qb]
        a(f"v_max3_f32 v{124+qb}, v{n}, v{n+1}, v{MS[qb]}")
        a(f"v_max3_f32 v{124+qb}, v{n+2}, v{n+3}, v{124+qb}")
    for qb in range(2):
        a(f"v_sub_f32 v{NM[qb]}, 0, v{124+qb}")
        a(f"v_sub_f32 v{NM[qb]+1}, 0, v{124+qb}")
    body_a = [f"v_pk_add_f32 v[{S0[0]+r}:{S0[0]+r+1}], v[{S0[0]+r}:{S0[0]+r+1}], v[{NM[0]}:{NM[0]+1}]" for r in range(0, 16, 2)]
    for r in range(15):
        body_a.append(ex(0, r))
        if r >= 1: body_a.append(ad(0, r-1))
        if r >= 2 and r % 2 == 0: body_a.append(cv(0, (r-2)//2))
    body_a += [f"v_pk_add_f32 v[{S0[1]+r}:{S0[1]+r+1}], v[{S0[1]+r}:{S0[1]+r+1}], v[{NM[1]}:{NM[1]+1}]" for r in range(0, 16, 2)]
    body_a += [f"v_pk_mov_b32 v[{NM[qb]+r}:{NM[qb]+r+1}], v[{NM[qb]}:{NM[qb]+1}], v[{NM[qb]}:{NM[qb]+1}]" for qb in range(2) for r in range(2, 16, 2)]
    n = len(body_a)
    if PK: a("v_mov_b32 v124, 0"); a("v_mov_b32 v125, 0")
    SH0 = opt.get("sh", 0)
    extra = (nexttile() + dma_k(0)[:5*SH0]) if SH0 > 0 else []
    emit(merge(body_a, spread(n, [(0, n - 4, (V1[3:] if SH0 >= 0 else V1[3:5]) + extra), (4, 30, vr0[8:(15 if opt.get("vg", [32])[-1] >= 32 else 16)])])))

    wo_slot = opt.get("wslot", [0, 4096, 8192, 12288, "X", 28672, 0, 4096])
    def wo_group(g):
        out = [f"s_add_u32 m0, s49, {wo_slot[g]}" if wo_slot[g] != "X" else "s_mov_b32 m0, s87"]
        out += [f"buffer_load_dwordx4 v{VKD+i}, s[36:39], s84 offen offset:{1024*i} lds" for i in range(4)]
        out += ["s_add_u32 s84, s84, 0x8000", "s_and_b32 s84, s84, 0x3ffff"]
        return out
    def wo_reads(g):
        out = []
        X = wo_slot[g] == "X"
        for s2_ in range(2):
            s = 2*g + s2_
            for ci in range(2):
                for u in range(2):
                    d = (s*2 + ci)*4 + 2*u
                    r_ = (117 if ci else 116) if X else (VWB if ci else VWA)
                    out.append(f"ds_read_b64_tr_b16 a[{d}:{d+1}], v{r_} offset:{(0 if X else wo_slot[g]) + (16*s2_ + 8*u)*128}")
        return out
    wpos = opt.get("wpos", {"i6": [(2, 10), (12, 20), (22, 30)], "f1": 0, "f2": 0, "f4": 1})
    wcnt = [0]
    def wnext(n=1):
        out = []
        for _ in range(n):
            out += wo_group(wcnt[0]); wcnt[0] += 1
        return out

    def body(par, kind):
        SH = opt.get("sh", 0)
        mf = pv(0) + qk(0) + pv(1) + qk(1)
        G = [[] for _ in range(32)]
        for r in range(16):
            G[(1 + r) % 32].append(ex(1, r)); G[(17 + r) % 32].append(ex(0, r))
        for r in range(16):
            o_ = 1 if (PK == 2 and r < 15) else 0
            G[(2 + r + o_) % 32].append(ad(1, r)); G[(18 + r + (o_ if r < 13 else 0)) % 32].append(ad(0, r))
        for i in range(8):
            G[(3 + 2*i) % 32].append(cv(1, i)); G[(19 + 2*i) % 32].append(cv(0, i))
        vr_prev = vreads(par); vr = vreads(1 - par); kr = kreads(1 - par)
        kg = opt.get("kg", [1, 2, 3, 4, 5, 6, 7, 8])
        if kg[0] == 1: G[0].append("WAITK")
        vg = opt.get("vg", list(range(17, 33)))
        dsg = [[] for _ in range(32)]
        for i in range(16):
            if vg[i] >= 32: dsg[vg[i] - 32].append(vr_prev[i])
        for s in range(8): dsg[kg[s]].append(kr[s])
        for i in range(16):
            if vg[i] < 32: dsg[vg[i]].append(vr[i])
        for g_ in range(32):
            if opt.get("dslast"): G[g_] += dsg[g_]
            elif g_ == 0: G[0] = [x for x in dsg[0] if x in vr_prev] + G[0] + [x for x in dsg[0] if x not in vr_prev]
            else: G[g_] = dsg[g_] + G[g_]
        nv0 = sum(1 for i in range(8, 16) if vg[i] < 32)
        cnt = lambda g_: sum(1 for s in range(8) if kg[s] < g_)
        pre = {}
        lw = opt.get("lw", 0)
        if lw == 0:
            pre = {0: [f"s_waitcnt lgkmcnt({nv0})"], 4: [f"s_waitcnt lgkmcnt({cnt(4)})"], 8: [f"s_waitcnt lgkmcnt({cnt(8) - 4})"], 12: ["s_waitcnt lgkmcnt(0)"]}
        elif lw == 1:
            assert nv0 == 8 and cnt(8) == 8
            pre = {0: ["s_waitcnt lgkmcnt(0)"], 8: ["s_waitcnt lgkmcnt(0)"]}
        elif lw == 2:
            assert cnt(8) == 8
            pre = {0: [f"s_waitcnt lgkmcnt({nv0})"], 4: [f"s_waitcnt lgkmcnt({cnt(4)})"], 8: ["s_waitcnt lgkmcnt(0)"]}
        if MSUM:
            mp = opt.get("mp", [1, 5, 17, 21])
            for (pos_, qb_, st_) in zip(mp, (0, 0, 1, 1), (0, 1, 0, 1)):
                pre.setdefault(pos_, []); pre[pos_] = pre[pos_] + [msum(qb_, st_)]
        if kind == "dma":
            allg = [("V", 1 - par, 1), ("K", par, 0), ("K", par, 1), ("V", par, 0), ("V", par, 1), ("K", 1 - par, 0), ("K", 1 - par, 1)]
            grpz = allg[1 + SH: 5 + SH]
            pos = [(1, [2, 4, 6, 8]), (9, [10, 12, 14, 16]), (17, [18, 20, 22, 24]), (25, [26, 28, 30, 31])]
            for gi, (kd, sl, hf) in enumerate(grpz):
                d_ = (dma_k(sl) if kd == "K" else dma_v(sl))[5*hf:5*hf+5]
                if kd == "K" and hf == 0:
                    if gi == 0: pre[0] = [f"s_and_b32 s54, s60, {TM}"] + pre[0]
                    else: G[pos[gi][0]].append(f"s_and_b32 s54, s60, {TM}")
                    G[(pos[gi][0] + 2) % 32 if gi else 11].append("s_lshr_b64 s[60:61], s[60:61], 4")
                G[pos[gi][0]].append(d_[0])
                for i in range(4): G[pos[gi][1][i]].append(d_[1 + i])
            G[vg[0] - 1].append("WAITV")
            if kg[0] > 1: G[kg[0] - 1].append("WAITK")
            if par == 1:
                G[13].append(f"buffer_load_dword v{VCNT}, v{125 if xl == 2 else VT}, s[68:71], s72 offen sc1")
                G[15].append("s_add_u32 s56, s56, 1")
        else:
            pat = [f"v_mov_b32 v{VKD}, v{VOD0}"] + [f"v_add_u32 v{VKD+i}, {7168*i}, v{VOD0}" for i in range(1, 4)]
            gw = spread(32, [(0, 2, pat)] + ([(1, 6, dma_v(1)[5:])] if SH < 0 else []) + [(g0, g1, wnext()) for (g0, g1) in wpos["i6"]])
            for i in range(32): G[i] += gw[i]
            G[vg[0] - 1].append("WAITV")
            if kg[0] > 1: G[kg[0] - 1].append("WAITK")
            adr = []
            for j in range(1, 4):
                adr += [f"s_sub_u32 s52, s3, {j}", "s_and_b32 s52, s52, 3", "s_lshl_b32 s52, s52, 15", f"v_add_u32 v{100+j}, s52, v{VL16}"]
            adr += [f"v_add_u32 v12, s49, v{VL16}", "s_lshl_b32 s51, s3, 2", f"s_add_u32 s51, s51, {MISC+1024}", f"v_add_u32 v14, s51, v{VL16}",
                    "s_lshl_b32 s51, s41, 9", "s_lshl_b32 s52, s43, 3", "s_add_u32 s51, s51, s52", "s_lshl_b32 s52, s3, 1", "s_add_u32 s51, s51, s52",
                    "s_lshl_b32 s51, s51, 10", "s_add_u32 s52, s51, 262144", f"v_readfirstlane_b32 s73, v{VCNT}", f"s_mov_b32 s53, {hex(f2u(LIMIT))}"]
            if xl == 2:
                adr.remove(f"v_readfirstlane_b32 s73, v{VCNT}")
                pre_ = ["s_lshl_b32 s44, s41, 9", "s_lshl_b32 s45, s43, 3", "s_add_u32 s44, s44, s45", "s_lshl_b32 s45, s3, 1", "s_add_u32 s44, s44, s45",
                        "s_lshl_b32 s44, s44, 10", "s_add_u32 s44, s44, s46", "v_and_b32 v124, 31, v0", "v_lshlrev_b32 v124, 6, v124",
                        f"v_lshrrev_b32 v{VCNT}, 5, v0", f"v_lshl_add_u32 v124, v{VCNT}, 18, v124", "s_add_u32 s48, s77, s46",
                        f"buffer_load_dword v{VCNT}, v124, s[64:67], s44 offen sc1", f"buffer_load_dword v{VCNT}, v{VT}, s[64:67], s48 offen sc1",
                        "s_add_u32 s45, s44, 262144"]
                gp = spread(32, [(0, 6, pre_)])
                for i in range(32): G[i] += gp[i]
                adr += ["s_add_u32 s51, s51, s47", "s_add_u32 s52, s52, s47"]
            ga = spread(32, [(8, 26, adr)])
            for i in range(32): G[i] += ga[i]
        seq = fs() + merge(mf, G, pre)
        issued = 0; out = []
        for x in seq:
            if x == "WAITK": out.append(f"s_waitcnt vmcnt({8 + 4*SH + issued})")
            elif x == "WAITV": out.append(f"s_waitcnt vmcnt({4*SH + issued})")
            else:
                if x.startswith("buffer_load"): issued += 1
                out.append(x)
        return out
    rot = opt.get("rot", 1)
    if rot in (5, 6):
        a("s_add_u32 s80, s42, s41" if rot == 5 else "s_mov_b32 s80, s41")
        a("s_mul_i32 s51, s80, 86"); a("s_lshr_b32 s51, s51, 8"); a("s_mul_i32 s51, s51, 3"); a("s_sub_u32 s80, s80, s51"); a("s_mul_i32 s80, s80, 3")
    elif rot == 3:
        a("s_add_u32 s80, s42, s41"); a("s_lshl_b32 s80, s80, 1"); a("s_and_b32 s80, s80, 7")
    elif rot == 4:
        a("s_lshl_b32 s80, s41, 1"); a("s_and_b32 s80, s80, 7")
    elif rot == 2:
        if xl:
            a("s_lshl_b32 s80, s41, 1"); a("s_add_u32 s80, s80, s43"); a("s_and_b32 s80, s80, 7")
        else:
            a("s_lshl_b32 s80, s42, 1"); a("s_add_u32 s80, s80, s41"); a("s_and_b32 s80, s80, 7")
    else:
        a("s_mov_b32 s80, s41" if rot else "s_mov_b32 s80, 0")
    a("s_lshl_b32 s84, s80, 15")
    a("s_lshl_b32 s87, s3, 12"); a(f"s_add_u32 s87, s87, {XB}")
    a("s_mov_b32 s86, s75")
    if opt.get("warm", 1):
        a("s_mov_b64 exec, 1")
        a(f"buffer_atomic_or v{VT}, v{VT}, s[64:67], s77 offen sc1")
        a(f"buffer_atomic_or v{VT}, v{VT}, s[64:67], s86 offen sc1")
        a("s_mov_b64 exec, -1")
    if xl == 2:
        a("s_and_b32 s51, s40, 6"); a("s_lshl_b32 s51, s51, 1"); a("s_add_u32 s51, s51, 4")
        a("v_min_u32 v125, 1, v0"); a("v_mul_u32_u24 v125, s51, v125")
        a("s_getreg_b32 s58, hwreg(HW_REG_XCC_ID, 0, 3)")
        a("s_lshl_b32 s58, s58, 2")
        a("s_or_b32 s52, s3, s76")
        a("s_cbranch_scc1 L_nocen")
        a("s_lshl_b32 s52, 1, s58")
        a("v_mov_b32 v124, s52")
        a("s_mov_b64 exec, 2")
        a("buffer_atomic_add v124, v125, s[68:71], s72 offen sc1")
        a("s_mov_b64 exec, -1")
        a.label("L_nocen")
    a("s_mov_b32 s56, 0")
    if "al" in opt:
        a(".p2align 6")
        for _ in range(opt["al"]): a("s_nop 0")
    a.label("L_loop")
    emit(body(0, "dma"))
    emit(body(1, "dma"))
    a("s_cmp_lt_u32 s56, 3")
    a("s_cbranch_scc1 L_loop")
    if xl == 2:
        a("s_mov_b32 s93, 0x40000")
        a("s_waitcnt vmcnt(8)")
        a.label("L_cen")
        a(f"v_readlane_b32 s73, v{VCNT}, 0")
        a(f"v_readlane_b32 s59, v{VCNT}, 1")
        a("s_mul_i32 s57, s59, 0x11111111")
        a("s_lshr_b32 s57, s57, 28")
        a("s_cmp_eq_u32 s73, 0")
        a("s_cselect_b32 s57, 0, s57")
        a("s_cmp_eq_u32 s57, 8")
        a("s_cbranch_scc1 L_cenok")
        a(f"buffer_load_dword v{VCNT}, v125, s[68:71], s72 offen sc1")
        a("s_sub_u32 s93, s93, 1")
        a("s_waitcnt vmcnt(0)")
        a("s_cbranch_scc0 L_cen")
        a.label("L_cenok")
        a("s_lshl_b32 s57, 8, s58")
        a("s_cmp_eq_u32 s59, s57")
        if opt.get("forceslow"): a("s_cmp_eq_u32 0, 1")
        a("s_cselect_b32 s46, 0, 0x40000000")
        a("s_cselect_b32 s47, 0x40000000, 0")
    emit(body(0, "wo"))
    emit(fs())
    mf = pv(0, (1, 2, 3, 0))
    G = [[] for _ in range(8)]
    VD = opt.get("vg", [32])[-1] >= 32
    G[0] += ([vreads(1)[15]] if VD else []) + [ex(0, 15), ad(0, 14)]
    G[1] += [ad(0, 15), cv(0, 7)]
    sm = []
    for r in range(16):
        sm.append(ex(1, r))
        if r >= 1: sm.append(ad(1, r-1))
        if r >= 2 and r % 2 == 0: sm.append(cv(1, (r-2)//2))
    tail_b = [ad(1, 15), cv(1, 7)]
    n1 = opt.get("n1", 28)
    wl = wnext(wpos["f1"])
    g2 = spread(8, [(1, 8, sm[:n1]), (1, 8, wl)])
    for i in range(8): G[i] += g2[i]
    emit(merge(mf, G, {0: [f"s_waitcnt lgkmcnt({7 if VD else 8})"], 1: [msum(0, 0)] if MSUM else [], 4: ["s_waitcnt lgkmcnt(0)"], 5: [msum(0, 1)] if MSUM else []}))
    def pack(qb, j): return [f"v_cvt_pk_bf16_f32 v{Oi(qb,j)+i}, v{Oi(qb,j)+2*i}, v{Oi(qb,j)+2*i+1}" for i in range(8)]
    def send(qb, j): return [f"ds_write_b128 v12, v[{Oi(qb,j)+4*sp}:{Oi(qb,j)+4*sp+3}] offset:{PART + ((j-1)*4 + qb*2 + sp)*1024}" for sp in range(2)]
    mf = pv(1, (1, 2, 3, 0))
    lst = (["v_add_f32 v96, v96, v97", "v_add_f32 v97, v124, v125", "s_nop 1"] if PK else []) + [f"v_permlane32_swap_b32 v{L_[0]}, v{L_[1]}", "s_nop 0", f"v_add_f32 v{L_[0]}, v{L_[0]}, v{L_[1]}", f"ds_write_b32 v14, v{L_[0]}"]
    pa = []
    for j in (1, 2, 3): pa += pack(0, j) + send(0, j)
    if MSUM:
        lst = ["s_mov_b64 exec, 0xffff"] + [f"ds_write_b32 v14, a{112+k} offset:{256*k}" for k in range(4)] + ["s_mov_b64 exec, -1"]
    G = spread(8, [(0, 2, sm[n1:] + ["s_nop 0"] + tail_b), (opt.get("pa0", 2), opt.get("pa1", 7), pa), ((6, 7, lst) if MSUM else (4, 5, lst)), (2, 8, wnext(wpos["f2"])), (7, 8, pack(1, 1) + (pack(1, 2) if opt.get("hp2") else []))])
    emit(merge(mf, G, {0: [msum(1, 0)], 3: [msum(1, 1)]} if MSUM else None))
    a("s_waitcnt lgkmcnt(0)")
    emit(fs())
    a("s_barrier")
    def rb(qb, j, sp): return 16 + ((qb*3 + j-1)*2 + sp)*4
    def prd(qb): return [f"ds_read_b128 v[{rb(qb,j,sp)}:{rb(qb,j,sp)+3}], v{100+j} offset:{PART + ((j-1)*4 + qb*2 + sp)*1024}" for j in range(1, 4) for sp in range(2)]
    def red(qb): return [mf32(O_(qb, 0), R("v", ID[sp], 4), R("v", rb(qb,j,sp), 4), O_(qb, 0)) for j in range(1, 4) for sp in range(2)]
    emit(prd(0))
    a(f"ds_read_b128 v[64:67], v{VMX} offset:1024")
    a(f"ds_read_b128 v[68:71], v{VMX} offset:1536")
    emit(send(1, 1) + ([] if opt.get("hp2") else pack(1, 2)) + send(1, 2))
    lsum = ["v_add_f32 v64, v64, v65", "v_add_f32 v66, v66, v67", "v_add_f32 v68, v68, v69", "v_add_f32 v70, v70, v71",
            "v_add_f32 v64, v64, v66", "v_add_f32 v68, v68, v70", "v_add_f32 v73, v64, v68",
            "v_cmp_nlt_f32 vcc, v73, s53", "v_rcp_f32 v64, v64", "v_rcp_f32 v68, v68"]
    chk = ["s_cmp_eq_u32 s76, 0", "s_cselect_b64 s[94:95], vcc, 0", "s_cmp_lg_u64 s[94:95], 0", "s_cbranch_scc1 L_fallback"]
    nb = opt.get("nb", 4)
    G = spread(6, [(0, 2, pack(1, 3) + send(1, 3)), (2, 4, lsum), (4, 6, wnext(wpos["f4"]))])
    G[nb - 1] += ["s_waitcnt lgkmcnt(0)", "s_barrier"] + prd(1)
    emit(merge(red(0), G, {0: ["s_waitcnt lgkmcnt(4)"]}))
    emit(chk)
    def fin(qb):
        o = Oi(qb, 0); g = 64 + 4*qb
        out = [f"v_pk_mul_f32 v[{o+r}:{o+r+1}], v[{o+r}:{o+r+1}], v[{g}:{g+1}] op_sel_hi:[1,0]" for r in range(0, 16, 2)]
        out += pack(qb, 0)
        out += [f"buffer_store_dwordx4 v[{o+4*sp}:{o+4*sp+3}], v{VL16}, s[64:67], {'s52' if qb else 's51'} offen offset:{sp*1024} sc1" for sp in range(2)]
        if xl == 2:
            out += [f"buffer_store_dwordx4 v[{o+4*sp}:{o+4*sp+3}], v{VL16}, s[64:67], {'s45' if qb else 's44'} offen offset:{sp*1024} {opt.get('fst', 'nt')}" for sp in range(2)]
        return out
    f0_ = [f"v_mul_f32 v{Oi(0,0)+r}, v64, v{Oi(0,0)+r}" for r in range(16)] + fin(0)[8:]
    emit(merge(red(1), spread(6, [(1, 6, f0_)]), {0: ["s_waitcnt lgkmcnt(4)"], 2: ["s_waitcnt lgkmcnt(0)"]}))
    a("s_sub_u32 s88, s87, s49")
    a(f"v_add_u32 v116, s88, v{VWA}"); a(f"v_add_u32 v117, s88, v{VWB}")
    a("v_and_b32 v14, 1, v0"); a("v_sub_u32 v14, 0, v14")
    a("v_and_b32 v12, 15, v0"); a("v_lshlrev_b32 v12, 2, v12")
    emit(fin(1))
    emit(fs())
    npre = wcnt[0]
    if xl != 2:
        a("s_mov_b32 s93, 0x40000")
        a.label("L_tag")
        a("s_cmp_lg_u32 s73, 0")
        a("s_cbranch_scc1 L_tagok")
        a(f"buffer_load_dword v{VCNT}, v{VT}, s[68:71], s72 offen sc1")
        a("s_waitcnt vmcnt(0)")
        a(f"v_readfirstlane_b32 s73, v{VCNT}")
        a("s_sub_u32 s93, s93, 1")
        a("s_cbranch_scc0 L_tag")
        a.label("L_tagok")
    la = opt.get("late_a", 2)
    if opt.get("noack"):
        a("v_xor_b32 v105, s73, v14")
        a("s_mov_b64 exec, 3")
        a(f"buffer_atomic_swap v105, v12, s[64:67], s77 offen sc1")
        a("s_mov_b64 exec, -1")
    emit(wnext(la))
    a(f"s_waitcnt vmcnt({(5 if opt.get('noack') else 4) + 4*la})")
    for g in range(min(npre, 2)): emit(wo_reads(g))
    a("v_xor_b32 v14, s73, v14")
    a("s_lshl_b32 s51, s41, 5"); a("s_add_u32 s51, s51, s78"); a("s_lshl_b32 s51, s51, 5"); a(f"s_add_u32 s55, s51, {FL_OFF}")
    a("s_lshl_b32 s51, s41, 9"); a("s_lshl_b32 s52, s78, 3"); a("s_add_u32 s51, s51, s52"); a("s_lshl_b32 s51, s51, 10")
    a("s_add_u32 s32, s18, s51"); a("s_addc_u32 s33, s19, 0"); a("s_and_b32 s33, s33, 0xffff"); a("s_mov_b32 s34, 0x44000")
    a("s_and_b32 s52, s40, 4"); a("s_lshl_b32 s52, s52, 16")
    a(f"v_add_u32 v104, s52, v{VL16}")
    a(f"v_xor_b32 v105, 0x40000, v104")
    def pollops():
        o = [f"buffer_atomic_or v106, v12, s[64:67], {'s59' if xl == 2 else 's55'} offen sc0 sc1"]
        if xl == 2: o.append("buffer_load_dword v107, v12, s[64:67], s55 offen sc1")
        return o
    a("v_mov_b32 v106, 0")
    if xl == 2:
        a("s_add_u32 s59, s55, s47"); a("s_add_u32 s55, s55, s46"); a("s_add_u32 s77, s77, s47")
    if not opt.get("noack"):
        a(f"s_waitcnt vmcnt({4*la})")
        a("s_mov_b64 exec, 3")
        a(f"buffer_atomic_swap v14, v12, s[64:67], s77 offen sc1")
    a("s_mov_b64 exec, 0xffff")
    emit(pollops())
    a("s_mov_b64 exec, -1")
    emit(fs(True))
    nrest = min(8 - wcnt[0], opt.get("lb", 8))
    if wcnt[0] + nrest > 6: a("s_waitcnt lgkmcnt(0)")
    emit(wnext(nrest))
    for g in range(2, npre): emit(wo_reads(g))
    a("s_mov_b32 s93, 0x40000")
    a(f"s_waitcnt vmcnt({4*nrest})")
    for g in range(npre, npre + la): emit(wo_reads(g))
    a("s_mov_b64 exec, 0xffff")
    pp = opt.get("pp", 0)
    if not pp:
        a.label("L_poll")
        if xl == 2: a("v_or_b32 v106, v106, v107")
        a("v_cmp_ne_u32 vcc, v14, v106")
        a("s_cbranch_vccz L_pollend")
        a("v_mov_b32 v106, 0")
        emit(pollops())
        a("s_sub_u32 s93, s93, 1")
        a("s_waitcnt vmcnt(0)")
        a("s_cbranch_scc0 L_poll")
    else:
        pd = opt.get("pd", 2)
        regs = [106, 107, 108, 109][:pd]
        a("v_cmp_ne_u32 vcc, v14, v106")
        a("s_cbranch_vccz L_pollend")
        for x in regs: a(f"v_mov_b32 v{x}, 0")
        for x in regs[:-1]:
            a(f"buffer_atomic_or v{x}, v12, s[64:67], s55 offen sc0 sc1")
            a(f"s_sleep {pp}")
        a.label("L_poll")
        for i_ in range(pd):
            x = regs[(i_ - 1) % pd]; y = regs[i_]
            a(f"buffer_atomic_or v{x}, v12, s[64:67], s55 offen sc0 sc1")
            a(f"s_waitcnt vmcnt({pd - 1})")
            a(f"v_cmp_ne_u32 vcc, v14, v{y}")
            a("s_cbranch_vccz L_pollend")
            a(f"v_mov_b32 v{y}, 0")
        a("s_sub_u32 s93, s93, 1")
        a("s_cbranch_scc0 L_poll")
    a.label("L_pollend")
    a("s_mov_b64 exec, -1")
    emit(fs(True))
    a("s_lshl_b32 s85, s80, 11")
    def oreg(i): return 128 + 4*i
    def oload(i):
        q = 1 - i // 16; s_ = i % 16
        o = [f"buffer_load_dwordx4 v[{oreg(i)}:{oreg(i)+3}], v{104+q}, s[32:35], s85 offen offset:{1024*(s_%2)} sc1"]
        if s_ % 2 == 1: o += ["s_add_u32 s85, s85, 2048", "s_and_b32 s85, s85, 0x3fff"]
        return o
    D = opt.get("odepth", 10)
    D0 = opt.get("d0", 6)
    nl2 = 8 - wcnt[0]
    late_reads = []; late2 = []
    for g in range(npre + la, wcnt[0]): late_reads += wo_reads(g)
    for g in range(wcnt[0], 8): late2 += wo_reads(g)
    vm0 = []
    for i in range(D):
        emit(oload(i)); vm0.append(("ld", i))
        if i == D0 - 1 and nl2:
            a("s_waitcnt lgkmcnt(0)")
            emit(wnext(nl2)); vm0 += [("w", 0)] * (4*nl2)
    def acc(j): return R("v", 16 + 16*j, 16)
    def omf(j, s_):
        i = (0 if j >> 1 else 16) + s_
        return mf32(acc(j), R("a", (s_*2 + (j & 1))*4, 4), R("v", oreg(i), 4), "0" if s_ == 0 else acc(j))
    NL = opt.get("nlag", 8)
    sched = []
    for s_ in range(16): sched += [(omf(3, s_), s_), (omf(2, s_), s_)]
    for s_ in range(16):
        sched.append((omf(1, s_), 16 + s_))
        if s_ < 16 - NL: sched.append((omf(0, s_), 16 + s_))
    nfirst = len(sched)
    for s_ in range(16 - NL, 16): sched.append((omf(0, s_), 16 + s_))
    misc = [f"v_add_u32 v12, s49, v{VL16}"] + [f"v_xor_b32 v{100+j}, {j << 15}, v12" for j in range(1, 4)]
    misc += ["v_mov_b32 v80, 0xff", "s_lshr_b32 s81, s73, 8", "s_lshr_b32 s82, s73, 16", "s_lshr_b32 s83, s73, 24"]
    for j in range(1, 4):
        misc += [f"s_xor_b32 s51, s2, {2*j}", "s_mul_i32 s51, s51, 12288", f"s_add_u32 s{93+j}, s51, {X_OFF + (j-1)*4096}"]
    misc += ["s_mul_i32 s51, s2, 12288", f"s_add_u32 s97, s51, {X_OFF}", "s_add_u32 s98, s97, 4096", "s_add_u32 s99, s97, 8192",
             "s_lshl_b32 s51, s3, 10", f"v_add_u32 v81, s51, v{VL16}",
             "s_mov_b32 s28, s14", "s_and_b32 s29, s15, 0xffff", "s_mov_b32 s30, 0x80000", "s_mov_b32 s31, 0x20000",
             "v_and_b32 v82, 31, v0", "v_lshlrev_b32 v82, 10, v82", "v_lshrrev_b32 v83, 5, v0", "v_lshl_add_u32 v82, v83, 3, v82",
             "s_lshl_b32 s50, s41, 16", "s_and_b32 s51, s40, 4", "s_lshl_b32 s51, s51, 13", "s_add_u32 s50, s50, s51",
             "s_lshl_b32 s51, s79, 7", "s_add_u32 s50, s50, s51", "s_and_b32 s51, s40, 2", "s_lshl_b32 s51, s51, 5", "s_add_u32 s50, s50, s51",
             "s_lshl_b32 s51, s3, 4", "s_add_u32 s50, s50, s51",
             "v_mov_b32 v84, 0x0c0c0400", "v_mov_b32 v85, 0x05040100",
             "s_and_b32 s52, s2, 6", "s_lshl_b32 s52, s52, 1", "s_add_u32 s88, s86, s52",
             "v_add_u32 v86, 1, v0", "v_lshlrev_b32 v86, 2, v86", "v_xor_b32 v86, s52, v86",
             "v_cmp_eq_u32 vcc, 0, v0", "v_mov_b32 v87, s73", "v_add_u32 v88, 16, v86", "v_cndmask_b32 v86, v86, v88, vcc"]
    CB = 0
    def wr(j): return [f"ds_write_b128 v12, v[{16+16*j+4*k}:{19+16*j+4*k}] offset:{CB + (j*3 + k-1)*1024}" for k in range(1, 4)]
    def rdd(j): return [f"ds_read_b128 v[{16+16*j+4*k}:{19+16*j+4*k}], v{100+k} offset:{CB + (j*3 + k-1)*1024}" for k in range(1, 4)]
    tg = ["s73", "s81", "s82", "s83"]
    def summ(j, pk):
        b = 16 + 16*j; out = []
        if pk:
            for p in (0, 2):
                out += [f"v_pk_add_f32 v[{b+p}:{b+p+1}], v[{b+p}:{b+p+1}], v[{b+4+p}:{b+5+p}]", f"v_pk_add_f32 v[{b+8+p}:{b+9+p}], v[{b+8+p}:{b+9+p}], v[{b+12+p}:{b+13+p}]"]
            for p in (0, 2):
                out += [f"v_pk_add_f32 v[{b+p}:{b+p+1}], v[{b+p}:{b+p+1}], v[{b+8+p}:{b+9+p}]"]
        else:
            for i in range(4): out += [f"v_add_f32 v{b+i}, v{b+i}, v{b+4+i}", f"v_add_f32 v{b+8+i}, v{b+8+i}, v{b+12+i}"]
            for i in range(4): out += [f"v_add_f32 v{b+i}, v{b+i}, v{b+8+i}"]
        if j:
            out += [f"v_bfi_b32 v{b+i}, v80, {tg[i]}, v{b+i}" for i in range(4)]
            out += [f"buffer_store_dwordx4 v[{b}:{b+3}], v81, s[64:67], s{93+j} offen sc1"]
        return out
    def hint(off):
        return ["s_mov_b64 exec, 1", f"buffer_atomic_swap v87, v{VT}, s[64:67], s88 offen offset:{off} sc1", "s_mov_b64 exec, -1"]
    n = len(sched)
    G = spread(n, [(0, 8, late_reads), (2, 30, misc), (34, 38, wr(3) + wr(2)),
                   (43, 50, ["s_waitcnt lgkmcnt(0)"] + summ(3, False) + summ(2, False)), (nfirst + 1, nfirst + 2, wr(1))])
    G[12].append("s_waitcnt lgkmcnt(0)")
    if nl2:
        g2r = spread(n, [(2*D0 + 1, 22, late2)])
        for i in range(n): G[i] += g2r[i]
        G[23].append("s_waitcnt lgkmcnt(0)")
    G[40] += ["s_waitcnt lgkmcnt(0)", "s_barrier"] + rdd(3) + rdd(2)
    G[50] += hint(0)
    g1 = min(n - 1, nfirst + 3)
    G[g1] += ["s_waitcnt lgkmcnt(0)", "s_barrier"] + rdd(1)
    g2_ = min(n - 1, nfirst + 5)
    s1 = ["s_waitcnt lgkmcnt(0)"] + summ(1, False)
    gg = spread(n, [(g2_, n, s1)])
    for i in range(n): G[i] += gg[i]
    G[n-1] += hint(16)
    vmq = list(vm0)
    issued = D; seen = -1
    for i, (m, need) in enumerate(sched):
        newload = False
        if need > seen:
            a(f"s_waitcnt vmcnt({len(vmq) - 1 - vmq.index(('ld', need))})" + (" lgkmcnt(0)" if i == 0 else ""))
            seen = need; newload = True
        a(m)
        if newload and issued < 32:
            emit(oload(issued)); vmq.append(("ld", issued)); issued += 1
        for x in G[i]:
            if x.startswith("buffer_"): vmq.append(("st", 0))
        emit(G[i])
    emit(fs(True))
    a("v_mov_b32 v88, 0")
    a("s_mov_b64 exec, 7")
    a(f"buffer_atomic_or v88, v86, s[64:67], s86 offen sc0 sc1")
    a("s_mov_b64 exec, -1")
    a("s_nop 3")
    emit(wr(0))
    a("s_waitcnt lgkmcnt(0)"); a("s_barrier")
    emit(rdd(0))
    a("s_waitcnt lgkmcnt(0)")
    emit(summ(0, True))
    emit(fs(True))
    a("s_mov_b32 s93, 0x40000")
    a("s_mov_b64 exec, 7")
    if not opt.get("hp"):
        a("s_waitcnt vmcnt(0)")
        a.label("L_h")
        a("v_cmp_ne_u32 vcc, v87, v88")
        a("s_cbranch_vccz L_hend")
        a("v_mov_b32 v88, 0")
        a(f"buffer_atomic_or v88, v86, s[64:67], s86 offen sc0 sc1")
        a("s_sub_u32 s93, s93, 1")
        a("s_waitcnt vmcnt(0)")
        a("s_cbranch_scc0 L_h")
    else:
        a("v_mov_b32 v89, 0")
        a.label("L_h")
        for x, y in ((89, 88), (88, 89)):
            a(f"buffer_atomic_or v{x}, v86, s[64:67], s86 offen sc0 sc1")
            a("s_waitcnt vmcnt(1)")
            a(f"v_cmp_ne_u32 vcc, v87, v{y}")
            a("s_cbranch_vccz L_hend")
            a(f"v_mov_b32 v{y}, 0")
        a("s_sub_u32 s93, s93, 1")
        a("s_cbranch_scc0 L_h")
    a.label("L_hend")
    a("s_mov_b64 exec, -1")
    emit(fs(True))
    a("s_mov_b32 s93, 0x40000")
    a.label("L_x")
    for j in range(3):
        a(f"buffer_load_dwordx4 v[{32+4*j}:{35+4*j}], v81, s[64:67], s{97+j} offen sc1")
    a("s_waitcnt vmcnt(0)")
    for j in range(3):
        b = 32 + 4*j
        a(f"v_perm_b32 v{44+2*j}, v{b+1}, v{b}, v84")
        a(f"v_perm_b32 v{45+2*j}, v{b+3}, v{b+2}, v84")
    for j in range(3):
        a(f"v_perm_b32 v{44+2*j}, v{45+2*j}, v{44+2*j}, v85")
    for j in range(3):
        a(f"v_xor_b32 v{44+2*j}, s73, v{44+2*j}")
    a("v_or3_b32 v44, v44, v46, v48")
    a("v_cmp_ne_u32 vcc, 0, v44")
    a("s_cbranch_vccz L_xend")
    a("s_sub_u32 s93, s93, 1")
    a("s_cbranch_scc0 L_x")
    a.label("L_xend")
    emit(fs(True))
    for i in range(12): a(f"v_and_b32 v{32+i}, 0xffffff00, v{32+i}")
    for p in range(2):
        a(f"v_pk_add_f32 v[{16+2*p}:{17+2*p}], v[{16+2*p}:{17+2*p}], v[{32+2*p}:{33+2*p}]")
        a(f"v_pk_add_f32 v[{36+2*p}:{37+2*p}], v[{36+2*p}:{37+2*p}], v[{40+2*p}:{41+2*p}]")
    for p in range(2):
        a(f"v_pk_add_f32 v[{16+2*p}:{17+2*p}], v[{16+2*p}:{17+2*p}], v[{36+2*p}:{37+2*p}]")
    a("v_cvt_pk_bf16_f32 v16, v16, v17")
    a("v_cvt_pk_bf16_f32 v17, v18, v19")
    a("buffer_store_dwordx2 v[16:17], v82, s[28:31], s50 offen")
    if fine:
        a("s_waitcnt vmcnt(0)")
        emit(fs(True, True)); emit(fs(True, True))
        a("s_lshl_b32 s51, s2, 2"); a("s_add_u32 s51, s51, s3"); a("s_lshl_b32 s51, s51, 8"); a(f"s_add_u32 s51, s51, {ST_OFF}")
        a("v_lshlrev_b32 v6, 2, v0")
        a("buffer_store_dword v127, v6, s[64:67], s51 offen")
    a.label("L_end")
    a("s_endpgm")

    a.label("L_fallback")
    a("s_mov_b32 s76, 1")
    a("s_waitcnt vmcnt(0) lgkmcnt(0)")
    a("s_barrier")
    for s in range(1, 4):
        a(f"v_xor_b32 v{VKR+s}, {32*s}, v{VKR}")
    for qb in range(2):
        for s_ in range(8):
            a(f"ds_write_b128 v{VQR}, {Q_(qb,s_)} offset:{(qb*8+s_)*1024}")
    a(f"v_subrev_u32 v{VKD}, 4096, v{VKD+4}")
    emit(kd_setup())
    a("s_mov_b32 s54, 0")
    a.label("L_fb_loop")
    emit(dma_k(0))
    a("s_waitcnt vmcnt(0)")
    emit(kreads(0))
    a("s_waitcnt lgkmcnt(0)")
    emit(qk(0, True) + qk(1, True))
    a("s_nop 15")
    for qb in range(2):
        for r in range(0, 16, 2):
            a(f"v_max3_f32 v{MS[qb]}, v{MS[qb]}, v{S0[qb]+r}, v{S0[qb]+r+1}")
    a(f"s_add_u32 s54, s54, {1 << TSH}")
    a(f"s_cmp_lt_u32 s54, {8 << TSH}")
    a("s_cbranch_scc1 L_fb_loop")
    a("s_nop 1")
    a(f"v_permlane32_swap_b32 v{MS[0]}, v{MS[1]}")
    a("s_lshl_b32 s51, s3, 2"); a(f"s_add_u32 s51, s51, {MISC+2048}")
    a(f"v_add_u32 v12, s51, v{VL16}")
    a(f"v_max_f32 v124, v{MS[0]}, v{MS[1]}")
    a("ds_write_b32 v12, v124")
    a("s_waitcnt lgkmcnt(0)"); a("s_barrier")
    a(f"ds_read_b128 v[16:19], v{VMX} offset:2048")
    a(f"ds_read_b128 v[20:23], v{VMX} offset:2560")
    a("s_waitcnt lgkmcnt(0)")
    for qb in range(2):
        a(f"v_max_f32 v{MS[qb]}, v{16+4*qb}, v{17+4*qb}")
        a(f"v_max3_f32 v{MS[qb]}, v{18+4*qb}, v{19+4*qb}, v{MS[qb]}")
    a("s_mov_b64 s[60:61], s[62:63]")
    emit(nexttile() + dma_k(0) + dma_v(0))
    if EB: emit(nexttile() + dma_k(1)[:5*EB])
    for k in range(4): a(f"v_mov_b32 v{VZ+k}, 0")
    a("s_nop 1")
    emit(zmf)
    a("s_waitcnt vmcnt(0)")
    a("s_branch L_att")
    return a.text()

def build(opt, fname):
    k = NAME + "_kernel"
    hdr = f"""; GQA block, one fused kernel: q-projection + attention + output projection
; @launch grid=(256,1,1) block=(256,1,1) lds=163840
.amdgcn_target "amdgcn-amd-amdhsa--gfx950"
"""
    txt = hdr + kernel_header(k) + gen(opt)
    txt += '.section .rodata,"a"\n.p2align 6\n' + kernel_desc(k, 512, 102, 256)
    open(fname, "w").write(txt)

L = [order(range(8))]*4
P = [order([0,1,2,3,4,5,6,7]), order([4,5,6,7,0,1,2,3])]*2
K6 = [order([0,1,2,3,4,5,6,7]), order([6,7,2,3,4,5,0,1])]*2
K5 = [order([0,1,2,3,4,5,6,7]), order([5,6,7,3,4,0,1,2])]*2
if __name__ == "__main__":
    B = {"orders": K5}
    B = dict(B, rot=2)
    W = lambda i6, f1, f2, f4: {"i6": i6, "f1": f1, "f2": f2, "f4": f4}
    B = dict(B, nb=6)
    K7 = [order([0,1,2,3,4,5,6,7]), order([7,1,2,3,4,5,6,0])]*2
    K6s = [order([0,1,2,3,4,5,6,7]), order([6,1,2,7,4,5,0,3])]*2
    K6l = [order([0,1,2,3,4,5,6,7]), order([0,1,2,3,6,7,4,5])]*2
    K5s = [order([0,1,2,3,4,5,6,7]), order([5,1,6,3,7,0,2,4])]*2
    R1 = [order(x) for x in ([0,2,1,3,4,6,5,7], [0,1,3,2,4,5,7,6], [1,0,2,4,3,5,6,7], [1,0,2,3,5,4,6,7])]
    R2 = [order(x) for x in ([0,2,1,6,3,4,5,7], [0,1,4,2,3,5,6,7], [1,3,0,7,2,4,5,6], [1,0,5,2,3,4,6,7])]
    R3 = [order(x) for x in ([0,2,1,3,6,4,5,7], [0,1,4,2,3,5,6,7], [1,3,0,2,4,7,5,6], [1,0,2,5,3,4,6,7])]
    R4 = [order(x) for x in ([0,3,1,2,4,7,5,6], [0,1,4,2,3,5,6,7], [1,0,2,5,3,4,6,7], [2,0,1,3,6,4,5,7])]
    R5 = [order(x) for x in ([0,4,1,2,3,5,6,7], [1,0,5,2,3,4,6,7], [2,0,1,6,3,4,5,7], [3,0,1,2,7,4,5,6])]
    R6 = [order(x) for x in ([0,1,4,2,3,5,6,7], [1,0,2,5,3,4,6,7], [2,0,1,3,6,4,5,7], [3,0,1,2,4,7,5,6])]
    B = dict(B, orders=R1)
    W = lambda i6, f1, f2, f4: {"i6": i6, "f1": f1, "f2": f2, "f4": f4}
    A0, A1, A2, A3 = R1
    R8 = [order(x) for x in ([0,2,1,3,6,4,5,7], [0,1,3,2,4,7,5,6], [1,0,2,4,3,5,6,7], [1,0,2,3,5,4,6,7])]
    R9 = [order(x) for x in ([0,2,1,3,4,6,5,7], [0,1,3,2,4,7,5,6], [1,0,2,4,3,5,6,7], [1,0,2,3,5,4,6,7])]
    P1 = [A0, A2, A1, A3]
    W5 = W([(1, 5), (24, 28), (28, 32)], 0, 0, 1)
    C = dict(B, orders=P1, wpos=W5, late_a=0, nb=4, nlag=6, pp=2)
    W0 = W([(2, 10), (12, 20), (22, 30)], 0, 0, 1)
    D_ = dict(C, wpos=W0, hp=1, pp=0, odepth=12)
    D_ = dict(D_, orders=R1)
    Wm = W([(8, 14), (16, 22), (24, 30)], 0, 0, 1)
    Q_3 = dict(D_, qr=3, orders=R3)
    R12 = [order(x) for x in ([0,2,1,3,6,5,7,4], [0,1,4,2,3,6,5,7], [1,3,0,4,2,7,6,5], [1,0,2,5,4,3,7,6])]
    Q_4 = dict(Q_3, qm=1)
    KV1 = {5: ["K0a", "K0b"], 6: ["V0a"], 7: ["V0b"]}
    M = dict(Q_4, msum=1, n1=33)
    F_ = dict(M, n1=38, pa0=0, pa1=6, hp2=1)
    K2 = [1, 1, 2, 2, 3, 3, 4, 4]; K3 = [1, 1, 3, 3, 5, 5, 6, 7]; K4 = [1, 2, 2, 3, 4, 4, 5, 6]
    V2 = [17, 18, 19, 19, 20, 21, 21, 22, 23, 23, 24, 25, 26, 27, 27, 28]
    V3 = [17, 18, 19, 20, 21, 22, 23, 23, 24, 25, 26, 27, 27, 28, 29, 30]
    K5_ = [3, 3, 4, 4, 5, 5, 6, 6]; K6_ = [2, 2, 3, 3, 4, 4, 5, 5]; K7_ = [4, 4, 5, 5, 6, 7, 8, 9]
    V4 = [21, 21, 22, 23, 23, 24, 25, 25, 26, 27, 27, 28, 29, 29, 30, 31]
    V5 = [23, 23, 24, 24, 25, 25, 26, 26, 27, 27, 28, 29, 29, 30, 31, 32]
    V6 = [19, 20, 21, 21, 22, 23, 23, 24, 25, 26, 27, 28, 29, 30, 31, 32]
    G_ = dict(F_, kg=K2, lw=2)
    R7 = [order(x) for x in ([0,1,3,2,4,5,7,6], [0,1,2,4,3,5,6,7], [0,2,1,3,5,4,6,7], [0,2,1,3,4,6,5,7])]
    R13 = [order(x) for x in ([0,1,2,3,4,7,5,6], [0,1,4,2,3,5,6,7], [0,2,1,5,3,4,6,7], [0,3,1,2,6,4,5,7])]
    R14 = [order(x) for x in ([0,1,2,4,3,5,6,7], [0,1,2,3,5,4,6,7], [0,1,3,2,4,6,5,7], [0,1,3,2,4,5,7,6])]
    R15 = [order(x) for x in ([0,1,3,2,4,5,6,7], [0,1,2,5,3,4,6,7], [0,2,4,1,3,7,5,6], [0,2,1,3,6,4,5,7])]
    H_ = dict(G_, orders=R7)
    H_ = dict(H_, rot=6)
    kvs = {"kv2": {4: ["K0a"], 5: ["K0b"], 6: ["V0a"], 7: ["V0b"]}, "kv3": {3: ["K0a"], 5: ["K0b"], 7: ["V0a"], 8: ["V0b"]},
           "kv4": {4: ["K0a"], 5: ["K0b"], 7: ["V0a"], 8: ["V0b"]}, "kv5": {3: ["K0a"], 5: ["K0b"], 6: ["V0a"], 7: ["V0b"]},
           "kv6": {2: ["K0a"], 5: ["K0b"], 6: ["V0a"], 7: ["V0b"]}, "kv7": {3: ["K0a", "K0b"], 5: ["V0a"], 6: ["V0b"]}, "kv8": {1: ["K0a"], 5: ["K0b"], 6: ["V0a"], 7: ["V0b"]}}
    V = {"h": H_}
    for k_, v_ in kvs.items(): V[k_] = dict(H_, kvq=v_)
    V["kv4r2"] = dict(H_, kvq=kvs["kv4"], rot=2)
    V["kv4R3"] = dict(H_, kvq=kvs["kv4"], rot=2, orders=R3)
    V["kv3R3"] = dict(H_, kvq=kvs["kv3"], rot=2, orders=R3)
    V["kv4R1"] = dict(H_, kvq=kvs["kv4"], rot=2, orders=R1)
    V["kv5e"] = dict(H_, kvq=kvs["kv5"], eb=1)
    V["kv7e"] = dict(H_, kvq=kvs["kv7"], eb=1)
    V["kv5r1"] = dict(H_, kvq=kvs["kv5"], orders=R1)
    for n, o in V.items():
        build(o, f"v38_{n}.s")
        build(dict(o, fine=3), f"v38_{n}_m.s")
```

```python
import sys, math, struct
from asmlib import *

C_SCALE = math.log2(math.e) / math.sqrt(128.0)
def f2u(f): return struct.unpack("<I", struct.pack("<f", f))[0]
def mf32(d, a, b, c): return f"v_mfma_f32_32x32x16_bf16 {d}, {a}, {b}, {c}"
def R(p, lo, n): return f"{p}[{lo}:{lo+n-1}]"

OB = 128
def Oi(qb, j): return OB + (qb*4+j)*16
def O_(qb, j): return R("v", Oi(qb, j), 16)
def Q_(qb, s): return R("a", 128 + (qb*8+s)*4, 4)
def Kf(s): return R("a", 192 + 4*s, 4)
def Vf(st, j): return R("a", 224 + (st*4+j)*4, 4)
def Vfh(st, j, u): return R("a", 224 + (st*4+j)*4 + 2*u, 2)
S0 = [16, 32]; NM = [48, 64]; P0 = [80, 88]; L_ = [96, 97]
VCNT = 98; VT = 99
VKR = 100; VVR = 108; VKD = 112; VVD = 120; MS = [122, 123]
ID = [2, 6]
VL16 = 13; VQR = 15; VMX = 10; VWA = 11; VWB = 1
VOD0 = 126
VXD = 48; VWD = 50; VXR = 54; VWR = 58; T = 68; VZ = 64
XB = 131072; QAREA = XB; MISC = XB + 16384
X_OFF = 0x400000; FL_OFF = 0x800000; ST_OFF = 0x810000
PART = 16384
LIMIT = 2.0 ** 40

def spread(n, fillers):
    gaps = [[] for _ in range(n)]
    for (g0, g1, lst) in fillers:
        lst = [x for x in lst if x is not None]
        k = max(1, len(lst))
        for i, x in enumerate(lst):
            gaps[g0 + (i * (g1 - g0)) // k].append(x)
    return gaps

def fix_m0(seq):
    out = []
    for i, x in enumerate(seq):
        out.append(x)
        if " m0," in x and i + 1 < len(seq) and seq[i+1].startswith("buffer_load"):
            out.append("s_nop 0")
    return out

def merge(mf, gaps, pre=None):
    s = []
    for i, m in enumerate(mf):
        if pre and i in pre: s += pre[i]
        s.append(m); s += gaps[i]
    return [x for x in s if x is not None]

def order(l):
    v = 0
    for i, t in enumerate(l): v |= t << (4*i)
    return v

def gen(opt):
    a = Asm()
    IL = opt.get("il", 0)
    MSUM = opt.get("msum", 0)
    TSH = 15 if IL else 13
    TM = hex(15 << TSH)
    fine = opt.get("fine")
    clk = "s_memtime" if fine == 2 else "s_memrealtime"
    def fs(sync=False, last=False):
        if not fine: return []
        if fine == 3 and not last: return []
        return (["s_waitcnt lgkmcnt(0)"] if sync else []) + ["s_mov_b32 s89, m0", "s_mov_b32 m0, s92", "s_add_u32 s92, s92, 1", "v_writelane_b32 v127, s90, m0", clk + " s[90:91]", "s_mov_b32 m0, s89"]
    LATEP = opt.get("late2", {})
    moved = {b for v in LATEP.values() for b in v}
    blocks = {}; saved = []
    def beg(name):
        if name in moved:
            saved.append(a.lines); a.lines = blocks.setdefault(name, [])
    def end(name):
        if name in moved: a.lines = saved.pop()
    def emit(l):
        for x in fix_m0(l): a(x)
    a("s_cmp_ge_u32 s2, 256")
    a("s_cbranch_scc1 L_end")
    a("s_load_dwordx8 s[4:11], s[0:1], 0")
    a("s_load_dwordx8 s[12:19], s[0:1], 32")
    a("s_memrealtime s[74:75]")
    if fine:
        a(clk + " s[90:91]"); a("s_mov_b32 s92, 0"); a("v_mov_b32 v127, 0"); a("s_mov_b32 m0, 0")
    a(f"v_lshrrev_b32 v{T}, 6, v0")
    a("v_and_b32 v0, 63, v0")
    a(f"v_readfirstlane_b32 s3, v{T}")
    xl = opt.get("xl", 0)
    if xl:
        a("s_and_b32 s40, s2, 6"); a("s_bfe_u32 s41, s2, 0x10005"); a("s_or_b32 s40, s40, s41")
        a("s_and_b32 s41, s2, 1"); a("s_lshl_b32 s41, s41, 2"); a("s_lshr_b32 s42, s2, 6"); a("s_or_b32 s41, s41, s42")
    else:
        a("s_and_b32 s40, s2, 7")
        a("s_lshr_b32 s41, s2, 5")
    a("s_bfe_u32 s42, s2, 0x20003")
    a("s_lshl_b32 s43, s40, 2")
    a("s_add_u32 s43, s43, s42")
    r4, c16, vp = T+1, T+2, T+4
    a(f"v_lshrrev_b32 v{r4}, 4, v0")
    a(f"v_and_b32 v{c16}, 15, v0")
    a(f"v_lshlrev_b32 v{vp}, 2, v{r4}")
    a(f"v_xor_b32 v{vp}, v{c16}, v{vp}")
    a(f"v_lshlrev_b32 v{vp}, 4, v{vp}")
    a(f"v_lshl_add_u32 v{VWD}, v{r4}, 13, v{vp}")
    for i in range(1, 4):
        a(f"v_add_u32 v{VWD+i}, {31744*i}, v{VWD}")
    a(f"v_lshrrev_b32 v{T+5}, 3, v0")
    a(f"v_and_b32 v{T+6}, 7, v0")
    a(f"v_xor_b32 v{T+7}, v{T+6}, v{r4}")
    a(f"v_lshlrev_b32 v{T+7}, 4, v{T+7}")
    a(f"v_lshl_add_u32 v{VXD}, v{T+5}, 10, v{T+7}")
    a(f"v_xor_b32 v{T+7}, 64, v{VXD}")
    a(f"v_add_u32 v{VXD+1}, {8192-1024}, v{T+7}")
    if xl:
        a("s_lshl_b32 s44, s41, 1"); a("s_add_u32 s44, s44, s43")
    elif opt.get("qr", 0) == 0:
        a("s_lshl_b32 s44, s42, 1"); a("s_add_u32 s44, s44, s41")
    elif opt["qr"] == 1:
        a("s_add_u32 s44, s42, s41"); a("s_lshl_b32 s44, s44, 1")
    elif opt["qr"] == 2:
        a("s_add_u32 s44, s42, s41"); a("s_lshl_b32 s44, s44, 2")
    elif opt["qr"] == 3:
        a("s_add_u32 s44, s42, s41"); a("s_lshl_b32 s44, s44, 2"); a("s_lshr_b64 s[44:45], 0x30630630630, s44") if False else None
        a("s_mul_i32 s45, s44, 22"); a("s_lshr_b32 s45, s45, 8"); a("s_mul_i32 s45, s45, 12"); a("s_sub_u32 s44, s44, s45"); a("s_lshr_b32 s44, s44, 2"); a("s_mul_i32 s44, s44, 3")
    elif opt["qr"] == 5:
        a("s_mov_b32 s44, 0")
    elif opt["qr"] == 6:
        a("s_add_u32 s44, s42, s41"); a("s_lshl_b32 s44, s44, 2")
        a("s_mul_i32 s45, s44, 22"); a("s_lshr_b32 s45, s45, 8"); a("s_mul_i32 s45, s45, 12"); a("s_sub_u32 s44, s44, s45"); a("s_lshr_b32 s44, s44, 2"); a("s_mul_i32 s44, s44, 3"); a("s_add_u32 s44, s44, s40")
    elif opt["qr"] == 4:
        a("s_add_u32 s44, s42, s41"); a("s_lshl_b32 s44, s44, 1"); a("s_add_u32 s44, s44, s40")
    QT = opt.get("qt")
    if QT:
        ncls = len(QT)
        if ncls == 8: a("s_lshl_b32 s44, s42, 1"); a("s_add_u32 s44, s44, s41"); a("s_and_b32 s44, s44, 7")
        else: a("s_add_u32 s44, s42, s41"); a(f"s_and_b32 s44, s44, {ncls-1}")
        a(f"s_mov_b32 s58, {hex(order(QT[0]))}")
        for c_ in range(1, ncls):
            a(f"s_cmp_eq_u32 s44, {c_}"); a(f"s_cselect_b32 s58, {hex(order(QT[c_]))}, s58")
    else:
        a("s_and_b32 s58, s44, 7")
    a("s_lshl_b32 s46, s3, 11"); a(f"s_add_u32 s46, s46, {XB}")
    a("s_lshl_b32 s47, s3, 12"); a("s_add_u32 s47, s47, 16384")
    a("s_lshl_b32 s49, s3, 15")
    a("s_lshl_b32 s44, s41, 16"); a("s_lshl_b32 s45, s3, 14"); a("s_add_u32 s44, s44, s45")
    a("s_lshl_b32 s48, s43, 8"); a("s_lshl_b32 s45, s3, 17"); a("s_add_u32 s48, s48, s45")
    a("s_sub_u32 s22, 0x80000, s44"); a("s_mov_b32 s23, 0x20000")
    a("s_sub_u32 s34, 0x400000, s48"); a("s_mov_b32 s35, 0x20000")
    a("s_waitcnt lgkmcnt(0)")
    a("s_add_u32 s20, s4, s44"); a("s_addc_u32 s21, s5, 0"); a("s_and_b32 s21, s21, 0xffff")
    a("s_add_u32 s32, s10, s48"); a("s_addc_u32 s33, s11, 0"); a("s_and_b32 s33, s33, 0xffff")

    def qdma(c):
        j = c % 4
        if QT:
            out = ["s_and_b32 s57, s58, 7", f"s_lshl_b32 s59, s57, 7", f"s_add_u32 m0, s46, {j*8192}", "s_lshl_b32 s57, s57, 19"]
            out += [f"buffer_load_dwordx4 v{VXD+i}, s[20:23], s59 offen offset:{1024*i} lds" for i in range(2)]
            out += [f"s_add_u32 m0, s47, {j*32768}", "s_lshr_b32 s58, s58, 4"]
            out += [f"buffer_load_dwordx4 v{VWD+i}, s[32:35], s57 offen offset:{1024*i} lds" for i in range(4)]
            return out
        out = [f"s_lshl_b32 s59, s58, 7", f"s_add_u32 m0, s46, {j*8192}", "s_lshl_b32 s57, s58, 19"]
        for i in range(2):
            out.append(f"buffer_load_dwordx4 v{VXD+i}, s[20:23], s59 offen offset:{1024*i} lds")
        out += [f"s_add_u32 m0, s47, {j*32768}", "s_add_u32 s58, s58, 1"]
        for i in range(4):
            out.append(f"buffer_load_dwordx4 v{VWD+i}, s[32:35], s57 offen offset:{1024*i} lds")
        out.append("s_and_b32 s58, s58, 7")
        return out
    def nexttile():
        return [f"s_and_b32 s54, s60, {TM}", "s_lshr_b64 s[60:61], s[60:61], 4"]
    def dma_k(slot):
        out = []
        for hh in range(2):
            out.append(f"s_add_u32 m0, s49, {slot*16384 + hh*4096}")
            for i in range(4):
                out.append(f"buffer_load_dwordx4 v{VKD+4*hh+i}, s[24:27], s54 offen offset:{1024*i} lds")
        return out
    def dma_v(slot):
        out = []
        for hh in range(2):
            out.append(f"s_add_u32 m0, s49, {slot*16384 + 8192 + hh*4096}")
            for i in range(4):
                out.append(f"buffer_load_dwordx4 v{VVD+hh}, s[28:31], s54 offen offset:{1024*i} lds")
        return out
    vm = []
    if opt.get("xfirst"):
        q0 = qdma(0); q1 = qdma(1)
        x1 = ["s_add_u32 s51, s58, 1", "s_and_b32 s51, s51, 7", "s_lshl_b32 s51, s51, 7", f"s_add_u32 m0, s46, 8192", "s_nop 0"] + \
             [f"buffer_load_dwordx4 v{VXD+i}, s[20:23], s51 offen offset:{1024*i} lds" for i in range(2)]
        emit(q0[:5] + x1 + q0[5:]); vm += ["c0"]*8
    else:
        emit(qdma(0)); vm += ["c0"]*6
    def kd_setup():
        out = [f"v_xor_b32 v{VKD+i}, {64*i}, v{VKD}" for i in range(1, 4)]
        return out
    a(f"v_xor_b32 v{T+3}, v{c16}, v{r4}"); a(f"v_lshlrev_b32 v{T+3}, 4, v{T+3}")
    a(f"v_lshl_add_u32 v{VKD}, v{r4}, 8, v{T+3}")
    emit(kd_setup())
    for i in range(4):
        a(f"v_add_u32 v{VKD+4+i}, 4096, v{VKD+i}")
    a(f"v_lshl_add_u32 v{VVD}, v{r4}, 8, v{vp}")
    a(f"v_add_u32 v{VVD+1}, 4096, v{VVD}")
    a(f"v_and_b32 v{T+7}, 16, v0"); a(f"v_lshrrev_b32 v{T+7}, 2, v{T+7}")
    a(f"v_xor_b32 v{T+7}, v{T+7}, v{T+6}"); a(f"v_lshlrev_b32 v{T+7}, 4, v{T+7}")
    a(f"v_lshl_add_u32 v{VOD0}, v{T+5}, 10, v{T+7}")
    orders = opt["orders"]
    a(f"s_mov_b32 s62, {hex(orders[0])}")
    for rr_ in range(1, 4):
        if orders[rr_] != orders[0]:
            a(f"s_cmp_eq_u32 s42, {rr_}"); a(f"s_cselect_b32 s62, {hex(orders[rr_])}, s62")
    if "orders2" in opt:
        o2 = opt["orders2"]
        a(f"s_mov_b32 s63, {hex(o2[0])}")
        for rr_ in range(1, 4):
            a(f"s_cmp_eq_u32 s42, {rr_}"); a(f"s_cselect_b32 s63, {hex(o2[rr_])}, s63")
        a("s_bitcmp1_b32 s41, 0"); a("s_cselect_b32 s62, s63, s62")
    tx = opt.get("tx", 0)
    if tx:
        if tx == 1: a("s_mov_b32 s63, s41")
        elif tx == 2: a("s_mov_b32 s63, s40")
        elif tx == 3: a("s_add_u32 s63, s40, s41")
        elif tx == 4: a("s_lshl_b32 s63, s3, 1")
        elif tx == 5: a("s_lshl_b32 s63, s3, 1"); a("s_add_u32 s63, s63, s40"); a("s_add_u32 s63, s63, s41")
        a("s_and_b32 s63, s63, 7"); a("s_mul_i32 s63, s63, 0x11111111"); a("s_xor_b32 s62, s62, s63")
    a("s_mov_b32 s63, 8")
    a(f"s_lshl_b64 s[62:63], s[62:63], {TSH}")
    a("s_mov_b64 s[60:61], s[62:63]")
    a("s_lshl_b32 s50, s41, 3"); a("s_add_u32 s50, s50, s40"); a(f"s_lshl_b32 s50, s50, {5 if IL else 2}"); a("s_add_u32 s50, s50, s3")
    a(f"s_lshl_b32 s50, s50, {13 if IL else 16}")
    a(f"s_mov_b32 s26, {hex(0x3a000 if IL else 0x10000)}"); a("s_mov_b32 s27, 0x20000")
    a(f"s_mov_b32 s30, {hex(0x3a000 if IL else 0x10000)}"); a("s_mov_b32 s31, 0x20000")
    a("s_add_u32 s24, s6, s50"); a("s_addc_u32 s25, s7, 0"); a("s_and_b32 s25, s25, 0xffff")
    a("s_add_u32 s28, s8, s50"); a("s_addc_u32 s29, s9, 0"); a("s_and_b32 s29, s29, 0xffff")
    srd(a, 64, 18, ST_OFF + (0x40000 if fine else 0))
    srd(a, 68, 16, 256)
    a(f"v_mov_b32 v{VT}, 0")
    a("s_lshl_b32 s72, s41, 5")
    a("s_or_b32 s51, s43, s3")
    a("s_cbranch_scc1 L_nolead")
    a("s_or_b32 s74, s74, 1")
    a(f"v_mov_b32 v{VCNT}, s74")
    a("s_mov_b64 exec, 1")
    a(f"buffer_store_dword v{VCNT}, v{VT}, s[68:71], s72 offen sc1")
    a("s_mov_b64 exec, -1")
    a.label("L_nolead")
    if opt.get("xfirst"):
        emit(q1[2:3] + q1[5:]); vm += ["c1"]*4
    else:
        emit(qdma(1)); vm += ["c1"]*6
    l31, hh_, rr, cc, dh = T+5, T+6, T+8, T+9, T+10
    a(f"v_and_b32 v{l31}, 31, v0")
    a(f"v_lshrrev_b32 v{hh_}, 5, v0")
    beg("L1")
    a(f"v_xor_b32 v{T+7}, v{hh_}, v{c16}")
    a(f"v_lshlrev_b32 v{T+7}, 4, v{T+7}")
    a(f"v_lshl_add_u32 v{T+7}, v{l31}, 8, v{T+7}")
    a(f"v_add_u32 v{VKR}, s49, v{T+7}")
    for s in range(1, 8):
        a(f"v_xor_b32 v{VKR+s}, {32*s}, v{VKR}")
    end("L1")
    a(f"v_bfe_u32 v{T+7}, v0, 1, 3")
    a(f"v_xor_b32 v{T+7}, v{T+7}, v{hh_}"); a(f"v_lshlrev_b32 v{T+7}, 4, v{T+7}")
    a(f"v_lshl_add_u32 v{T+7}, v{l31}, 7, v{T+7}")
    a(f"v_add_u32 v{VXR}, {XB}, v{T+7}")
    for s in range(1, 4):
        a(f"v_xor_b32 v{VXR+s}, {32*s}, v{VXR}")
    a(f"v_lshrrev_b32 v{rr}, 2, v{c16}")
    a(f"v_and_b32 v{cc}, 3, v0")
    a(f"v_and_b32 v{dh}, 16, v0")
    a(f"v_lshlrev_b32 v{dh}, 1, v{dh}")
    beg("L2")
    a(f"v_lshl_add_u32 v{T+13}, v{hh_}, 2, v{rr}")
    a(f"v_lshl_add_u32 v{T+14}, v{cc}, 3, v{dh}")
    a(f"v_lshl_add_u32 v{T+11}, v{T+13}, 8, v{T+14}")
    a(f"v_add_u32 v{T+11}, s49, v{T+11}")
    for j in range(4):
        a(f"s_add_u32 s51, s3, {j}"); a("s_and_b32 s51, s51, 3")
        a(f"v_xor_b32 v{T+12}, s51, v{rr}")
        a(f"v_lshl_add_u32 v{VVR+j}, v{T+12}, 6, v{T+11}")
    a("s_lshl_b32 s51, s3, 4")
    a("s_and_b32 s52, s40, 2"); a("s_lshl_b32 s52, s52, 5"); a("s_or_b32 s51, s51, s52")
    a(f"v_and_b32 v{T+12}, 8, v0"); a(f"v_lshl_add_u32 v{T+14}, v{T+12}, 3, v{T+14}")
    a(f"v_xor_b32 v{T+14}, s51, v{T+14}")
    a(f"v_lshl_add_u32 v{T+14}, v{T+13}, 7, v{T+14}")
    a(f"v_add_u32 v{VWA}, s49, v{T+14}")
    a(f"v_xor_b32 v{VWB}, 64, v{VWA}")
    end("L2")
    a(f"v_lshl_add_u32 v{T+11}, v{hh_}, 3, v{rr}")
    a(f"v_lshl_add_u32 v{T+11}, v{T+11}, 8, v{dh}")
    a(f"v_xor_b32 v{T+12}, s3, v{rr}")
    a(f"v_lshl_add_u32 v{T+11}, v{T+12}, 6, v{T+11}")
    a(f"v_and_b32 v{T+12}, 1, v0"); a(f"v_lshl_add_u32 v{T+11}, v{T+12}, 4, v{T+11}")
    a(f"v_and_b32 v{T+12}, 2, v0"); a(f"v_lshl_add_u32 v{T+11}, v{T+12}, 2, v{T+11}")
    a(f"v_add_u32 v{VWR}, 16384, v{T+11}")
    a(f"v_add_u32 v{VWR+1}, {16384+65536}, v{T+11}")
    a(f"v_lshlrev_b32 v{VL16}, 4, v0")
    a(f"v_add_u32 v{VQR}, {QAREA}, v{VL16}")
    beg("L3")
    a(f"v_lshlrev_b32 v{VMX}, 4, v{l31}")
    a(f"v_add_u32 v{VMX}, {MISC}, v{VMX}")
    a(f"v_mov_b32 v{MS[0]}, 0xff800000"); a(f"v_mov_b32 v{MS[1]}, 0xff800000")
    a("s_mov_b32 s76, 0")
    a("s_lshl_b32 s51, s41, 5"); a("s_add_u32 s51, s51, s43"); a("s_lshl_b32 s51, s51, 2"); a("s_add_u32 s51, s51, s3")
    a("s_lshl_b32 s51, s51, 3"); a(f"s_add_u32 s77, s51, {FL_OFF}")
    a("s_andn2_b32 s51, s2, 6"); a("s_lshl_b32 s51, s51, 7"); a("s_lshl_b32 s52, s3, 5"); a("s_add_u32 s51, s51, s52"); a(f"s_add_u32 s75, s51, {FL_OFF + 0x4000}")
    a("s_and_b32 s78, s40, 6"); a("s_lshl_b32 s78, s78, 2"); a("s_lshl_b32 s51, s3, 1"); a("s_add_u32 s78, s78, s51")
    a("s_and_b32 s79, s40, 1"); a("s_lshl_b32 s79, s79, 2"); a("s_add_u32 s79, s79, s42")
    a("s_lshl_b32 s51, s78, 17"); a("s_lshl_b32 s52, s79, 7"); a("s_add_u32 s51, s51, s52")
    a("s_add_u32 s36, s12, s51"); a("s_addc_u32 s37, s13, 0"); a("s_and_b32 s37, s37, 0xffff")
    a("s_sub_u32 s38, 0x400000, s51"); a("s_mov_b32 s39, 0x20000")
    end("L3")
    beg("L4")
    a(f"v_bfe_u32 v{T+7}, v0, 2, 1")
    a(f"v_bfe_u32 v{T+11}, v0, 3, 2")
    a(f"v_bfe_u32 v{T+12}, v0, 1, 1")
    a(f"v_lshl_add_u32 v{T+11}, v{T+11}, 1, v{T+12}")
    a(f"v_xor_b32 v{T+7}, v{T+7}, v{hh_}")
    a(f"v_lshl_add_u32 v{T+11}, v{T+7}, 4, v{T+11}")
    a(f"v_and_b32 v{T+12}, 1, v0"); a(f"v_lshlrev_b32 v{T+12}, 4, v{T+12}")
    a(f"v_mov_b32 v{T+7}, 0x3f80")
    a(f"v_lshlrev_b32 v{T+12}, v{T+12}, v{T+7}")
    msk = [80, 82, 84, 86, 94, 96, 98, 100]
    for k in range(8): a(f"v_cmp_eq_u32 s[{msk[k]}:{msk[k]+1}], {k}, v{T+11}")
    for k in range(4): a(f"v_mov_b32 v{VZ+k}, 0")
    for k in range(8): a(f"v_cndmask_b32 v{2+k}, 0, v{T+12}, s[{msk[k]}:{msk[k]+1}]")
    if MSUM:
        a(f"v_and_b32 v{T+7}, 1, v{r4}"); a(f"v_xor_b32 v{T+7}, v{T+7}, v{c16}")
        a(f"v_cmp_eq_u32 s[80:81], 0, v{T+7}"); a(f"v_cmp_eq_u32 s[82:83], 2, v{T+7}")
        a(f"v_mov_b32 v{T+12}, 0x3f803f80"); a("s_nop 0")
        a(f"v_cndmask_b32 v{T+7}, 0, v{T+12}, s[80:81]"); a(f"v_cndmask_b32 v{T+11}, 0, v{T+12}, s[82:83]")
        for k in range(4):
            a(f"v_accvgpr_write_b32 a{116+k}, v{T+7}"); a(f"v_accvgpr_write_b32 a{120+k}, v{T+11}")
    end("L4")
    z = R("v", VZ, 4)
    zmf = [mf32(O_(qb, j), z, z, "0") for qb in range(2) for j in range(4)]
    for _ in range(opt.get("wu", 0)):
        a(mf32(O_(0, _ % 8 // 2), R("v", VKR, 4), R("v", VKD, 4), O_(0, _ % 8 // 2)))
    beg("L5")
    emit(zmf)
    end("L5")
    emit(qdma(2)); vm += ["c2"]*6

    kvq = opt.get("kvq", {5: ["K0a"], 6: ["K0b"], 7: ["V0a"], 8: ["V0b"]})
    K0 = dma_k(0); V0 = dma_v(0)
    grp = {"K0a": nexttile() + K0[:5], "K0b": K0[5:], "V0a": V0[:5], "V0b": V0[5:]}
    def kv(c):
        out = []
        for g in kvq.get(c, []):
            out += grp[g]; vm.extend([g[:2]]*4)
        return out
    LAG = opt.get("lag", 1)
    QB = [0, 48, 128, 176][:LAG + 1]
    def qreads(c):
        j = c % 4; base = QB[c % len(QB)]; out = []
        for s in range(4):
            b = base + 12*s
            wreg = VWR + (j >> 1); wo = (j & 1) * 32768
            out.append(f"ds_read_b64_tr_b16 a[{b}:{b+1}], v{wreg} offset:{wo + (16*s)*256}")
            out.append(f"ds_read_b64_tr_b16 a[{b+2}:{b+3}], v{wreg} offset:{wo + (16*s+4)*256}")
            out.append(f"ds_read_b128 a[{b+4}:{b+7}], v{VXR+s} offset:{j*8192}")
            out.append(f"ds_read_b128 a[{b+8}:{b+11}], v{VXR+s} offset:{j*8192+4096}")
        return out
    def qmf(c):
        base = QB[c % len(QB)]; out = []
        for s in range(4):
            b = base + 12*s
            for qb in range(2):
                cin = "0" if (c == 0 and s == 0) else R("v", S0[qb], 16)
                out.append(mf32(R("v", S0[qb], 16), R("a", b, 4), R("a", b+4+4*qb, 4), cin))
        return out
    def nwait(tag):
        last = max(i for i, x in enumerate(vm) if x == tag)
        return len(vm) - 1 - last
    emit(fs())
    for c in range(8):
        a(f"s_waitcnt vmcnt({nwait(f'c{c}')})")
        a("s_barrier")
        emit(fs(c == 0))
        seq = qreads(c)
        ld = []
        if c + 3 < 8:
            ld += qdma(c + 3); vm += [f"c{c+3}"]*6
        ld += kv(c)
        if c in opt.get("slp", {}): ld += [f"s_sleep {opt['slp'][c]}"]
        if c < LAG:
            emit(seq + ld)
        else:
            mf = qmf(c - LAG)
            if opt.get("nomf") and c < 5: mf = ["s_nop 0"]*8
            if opt.get("nord") and c < 5: seq = []
            gaps = spread(8, [(0, 4, seq), (1, 8, ld)])
            s2 = []
            for i in range(8):
                s2 += gaps[i]; s2.append(mf[i])
            emit(s2)
        for b_ in LATEP.get(c, []): a.lines += blocks[b_]
        if c in opt.get("pre", {}):
            role, gl = opt["pre"][c]
            a(f"s_cmp_lg_u32 s42, {role}"); a(f"s_cbranch_scc1 L_np{c}")
            a(f"s_and_b32 s54, s60, {TM}")
            for g in gl: emit([x for x in grp[g] if not x.startswith(("s_and_b32 s54", "s_lshr_b64"))])
            a.label(f"L_np{c}")
        a("s_waitcnt lgkmcnt(0)")
    for c in range(8 - LAG, 7): emit(qmf(c))
    def kreads(slot): return [f"ds_read_b128 {Kf(s)}, v{VKR+s} offset:{slot*16384}" for s in range(8)]
    def vreads(slot):
        return [f"ds_read_b64_tr_b16 {Vfh(st,j,u)}, v{VVR+j} offset:{slot*16384 + 8192 + (16*st+8*u)*256}" for st in range(2) for j in range(4) for u in range(2)]
    m7 = qmf(7)
    m7 = m7[0::2] + m7[1::2]
    def qfin(qb):
        out = [f"v_pk_mul_f32 v[{S0[qb]+r}:{S0[qb]+r+1}], v[{S0[qb]+r}:{S0[qb]+r+1}], v[14:15] op_sel_hi:[1,0]" for r in range(0, 16, 2)]
        out += [f"v_cvt_pk_bf16_f32 v{P0[qb]+r}, v{S0[qb]+2*r}, v{S0[qb]+2*r+1}" for r in range(8)]
        out += [f"ds_write_b128 v12, v[{P0[qb]+4*sp}:{P0[qb]+4*sp+3}] offset:{qb*8192 + sp*1024}" for sp in range(2)]
        return out
    EB = opt.get("eb", 0)
    if EB: a("s_barrier")
    l8 = kv(8)
    if EB:
        l8 += nexttile() + dma_k(1)[:5*EB]; vm.extend(["K1"]*(4*EB))
    f0 = qfin(0)
    if opt.get("qm"):
        f0 = [f"v_mul_f32 v{S0[0]+r}, v14, v{S0[0]+r}" for r in range(16)] + f0[8:]
    emit(merge(m7, spread(8, [(0, 2, [f"v_mov_b32 v14, {hex(f2u(C_SCALE))}", "s_lshl_b32 s51, s3, 11", f"v_add_u32 v12, s51, v{VQR}"]), ((5, 7, f0[:12]) if opt.get("qm") else (6, 7, f0[:6])), (7, 8, f0[12:] if opt.get("qm") else f0[6:])])))
    if opt.get("l8s"):
        q1_ = qfin(1)
        emit(merge(q1_, spread(len(q1_), [(0, len(q1_), l8)])))
    else:
        emit(qfin(1))
        emit(l8)

    def qk(qb, first=False):
        return [mf32(R("v", S0[qb], 16), Kf(s), Q_(qb, s), ("0" if first else R("v", NM[qb], 16)) if s == 0 else R("v", S0[qb], 16)) for s in range(8)]
    def pv(qb, order1=(0, 1, 2, 3)):
        return [mf32(O_(qb, j), Vf(0, j), R("v", P0[qb], 4), O_(qb, j)) for j in range(4)] + \
               [mf32(O_(qb, j), Vf(1, j), R("v", P0[qb]+4, 4), O_(qb, j)) for j in order1]
    def ex(qb, r): return f"v_exp_f32 v{S0[qb]+r}, v{S0[qb]+r}"
    PK = opt.get("pk", 0)
    def msum(qb, st): return f"v_mfma_f32_16x16x32_bf16 a[112:115], a[{116+4*qb}:{119+4*qb}], v[{P0[qb]+4*st}:{P0[qb]+4*st+3}], a[112:115]"
    LP = [96, 124]
    def ad(qb, r):
        if MSUM: return None
        if not PK: return f"v_add_f32 v{L_[qb]}, v{L_[qb]}, v{S0[qb]+r}"
        if r % 2 == 0: return None
        return f"v_pk_add_f32 v[{LP[qb]}:{LP[qb]+1}], v[{LP[qb]}:{LP[qb]+1}], v[{S0[qb]+r-1}:{S0[qb]+r}]"
    def cv(qb, i): return f"v_cvt_pk_bf16_f32 v{P0[qb]+i}, v{S0[qb]+2*i}, v{S0[qb]+2*i+1}"

    emit(fs(True))
    a("s_waitcnt lgkmcnt(0)")
    a.label("L_att")
    a("s_barrier")
    qr = [f"ds_read_b128 {Q_(qb,s)}, v{VQR} offset:{(qb*8+s)*1024}" for qb in range(2) for s in range(8)]
    emit(qr[:8])
    a(f"s_waitcnt vmcnt({nwait('K0')})")
    emit(fs())
    emit(kreads(0))
    if MSUM:
        for k in range(4): a(f"v_accvgpr_write_b32 a{112+k}, 0")
    else:
        a(f"v_mov_b32 v{L_[0]}, 0"); a(f"v_mov_b32 v{L_[1]}, 0")
    K1 = nexttile() + dma_k(1); V1 = dma_v(1)
    mf = qk(0, True) + qk(1, True)
    def inmax(qb, t):
        s = S0[qb]; out = [f"v_max3_f32 v{t}, v{s}, v{s+1}, v{s+2}"]
        for r in range(3, 15, 2):
            out.append(f"v_max3_f32 v{t}, v{t}, v{s+r}, v{s+r+1}")
        out.append(f"v_max_f32 v{t}, v{t}, v{s+15}")
        return out
    vr0 = vreads(0)
    nq = 8
    if EB:
        seq_ = (dma_k(1) + dma_v(1))[5*EB:]
        K1 = [None, None] + seq_[:10]; V1 = seq_[10:] + [None]*(5*EB)
    emit([x for x in K1[:4] if x])
    gaps = spread(16, [(0, 4, qr[8:]), (0, 14, K1[4:]), (10, 14, inmax(0, 124))])
    emit(merge(mf, gaps, pre={0: ["s_waitcnt lgkmcnt(4)"], 4: ["s_waitcnt lgkmcnt(8)"], 8: ["s_waitcnt lgkmcnt(0)"]}))
    a("s_lshl_b32 s51, s3, 2"); a(f"s_add_u32 s51, s51, {MISC}")
    a(f"v_add_u32 v12, s51, v{VL16}")
    emit([x for x in V1[:2] if x])
    a("s_nop 5" if V1[0] else "s_nop 8")
    emit(inmax(1, 125))
    a("s_nop 1")
    a("v_permlane32_swap_b32 v124, v125")
    a("s_nop 0")
    a("v_max_f32 v124, v124, v125")
    a("ds_write_b32 v12, v124")
    emit([x for x in V1[2:3] if x])
    a("s_waitcnt lgkmcnt(0)"); a("s_barrier")
    a(f"ds_read_b128 v[{NM[0]}:{NM[0]+3}], v{VMX}")
    a(f"ds_read_b128 v[{NM[1]}:{NM[1]+3}], v{VMX} offset:512")
    emit(fs())
    a(f"s_waitcnt vmcnt({nwait('V0') + (10 if V1[0] else 8)})")
    emit(vr0[:8])
    a("s_waitcnt lgkmcnt(8)")
    for qb in range(2):
        n = NM[qb]
        a(f"v_max3_f32 v{124+qb}, v{n}, v{n+1}, v{MS[qb]}")
        a(f"v_max3_f32 v{124+qb}, v{n+2}, v{n+3}, v{124+qb}")
    for qb in range(2):
        a(f"v_sub_f32 v{NM[qb]}, 0, v{124+qb}")
        a(f"v_sub_f32 v{NM[qb]+1}, 0, v{124+qb}")
    body_a = [f"v_pk_add_f32 v[{S0[0]+r}:{S0[0]+r+1}], v[{S0[0]+r}:{S0[0]+r+1}], v[{NM[0]}:{NM[0]+1}]" for r in range(0, 16, 2)]
    for r in range(15):
        body_a.append(ex(0, r))
        if r >= 1: body_a.append(ad(0, r-1))
        if r >= 2 and r % 2 == 0: body_a.append(cv(0, (r-2)//2))
    body_a += [f"v_pk_add_f32 v[{S0[1]+r}:{S0[1]+r+1}], v[{S0[1]+r}:{S0[1]+r+1}], v[{NM[1]}:{NM[1]+1}]" for r in range(0, 16, 2)]
    body_a += [f"v_pk_mov_b32 v[{NM[qb]+r}:{NM[qb]+r+1}], v[{NM[qb]}:{NM[qb]+1}], v[{NM[qb]}:{NM[qb]+1}]" for qb in range(2) for r in range(2, 16, 2)]
    n = len(body_a)
    if PK: a("v_mov_b32 v124, 0"); a("v_mov_b32 v125, 0")
    SH0 = opt.get("sh", 0)
    extra = (nexttile() + dma_k(0)[:5*SH0]) if SH0 > 0 else []
    emit(merge(body_a, spread(n, [(0, n - 4, (V1[3:] if SH0 >= 0 else V1[3:5]) + extra), (4, 30, vr0[8:(15 if opt.get("vg", [32])[-1] >= 32 else 16)])])))

    wo_slot = opt.get("wslot", [0, 4096, 8192, 12288, "X", 28672, 0, 4096])
    def wo_group(g):
        out = [f"s_add_u32 m0, s49, {wo_slot[g]}" if wo_slot[g] != "X" else "s_mov_b32 m0, s87"]
        out += [f"buffer_load_dwordx4 v{VKD+i}, s[36:39], s84 offen offset:{1024*i} lds" for i in range(4)]
        out += ["s_add_u32 s84, s84, 0x8000", "s_and_b32 s84, s84, 0x3ffff"]
        return out
    def wo_reads(g):
        out = []
        X = wo_slot[g] == "X"
        for s2_ in range(2):
            s = 2*g + s2_
            for ci in range(2):
                for u in range(2):
                    d = (s*2 + ci)*4 + 2*u
                    r_ = (117 if ci else 116) if X else (VWB if ci else VWA)
                    out.append(f"ds_read_b64_tr_b16 a[{d}:{d+1}], v{r_} offset:{(0 if X else wo_slot[g]) + (16*s2_ + 8*u)*128}")
        return out
    wpos = opt.get("wpos", {"i6": [(2, 10), (12, 20), (22, 30)], "f1": 0, "f2": 0, "f4": 1})
    wcnt = [0]
    def wnext(n=1):
        out = []
        for _ in range(n):
            out += wo_group(wcnt[0]); wcnt[0] += 1
        return out

    def body(par, kind):
        SH = opt.get("sh", 0)
        mf = pv(0) + qk(0) + pv(1) + qk(1)
        G = [[] for _ in range(32)]
        for r in range(16):
            G[(1 + r) % 32].append(ex(1, r)); G[(17 + r) % 32].append(ex(0, r))
        for r in range(16):
            o_ = 1 if (PK == 2 and r < 15) else 0
            G[(2 + r + o_) % 32].append(ad(1, r)); G[(18 + r + (o_ if r < 13 else 0)) % 32].append(ad(0, r))
        for i in range(8):
            G[(3 + 2*i) % 32].append(cv(1, i)); G[(19 + 2*i) % 32].append(cv(0, i))
        vr_prev = vreads(par); vr = vreads(1 - par); kr = kreads(1 - par)
        kg = opt.get("kg", [1, 2, 3, 4, 5, 6, 7, 8])
        if kg[0] == 1: G[0].append("WAITK")
        vg = opt.get("vg", list(range(17, 33)))
        dsg = [[] for _ in range(32)]
        for i in range(16):
            if vg[i] >= 32: dsg[vg[i] - 32].append(vr_prev[i])
        for s in range(8): dsg[kg[s]].append(kr[s])
        for i in range(16):
            if vg[i] < 32: dsg[vg[i]].append(vr[i])
        for g_ in range(32):
            if opt.get("dslast"): G[g_] += dsg[g_]
            elif g_ == 0: G[0] = [x for x in dsg[0] if x in vr_prev] + G[0] + [x for x in dsg[0] if x not in vr_prev]
            else: G[g_] = dsg[g_] + G[g_]
        nv0 = sum(1 for i in range(8, 16) if vg[i] < 32)
        cnt = lambda g_: sum(1 for s in range(8) if kg[s] < g_)
        pre = {}
        lw = opt.get("lw", 0)
        if lw == 0:
            pre = {0: [f"s_waitcnt lgkmcnt({nv0})"], 4: [f"s_waitcnt lgkmcnt({cnt(4)})"], 8: [f"s_waitcnt lgkmcnt({cnt(8) - 4})"], 12: ["s_waitcnt lgkmcnt(0)"]}
        elif lw == 1:
            assert nv0 == 8 and cnt(8) == 8
            pre = {0: ["s_waitcnt lgkmcnt(0)"], 8: ["s_waitcnt lgkmcnt(0)"]}
        elif lw == 2:
            assert cnt(8) == 8
            pre = {0: [f"s_waitcnt lgkmcnt({nv0})"], 4: [f"s_waitcnt lgkmcnt({cnt(4)})"], 8: ["s_waitcnt lgkmcnt(0)"]}
        if MSUM:
            mp = opt.get("mp", [1, 5, 17, 21])
            for (pos_, qb_, st_) in zip(mp, (0, 0, 1, 1), (0, 1, 0, 1)):
                pre.setdefault(pos_, []); pre[pos_] = pre[pos_] + [msum(qb_, st_)]
        if kind == "dma":
            allg = [("V", 1 - par, 1), ("K", par, 0), ("K", par, 1), ("V", par, 0), ("V", par, 1), ("K", 1 - par, 0), ("K", 1 - par, 1)]
            grpz = allg[1 + SH: 5 + SH]
            pos = [(1, [2, 4, 6, 8]), (9, [10, 12, 14, 16]), (17, [18, 20, 22, 24]), (25, [26, 28, 30, 31])]
            for gi, (kd, sl, hf) in enumerate(grpz):
                d_ = (dma_k(sl) if kd == "K" else dma_v(sl))[5*hf:5*hf+5]
                if kd == "K" and hf == 0:
                    if gi == 0: pre[0] = [f"s_and_b32 s54, s60, {TM}"] + pre[0]
                    else: G[pos[gi][0]].append(f"s_and_b32 s54, s60, {TM}")
                    G[(pos[gi][0] + 2) % 32 if gi else 11].append("s_lshr_b64 s[60:61], s[60:61], 4")
                G[pos[gi][0]].append(d_[0])
                for i in range(4): G[pos[gi][1][i]].append(d_[1 + i])
            G[vg[0] - 1].append("WAITV")
            if kg[0] > 1: G[kg[0] - 1].append("WAITK")
            if par == 1:
                G[13].append(f"buffer_load_dword v{VCNT}, v{125 if xl == 2 else VT}, s[68:71], s72 offen sc1")
                G[15].append("s_add_u32 s56, s56, 1")
        else:
            pat = [f"v_mov_b32 v{VKD}, v{VOD0}"] + [f"v_add_u32 v{VKD+i}, {7168*i}, v{VOD0}" for i in range(1, 4)]
            gw = spread(32, [(0, 2, pat)] + ([(1, 6, dma_v(1)[5:])] if SH < 0 else []) + [(g0, g1, wnext()) for (g0, g1) in wpos["i6"]])
            for i in range(32): G[i] += gw[i]
            G[vg[0] - 1].append("WAITV")
            if kg[0] > 1: G[kg[0] - 1].append("WAITK")
            adr = []
            for j in range(1, 4):
                adr += [f"s_sub_u32 s52, s3, {j}", "s_and_b32 s52, s52, 3", "s_lshl_b32 s52, s52, 15", f"v_add_u32 v{100+j}, s52, v{VL16}"]
            adr += [f"v_add_u32 v12, s49, v{VL16}", "s_lshl_b32 s51, s3, 2", f"s_add_u32 s51, s51, {MISC+1024}", f"v_add_u32 v14, s51, v{VL16}",
                    "s_lshl_b32 s51, s41, 9", "s_lshl_b32 s52, s43, 3", "s_add_u32 s51, s51, s52", "s_lshl_b32 s52, s3, 1", "s_add_u32 s51, s51, s52",
                    "s_lshl_b32 s51, s51, 10", "s_add_u32 s52, s51, 262144", f"v_readfirstlane_b32 s73, v{VCNT}", f"s_mov_b32 s53, {hex(f2u(LIMIT))}"]
            if xl == 2:
                adr.remove(f"v_readfirstlane_b32 s73, v{VCNT}")
                pre_ = ["s_lshl_b32 s44, s41, 9", "s_lshl_b32 s45, s43, 3", "s_add_u32 s44, s44, s45", "s_lshl_b32 s45, s3, 1", "s_add_u32 s44, s44, s45",
                        "s_lshl_b32 s44, s44, 10", "s_add_u32 s44, s44, s46", "v_and_b32 v124, 31, v0", "v_lshlrev_b32 v124, 6, v124",
                        f"v_lshrrev_b32 v{VCNT}, 5, v0", f"v_lshl_add_u32 v124, v{VCNT}, 18, v124", "s_add_u32 s48, s77, s46",
                        f"buffer_load_dword v{VCNT}, v124, s[64:67], s44 offen sc1", f"buffer_load_dword v{VCNT}, v{VT}, s[64:67], s48 offen sc1",
                        "s_add_u32 s45, s44, 262144"]
                gp = spread(32, [(0, 6, pre_)])
                for i in range(32): G[i] += gp[i]
                adr += ["s_add_u32 s51, s51, s47", "s_add_u32 s52, s52, s47"]
            ga = spread(32, [(8, 26, adr)])
            for i in range(32): G[i] += ga[i]
        seq = fs() + merge(mf, G, pre)
        issued = 0; out = []
        for x in seq:
            if x == "WAITK": out.append(f"s_waitcnt vmcnt({8 + 4*SH + issued})")
            elif x == "WAITV": out.append(f"s_waitcnt vmcnt({4*SH + issued})")
            else:
                if x.startswith("buffer_load"): issued += 1
                out.append(x)
        return out
    rot = opt.get("rot", 1)
    if rot in (5, 6):
        a("s_add_u32 s80, s42, s41" if rot == 5 else "s_mov_b32 s80, s41")
        a("s_mul_i32 s51, s80, 86"); a("s_lshr_b32 s51, s51, 8"); a("s_mul_i32 s51, s51, 3"); a("s_sub_u32 s80, s80, s51"); a("s_mul_i32 s80, s80, 3")
    elif rot == 3:
        a("s_add_u32 s80, s42, s41"); a("s_lshl_b32 s80, s80, 1"); a("s_and_b32 s80, s80, 7")
    elif rot == 4:
        a("s_lshl_b32 s80, s41, 1"); a("s_and_b32 s80, s80, 7")
    elif rot == 2:
        if xl:
            a("s_lshl_b32 s80, s41, 1"); a("s_add_u32 s80, s80, s43"); a("s_and_b32 s80, s80, 7")
        else:
            a("s_lshl_b32 s80, s42, 1"); a("s_add_u32 s80, s80, s41"); a("s_and_b32 s80, s80, 7")
    else:
        a("s_mov_b32 s80, s41" if rot else "s_mov_b32 s80, 0")
    a("s_lshl_b32 s84, s80, 15")
    a("s_lshl_b32 s87, s3, 12"); a(f"s_add_u32 s87, s87, {XB}")
    a("s_mov_b32 s86, s75")
    if opt.get("warm", 1):
        a("s_mov_b64 exec, 1")
        a(f"buffer_atomic_or v{VT}, v{VT}, s[64:67], s77 offen sc1")
        a(f"buffer_atomic_or v{VT}, v{VT}, s[64:67], s86 offen sc1")
        a("s_mov_b64 exec, -1")
    if xl == 2:
        a("s_and_b32 s51, s40, 6"); a("s_lshl_b32 s51, s51, 1"); a("s_add_u32 s51, s51, 4")
        a("v_min_u32 v125, 1, v0"); a("v_mul_u32_u24 v125, s51, v125")
        a("s_getreg_b32 s58, hwreg(HW_REG_XCC_ID, 0, 3)")
        a("s_lshl_b32 s58, s58, 2")
        a("s_or_b32 s52, s3, s76")
        a("s_cbranch_scc1 L_nocen")
        a("s_lshl_b32 s52, 1, s58")
        a("v_mov_b32 v124, s52")
        a("s_mov_b64 exec, 2")
        a("buffer_atomic_add v124, v125, s[68:71], s72 offen sc1")
        a("s_mov_b64 exec, -1")
        a.label("L_nocen")
    a("s_mov_b32 s56, 0")
    if "al" in opt:
        a(".p2align 6")
        for _ in range(opt["al"]): a("s_nop 0")
    a.label("L_loop")
    emit(body(0, "dma"))
    emit(body(1, "dma"))
    a("s_cmp_lt_u32 s56, 3")
    a("s_cbranch_scc1 L_loop")
    if xl == 2:
        a("s_mov_b32 s93, 0x40000")
        a("s_waitcnt vmcnt(8)")
        a.label("L_cen")
        a(f"v_readlane_b32 s73, v{VCNT}, 0")
        a(f"v_readlane_b32 s59, v{VCNT}, 1")
        a("s_mul_i32 s57, s59, 0x11111111")
        a("s_lshr_b32 s57, s57, 28")
        a("s_cmp_eq_u32 s73, 0")
        a("s_cselect_b32 s57, 0, s57")
        a("s_cmp_eq_u32 s57, 8")
        a("s_cbranch_scc1 L_cenok")
        a(f"buffer_load_dword v{VCNT}, v125, s[68:71], s72 offen sc1")
        a("s_sub_u32 s93, s93, 1")
        a("s_waitcnt vmcnt(0)")
        a("s_cbranch_scc0 L_cen")
        a.label("L_cenok")
        a("s_lshl_b32 s57, 8, s58")
        a("s_cmp_eq_u32 s59, s57")
        if opt.get("forceslow"): a("s_cmp_eq_u32 0, 1")
        a("s_cselect_b32 s46, 0, 0x40000000")
        a("s_cselect_b32 s47, 0x40000000, 0")
    emit(body(0, "wo"))
    emit(fs())
    mf = pv(0, (1, 2, 3, 0))
    G = [[] for _ in range(8)]
    VD = opt.get("vg", [32])[-1] >= 32
    G[0] += ([vreads(1)[15]] if VD else []) + [ex(0, 15), ad(0, 14)]
    G[1] += [ad(0, 15), cv(0, 7)]
    sm = []
    for r in range(16):
        sm.append(ex(1, r))
        if r >= 1: sm.append(ad(1, r-1))
        if r >= 2 and r % 2 == 0: sm.append(cv(1, (r-2)//2))
    tail_b = [ad(1, 15), cv(1, 7)]
    n1 = opt.get("n1", 28)
    wl = wnext(wpos["f1"])
    g2 = spread(8, [(1, 8, sm[:n1]), (1, 8, wl)])
    for i in range(8): G[i] += g2[i]
    emit(merge(mf, G, {0: [f"s_waitcnt lgkmcnt({7 if VD else 8})"], 1: [msum(0, 0)] if MSUM else [], 4: ["s_waitcnt lgkmcnt(0)"], 5: [msum(0, 1)] if MSUM else []}))
    def pack(qb, j): return [f"v_cvt_pk_bf16_f32 v{Oi(qb,j)+i}, v{Oi(qb,j)+2*i}, v{Oi(qb,j)+2*i+1}" for i in range(8)]
    def send(qb, j): return [f"ds_write_b128 v12, v[{Oi(qb,j)+4*sp}:{Oi(qb,j)+4*sp+3}] offset:{PART + ((j-1)*4 + qb*2 + sp)*1024}" for sp in range(2)]
    mf = pv(1, (1, 2, 3, 0))
    lst = (["v_add_f32 v96, v96, v97", "v_add_f32 v97, v124, v125", "s_nop 1"] if PK else []) + [f"v_permlane32_swap_b32 v{L_[0]}, v{L_[1]}", "s_nop 0", f"v_add_f32 v{L_[0]}, v{L_[0]}, v{L_[1]}", f"ds_write_b32 v14, v{L_[0]}"]
    pa = []
    for j in (1, 2, 3): pa += pack(0, j) + send(0, j)
    if MSUM:
        lst = ["s_mov_b64 exec, 0xffff"] + [f"ds_write_b32 v14, a{112+k} offset:{256*k}" for k in range(4)] + ["s_mov_b64 exec, -1"]
    G = spread(8, [(0, 2, sm[n1:] + ["s_nop 0"] + tail_b), (opt.get("pa0", 2), opt.get("pa1", 7), pa), ((6, 7, lst) if MSUM else (4, 5, lst)), (2, 8, wnext(wpos["f2"])), (7, 8, pack(1, 1) + (pack(1, 2) if opt.get("hp2") else []))])
    emit(merge(mf, G, {0: [msum(1, 0)], 3: [msum(1, 1)]} if MSUM else None))
    a("s_waitcnt lgkmcnt(0)")
    emit(fs())
    a("s_barrier")
    def rb(qb, j, sp): return 16 + ((qb*3 + j-1)*2 + sp)*4
    def prd(qb): return [f"ds_read_b128 v[{rb(qb,j,sp)}:{rb(qb,j,sp)+3}], v{100+j} offset:{PART + ((j-1)*4 + qb*2 + sp)*1024}" for j in range(1, 4) for sp in range(2)]
    def red(qb): return [mf32(O_(qb, 0), R("v", ID[sp], 4), R("v", rb(qb,j,sp), 4), O_(qb, 0)) for j in range(1, 4) for sp in range(2)]
    emit(prd(0))
    a(f"ds_read_b128 v[64:67], v{VMX} offset:1024")
    a(f"ds_read_b128 v[68:71], v{VMX} offset:1536")
    emit(send(1, 1) + ([] if opt.get("hp2") else pack(1, 2)) + send(1, 2))
    lsum = ["v_add_f32 v64, v64, v65", "v_add_f32 v66, v66, v67", "v_add_f32 v68, v68, v69", "v_add_f32 v70, v70, v71",
            "v_add_f32 v64, v64, v66", "v_add_f32 v68, v68, v70", "v_add_f32 v73, v64, v68",
            "v_cmp_nlt_f32 vcc, v73, s53", "v_rcp_f32 v64, v64", "v_rcp_f32 v68, v68"]
    chk = ["s_cmp_eq_u32 s76, 0", "s_cselect_b64 s[94:95], vcc, 0", "s_cmp_lg_u64 s[94:95], 0", "s_cbranch_scc1 L_fallback"]
    nb = opt.get("nb", 4)
    G = spread(6, [(0, 2, pack(1, 3) + send(1, 3)), (2, 4, lsum), (4, 6, wnext(wpos["f4"]))])
    G[nb - 1] += ["s_waitcnt lgkmcnt(0)", "s_barrier"] + prd(1)
    emit(merge(red(0), G, {0: ["s_waitcnt lgkmcnt(4)"]}))
    emit(chk)
    def fin(qb):
        o = Oi(qb, 0); g = 64 + 4*qb
        out = [f"v_pk_mul_f32 v[{o+r}:{o+r+1}], v[{o+r}:{o+r+1}], v[{g}:{g+1}] op_sel_hi:[1,0]" for r in range(0, 16, 2)]
        out += pack(qb, 0)
        out += [f"buffer_store_dwordx4 v[{o+4*sp}:{o+4*sp+3}], v{VL16}, s[64:67], {'s52' if qb else 's51'} offen offset:{sp*1024} sc1" for sp in range(2)]
        if xl == 2:
            out += [f"buffer_store_dwordx4 v[{o+4*sp}:{o+4*sp+3}], v{VL16}, s[64:67], {'s45' if qb else 's44'} offen offset:{sp*1024} {opt.get('fst', 'nt')}" for sp in range(2)]
        return out
    f0_ = [f"v_mul_f32 v{Oi(0,0)+r}, v64, v{Oi(0,0)+r}" for r in range(16)] + fin(0)[8:]
    emit(merge(red(1), spread(6, [(1, 6, f0_)]), {0: ["s_waitcnt lgkmcnt(4)"], 2: ["s_waitcnt lgkmcnt(0)"]}))
    a("s_sub_u32 s88, s87, s49")
    a(f"v_add_u32 v116, s88, v{VWA}"); a(f"v_add_u32 v117, s88, v{VWB}")
    a("v_and_b32 v14, 1, v0"); a("v_sub_u32 v14, 0, v14")
    a("v_and_b32 v12, 15, v0"); a("v_lshlrev_b32 v12, 2, v12")
    emit(fin(1))
    emit(fs())
    npre = wcnt[0]
    if xl != 2:
        a("s_mov_b32 s93, 0x40000")
        a.label("L_tag")
        a("s_cmp_lg_u32 s73, 0")
        a("s_cbranch_scc1 L_tagok")
        a(f"buffer_load_dword v{VCNT}, v{VT}, s[68:71], s72 offen sc1")
        a("s_waitcnt vmcnt(0)")
        a(f"v_readfirstlane_b32 s73, v{VCNT}")
        a("s_sub_u32 s93, s93, 1")
        a("s_cbranch_scc0 L_tag")
        a.label("L_tagok")
    la = opt.get("late_a", 2)
    if opt.get("noack"):
        a("v_xor_b32 v105, s73, v14")
        a("s_mov_b64 exec, 3")
        a(f"buffer_atomic_swap v105, v12, s[64:67], s77 offen sc1")
        a("s_mov_b64 exec, -1")
    emit(wnext(la))
    a(f"s_waitcnt vmcnt({(5 if opt.get('noack') else 4) + 4*la})")
    for g in range(min(npre, 2)): emit(wo_reads(g))
    a("v_xor_b32 v14, s73, v14")
    a("s_lshl_b32 s51, s41, 5"); a("s_add_u32 s51, s51, s78"); a("s_lshl_b32 s51, s51, 5"); a(f"s_add_u32 s55, s51, {FL_OFF}")
    a("s_lshl_b32 s51, s41, 9"); a("s_lshl_b32 s52, s78, 3"); a("s_add_u32 s51, s51, s52"); a("s_lshl_b32 s51, s51, 10")
    a("s_add_u32 s32, s18, s51"); a("s_addc_u32 s33, s19, 0"); a("s_and_b32 s33, s33, 0xffff"); a("s_mov_b32 s34, 0x44000")
    a("s_and_b32 s52, s40, 4"); a("s_lshl_b32 s52, s52, 16")
    a(f"v_add_u32 v104, s52, v{VL16}")
    a(f"v_xor_b32 v105, 0x40000, v104")
    def pollops():
        o = [f"buffer_atomic_or v106, v12, s[64:67], {'s59' if xl == 2 else 's55'} offen sc0 sc1"]
        if xl == 2: o.append("buffer_load_dword v107, v12, s[64:67], s55 offen sc1")
        return o
    a("v_mov_b32 v106, 0")
    if xl == 2:
        a("s_add_u32 s59, s55, s47"); a("s_add_u32 s55, s55, s46"); a("s_add_u32 s77, s77, s47")
    if not opt.get("noack"):
        a(f"s_waitcnt vmcnt({4*la})")
        a("s_mov_b64 exec, 3")
        a(f"buffer_atomic_swap v14, v12, s[64:67], s77 offen sc1")
    a("s_mov_b64 exec, 0xffff")
    emit(pollops())
    a("s_mov_b64 exec, -1")
    emit(fs(True))
    nrest = min(8 - wcnt[0], opt.get("lb", 8))
    if wcnt[0] + nrest > 6: a("s_waitcnt lgkmcnt(0)")
    emit(wnext(nrest))
    for g in range(2, npre): emit(wo_reads(g))
    a("s_mov_b32 s93, 0x40000")
    a(f"s_waitcnt vmcnt({4*nrest})")
    for g in range(npre, npre + la): emit(wo_reads(g))
    a("s_mov_b64 exec, 0xffff")
    pp = opt.get("pp", 0)
    if not pp:
        a.label("L_poll")
        if xl == 2: a("v_or_b32 v106, v106, v107")
        a("v_cmp_ne_u32 vcc, v14, v106")
        a("s_cbranch_vccz L_pollend")
        a("v_mov_b32 v106, 0")
        emit(pollops())
        a("s_sub_u32 s93, s93, 1")
        a("s_waitcnt vmcnt(0)")
        a("s_cbranch_scc0 L_poll")
    else:
        pd = opt.get("pd", 2)
        regs = [106, 107, 108, 109][:pd]
        a("v_cmp_ne_u32 vcc, v14, v106")
        a("s_cbranch_vccz L_pollend")
        for x in regs: a(f"v_mov_b32 v{x}, 0")
        for x in regs[:-1]:
            a(f"buffer_atomic_or v{x}, v12, s[64:67], s55 offen sc0 sc1")
            a(f"s_sleep {pp}")
        a.label("L_poll")
        for i_ in range(pd):
            x = regs[(i_ - 1) % pd]; y = regs[i_]
            a(f"buffer_atomic_or v{x}, v12, s[64:67], s55 offen sc0 sc1")
            a(f"s_waitcnt vmcnt({pd - 1})")
            a(f"v_cmp_ne_u32 vcc, v14, v{y}")
            a("s_cbranch_vccz L_pollend")
            a(f"v_mov_b32 v{y}, 0")
        a("s_sub_u32 s93, s93, 1")
        a("s_cbranch_scc0 L_poll")
    a.label("L_pollend")
    a("s_mov_b64 exec, -1")
    emit(fs(True))
    a("s_lshl_b32 s85, s80, 11")
    def oreg(i): return 128 + 4*i
    def oload(i):
        q = 1 - i // 16; s_ = i % 16
        o = [f"buffer_load_dwordx4 v[{oreg(i)}:{oreg(i)+3}], v{104+q}, s[32:35], s85 offen offset:{1024*(s_%2)} sc1"]
        if s_ % 2 == 1: o += ["s_add_u32 s85, s85, 2048", "s_and_b32 s85, s85, 0x3fff"]
        return o
    D = opt.get("odepth", 10)
    D0 = opt.get("d0", 6)
    nl2 = 8 - wcnt[0]
    late_reads = []; late2 = []
    for g in range(npre + la, wcnt[0]): late_reads += wo_reads(g)
    for g in range(wcnt[0], 8): late2 += wo_reads(g)
    vm0 = []
    for i in range(D):
        emit(oload(i)); vm0.append(("ld", i))
        if i == D0 - 1 and nl2:
            a("s_waitcnt lgkmcnt(0)")
            emit(wnext(nl2)); vm0 += [("w", 0)] * (4*nl2)
    def acc(j): return R("v", 16 + 16*j, 16)
    def omf(j, s_):
        i = (0 if j >> 1 else 16) + s_
        return mf32(acc(j), R("a", (s_*2 + (j & 1))*4, 4), R("v", oreg(i), 4), "0" if s_ == 0 else acc(j))
    NL = opt.get("nlag", 8)
    sched = []
    for s_ in range(16): sched += [(omf(3, s_), s_), (omf(2, s_), s_)]
    for s_ in range(16):
        sched.append((omf(1, s_), 16 + s_))
        if s_ < 16 - NL: sched.append((omf(0, s_), 16 + s_))
    nfirst = len(sched)
    for s_ in range(16 - NL, 16): sched.append((omf(0, s_), 16 + s_))
    misc = [f"v_add_u32 v12, s49, v{VL16}"] + [f"v_xor_b32 v{100+j}, {j << 15}, v12" for j in range(1, 4)]
    misc += ["v_mov_b32 v80, 0xff", "s_lshr_b32 s81, s73, 8", "s_lshr_b32 s82, s73, 16", "s_lshr_b32 s83, s73, 24"]
    for j in range(1, 4):
        misc += [f"s_xor_b32 s51, s2, {2*j}", "s_mul_i32 s51, s51, 12288", f"s_add_u32 s{93+j}, s51, {X_OFF + (j-1)*4096}"]
    misc += ["s_mul_i32 s51, s2, 12288", f"s_add_u32 s97, s51, {X_OFF}", "s_add_u32 s98, s97, 4096", "s_add_u32 s99, s97, 8192",
             "s_lshl_b32 s51, s3, 10", f"v_add_u32 v81, s51, v{VL16}",
             "s_mov_b32 s28, s14", "s_and_b32 s29, s15, 0xffff", "s_mov_b32 s30, 0x80000", "s_mov_b32 s31, 0x20000",
             "v_and_b32 v82, 31, v0", "v_lshlrev_b32 v82, 10, v82", "v_lshrrev_b32 v83, 5, v0", "v_lshl_add_u32 v82, v83, 3, v82",
             "s_lshl_b32 s50, s41, 16", "s_and_b32 s51, s40, 4", "s_lshl_b32 s51, s51, 13", "s_add_u32 s50, s50, s51",
             "s_lshl_b32 s51, s79, 7", "s_add_u32 s50, s50, s51", "s_and_b32 s51, s40, 2", "s_lshl_b32 s51, s51, 5", "s_add_u32 s50, s50, s51",
             "s_lshl_b32 s51, s3, 4", "s_add_u32 s50, s50, s51",
             "v_mov_b32 v84, 0x0c0c0400", "v_mov_b32 v85, 0x05040100",
             "s_and_b32 s52, s2, 6", "s_lshl_b32 s52, s52, 1", "s_add_u32 s88, s86, s52",
             "v_add_u32 v86, 1, v0", "v_lshlrev_b32 v86, 2, v86", "v_xor_b32 v86, s52, v86",
             "v_cmp_eq_u32 vcc, 0, v0", "v_mov_b32 v87, s73", "v_add_u32 v88, 16, v86", "v_cndmask_b32 v86, v86, v88, vcc"]
    CB = 0
    def wr(j): return [f"ds_write_b128 v12, v[{16+16*j+4*k}:{19+16*j+4*k}] offset:{CB + (j*3 + k-1)*1024}" for k in range(1, 4)]
    def rdd(j): return [f"ds_read_b128 v[{16+16*j+4*k}:{19+16*j+4*k}], v{100+k} offset:{CB + (j*3 + k-1)*1024}" for k in range(1, 4)]
    tg = ["s73", "s81", "s82", "s83"]
    def summ(j, pk):
        b = 16 + 16*j; out = []
        if pk:
            for p in (0, 2):
                out += [f"v_pk_add_f32 v[{b+p}:{b+p+1}], v[{b+p}:{b+p+1}], v[{b+4+p}:{b+5+p}]", f"v_pk_add_f32 v[{b+8+p}:{b+9+p}], v[{b+8+p}:{b+9+p}], v[{b+12+p}:{b+13+p}]"]
            for p in (0, 2):
                out += [f"v_pk_add_f32 v[{b+p}:{b+p+1}], v[{b+p}:{b+p+1}], v[{b+8+p}:{b+9+p}]"]
        else:
            for i in range(4): out += [f"v_add_f32 v{b+i}, v{b+i}, v{b+4+i}", f"v_add_f32 v{b+8+i}, v{b+8+i}, v{b+12+i}"]
            for i in range(4): out += [f"v_add_f32 v{b+i}, v{b+i}, v{b+8+i}"]
        if j:
            out += [f"v_bfi_b32 v{b+i}, v80, {tg[i]}, v{b+i}" for i in range(4)]
            out += [f"buffer_store_dwordx4 v[{b}:{b+3}], v81, s[64:67], s{93+j} offen sc1"]
        return out
    def hint(off):
        return ["s_mov_b64 exec, 1", f"buffer_atomic_swap v87, v{VT}, s[64:67], s88 offen offset:{off} sc1", "s_mov_b64 exec, -1"]
    n = len(sched)
    G = spread(n, [(0, 8, late_reads), (2, 30, misc), (34, 38, wr(3) + wr(2)),
                   (43, 50, ["s_waitcnt lgkmcnt(0)"] + summ(3, False) + summ(2, False)), (nfirst + 1, nfirst + 2, wr(1))])
    G[12].append("s_waitcnt lgkmcnt(0)")
    if nl2:
        g2r = spread(n, [(2*D0 + 1, 22, late2)])
        for i in range(n): G[i] += g2r[i]
        G[23].append("s_waitcnt lgkmcnt(0)")
    G[40] += ["s_waitcnt lgkmcnt(0)", "s_barrier"] + rdd(3) + rdd(2)
    G[50] += hint(0)
    g1 = min(n - 1, nfirst + 3)
    G[g1] += ["s_waitcnt lgkmcnt(0)", "s_barrier"] + rdd(1)
    g2_ = min(n - 1, nfirst + 5)
    s1 = ["s_waitcnt lgkmcnt(0)"] + summ(1, False)
    gg = spread(n, [(g2_, n, s1)])
    for i in range(n): G[i] += gg[i]
    G[n-1] += hint(16)
    vmq = list(vm0)
    issued = D; seen = -1
    for i, (m, need) in enumerate(sched):
        newload = False
        if need > seen:
            a(f"s_waitcnt vmcnt({len(vmq) - 1 - vmq.index(('ld', need))})" + (" lgkmcnt(0)" if i == 0 else ""))
            seen = need; newload = True
        a(m)
        if newload and issued < 32:
            emit(oload(issued)); vmq.append(("ld", issued)); issued += 1
        for x in G[i]:
            if x.startswith("buffer_"): vmq.append(("st", 0))
        emit(G[i])
    emit(fs(True))
    a("v_mov_b32 v88, 0")
    a("s_mov_b64 exec, 7")
    a(f"buffer_atomic_or v88, v86, s[64:67], s86 offen sc0 sc1")
    a("s_mov_b64 exec, -1")
    a("s_nop 3")
    emit(wr(0))
    a("s_waitcnt lgkmcnt(0)"); a("s_barrier")
    emit(rdd(0))
    a("s_waitcnt lgkmcnt(0)")
    emit(summ(0, True))
    emit(fs(True))
    a("s_mov_b32 s93, 0x40000")
    a("s_mov_b64 exec, 7")
    if not opt.get("hp"):
        a("s_waitcnt vmcnt(0)")
        a.label("L_h")
        a("v_cmp_ne_u32 vcc, v87, v88")
        a("s_cbranch_vccz L_hend")
        a("v_mov_b32 v88, 0")
        a(f"buffer_atomic_or v88, v86, s[64:67], s86 offen sc0 sc1")
        a("s_sub_u32 s93, s93, 1")
        a("s_waitcnt vmcnt(0)")
        a("s_cbranch_scc0 L_h")
    else:
        a("v_mov_b32 v89, 0")
        a.label("L_h")
        for x, y in ((89, 88), (88, 89)):
            a(f"buffer_atomic_or v{x}, v86, s[64:67], s86 offen sc0 sc1")
            a("s_waitcnt vmcnt(1)")
            a(f"v_cmp_ne_u32 vcc, v87, v{y}")
            a("s_cbranch_vccz L_hend")
            a(f"v_mov_b32 v{y}, 0")
        a("s_sub_u32 s93, s93, 1")
        a("s_cbranch_scc0 L_h")
    a.label("L_hend")
    a("s_mov_b64 exec, -1")
    emit(fs(True))
    a("s_mov_b32 s93, 0x40000")
    a.label("L_x")
    for j in range(3):
        a(f"buffer_load_dwordx4 v[{32+4*j}:{35+4*j}], v81, s[64:67], s{97+j} offen sc1")
    a("s_waitcnt vmcnt(0)")
    for j in range(3):
        b = 32 + 4*j
        a(f"v_perm_b32 v{44+2*j}, v{b+1}, v{b}, v84")
        a(f"v_perm_b32 v{45+2*j}, v{b+3}, v{b+2}, v84")
    for j in range(3):
        a(f"v_perm_b32 v{44+2*j}, v{45+2*j}, v{44+2*j}, v85")
    for j in range(3):
        a(f"v_xor_b32 v{44+2*j}, s73, v{44+2*j}")
    a("v_or3_b32 v44, v44, v46, v48")
    a("v_cmp_ne_u32 vcc, 0, v44")
    a("s_cbranch_vccz L_xend")
    a("s_sub_u32 s93, s93, 1")
    a("s_cbranch_scc0 L_x")
    a.label("L_xend")
    emit(fs(True))
    for i in range(12): a(f"v_and_b32 v{32+i}, 0xffffff00, v{32+i}")
    for p in range(2):
        a(f"v_pk_add_f32 v[{16+2*p}:{17+2*p}], v[{16+2*p}:{17+2*p}], v[{32+2*p}:{33+2*p}]")
        a(f"v_pk_add_f32 v[{36+2*p}:{37+2*p}], v[{36+2*p}:{37+2*p}], v[{40+2*p}:{41+2*p}]")
    for p in range(2):
        a(f"v_pk_add_f32 v[{16+2*p}:{17+2*p}], v[{16+2*p}:{17+2*p}], v[{36+2*p}:{37+2*p}]")
    a("v_cvt_pk_bf16_f32 v16, v16, v17")
    a("v_cvt_pk_bf16_f32 v17, v18, v19")
    a("buffer_store_dwordx2 v[16:17], v82, s[28:31], s50 offen")
    if fine:
        a("s_waitcnt vmcnt(0)")
        emit(fs(True, True)); emit(fs(True, True))
        a("s_lshl_b32 s51, s2, 2"); a("s_add_u32 s51, s51, s3"); a("s_lshl_b32 s51, s51, 8"); a(f"s_add_u32 s51, s51, {ST_OFF}")
        a("v_lshlrev_b32 v6, 2, v0")
        a("buffer_store_dword v127, v6, s[64:67], s51 offen")
    a.label("L_end")
    a("s_endpgm")

    a.label("L_fallback")
    a("s_mov_b32 s76, 1")
    a("s_waitcnt vmcnt(0) lgkmcnt(0)")
    a("s_barrier")
    for s in range(1, 4):
        a(f"v_xor_b32 v{VKR+s}, {32*s}, v{VKR}")
    for qb in range(2):
        for s_ in range(8):
            a(f"ds_write_b128 v{VQR}, {Q_(qb,s_)} offset:{(qb*8+s_)*1024}")
    a(f"v_subrev_u32 v{VKD}, 4096, v{VKD+4}")
    emit(kd_setup())
    a("s_mov_b32 s54, 0")
    a.label("L_fb_loop")
    emit(dma_k(0))
    a("s_waitcnt vmcnt(0)")
    emit(kreads(0))
    a("s_waitcnt lgkmcnt(0)")
    emit(qk(0, True) + qk(1, True))
    a("s_nop 15")
    for qb in range(2):
        for r in range(0, 16, 2):
            a(f"v_max3_f32 v{MS[qb]}, v{MS[qb]}, v{S0[qb]+r}, v{S0[qb]+r+1}")
    a(f"s_add_u32 s54, s54, {1 << TSH}")
    a(f"s_cmp_lt_u32 s54, {8 << TSH}")
    a("s_cbranch_scc1 L_fb_loop")
    a("s_nop 1")
    a(f"v_permlane32_swap_b32 v{MS[0]}, v{MS[1]}")
    a("s_lshl_b32 s51, s3, 2"); a(f"s_add_u32 s51, s51, {MISC+2048}")
    a(f"v_add_u32 v12, s51, v{VL16}")
    a(f"v_max_f32 v124, v{MS[0]}, v{MS[1]}")
    a("ds_write_b32 v12, v124")
    a("s_waitcnt lgkmcnt(0)"); a("s_barrier")
    a(f"ds_read_b128 v[16:19], v{VMX} offset:2048")
    a(f"ds_read_b128 v[20:23], v{VMX} offset:2560")
    a("s_waitcnt lgkmcnt(0)")
    for qb in range(2):
        a(f"v_max_f32 v{MS[qb]}, v{16+4*qb}, v{17+4*qb}")
        a(f"v_max3_f32 v{MS[qb]}, v{18+4*qb}, v{19+4*qb}, v{MS[qb]}")
    a("s_mov_b64 s[60:61], s[62:63]")
    emit(nexttile() + dma_k(0) + dma_v(0))
    if EB: emit(nexttile() + dma_k(1)[:5*EB])
    for k in range(4): a(f"v_mov_b32 v{VZ+k}, 0")
    a("s_nop 1")
    emit(zmf)
    a("s_waitcnt vmcnt(0)")
    a("s_branch L_att")
    return a.text()

def build(opt, fname):
    k = NAME + "_kernel"
    hdr = f"""; GQA block, one fused kernel: q-projection + attention + output projection
; @launch grid=(256,1,1) block=(256,1,1) lds=163840
.amdgcn_target "amdgcn-amd-amdhsa--gfx950"
"""
    txt = hdr + kernel_header(k) + gen(opt)
    txt += '.section .rodata,"a"\n.p2align 6\n' + kernel_desc(k, 512, 102, 256)
    open(fname, "w").write(txt)

L = [order(range(8))]*4
P = [order([0,1,2,3,4,5,6,7]), order([4,5,6,7,0,1,2,3])]*2
K6 = [order([0,1,2,3,4,5,6,7]), order([6,7,2,3,4,5,0,1])]*2
K5 = [order([0,1,2,3,4,5,6,7]), order([5,6,7,3,4,0,1,2])]*2
if __name__ == "__main__":
    B = {"orders": K5}
    B = dict(B, rot=2)
    W = lambda i6, f1, f2, f4: {"i6": i6, "f1": f1, "f2": f2, "f4": f4}
    B = dict(B, nb=6)
    K7 = [order([0,1,2,3,4,5,6,7]), order([7,1,2,3,4,5,6,0])]*2
    K6s = [order([0,1,2,3,4,5,6,7]), order([6,1,2,7,4,5,0,3])]*2
    K6l = [order([0,1,2,3,4,5,6,7]), order([0,1,2,3,6,7,4,5])]*2
    K5s = [order([0,1,2,3,4,5,6,7]), order([5,1,6,3,7,0,2,4])]*2
    R1 = [order(x) for x in ([0,2,1,3,4,6,5,7], [0,1,3,2,4,5,7,6], [1,0,2,4,3,5,6,7], [1,0,2,3,5,4,6,7])]
    R2 = [order(x) for x in ([0,2,1,6,3,4,5,7], [0,1,4,2,3,5,6,7], [1,3,0,7,2,4,5,6], [1,0,5,2,3,4,6,7])]
    R3 = [order(x) for x in ([0,2,1,3,6,4,5,7], [0,1,4,2,3,5,6,7], [1,3,0,2,4,7,5,6], [1,0,2,5,3,4,6,7])]
    R4 = [order(x) for x in ([0,3,1,2,4,7,5,6], [0,1,4,2,3,5,6,7], [1,0,2,5,3,4,6,7], [2,0,1,3,6,4,5,7])]
    R5 = [order(x) for x in ([0,4,1,2,3,5,6,7], [1,0,5,2,3,4,6,7], [2,0,1,6,3,4,5,7], [3,0,1,2,7,4,5,6])]
    R6 = [order(x) for x in ([0,1,4,2,3,5,6,7], [1,0,2,5,3,4,6,7], [2,0,1,3,6,4,5,7], [3,0,1,2,4,7,5,6])]
    B = dict(B, orders=R1)
    W = lambda i6, f1, f2, f4: {"i6": i6, "f1": f1, "f2": f2, "f4": f4}
    A0, A1, A2, A3 = R1
    R8 = [order(x) for x in ([0,2,1,3,6,4,5,7], [0,1,3,2,4,7,5,6], [1,0,2,4,3,5,6,7], [1,0,2,3,5,4,6,7])]
    R9 = [order(x) for x in ([0,2,1,3,4,6,5,7], [0,1,3,2,4,7,5,6], [1,0,2,4,3,5,6,7], [1,0,2,3,5,4,6,7])]
    P1 = [A0, A2, A1, A3]
    W5 = W([(1, 5), (24, 28), (28, 32)], 0, 0, 1)
    C = dict(B, orders=P1, wpos=W5, late_a=0, nb=4, nlag=6, pp=2)
    W0 = W([(2, 10), (12, 20), (22, 30)], 0, 0, 1)
    D_ = dict(C, wpos=W0, hp=1, pp=0, odepth=12)
    D_ = dict(D_, orders=R1)
    Wm = W([(8, 14), (16, 22), (24, 30)], 0, 0, 1)
    Q_3 = dict(D_, qr=3, orders=R3)
    R12 = [order(x) for x in ([0,2,1,3,6,5,7,4], [0,1,4,2,3,6,5,7], [1,3,0,4,2,7,6,5], [1,0,2,5,4,3,7,6])]
    Q_4 = dict(Q_3, qm=1)
    KV1 = {5: ["K0a", "K0b"], 6: ["V0a"], 7: ["V0b"]}
    M = dict(Q_4, msum=1, n1=33)
    F_ = dict(M, n1=38, pa0=0, pa1=6, hp2=1)
    K2 = [1, 1, 2, 2, 3, 3, 4, 4]; K3 = [1, 1, 3, 3, 5, 5, 6, 7]; K4 = [1, 2, 2, 3, 4, 4, 5, 6]
    V2 = [17, 18, 19, 19, 20, 21, 21, 22, 23, 23, 24, 25, 26, 27, 27, 28]
    V3 = [17, 18, 19, 20, 21, 22, 23, 23, 24, 25, 26, 27, 27, 28, 29, 30]
    K5_ = [3, 3, 4, 4, 5, 5, 6, 6]; K6_ = [2, 2, 3, 3, 4, 4, 5, 5]; K7_ = [4, 4, 5, 5, 6, 7, 8, 9]
    V4 = [21, 21, 22, 23, 23, 24, 25, 25, 26, 27, 27, 28, 29, 29, 30, 31]
    V5 = [23, 23, 24, 24, 25, 25, 26, 26, 27, 27, 28, 29, 29, 30, 31, 32]
    V6 = [19, 20, 21, 21, 22, 23, 23, 24, 25, 26, 27, 28, 29, 30, 31, 32]
    G_ = dict(F_, kg=K2, lw=2)
    R7 = [order(x) for x in ([0,1,3,2,4,5,7,6], [0,1,2,4,3,5,6,7], [0,2,1,3,5,4,6,7], [0,2,1,3,4,6,5,7])]
    R13 = [order(x) for x in ([0,1,2,3,4,7,5,6], [0,1,4,2,3,5,6,7], [0,2,1,5,3,4,6,7], [0,3,1,2,6,4,5,7])]
    R14 = [order(x) for x in ([0,1,2,4,3,5,6,7], [0,1,2,3,5,4,6,7], [0,1,3,2,4,6,5,7], [0,1,3,2,4,5,7,6])]
    R15 = [order(x) for x in ([0,1,3,2,4,5,6,7], [0,1,2,5,3,4,6,7], [0,2,4,1,3,7,5,6], [0,2,1,3,6,4,5,7])]
    H_ = dict(G_, orders=R7)
    H_ = dict(H_, rot=6)
    kvs = {"kv2": {4: ["K0a"], 5: ["K0b"], 6: ["V0a"], 7: ["V0b"]}, "kv3": {3: ["K0a"], 5: ["K0b"], 7: ["V0a"], 8: ["V0b"]},
           "kv4": {4: ["K0a"], 5: ["K0b"], 7: ["V0a"], 8: ["V0b"]}, "kv5": {3: ["K0a"], 5: ["K0b"], 6: ["V0a"], 7: ["V0b"]},
           "kv6": {2: ["K0a"], 5: ["K0b"], 6: ["V0a"], 7: ["V0b"]}, "kv7": {3: ["K0a", "K0b"], 5: ["V0a"], 6: ["V0b"]}, "kv8": {1: ["K0a"], 5: ["K0b"], 6: ["V0a"], 7: ["V0b"]}}
    V = {"h": H_, "c3": dict(H_, late2={3: ["L4", "L5"]}), "c4": dict(H_, late2={4: ["L4", "L5"]}), "c5": dict(H_, late2={5: ["L4", "L5"]}), "c6": dict(H_, late2={6: ["L4", "L5"]}),
         "s35": dict(H_, late2={3: ["L4"], 5: ["L5"]}), "s34": dict(H_, late2={3: ["L4"], 4: ["L5"]}), "f35": dict(H_, late2={3: ["L4", "L5"], 5: ["L3"]}),
         "f46": dict(H_, late2={4: ["L4", "L5"], 6: ["L2"]}), "b4": dict(H_, late2={4: ["L3", "L4", "L5"]}), "sp": dict(H_, late2={2: ["L2"], 3: ["L3"], 4: ["L4"], 5: ["L5"]})}
    for n, o in V.items():
        build(o, f"v41_{n}.s")
        build(dict(o, fine=3), f"v41_{n}_m.s")
```

```python
import sys, math, struct
from asmlib import *

C_SCALE = math.log2(math.e) / math.sqrt(128.0)
def f2u(f): return struct.unpack("<I", struct.pack("<f", f))[0]
def mf32(d, a, b, c): return f"v_mfma_f32_32x32x16_bf16 {d}, {a}, {b}, {c}"
def R(p, lo, n): return f"{p}[{lo}:{lo+n-1}]"

OB = 128
def Oi(qb, j): return OB + (qb*4+j)*16
def O_(qb, j): return R("v", Oi(qb, j), 16)
def Q_(qb, s): return R("a", 128 + (qb*8+s)*4, 4)
def Kf(s): return R("a", 192 + 4*s, 4)
def Vf(st, j): return R("a", 224 + (st*4+j)*4, 4)
def Vfh(st, j, u): return R("a", 224 + (st*4+j)*4 + 2*u, 2)
S0 = [16, 32]; NM = [48, 64]; P0 = [80, 88]; L_ = [96, 97]
VCNT = 98; VT = 99
VKR = 100; VVR = 108; VKD = 112; VVD = 120; MS = [122, 123]
ID = [2, 6]
VL16 = 13; VQR = 15; VMX = 10; VWA = 11; VWB = 1
VOD0 = 126
VXD = 48; VWD = 50; VXR = 54; VWR = 58; T = 68; VZ = 64
XB = 131072; QAREA = XB; MISC = XB + 16384
X_OFF = 0x400000; FL_OFF = 0x800000; ST_OFF = 0x810000
PART = 16384
LIMIT = 2.0 ** 40

def spread(n, fillers):
    gaps = [[] for _ in range(n)]
    for (g0, g1, lst) in fillers:
        lst = [x for x in lst if x is not None]
        k = max(1, len(lst))
        for i, x in enumerate(lst):
            gaps[g0 + (i * (g1 - g0)) // k].append(x)
    return gaps

def fix_m0(seq):
    out = []
    for i, x in enumerate(seq):
        out.append(x)
        if " m0," in x and i + 1 < len(seq) and seq[i+1].startswith("buffer_load"):
            out.append("s_nop 0")
    return out

def merge(mf, gaps, pre=None):
    s = []
    for i, m in enumerate(mf):
        if pre and i in pre: s += pre[i]
        s.append(m); s += gaps[i]
    return [x for x in s if x is not None]

def order(l):
    v = 0
    for i, t in enumerate(l): v |= t << (4*i)
    return v

def gen(opt):
    a = Asm()
    IL = opt.get("il", 0)
    MSUM = opt.get("msum", 0)
    TSH = 15 if IL else 13
    TM = hex(15 << TSH)
    fine = opt.get("fine")
    clk = "s_memtime" if fine == 2 else "s_memrealtime"
    def fs(sync=False, last=False):
        if not fine: return []
        if fine == 3 and not last: return []
        return (["s_waitcnt lgkmcnt(0)"] if sync else []) + ["s_mov_b32 s89, m0", "s_mov_b32 m0, s92", "s_add_u32 s92, s92, 1", "v_writelane_b32 v127, s90, m0", clk + " s[90:91]", "s_mov_b32 m0, s89"]
    LATEP = opt.get("late2", {})
    moved = {b for v in LATEP.values() for b in v}
    blocks = {}; saved = []
    def beg(name):
        if name in moved:
            saved.append(a.lines); a.lines = blocks.setdefault(name, [])
    def end(name):
        if name in moved: a.lines = saved.pop()
    def emit(l):
        for x in fix_m0(l): a(x)
    a.c('workgroups past the 256 that carry data leave at once')
    a("s_cmp_ge_u32 s2, 256")
    a("s_cbranch_scc1 L_end")
    a("s_load_dwordx8 s[4:11], s[0:1], 0")
    a("s_load_dwordx8 s[12:19], s[0:1], 32")
    a("s_memrealtime s[74:75]")
    if fine:
        a(clk + " s[90:91]"); a("s_mov_b32 s92, 0"); a("v_mov_b32 v127, 0"); a("s_mov_b32 m0, 0")
    a(f"v_lshrrev_b32 v{T}, 6, v0")
    a("v_and_b32 v0, 63, v0")
    a(f"v_readfirstlane_b32 s3, v{T}")
    a.c('id -> kv head s40 (= id & 7), batch s41, head-in-group s42, q head s43; wave index s3, lane v0')
    xl = opt.get("xl", 0)
    if xl:
        a("s_and_b32 s40, s2, 6"); a("s_bfe_u32 s41, s2, 0x10005"); a("s_or_b32 s40, s40, s41")
        a("s_and_b32 s41, s2, 1"); a("s_lshl_b32 s41, s41, 2"); a("s_lshr_b32 s42, s2, 6"); a("s_or_b32 s41, s41, s42")
    else:
        a("s_and_b32 s40, s2, 7")
        a("s_lshr_b32 s41, s2, 5")
    a("s_bfe_u32 s42, s2, 0x20003")
    a("s_lshl_b32 s43, s40, 2")
    a("s_add_u32 s43, s43, s42")
    a.c('per-lane source offsets of the LDS-DMA tile loads (bank swizzle applied on the source side)')
    r4, c16, vp = T+1, T+2, T+4
    a(f"v_lshrrev_b32 v{r4}, 4, v0")
    a(f"v_and_b32 v{c16}, 15, v0")
    a(f"v_lshlrev_b32 v{vp}, 2, v{r4}")
    a(f"v_xor_b32 v{vp}, v{c16}, v{vp}")
    a(f"v_lshlrev_b32 v{vp}, 4, v{vp}")
    a(f"v_lshl_add_u32 v{VWD}, v{r4}, 13, v{vp}")
    for i in range(1, 4):
        a(f"v_add_u32 v{VWD+i}, {31744*i}, v{VWD}")
    a(f"v_lshrrev_b32 v{T+5}, 3, v0")
    a(f"v_and_b32 v{T+6}, 7, v0")
    a(f"v_xor_b32 v{T+7}, v{T+6}, v{r4}")
    a(f"v_lshlrev_b32 v{T+7}, 4, v{T+7}")
    a(f"v_lshl_add_u32 v{VXD}, v{T+5}, 10, v{T+7}")
    a(f"v_xor_b32 v{T+7}, 64, v{VXD}")
    a(f"v_add_u32 v{VXD+1}, {8192-1024}, v{T+7}")
    if xl:
        a("s_lshl_b32 s44, s41, 1"); a("s_add_u32 s44, s44, s43")
    elif opt.get("qr", 0) == 0:
        a("s_lshl_b32 s44, s42, 1"); a("s_add_u32 s44, s44, s41")
    elif opt["qr"] == 1:
        a("s_add_u32 s44, s42, s41"); a("s_lshl_b32 s44, s44, 1")
    elif opt["qr"] == 2:
        a("s_add_u32 s44, s42, s41"); a("s_lshl_b32 s44, s44, 2")
    elif opt["qr"] == 3:
        a("s_add_u32 s44, s42, s41"); a("s_lshl_b32 s44, s44, 2"); a("s_lshr_b64 s[44:45], 0x30630630630, s44") if False else None
        a("s_mul_i32 s45, s44, 22"); a("s_lshr_b32 s45, s45, 8"); a("s_mul_i32 s45, s45, 12"); a("s_sub_u32 s44, s44, s45"); a("s_lshr_b32 s44, s44, 2"); a("s_mul_i32 s44, s44, 3")
    elif opt["qr"] == 5:
        a("s_mov_b32 s44, 0")
    elif opt["qr"] == 6:
        a("s_add_u32 s44, s42, s41"); a("s_lshl_b32 s44, s44, 2")
        a("s_mul_i32 s45, s44, 22"); a("s_lshr_b32 s45, s45, 8"); a("s_mul_i32 s45, s45, 12"); a("s_sub_u32 s44, s44, s45"); a("s_lshr_b32 s44, s44, 2"); a("s_mul_i32 s44, s44, 3"); a("s_add_u32 s44, s44, s40")
    elif opt["qr"] == 4:
        a("s_add_u32 s44, s42, s41"); a("s_lshl_b32 s44, s44, 1"); a("s_add_u32 s44, s44, s40")
    QT = opt.get("qt")
    if QT:
        ncls = len(QT)
        if ncls == 8: a("s_lshl_b32 s44, s42, 1"); a("s_add_u32 s44, s44, s41"); a("s_and_b32 s44, s44, 7")
        else: a("s_add_u32 s44, s42, s41"); a(f"s_and_b32 s44, s44, {ncls-1}")
        a(f"s_mov_b32 s58, {hex(order(QT[0]))}")
        for c_ in range(1, ncls):
            a(f"s_cmp_eq_u32 s44, {c_}"); a(f"s_cselect_b32 s58, {hex(order(QT[c_]))}, s58")
    else:
        a("s_and_b32 s58, s44, 7")
    a("s_lshl_b32 s46, s3, 11"); a(f"s_add_u32 s46, s46, {XB}")
    a("s_lshl_b32 s47, s3, 12"); a("s_add_u32 s47, s47, 16384")
    a("s_lshl_b32 s49, s3, 15")
    a("s_lshl_b32 s44, s41, 16"); a("s_lshl_b32 s45, s3, 14"); a("s_add_u32 s44, s44, s45")
    a("s_lshl_b32 s48, s43, 8"); a("s_lshl_b32 s45, s3, 17"); a("s_add_u32 s48, s48, s45")
    a("s_sub_u32 s22, 0x80000, s44"); a("s_mov_b32 s23, 0x20000")
    a("s_sub_u32 s34, 0x400000, s48"); a("s_mov_b32 s35, 0x20000")
    a("s_waitcnt lgkmcnt(0)")
    a("s_add_u32 s20, s4, s44"); a("s_addc_u32 s21, s5, 0"); a("s_and_b32 s21, s21, 0xffff")
    a("s_add_u32 s32, s10, s48"); a("s_addc_u32 s33, s11, 0"); a("s_and_b32 s33, s33, 0xffff")

    def qdma(c):
        j = c % 4
        if QT:
            out = ["s_and_b32 s57, s58, 7", f"s_lshl_b32 s59, s57, 7", f"s_add_u32 m0, s46, {j*8192}", "s_lshl_b32 s57, s57, 19"]
            out += [f"buffer_load_dwordx4 v{VXD+i}, s[20:23], s59 offen offset:{1024*i} lds" for i in range(2)]
            out += [f"s_add_u32 m0, s47, {j*32768}", "s_lshr_b32 s58, s58, 4"]
            out += [f"buffer_load_dwordx4 v{VWD+i}, s[32:35], s57 offen offset:{1024*i} lds" for i in range(4)]
            return out
        out = [f"s_lshl_b32 s59, s58, 7", f"s_add_u32 m0, s46, {j*8192}", "s_lshl_b32 s57, s58, 19"]
        for i in range(2):
            out.append(f"buffer_load_dwordx4 v{VXD+i}, s[20:23], s59 offen offset:{1024*i} lds")
        out += [f"s_add_u32 m0, s47, {j*32768}", "s_add_u32 s58, s58, 1"]
        for i in range(4):
            out.append(f"buffer_load_dwordx4 v{VWD+i}, s[32:35], s57 offen offset:{1024*i} lds")
        out.append("s_and_b32 s58, s58, 7")
        return out
    def nexttile():
        return [f"s_and_b32 s54, s60, {TM}", "s_lshr_b64 s[60:61], s[60:61], 4"]
    def dma_k(slot):
        out = []
        for hh in range(2):
            out.append(f"s_add_u32 m0, s49, {slot*16384 + hh*4096}")
            for i in range(4):
                out.append(f"buffer_load_dwordx4 v{VKD+4*hh+i}, s[24:27], s54 offen offset:{1024*i} lds")
        return out
    def dma_v(slot):
        out = []
        for hh in range(2):
            out.append(f"s_add_u32 m0, s49, {slot*16384 + 8192 + hh*4096}")
            for i in range(4):
                out.append(f"buffer_load_dwordx4 v{VVD+hh}, s[28:31], s54 offen offset:{1024*i} lds")
        return out
    a.c('---- q projection: Q^T[128 x 64] = Wq_h^T x_b^T, 8 k-chunks of 64 through a 4-deep LDS ring ----')
    vm = []
    if opt.get("xfirst"):
        q0 = qdma(0); q1 = qdma(1)
        x1 = ["s_add_u32 s51, s58, 1", "s_and_b32 s51, s51, 7", "s_lshl_b32 s51, s51, 7", f"s_add_u32 m0, s46, 8192", "s_nop 0"] + \
             [f"buffer_load_dwordx4 v{VXD+i}, s[20:23], s51 offen offset:{1024*i} lds" for i in range(2)]
        emit(q0[:5] + x1 + q0[5:]); vm += ["c0"]*8
    else:
        emit(qdma(0)); vm += ["c0"]*6
    a.c('remaining address / descriptor setup, overlapped with the first loads')
    def kd_setup():
        out = [f"v_xor_b32 v{VKD+i}, {64*i}, v{VKD}" for i in range(1, 4)]
        return out
    a(f"v_xor_b32 v{T+3}, v{c16}, v{r4}"); a(f"v_lshlrev_b32 v{T+3}, 4, v{T+3}")
    a(f"v_lshl_add_u32 v{VKD}, v{r4}, 8, v{T+3}")
    emit(kd_setup())
    for i in range(4):
        a(f"v_add_u32 v{VKD+4+i}, 4096, v{VKD+i}")
    a(f"v_lshl_add_u32 v{VVD}, v{r4}, 8, v{vp}")
    a(f"v_add_u32 v{VVD+1}, 4096, v{VVD}")
    a(f"v_and_b32 v{T+7}, 16, v0"); a(f"v_lshrrev_b32 v{T+7}, 2, v{T+7}")
    a(f"v_xor_b32 v{T+7}, v{T+7}, v{T+6}"); a(f"v_lshlrev_b32 v{T+7}, 4, v{T+7}")
    a(f"v_lshl_add_u32 v{VOD0}, v{T+5}, 10, v{T+7}")
    a.c('order in which this workgroup visits its 8 key tiles (the 4 heads of a kv group take turns fetching from HBM)')
    orders = opt["orders"]
    a(f"s_mov_b32 s62, {hex(orders[0])}")
    for rr_ in range(1, 4):
        if orders[rr_] != orders[0]:
            a(f"s_cmp_eq_u32 s42, {rr_}"); a(f"s_cselect_b32 s62, {hex(orders[rr_])}, s62")
    if "orders2" in opt:
        o2 = opt["orders2"]
        a(f"s_mov_b32 s63, {hex(o2[0])}")
        for rr_ in range(1, 4):
            a(f"s_cmp_eq_u32 s42, {rr_}"); a(f"s_cselect_b32 s63, {hex(o2[rr_])}, s63")
        a("s_bitcmp1_b32 s41, 0"); a("s_cselect_b32 s62, s63, s62")
    tx = opt.get("tx", 0)
    if tx:
        if tx == 1: a("s_mov_b32 s63, s41")
        elif tx == 2: a("s_mov_b32 s63, s40")
        elif tx == 3: a("s_add_u32 s63, s40, s41")
        elif tx == 4: a("s_lshl_b32 s63, s3, 1")
        elif tx == 6: a("s_mul_i32 s63, s41, 3"); a("s_add_u32 s63, s63, s3")
        elif tx == 7: a("s_lshr_b32 s63, s41, 1"); a("s_xor_b32 s63, s63, s41"); a("s_lshl_b32 s51, s3, 1"); a("s_add_u32 s63, s63, s51")
        elif tx == 5: a("s_lshl_b32 s63, s3, 1"); a("s_add_u32 s63, s63, s40"); a("s_add_u32 s63, s63, s41")
        a("s_and_b32 s63, s63, 7"); a("s_mul_i32 s63, s63, 0x11111111"); a("s_xor_b32 s62, s62, s63")
    a("s_mov_b32 s63, 8")
    a(f"s_lshl_b64 s[62:63], s[62:63], {TSH}")
    a("s_mov_b64 s[60:61], s[62:63]")
    a("s_lshl_b32 s50, s41, 3"); a("s_add_u32 s50, s50, s40"); a(f"s_lshl_b32 s50, s50, {5 if IL else 2}"); a("s_add_u32 s50, s50, s3")
    a(f"s_lshl_b32 s50, s50, {13 if IL else 16}")
    a(f"s_mov_b32 s26, {hex(0x3a000 if IL else 0x10000)}"); a("s_mov_b32 s27, 0x20000")
    a(f"s_mov_b32 s30, {hex(0x3a000 if IL else 0x10000)}"); a("s_mov_b32 s31, 0x20000")
    a("s_add_u32 s24, s6, s50"); a("s_addc_u32 s25, s7, 0"); a("s_and_b32 s25, s25, 0xffff")
    a("s_add_u32 s28, s8, s50"); a("s_addc_u32 s29, s9, 0"); a("s_and_b32 s29, s29, 0xffff")
    srd(a, 64, 18, ST_OFF + (0x40000 if fine else 0))
    srd(a, 68, 16, 256)
    a(f"v_mov_b32 v{VT}, 0")
    a("s_lshl_b32 s72, s41, 5")
    a.c('hand-off tag of this launch: q head 0 of each batch publishes its clock value in d_debug (zero at launch)')
    a("s_or_b32 s51, s43, s3")
    a("s_cbranch_scc1 L_nolead")
    a("s_or_b32 s74, s74, 1")
    a(f"v_mov_b32 v{VCNT}, s74")
    a("s_mov_b64 exec, 1")
    a(f"buffer_store_dword v{VCNT}, v{VT}, s[68:71], s72 offen sc1")
    a("s_mov_b64 exec, -1")
    a.label("L_nolead")
    if opt.get("xfirst"):
        emit(q1[2:3] + q1[5:]); vm += ["c1"]*4
    else:
        emit(qdma(1)); vm += ["c1"]*6
    l31, hh_, rr, cc, dh = T+5, T+6, T+8, T+9, T+10
    a(f"v_and_b32 v{l31}, 31, v0")
    a(f"v_lshrrev_b32 v{hh_}, 5, v0")
    beg("L1")
    a(f"v_xor_b32 v{T+7}, v{hh_}, v{c16}")
    a(f"v_lshlrev_b32 v{T+7}, 4, v{T+7}")
    a(f"v_lshl_add_u32 v{T+7}, v{l31}, 8, v{T+7}")
    a(f"v_add_u32 v{VKR}, s49, v{T+7}")
    for s in range(1, 8):
        a(f"v_xor_b32 v{VKR+s}, {32*s}, v{VKR}")
    end("L1")
    a(f"v_bfe_u32 v{T+7}, v0, 1, 3")
    a(f"v_xor_b32 v{T+7}, v{T+7}, v{hh_}"); a(f"v_lshlrev_b32 v{T+7}, 4, v{T+7}")
    a(f"v_lshl_add_u32 v{T+7}, v{l31}, 7, v{T+7}")
    a(f"v_add_u32 v{VXR}, {XB}, v{T+7}")
    for s in range(1, 4):
        a(f"v_xor_b32 v{VXR+s}, {32*s}, v{VXR}")
    a(f"v_lshrrev_b32 v{rr}, 2, v{c16}")
    a(f"v_and_b32 v{cc}, 3, v0")
    a(f"v_and_b32 v{dh}, 16, v0")
    a(f"v_lshlrev_b32 v{dh}, 1, v{dh}")
    beg("L2")
    a(f"v_lshl_add_u32 v{T+13}, v{hh_}, 2, v{rr}")
    a(f"v_lshl_add_u32 v{T+14}, v{cc}, 3, v{dh}")
    a(f"v_lshl_add_u32 v{T+11}, v{T+13}, 8, v{T+14}")
    a(f"v_add_u32 v{T+11}, s49, v{T+11}")
    for j in range(4):
        a(f"s_add_u32 s51, s3, {j}"); a("s_and_b32 s51, s51, 3")
        a(f"v_xor_b32 v{T+12}, s51, v{rr}")
        a(f"v_lshl_add_u32 v{VVR+j}, v{T+12}, 6, v{T+11}")
    a("s_lshl_b32 s51, s3, 4")
    a("s_and_b32 s52, s40, 2"); a("s_lshl_b32 s52, s52, 5"); a("s_or_b32 s51, s51, s52")
    a(f"v_and_b32 v{T+12}, 8, v0"); a(f"v_lshl_add_u32 v{T+14}, v{T+12}, 3, v{T+14}")
    a(f"v_xor_b32 v{T+14}, s51, v{T+14}")
    a(f"v_lshl_add_u32 v{T+14}, v{T+13}, 7, v{T+14}")
    a(f"v_add_u32 v{VWA}, s49, v{T+14}")
    a(f"v_xor_b32 v{VWB}, 64, v{VWA}")
    end("L2")
    a(f"v_lshl_add_u32 v{T+11}, v{hh_}, 3, v{rr}")
    a(f"v_lshl_add_u32 v{T+11}, v{T+11}, 8, v{dh}")
    a(f"v_xor_b32 v{T+12}, s3, v{rr}")
    a(f"v_lshl_add_u32 v{T+11}, v{T+12}, 6, v{T+11}")
    a(f"v_and_b32 v{T+12}, 1, v0"); a(f"v_lshl_add_u32 v{T+11}, v{T+12}, 4, v{T+11}")
    a(f"v_and_b32 v{T+12}, 2, v0"); a(f"v_lshl_add_u32 v{T+11}, v{T+12}, 2, v{T+11}")
    a(f"v_add_u32 v{VWR}, 16384, v{T+11}")
    a(f"v_add_u32 v{VWR+1}, {16384+65536}, v{T+11}")
    a(f"v_lshlrev_b32 v{VL16}, 4, v0")
    a(f"v_add_u32 v{VQR}, {QAREA}, v{VL16}")
    beg("L3")
    a(f"v_lshlrev_b32 v{VMX}, 4, v{l31}")
    a(f"v_add_u32 v{VMX}, {MISC}, v{VMX}")
    a(f"v_mov_b32 v{MS[0]}, 0xff800000"); a(f"v_mov_b32 v{MS[1]}, 0xff800000")
    a("s_mov_b32 s76, 0")
    a("s_lshl_b32 s51, s41, 5"); a("s_add_u32 s51, s51, s43"); a("s_lshl_b32 s51, s51, 2"); a("s_add_u32 s51, s51, s3")
    a("s_lshl_b32 s51, s51, 3"); a(f"s_add_u32 s77, s51, {FL_OFF}")
    a("s_andn2_b32 s51, s2, 6"); a("s_lshl_b32 s51, s51, 7"); a("s_lshl_b32 s52, s3, 5"); a("s_add_u32 s51, s51, s52"); a(f"s_add_u32 s75, s51, {FL_OFF + 0x4000}")
    a("s_and_b32 s78, s40, 6"); a("s_lshl_b32 s78, s78, 2"); a("s_lshl_b32 s51, s3, 1"); a("s_add_u32 s78, s78, s51")
    a("s_and_b32 s79, s40, 1"); a("s_lshl_b32 s79, s79, 2"); a("s_add_u32 s79, s79, s42")
    a("s_lshl_b32 s51, s78, 17"); a("s_lshl_b32 s52, s79, 7"); a("s_add_u32 s51, s51, s52")
    a("s_add_u32 s36, s12, s51"); a("s_addc_u32 s37, s13, 0"); a("s_and_b32 s37, s37, 0xffff")
    a("s_sub_u32 s38, 0x400000, s51"); a("s_mov_b32 s39, 0x20000")
    end("L3")
    beg("L4")
    a.c('constants used after the q projection: identity A fragments (v2..v9) for the bf16 cross-wave reduction,')
    a.c('selector fragments (a116..a123) for the row sums')
    a(f"v_bfe_u32 v{T+7}, v0, 2, 1")
    a(f"v_bfe_u32 v{T+11}, v0, 3, 2")
    a(f"v_bfe_u32 v{T+12}, v0, 1, 1")
    a(f"v_lshl_add_u32 v{T+11}, v{T+11}, 1, v{T+12}")
    a(f"v_xor_b32 v{T+7}, v{T+7}, v{hh_}")
    a(f"v_lshl_add_u32 v{T+11}, v{T+7}, 4, v{T+11}")
    a(f"v_and_b32 v{T+12}, 1, v0"); a(f"v_lshlrev_b32 v{T+12}, 4, v{T+12}")
    a(f"v_mov_b32 v{T+7}, 0x3f80")
    a(f"v_lshlrev_b32 v{T+12}, v{T+12}, v{T+7}")
    msk = [80, 82, 84, 86, 94, 96, 98, 100]
    for k in range(8): a(f"v_cmp_eq_u32 s[{msk[k]}:{msk[k]+1}], {k}, v{T+11}")
    for k in range(4): a(f"v_mov_b32 v{VZ+k}, 0")
    for k in range(8): a(f"v_cndmask_b32 v{2+k}, 0, v{T+12}, s[{msk[k]}:{msk[k]+1}]")
    if MSUM:
        a(f"v_and_b32 v{T+7}, 1, v{r4}"); a(f"v_xor_b32 v{T+7}, v{T+7}, v{c16}")
        a(f"v_cmp_eq_u32 s[80:81], 0, v{T+7}"); a(f"v_cmp_eq_u32 s[82:83], 2, v{T+7}")
        a(f"v_mov_b32 v{T+12}, 0x3f803f80"); a("s_nop 0")
        a(f"v_cndmask_b32 v{T+7}, 0, v{T+12}, s[80:81]"); a(f"v_cndmask_b32 v{T+11}, 0, v{T+12}, s[82:83]")
        for k in range(4):
            a(f"v_accvgpr_write_b32 a{116+k}, v{T+7}"); a(f"v_accvgpr_write_b32 a{120+k}, v{T+11}")
    end("L4")
    z = R("v", VZ, 4)
    zmf = [mf32(O_(qb, j), z, z, "0") for qb in range(2) for j in range(4)]
    for _ in range(opt.get("wu", 0)):
        a(mf32(O_(0, _ % 8 // 2), R("v", VKR, 4), R("v", VKD, 4), O_(0, _ % 8 // 2)))
    beg("L5")
    a.c('O accumulators v128..v255 := 0')
    emit(zmf)
    end("L5")
    emit(qdma(2)); vm += ["c2"]*6

    kvq = opt.get("kvq", {5: ["K0a"], 6: ["K0b"], 7: ["V0a"], 8: ["V0b"]})
    K0 = dma_k(0); V0 = dma_v(0)
    grp = {"K0a": nexttile() + K0[:5], "K0b": K0[5:], "V0a": V0[:5], "V0b": V0[5:]}
    def kv(c):
        out = []
        for g in kvq.get(c, []):
            out += grp[g]; vm.extend([g[:2]]*4)
        return out
    LAG = opt.get("lag", 1)
    QB = [0, 48, 128, 176][:LAG + 1]
    def qreads(c):
        j = c % 4; base = QB[c % len(QB)]; out = []
        for s in range(4):
            b = base + 12*s
            wreg = VWR + (j >> 1); wo = (j & 1) * 32768
            out.append(f"ds_read_b64_tr_b16 a[{b}:{b+1}], v{wreg} offset:{wo + (16*s)*256}")
            out.append(f"ds_read_b64_tr_b16 a[{b+2}:{b+3}], v{wreg} offset:{wo + (16*s+4)*256}")
            out.append(f"ds_read_b128 a[{b+4}:{b+7}], v{VXR+s} offset:{j*8192}")
            out.append(f"ds_read_b128 a[{b+8}:{b+11}], v{VXR+s} offset:{j*8192+4096}")
        return out
    def qmf(c):
        base = QB[c % len(QB)]; out = []
        for s in range(4):
            b = base + 12*s
            for qb in range(2):
                cin = "0" if (c == 0 and s == 0) else R("v", S0[qb], 16)
                out.append(mf32(R("v", S0[qb], 16), R("a", b, 4), R("a", b+4+4*qb, 4), cin))
        return out
    def nwait(tag):
        last = max(i for i, x in enumerate(vm) if x == tag)
        return len(vm) - 1 - last
    emit(fs())
    for c in range(8):
        a(f"s_waitcnt vmcnt({nwait(f'c{c}')})")
        a("s_barrier")
        emit(fs(c == 0))
        seq = qreads(c)
        ld = []
        if c + 3 < 8:
            ld += qdma(c + 3); vm += [f"c{c+3}"]*6
        ld += kv(c)
        if c in opt.get("slp", {}): ld += [f"s_sleep {opt['slp'][c]}"]
        if c < LAG:
            emit(seq + ld)
        else:
            mf = qmf(c - LAG)
            if opt.get("nomf") and c < 5: mf = ["s_nop 0"]*8
            if opt.get("nord") and c < 5: seq = []
            gaps = spread(8, [(0, 4, seq), (1, 8, ld)])
            s2 = []
            for i in range(8):
                s2 += gaps[i]; s2.append(mf[i])
            emit(s2)
        for b_ in LATEP.get(c, []): a.lines += blocks[b_]
        if c in opt.get("pre", {}):
            role, gl = opt["pre"][c]
            a(f"s_cmp_lg_u32 s42, {role}"); a(f"s_cbranch_scc1 L_np{c}")
            a(f"s_and_b32 s54, s60, {TM}")
            for g in gl: emit([x for x in grp[g] if not x.startswith(("s_and_b32 s54", "s_lshr_b64"))])
            a.label(f"L_np{c}")
        a("s_waitcnt lgkmcnt(0)")
    for c in range(8 - LAG, 7): emit(qmf(c))
    def kreads(slot): return [f"ds_read_b128 {Kf(s)}, v{VKR+s} offset:{slot*16384}" for s in range(8)]
    def vreads(slot):
        return [f"ds_read_b64_tr_b16 {Vfh(st,j,u)}, v{VVR+j} offset:{slot*16384 + 8192 + (16*st+8*u)*256}" for st in range(2) for j in range(4) for u in range(2)]
    a.c('scale Q by log2(e)/sqrt(128), round to bf16, exchange the fragments through LDS')
    m7 = qmf(7)
    m7 = m7[0::2] + m7[1::2]
    def qfin(qb):
        out = [f"v_pk_mul_f32 v[{S0[qb]+r}:{S0[qb]+r+1}], v[{S0[qb]+r}:{S0[qb]+r+1}], v[14:15] op_sel_hi:[1,0]" for r in range(0, 16, 2)]
        out += [f"v_cvt_pk_bf16_f32 v{P0[qb]+r}, v{S0[qb]+2*r}, v{S0[qb]+2*r+1}" for r in range(8)]
        out += [f"ds_write_b128 v12, v[{P0[qb]+4*sp}:{P0[qb]+4*sp+3}] offset:{qb*8192 + sp*1024}" for sp in range(2)]
        return out
    EB = opt.get("eb", 0)
    if EB: a("s_barrier")
    l8 = kv(8)
    if EB:
        l8 += nexttile() + dma_k(1)[:5*EB]; vm.extend(["K1"]*(4*EB))
    f0 = qfin(0)
    if opt.get("qm"):
        f0 = [f"v_mul_f32 v{S0[0]+r}, v14, v{S0[0]+r}" for r in range(16)] + f0[8:]
    emit(merge(m7, spread(8, [(0, 2, [f"v_mov_b32 v14, {hex(f2u(C_SCALE))}", "s_lshl_b32 s51, s3, 11", f"v_add_u32 v12, s51, v{VQR}"]), ((5, 7, f0[:12]) if opt.get("qm") else (6, 7, f0[:6])), (7, 8, f0[12:] if opt.get("qm") else f0[6:])])))
    if opt.get("l8s"):
        q1_ = qfin(1)
        emit(merge(q1_, spread(len(q1_), [(0, len(q1_), l8)])))
    else:
        emit(qfin(1))
        emit(l8)

    def qk(qb, first=False):
        return [mf32(R("v", S0[qb], 16), Kf(s), Q_(qb, s), ("0" if first else R("v", NM[qb], 16)) if s == 0 else R("v", S0[qb], 16)) for s in range(8)]
    def pv(qb, order1=(0, 1, 2, 3)):
        return [mf32(O_(qb, j), Vf(0, j), R("v", P0[qb], 4), O_(qb, j)) for j in range(4)] + \
               [mf32(O_(qb, j), Vf(1, j), R("v", P0[qb]+4, 4), O_(qb, j)) for j in order1]
    def ex(qb, r): return f"v_exp_f32 v{S0[qb]+r}, v{S0[qb]+r}"
    PK = opt.get("pk", 0)
    def msum(qb, st): return f"v_mfma_f32_16x16x32_bf16 a[112:115], a[{116+4*qb}:{119+4*qb}], v[{P0[qb]+4*st}:{P0[qb]+4*st+3}], a[112:115]"
    LP = [96, 124]
    def ad(qb, r):
        if MSUM: return None
        if not PK: return f"v_add_f32 v{L_[qb]}, v{L_[qb]}, v{S0[qb]+r}"
        if r % 2 == 0: return None
        return f"v_pk_add_f32 v[{LP[qb]}:{LP[qb]+1}], v[{LP[qb]}:{LP[qb]+1}], v[{S0[qb]+r-1}:{S0[qb]+r}]"
    def cv(qb, i): return f"v_cvt_pk_bf16_f32 v{P0[qb]+i}, v{S0[qb]+2*i}, v{S0[qb]+2*i+1}"

    emit(fs(True))
    a("s_waitcnt lgkmcnt(0)")
    a.c('---- attention: wave w owns keys [256w, 256w+256), all 64 query rows; S^T = K Q^T, O^T += V^T P^T ----')
    a.label("L_att")
    a("s_barrier")
    qr = [f"ds_read_b128 {Q_(qb,s)}, v{VQR} offset:{(qb*8+s)*1024}" for qb in range(2) for s in range(8)]
    emit(qr[:8])
    a(f"s_waitcnt vmcnt({nwait('K0')})")
    emit(fs())
    emit(kreads(0))
    if MSUM:
        for k in range(4): a(f"v_accvgpr_write_b32 a{112+k}, 0")
    else:
        a(f"v_mov_b32 v{L_[0]}, 0"); a(f"v_mov_b32 v{L_[1]}, 0")
    K1 = nexttile() + dma_k(1); V1 = dma_v(1)
    mf = qk(0, True) + qk(1, True)
    def inmax(qb, t):
        s = S0[qb]; out = [f"v_max3_f32 v{t}, v{s}, v{s+1}, v{s+2}"]
        for r in range(3, 15, 2):
            out.append(f"v_max3_f32 v{t}, v{t}, v{s+r}, v{s+r+1}")
        out.append(f"v_max_f32 v{t}, v{t}, v{s+15}")
        return out
    vr0 = vreads(0)
    nq = 8
    if EB:
        seq_ = (dma_k(1) + dma_v(1))[5*EB:]
        K1 = [None, None] + seq_[:10]; V1 = seq_[10:] + [None]*(5*EB)
    emit([x for x in K1[:4] if x])
    gaps = spread(16, [(0, 4, qr[8:]), (0, 14, K1[4:]), (10, 14, inmax(0, 124))])
    emit(merge(mf, gaps, pre={0: ["s_waitcnt lgkmcnt(4)"], 4: ["s_waitcnt lgkmcnt(8)"], 8: ["s_waitcnt lgkmcnt(0)"]}))
    a.c('softmax shift m = true row max over the first key tile of all 4 waves (or the exact row max v122/v123 after the fallback);')
    a.c('it enters every later QK tile as the MFMA C operand (-m); the row sums are checked at the end')
    a("s_lshl_b32 s51, s3, 2"); a(f"s_add_u32 s51, s51, {MISC}")
    a(f"v_add_u32 v12, s51, v{VL16}")
    emit([x for x in V1[:2] if x])
    a("s_nop 5" if V1[0] else "s_nop 8")
    emit(inmax(1, 125))
    a("s_nop 1")
    a("v_permlane32_swap_b32 v124, v125")
    a("s_nop 0")
    a("v_max_f32 v124, v124, v125")
    a("ds_write_b32 v12, v124")
    emit([x for x in V1[2:3] if x])
    a("s_waitcnt lgkmcnt(0)"); a("s_barrier")
    a(f"ds_read_b128 v[{NM[0]}:{NM[0]+3}], v{VMX}")
    a(f"ds_read_b128 v[{NM[1]}:{NM[1]+3}], v{VMX} offset:512")
    emit(fs())
    a(f"s_waitcnt vmcnt({nwait('V0') + (10 if V1[0] else 8)})")
    emit(vr0[:8])
    a("s_waitcnt lgkmcnt(8)")
    for qb in range(2):
        n = NM[qb]
        a(f"v_max3_f32 v{124+qb}, v{n}, v{n+1}, v{MS[qb]}")
        a(f"v_max3_f32 v{124+qb}, v{n+2}, v{n+3}, v{124+qb}")
    for qb in range(2):
        a(f"v_sub_f32 v{NM[qb]}, 0, v{124+qb}")
        a(f"v_sub_f32 v{NM[qb]+1}, 0, v{124+qb}")
    body_a = [f"v_pk_add_f32 v[{S0[0]+r}:{S0[0]+r+1}], v[{S0[0]+r}:{S0[0]+r+1}], v[{NM[0]}:{NM[0]+1}]" for r in range(0, 16, 2)]
    for r in range(15):
        body_a.append(ex(0, r))
        if r >= 1: body_a.append(ad(0, r-1))
        if r >= 2 and r % 2 == 0: body_a.append(cv(0, (r-2)//2))
    body_a += [f"v_pk_add_f32 v[{S0[1]+r}:{S0[1]+r+1}], v[{S0[1]+r}:{S0[1]+r+1}], v[{NM[1]}:{NM[1]+1}]" for r in range(0, 16, 2)]
    body_a += [f"v_pk_mov_b32 v[{NM[qb]+r}:{NM[qb]+r+1}], v[{NM[qb]}:{NM[qb]+1}], v[{NM[qb]}:{NM[qb]+1}]" for qb in range(2) for r in range(2, 16, 2)]
    n = len(body_a)
    if PK: a("v_mov_b32 v124, 0"); a("v_mov_b32 v125, 0")
    SH0 = opt.get("sh", 0)
    extra = (nexttile() + dma_k(0)[:5*SH0]) if SH0 > 0 else []
    emit(merge(body_a, spread(n, [(0, n - 4, (V1[3:] if SH0 >= 0 else V1[3:5]) + extra), (4, 30, vr0[8:(15 if opt.get("vg", [32])[-1] >= 32 else 16)])])))

    wo_slot = opt.get("wslot", [0, 4096, 8192, 12288, "X", 28672, 0, 4096])
    def wo_group(g):
        out = [f"s_add_u32 m0, s49, {wo_slot[g]}" if wo_slot[g] != "X" else "s_mov_b32 m0, s87"]
        out += [f"buffer_load_dwordx4 v{VKD+i}, s[36:39], s84 offen offset:{1024*i} lds" for i in range(4)]
        out += ["s_add_u32 s84, s84, 0x8000", "s_and_b32 s84, s84, 0x3ffff"]
        return out
    def wo_reads(g):
        out = []
        X = wo_slot[g] == "X"
        for s2_ in range(2):
            s = 2*g + s2_
            for ci in range(2):
                for u in range(2):
                    d = (s*2 + ci)*4 + 2*u
                    r_ = (117 if ci else 116) if X else (VWB if ci else VWA)
                    out.append(f"ds_read_b64_tr_b16 a[{d}:{d+1}], v{r_} offset:{(0 if X else wo_slot[g]) + (16*s2_ + 8*u)*128}")
        return out
    wpos = opt.get("wpos", {"i6": [(2, 10), (12, 20), (22, 30)], "f1": 0, "f2": 0, "f4": 1})
    wcnt = [0]
    def wnext(n=1):
        out = []
        for _ in range(n):
            out += wo_group(wcnt[0]); wcnt[0] += 1
        return out

    def body(par, kind):
        SH = opt.get("sh", 0)
        mf = pv(0) + qk(0) + pv(1) + qk(1)
        G = [[] for _ in range(32)]
        for r in range(16):
            G[(1 + r) % 32].append(ex(1, r)); G[(17 + r) % 32].append(ex(0, r))
        for r in range(16):
            o_ = 1 if (PK == 2 and r < 15) else 0
            G[(2 + r + o_) % 32].append(ad(1, r)); G[(18 + r + (o_ if r < 13 else 0)) % 32].append(ad(0, r))
        for i in range(8):
            G[(3 + 2*i) % 32].append(cv(1, i)); G[(19 + 2*i) % 32].append(cv(0, i))
        vr_prev = vreads(par); vr = vreads(1 - par); kr = kreads(1 - par)
        kg = opt.get("kg", [1, 2, 3, 4, 5, 6, 7, 8])
        if kg[0] == 1: G[0].append("WAITK")
        vg = opt.get("vg", list(range(17, 33)))
        dsg = [[] for _ in range(32)]
        for i in range(16):
            if vg[i] >= 32: dsg[vg[i] - 32].append(vr_prev[i])
        for s in range(8): dsg[kg[s]].append(kr[s])
        for i in range(16):
            if vg[i] < 32: dsg[vg[i]].append(vr[i])
        for g_ in range(32):
            if opt.get("dslast"): G[g_] += dsg[g_]
            elif g_ == 0: G[0] = [x for x in dsg[0] if x in vr_prev] + G[0] + [x for x in dsg[0] if x not in vr_prev]
            else: G[g_] = dsg[g_] + G[g_]
        nv0 = sum(1 for i in range(8, 16) if vg[i] < 32)
        cnt = lambda g_: sum(1 for s in range(8) if kg[s] < g_)
        pre = {}
        lw = opt.get("lw", 0)
        if lw == 0:
            pre = {0: [f"s_waitcnt lgkmcnt({nv0})"], 4: [f"s_waitcnt lgkmcnt({cnt(4)})"], 8: [f"s_waitcnt lgkmcnt({cnt(8) - 4})"], 12: ["s_waitcnt lgkmcnt(0)"]}
        elif lw == 1:
            assert nv0 == 8 and cnt(8) == 8
            pre = {0: ["s_waitcnt lgkmcnt(0)"], 8: ["s_waitcnt lgkmcnt(0)"]}
        elif lw == 2:
            assert cnt(8) == 8
            pre = {0: [f"s_waitcnt lgkmcnt({nv0})"], 4: [f"s_waitcnt lgkmcnt({cnt(4)})"], 8: ["s_waitcnt lgkmcnt(0)"]}
        if MSUM:
            mp = opt.get("mp", [1, 5, 17, 21])
            for (pos_, qb_, st_) in zip(mp, (0, 0, 1, 1), (0, 1, 0, 1)):
                pre.setdefault(pos_, []); pre[pos_] = pre[pos_] + [msum(qb_, st_)]
        if kind == "dma":
            allg = [("V", 1 - par, 1), ("K", par, 0), ("K", par, 1), ("V", par, 0), ("V", par, 1), ("K", 1 - par, 0), ("K", 1 - par, 1)]
            grpz = allg[1 + SH: 5 + SH]
            pos = [(1, [2, 4, 6, 8]), (9, [10, 12, 14, 16]), (17, [18, 20, 22, 24]), (25, [26, 28, 30, 31])]
            for gi, (kd, sl, hf) in enumerate(grpz):
                d_ = (dma_k(sl) if kd == "K" else dma_v(sl))[5*hf:5*hf+5]
                if kd == "K" and hf == 0:
                    if gi == 0: pre[0] = [f"s_and_b32 s54, s60, {TM}"] + pre[0]
                    else: G[pos[gi][0]].append(f"s_and_b32 s54, s60, {TM}")
                    G[(pos[gi][0] + 2) % 32 if gi else 11].append("s_lshr_b64 s[60:61], s[60:61], 4")
                G[pos[gi][0]].append(d_[0])
                for i in range(4): G[pos[gi][1][i]].append(d_[1 + i])
            G[vg[0] - 1].append("WAITV")
            if kg[0] > 1: G[kg[0] - 1].append("WAITK")
            if par == 1:
                G[13].append(f"buffer_load_dword v{VCNT}, v{125 if xl == 2 else VT}, s[68:71], s72 offen sc1")
                G[15].append("s_add_u32 s56, s56, 1")
        else:
            pat = [f"v_mov_b32 v{VKD}, v{VOD0}"] + [f"v_add_u32 v{VKD+i}, {7168*i}, v{VOD0}" for i in range(1, 4)]
            gw = spread(32, [(0, 2, pat)] + ([(1, 6, dma_v(1)[5:])] if SH < 0 else []) + [(g0, g1, wnext()) for (g0, g1) in wpos["i6"]])
            for i in range(32): G[i] += gw[i]
            G[vg[0] - 1].append("WAITV")
            if kg[0] > 1: G[kg[0] - 1].append("WAITK")
            adr = []
            for j in range(1, 4):
                adr += [f"s_sub_u32 s52, s3, {j}", "s_and_b32 s52, s52, 3", "s_lshl_b32 s52, s52, 15", f"v_add_u32 v{100+j}, s52, v{VL16}"]
            adr += [f"v_add_u32 v12, s49, v{VL16}", "s_lshl_b32 s51, s3, 2", f"s_add_u32 s51, s51, {MISC+1024}", f"v_add_u32 v14, s51, v{VL16}",
                    "s_lshl_b32 s51, s41, 9", "s_lshl_b32 s52, s43, 3", "s_add_u32 s51, s51, s52", "s_lshl_b32 s52, s3, 1", "s_add_u32 s51, s51, s52",
                    "s_lshl_b32 s51, s51, 10", "s_add_u32 s52, s51, 262144", f"v_readfirstlane_b32 s73, v{VCNT}", f"s_mov_b32 s53, {hex(f2u(LIMIT))}"]
            if xl == 2:
                adr.remove(f"v_readfirstlane_b32 s73, v{VCNT}")
                pre_ = ["s_lshl_b32 s44, s41, 9", "s_lshl_b32 s45, s43, 3", "s_add_u32 s44, s44, s45", "s_lshl_b32 s45, s3, 1", "s_add_u32 s44, s44, s45",
                        "s_lshl_b32 s44, s44, 10", "s_add_u32 s44, s44, s46", "v_and_b32 v124, 31, v0", "v_lshlrev_b32 v124, 6, v124",
                        f"v_lshrrev_b32 v{VCNT}, 5, v0", f"v_lshl_add_u32 v124, v{VCNT}, 18, v124", "s_add_u32 s48, s77, s46",
                        f"buffer_load_dword v{VCNT}, v124, s[64:67], s44 offen sc1", f"buffer_load_dword v{VCNT}, v{VT}, s[64:67], s48 offen sc1",
                        "s_add_u32 s45, s44, 262144"]
                gp = spread(32, [(0, 6, pre_)])
                for i in range(32): G[i] += gp[i]
                adr += ["s_add_u32 s51, s51, s47", "s_add_u32 s52, s52, s47"]
            ga = spread(32, [(8, 26, adr)])
            for i in range(32): G[i] += ga[i]
        seq = fs() + merge(mf, G, pre)
        issued = 0; out = []
        for x in seq:
            if x == "WAITK": out.append(f"s_waitcnt vmcnt({8 + 4*SH + issued})")
            elif x == "WAITV": out.append(f"s_waitcnt vmcnt({4*SH + issued})")
            else:
                if x.startswith("buffer_load"): issued += 1
                out.append(x)
        return out
    rot = opt.get("rot", 1)
    if rot in (5, 6):
        a("s_add_u32 s80, s42, s41" if rot == 5 else "s_mov_b32 s80, s41")
        a("s_mul_i32 s51, s80, 86"); a("s_lshr_b32 s51, s51, 8"); a("s_mul_i32 s51, s51, 3"); a("s_sub_u32 s80, s80, s51"); a("s_mul_i32 s80, s80, 3")
    elif rot == 3:
        a("s_add_u32 s80, s42, s41"); a("s_lshl_b32 s80, s80, 1"); a("s_and_b32 s80, s80, 7")
    elif rot == 4:
        a("s_lshl_b32 s80, s41, 1"); a("s_and_b32 s80, s80, 7")
    elif rot == 2:
        if xl:
            a("s_lshl_b32 s80, s41, 1"); a("s_add_u32 s80, s80, s43"); a("s_and_b32 s80, s80, 7")
        else:
            a("s_lshl_b32 s80, s42, 1"); a("s_add_u32 s80, s80, s41"); a("s_and_b32 s80, s80, 7")
    else:
        a("s_mov_b32 s80, s41" if rot else "s_mov_b32 s80, 0")
    a("s_lshl_b32 s84, s80, 15")
    a("s_lshl_b32 s87, s3, 12"); a(f"s_add_u32 s87, s87, {XB}")
    a("s_mov_b32 s86, s75")
    if opt.get("warm", 1):
        a("s_mov_b64 exec, 1")
        a(f"buffer_atomic_or v{VT}, v{VT}, s[64:67], s77 offen sc1")
        a(f"buffer_atomic_or v{VT}, v{VT}, s[64:67], s86 offen sc1")
        a("s_mov_b64 exec, -1")
    if xl == 2:
        a("s_and_b32 s51, s40, 6"); a("s_lshl_b32 s51, s51, 1"); a("s_add_u32 s51, s51, 4")
        a("v_min_u32 v125, 1, v0"); a("v_mul_u32_u24 v125, s51, v125")
        a("s_getreg_b32 s58, hwreg(HW_REG_XCC_ID, 0, 3)")
        a("s_lshl_b32 s58, s58, 2")
        a("s_or_b32 s52, s3, s76")
        a("s_cbranch_scc1 L_nocen")
        a("s_lshl_b32 s52, 1, s58")
        a("v_mov_b32 v124, s52")
        a("s_mov_b64 exec, 2")
        a("buffer_atomic_add v124, v125, s[68:71], s72 offen sc1")
        a("s_mov_b64 exec, -1")
        a.label("L_nocen")
    a("s_mov_b32 s56, 0")
    if "al" in opt:
        a(".p2align 6")
        for _ in range(opt["al"]): a("s_nop 0")
    a.c('steady loop, two tiles per trip: PVa(t) QKa(t+1) PVb(t) QKb(t+1); exp/pack, K/V DMA and fragment reads sit in the MFMA gaps,')
    a.c('the 16x16x32 MFMAs accumulate the row sums of P')
    a.label("L_loop")
    emit(body(0, "dma"))
    emit(body(1, "dma"))
    a("s_cmp_lt_u32 s56, 3")
    a("s_cbranch_scc1 L_loop")
    if xl == 2:
        a("s_mov_b32 s93, 0x40000")
        a("s_waitcnt vmcnt(8)")
        a.label("L_cen")
        a(f"v_readlane_b32 s73, v{VCNT}, 0")
        a(f"v_readlane_b32 s59, v{VCNT}, 1")
        a("s_mul_i32 s57, s59, 0x11111111")
        a("s_lshr_b32 s57, s57, 28")
        a("s_cmp_eq_u32 s73, 0")
        a("s_cselect_b32 s57, 0, s57")
        a("s_cmp_eq_u32 s57, 8")
        a("s_cbranch_scc1 L_cenok")
        a(f"buffer_load_dword v{VCNT}, v125, s[68:71], s72 offen sc1")
        a("s_sub_u32 s93, s93, 1")
        a("s_waitcnt vmcnt(0)")
        a("s_cbranch_scc0 L_cen")
        a.label("L_cenok")
        a("s_lshl_b32 s57, 8, s58")
        a("s_cmp_eq_u32 s59, s57")
        if opt.get("forceslow"): a("s_cmp_eq_u32 0, 1")
        a("s_cselect_b32 s46, 0, 0x40000000")
        a("s_cselect_b32 s47, 0x40000000, 0")
    a.c('tile 6 / QK of tile 7; the Wo slice starts streaming into free ring slots')
    emit(body(0, "wo"))
    emit(fs())
    a.c('last PV, then reduce O across the 4 waves (bf16 partials via LDS, added by identity MFMAs)')
    mf = pv(0, (1, 2, 3, 0))
    G = [[] for _ in range(8)]
    VD = opt.get("vg", [32])[-1] >= 32
    G[0] += ([vreads(1)[15]] if VD else []) + [ex(0, 15), ad(0, 14)]
    G[1] += [ad(0, 15), cv(0, 7)]
    sm = []
    for r in range(16):
        sm.append(ex(1, r))
        if r >= 1: sm.append(ad(1, r-1))
        if r >= 2 and r % 2 == 0: sm.append(cv(1, (r-2)//2))
    tail_b = [ad(1, 15), cv(1, 7)]
    n1 = opt.get("n1", 28)
    wl = wnext(wpos["f1"])
    g2 = spread(8, [(1, 8, sm[:n1]), (1, 8, wl)])
    for i in range(8): G[i] += g2[i]
    emit(merge(mf, G, {0: [f"s_waitcnt lgkmcnt({7 if VD else 8})"], 1: [msum(0, 0)] if MSUM else [], 4: ["s_waitcnt lgkmcnt(0)"], 5: [msum(0, 1)] if MSUM else []}))
    def pack(qb, j): return [f"v_cvt_pk_bf16_f32 v{Oi(qb,j)+i}, v{Oi(qb,j)+2*i}, v{Oi(qb,j)+2*i+1}" for i in range(8)]
    def send(qb, j): return [f"ds_write_b128 v12, v[{Oi(qb,j)+4*sp}:{Oi(qb,j)+4*sp+3}] offset:{PART + ((j-1)*4 + qb*2 + sp)*1024}" for sp in range(2)]
    mf = pv(1, (1, 2, 3, 0))
    lst = (["v_add_f32 v96, v96, v97", "v_add_f32 v97, v124, v125", "s_nop 1"] if PK else []) + [f"v_permlane32_swap_b32 v{L_[0]}, v{L_[1]}", "s_nop 0", f"v_add_f32 v{L_[0]}, v{L_[0]}, v{L_[1]}", f"ds_write_b32 v14, v{L_[0]}"]
    pa = []
    for j in (1, 2, 3): pa += pack(0, j) + send(0, j)
    if MSUM:
        lst = ["s_mov_b64 exec, 0xffff"] + [f"ds_write_b32 v14, a{112+k} offset:{256*k}" for k in range(4)] + ["s_mov_b64 exec, -1"]
    G = spread(8, [(0, 2, sm[n1:] + ["s_nop 0"] + tail_b), (opt.get("pa0", 2), opt.get("pa1", 7), pa), ((6, 7, lst) if MSUM else (4, 5, lst)), (2, 8, wnext(wpos["f2"])), (7, 8, pack(1, 1) + (pack(1, 2) if opt.get("hp2") else []))])
    emit(merge(mf, G, {0: [msum(1, 0)], 3: [msum(1, 1)]} if MSUM else None))
    a("s_waitcnt lgkmcnt(0)")
    emit(fs())
    a("s_barrier")
    def rb(qb, j, sp): return 16 + ((qb*3 + j-1)*2 + sp)*4
    def prd(qb): return [f"ds_read_b128 v[{rb(qb,j,sp)}:{rb(qb,j,sp)+3}], v{100+j} offset:{PART + ((j-1)*4 + qb*2 + sp)*1024}" for j in range(1, 4) for sp in range(2)]
    def red(qb): return [mf32(O_(qb, 0), R("v", ID[sp], 4), R("v", rb(qb,j,sp), 4), O_(qb, 0)) for j in range(1, 4) for sp in range(2)]
    emit(prd(0))
    a(f"ds_read_b128 v[64:67], v{VMX} offset:1024")
    a(f"ds_read_b128 v[68:71], v{VMX} offset:1536")
    emit(send(1, 1) + ([] if opt.get("hp2") else pack(1, 2)) + send(1, 2))
    lsum = ["v_add_f32 v64, v64, v65", "v_add_f32 v66, v66, v67", "v_add_f32 v68, v68, v69", "v_add_f32 v70, v70, v71",
            "v_add_f32 v64, v64, v66", "v_add_f32 v68, v68, v70", "v_add_f32 v73, v64, v68",
            "v_cmp_nlt_f32 vcc, v73, s53", "v_rcp_f32 v64, v64", "v_rcp_f32 v68, v68"]
    chk = ["s_cmp_eq_u32 s76, 0", "s_cselect_b64 s[94:95], vcc, 0", "s_cmp_lg_u64 s[94:95], 0", "s_cbranch_scc1 L_fallback"]
    nb = opt.get("nb", 4)
    G = spread(6, [(0, 2, pack(1, 3) + send(1, 3)), (2, 4, lsum), (4, 6, wnext(wpos["f4"]))])
    G[nb - 1] += ["s_waitcnt lgkmcnt(0)", "s_barrier"] + prd(1)
    emit(merge(red(0), G, {0: ["s_waitcnt lgkmcnt(4)"]}))
    a.c('row sum >= 2^40 or not finite: the shift was unsafe -> redo with the exact row max')
    emit(chk)
    def fin(qb):
        o = Oi(qb, 0); g = 64 + 4*qb
        out = [f"v_pk_mul_f32 v[{o+r}:{o+r+1}], v[{o+r}:{o+r+1}], v[{g}:{g+1}] op_sel_hi:[1,0]" for r in range(0, 16, 2)]
        out += pack(qb, 0)
        out += [f"buffer_store_dwordx4 v[{o+4*sp}:{o+4*sp+3}], v{VL16}, s[64:67], {'s52' if qb else 's51'} offen offset:{sp*1024} sc1" for sp in range(2)]
        if xl == 2:
            out += [f"buffer_store_dwordx4 v[{o+4*sp}:{o+4*sp+3}], v{VL16}, s[64:67], {'s45' if qb else 's44'} offen offset:{sp*1024} {opt.get('fst', 'nt')}" for sp in range(2)]
        return out
    f0_ = [f"v_mul_f32 v{Oi(0,0)+r}, v64, v{Oi(0,0)+r}" for r in range(16)] + fin(0)[8:]
    emit(merge(red(1), spread(6, [(1, 6, f0_)]), {0: ["s_waitcnt lgkmcnt(4)"], 2: ["s_waitcnt lgkmcnt(0)"]}))
    a("s_sub_u32 s88, s87, s49")
    a(f"v_add_u32 v116, s88, v{VWA}"); a(f"v_add_u32 v117, s88, v{VWB}")
    a("v_and_b32 v14, 1, v0"); a("v_sub_u32 v14, 0, v14")
    a("v_and_b32 v12, 15, v0"); a("v_lshlrev_b32 v12, 2, v12")
    emit(fin(1))
    emit(fs())
    npre = wcnt[0]
    a.c('O (normalised, bf16, MFMA fragment layout) was stored write-through; publish a flag after the stores are acknowledged')
    if xl != 2:
        a("s_mov_b32 s93, 0x40000")
        a.label("L_tag")
        a("s_cmp_lg_u32 s73, 0")
        a("s_cbranch_scc1 L_tagok")
        a(f"buffer_load_dword v{VCNT}, v{VT}, s[68:71], s72 offen sc1")
        a("s_waitcnt vmcnt(0)")
        a(f"v_readfirstlane_b32 s73, v{VCNT}")
        a("s_sub_u32 s93, s93, 1")
        a("s_cbranch_scc0 L_tag")
        a.label("L_tagok")
    la = opt.get("late_a", 2)
    if opt.get("noack"):
        a("v_xor_b32 v105, s73, v14")
        a("s_mov_b64 exec, 3")
        a(f"buffer_atomic_swap v105, v12, s[64:67], s77 offen sc1")
        a("s_mov_b64 exec, -1")
    emit(wnext(la))
    a(f"s_waitcnt vmcnt({(5 if opt.get('noack') else 4) + 4*la})")
    for g in range(min(npre, 2)): emit(wo_reads(g))
    a("v_xor_b32 v14, s73, v14")
    a("s_lshl_b32 s51, s41, 5"); a("s_add_u32 s51, s51, s78"); a("s_lshl_b32 s51, s51, 5"); a(f"s_add_u32 s55, s51, {FL_OFF}")
    a("s_lshl_b32 s51, s41, 9"); a("s_lshl_b32 s52, s78, 3"); a("s_add_u32 s51, s51, s52"); a("s_lshl_b32 s51, s51, 10")
    a("s_add_u32 s32, s18, s51"); a("s_addc_u32 s33, s19, 0"); a("s_and_b32 s33, s33, 0xffff"); a("s_mov_b32 s34, 0x44000")
    a("s_and_b32 s52, s40, 4"); a("s_lshl_b32 s52, s52, 16")
    a(f"v_add_u32 v104, s52, v{VL16}")
    a(f"v_xor_b32 v105, 0x40000, v104")
    def pollops():
        o = [f"buffer_atomic_or v106, v12, s[64:67], {'s59' if xl == 2 else 's55'} offen sc0 sc1"]
        if xl == 2: o.append("buffer_load_dword v107, v12, s[64:67], s55 offen sc1")
        return o
    a("v_mov_b32 v106, 0")
    if xl == 2:
        a("s_add_u32 s59, s55, s47"); a("s_add_u32 s55, s55, s46"); a("s_add_u32 s77, s77, s47")
    if not opt.get("noack"):
        a(f"s_waitcnt vmcnt({4*la})")
        a("s_mov_b64 exec, 3")
        a(f"buffer_atomic_swap v14, v12, s[64:67], s77 offen sc1")
    a("s_mov_b64 exec, 0xffff")
    emit(pollops())
    a("s_mov_b64 exec, -1")
    emit(fs(True))
    nrest = min(8 - wcnt[0], opt.get("lb", 8))
    if wcnt[0] + nrest > 6: a("s_waitcnt lgkmcnt(0)")
    emit(wnext(nrest))
    for g in range(2, npre): emit(wo_reads(g))
    a("s_mov_b32 s93, 0x40000")
    a(f"s_waitcnt vmcnt({4*nrest})")
    for g in range(npre, npre + la): emit(wo_reads(g))
    a("s_mov_b64 exec, 0xffff")
    pp = opt.get("pp", 0)
    if not pp:
        a.label("L_poll")
        if xl == 2: a("v_or_b32 v106, v106, v107")
        a("v_cmp_ne_u32 vcc, v14, v106")
        a("s_cbranch_vccz L_pollend")
        a("v_mov_b32 v106, 0")
        emit(pollops())
        a("s_sub_u32 s93, s93, 1")
        a("s_waitcnt vmcnt(0)")
        a("s_cbranch_scc0 L_poll")
    else:
        pd = opt.get("pd", 2)
        regs = [106, 107, 108, 109][:pd]
        a("v_cmp_ne_u32 vcc, v14, v106")
        a("s_cbranch_vccz L_pollend")
        for x in regs: a(f"v_mov_b32 v{x}, 0")
        for x in regs[:-1]:
            a(f"buffer_atomic_or v{x}, v12, s[64:67], s55 offen sc0 sc1")
            a(f"s_sleep {pp}")
        a.label("L_poll")
        for i_ in range(pd):
            x = regs[(i_ - 1) % pd]; y = regs[i_]
            a(f"buffer_atomic_or v{x}, v12, s[64:67], s55 offen sc0 sc1")
            a(f"s_waitcnt vmcnt({pd - 1})")
            a(f"v_cmp_ne_u32 vcc, v14, v{y}")
            a("s_cbranch_vccz L_pollend")
            a(f"v_mov_b32 v{y}, 0")
        a("s_sub_u32 s93, s93, 1")
        a("s_cbranch_scc0 L_poll")
    a.label("L_pollend")
    a("s_mov_b64 exec, -1")
    emit(fs(True))
    a.c('---- output projection: tile 64 tokens x 64 cols x 1024 k per workgroup (wave = 2 heads); 4 workgroups share a tile ----')
    a("s_lshl_b32 s85, s80, 11")
    def oreg(i): return 128 + 4*i
    def oload(i):
        q = 1 - i // 16; s_ = i % 16
        o = [f"buffer_load_dwordx4 v[{oreg(i)}:{oreg(i)+3}], v{104+q}, s[32:35], s85 offen offset:{1024*(s_%2)} sc1"]
        if s_ % 2 == 1: o += ["s_add_u32 s85, s85, 2048", "s_and_b32 s85, s85, 0x3fff"]
        return o
    D = opt.get("odepth", 10)
    D0 = opt.get("d0", 6)
    nl2 = 8 - wcnt[0]
    late_reads = []; late2 = []
    for g in range(npre + la, wcnt[0]): late_reads += wo_reads(g)
    for g in range(wcnt[0], 8): late2 += wo_reads(g)
    vm0 = []
    for i in range(D):
        emit(oload(i)); vm0.append(("ld", i))
        if i == D0 - 1 and nl2:
            a("s_waitcnt lgkmcnt(0)")
            emit(wnext(nl2)); vm0 += [("w", 0)] * (4*nl2)
    def acc(j): return R("v", 16 + 16*j, 16)
    def omf(j, s_):
        i = (0 if j >> 1 else 16) + s_
        return mf32(acc(j), R("a", (s_*2 + (j & 1))*4, 4), R("v", oreg(i), 4), "0" if s_ == 0 else acc(j))
    NL = opt.get("nlag", 8)
    sched = []
    for s_ in range(16): sched += [(omf(3, s_), s_), (omf(2, s_), s_)]
    for s_ in range(16):
        sched.append((omf(1, s_), 16 + s_))
        if s_ < 16 - NL: sched.append((omf(0, s_), 16 + s_))
    nfirst = len(sched)
    for s_ in range(16 - NL, 16): sched.append((omf(0, s_), 16 + s_))
    misc = [f"v_add_u32 v12, s49, v{VL16}"] + [f"v_xor_b32 v{100+j}, {j << 15}, v12" for j in range(1, 4)]
    misc += ["v_mov_b32 v80, 0xff", "s_lshr_b32 s81, s73, 8", "s_lshr_b32 s82, s73, 16", "s_lshr_b32 s83, s73, 24"]
    for j in range(1, 4):
        misc += [f"s_xor_b32 s51, s2, {2*j}", "s_mul_i32 s51, s51, 12288", f"s_add_u32 s{93+j}, s51, {X_OFF + (j-1)*4096}"]
    misc += ["s_mul_i32 s51, s2, 12288", f"s_add_u32 s97, s51, {X_OFF}", "s_add_u32 s98, s97, 4096", "s_add_u32 s99, s97, 8192",
             "s_lshl_b32 s51, s3, 10", f"v_add_u32 v81, s51, v{VL16}",
             "s_mov_b32 s28, s14", "s_and_b32 s29, s15, 0xffff", "s_mov_b32 s30, 0x80000", "s_mov_b32 s31, 0x20000",
             "v_and_b32 v82, 31, v0", "v_lshlrev_b32 v82, 10, v82", "v_lshrrev_b32 v83, 5, v0", "v_lshl_add_u32 v82, v83, 3, v82",
             "s_lshl_b32 s50, s41, 16", "s_and_b32 s51, s40, 4", "s_lshl_b32 s51, s51, 13", "s_add_u32 s50, s50, s51",
             "s_lshl_b32 s51, s79, 7", "s_add_u32 s50, s50, s51", "s_and_b32 s51, s40, 2", "s_lshl_b32 s51, s51, 5", "s_add_u32 s50, s50, s51",
             "s_lshl_b32 s51, s3, 4", "s_add_u32 s50, s50, s51",
             "v_mov_b32 v84, 0x0c0c0400", "v_mov_b32 v85, 0x05040100",
             "s_and_b32 s52, s2, 6", "s_lshl_b32 s52, s52, 1", "s_add_u32 s88, s86, s52",
             "v_add_u32 v86, 1, v0", "v_lshlrev_b32 v86, 2, v86", "v_xor_b32 v86, s52, v86",
             "v_cmp_eq_u32 vcc, 0, v0", "v_mov_b32 v87, s73", "v_add_u32 v88, 16, v86", "v_cndmask_b32 v86, v86, v88, vcc"]
    CB = 0
    def wr(j): return [f"ds_write_b128 v12, v[{16+16*j+4*k}:{19+16*j+4*k}] offset:{CB + (j*3 + k-1)*1024}" for k in range(1, 4)]
    def rdd(j): return [f"ds_read_b128 v[{16+16*j+4*k}:{19+16*j+4*k}], v{100+k} offset:{CB + (j*3 + k-1)*1024}" for k in range(1, 4)]
    tg = ["s73", "s81", "s82", "s83"]
    def summ(j, pk):
        b = 16 + 16*j; out = []
        if pk:
            for p in (0, 2):
                out += [f"v_pk_add_f32 v[{b+p}:{b+p+1}], v[{b+p}:{b+p+1}], v[{b+4+p}:{b+5+p}]", f"v_pk_add_f32 v[{b+8+p}:{b+9+p}], v[{b+8+p}:{b+9+p}], v[{b+12+p}:{b+13+p}]"]
            for p in (0, 2):
                out += [f"v_pk_add_f32 v[{b+p}:{b+p+1}], v[{b+p}:{b+p+1}], v[{b+8+p}:{b+9+p}]"]
        else:
            for i in range(4): out += [f"v_add_f32 v{b+i}, v{b+i}, v{b+4+i}", f"v_add_f32 v{b+8+i}, v{b+8+i}, v{b+12+i}"]
            for i in range(4): out += [f"v_add_f32 v{b+i}, v{b+i}, v{b+8+i}"]
        if j:
            out += [f"v_bfi_b32 v{b+i}, v80, {tg[i]}, v{b+i}" for i in range(4)]
            out += [f"buffer_store_dwordx4 v[{b}:{b+3}], v81, s[64:67], s{93+j} offen sc1"]
        return out
    def hint(off):
        return ["s_mov_b64 exec, 1", f"buffer_atomic_swap v87, v{VT}, s[64:67], s88 offen offset:{off} sc1", "s_mov_b64 exec, -1"]
    n = len(sched)
    G = spread(n, [(0, 8, late_reads), (2, 30, misc), (34, 38, wr(3) + wr(2)),
                   (43, 50, ["s_waitcnt lgkmcnt(0)"] + summ(3, False) + summ(2, False)), (nfirst + 1, nfirst + 2, wr(1))])
    G[12].append("s_waitcnt lgkmcnt(0)")
    if nl2:
        g2r = spread(n, [(2*D0 + 1, 22, late2)])
        for i in range(n): G[i] += g2r[i]
        G[23].append("s_waitcnt lgkmcnt(0)")
    G[40] += ["s_waitcnt lgkmcnt(0)", "s_barrier"] + rdd(3) + rdd(2)
    G[50] += hint(0)
    g1 = min(n - 1, nfirst + 3)
    G[g1] += ["s_waitcnt lgkmcnt(0)", "s_barrier"] + rdd(1)
    g2_ = min(n - 1, nfirst + 5)
    s1 = ["s_waitcnt lgkmcnt(0)"] + summ(1, False)
    gg = spread(n, [(g2_, n, s1)])
    for i in range(n): G[i] += gg[i]
    G[n-1] += hint(16)
    vmq = list(vm0)
    issued = D; seen = -1
    for i, (m, need) in enumerate(sched):
        newload = False
        if need > seen:
            a(f"s_waitcnt vmcnt({len(vmq) - 1 - vmq.index(('ld', need))})" + (" lgkmcnt(0)" if i == 0 else ""))
            seen = need; newload = True
        a(m)
        if newload and issued < 32:
            emit(oload(issued)); vmq.append(("ld", issued)); issued += 1
        for x in G[i]:
            if x.startswith("buffer_"): vmq.append(("st", 0))
        emit(G[i])
    emit(fs(True))
    a.c('own 32x32 block: reduce over waves; partner partials arrive tagged (low byte of every word), hints only avoid early reads')
    a("v_mov_b32 v88, 0")
    a("s_mov_b64 exec, 7")
    a(f"buffer_atomic_or v88, v86, s[64:67], s86 offen sc0 sc1")
    a("s_mov_b64 exec, -1")
    a("s_nop 3")
    emit(wr(0))
    a("s_waitcnt lgkmcnt(0)"); a("s_barrier")
    emit(rdd(0))
    a("s_waitcnt lgkmcnt(0)")
    emit(summ(0, True))
    emit(fs(True))
    a("s_mov_b32 s93, 0x40000")
    a("s_mov_b64 exec, 7")
    if not opt.get("hp"):
        a("s_waitcnt vmcnt(0)")
        a.label("L_h")
        a("v_cmp_ne_u32 vcc, v87, v88")
        a("s_cbranch_vccz L_hend")
        a("v_mov_b32 v88, 0")
        a(f"buffer_atomic_or v88, v86, s[64:67], s86 offen sc0 sc1")
        a("s_sub_u32 s93, s93, 1")
        a("s_waitcnt vmcnt(0)")
        a("s_cbranch_scc0 L_h")
    else:
        a("v_mov_b32 v89, 0")
        a.label("L_h")
        for x, y in ((89, 88), (88, 89)):
            a(f"buffer_atomic_or v{x}, v86, s[64:67], s86 offen sc0 sc1")
            a("s_waitcnt vmcnt(1)")
            a(f"v_cmp_ne_u32 vcc, v87, v{y}")
            a("s_cbranch_vccz L_hend")
            a(f"v_mov_b32 v{y}, 0")
        a("s_sub_u32 s93, s93, 1")
        a("s_cbranch_scc0 L_h")
    a.label("L_hend")
    a("s_mov_b64 exec, -1")
    emit(fs(True))
    a("s_mov_b32 s93, 0x40000")
    a.label("L_x")
    for j in range(3):
        a(f"buffer_load_dwordx4 v[{32+4*j}:{35+4*j}], v81, s[64:67], s{97+j} offen sc1")
    a("s_waitcnt vmcnt(0)")
    for j in range(3):
        b = 32 + 4*j
        a(f"v_perm_b32 v{44+2*j}, v{b+1}, v{b}, v84")
        a(f"v_perm_b32 v{45+2*j}, v{b+3}, v{b+2}, v84")
    for j in range(3):
        a(f"v_perm_b32 v{44+2*j}, v{45+2*j}, v{44+2*j}, v85")
    for j in range(3):
        a(f"v_xor_b32 v{44+2*j}, s73, v{44+2*j}")
    a("v_or3_b32 v44, v44, v46, v48")
    a("v_cmp_ne_u32 vcc, 0, v44")
    a("s_cbranch_vccz L_xend")
    a("s_sub_u32 s93, s93, 1")
    a("s_cbranch_scc0 L_x")
    a.label("L_xend")
    emit(fs(True))
    for i in range(12): a(f"v_and_b32 v{32+i}, 0xffffff00, v{32+i}")
    for p in range(2):
        a(f"v_pk_add_f32 v[{16+2*p}:{17+2*p}], v[{16+2*p}:{17+2*p}], v[{32+2*p}:{33+2*p}]")
        a(f"v_pk_add_f32 v[{36+2*p}:{37+2*p}], v[{36+2*p}:{37+2*p}], v[{40+2*p}:{41+2*p}]")
    for p in range(2):
        a(f"v_pk_add_f32 v[{16+2*p}:{17+2*p}], v[{16+2*p}:{17+2*p}], v[{36+2*p}:{37+2*p}]")
    a("v_cvt_pk_bf16_f32 v16, v16, v17")
    a("v_cvt_pk_bf16_f32 v17, v18, v19")
    a("buffer_store_dwordx2 v[16:17], v82, s[28:31], s50 offen")
    if fine:
        a("s_waitcnt vmcnt(0)")
        emit(fs(True, True)); emit(fs(True, True))
        a("s_lshl_b32 s51, s2, 2"); a("s_add_u32 s51, s51, s3"); a("s_lshl_b32 s51, s51, 8"); a(f"s_add_u32 s51, s51, {ST_OFF}")
        a("v_lshlrev_b32 v6, 2, v0")
        a("buffer_store_dword v127, v6, s[64:67], s51 offen")
    a.label("L_end")
    a("s_endpgm")

    a.c('---- rare path: exact row max over all 1024 keys, then the attention is run again with it ----')
    a.label("L_fallback")
    a("s_mov_b32 s76, 1")
    a("s_waitcnt vmcnt(0) lgkmcnt(0)")
    a("s_barrier")
    for s in range(1, 4):
        a(f"v_xor_b32 v{VKR+s}, {32*s}, v{VKR}")
    for qb in range(2):
        for s_ in range(8):
            a(f"ds_write_b128 v{VQR}, {Q_(qb,s_)} offset:{(qb*8+s_)*1024}")
    a(f"v_subrev_u32 v{VKD}, 4096, v{VKD+4}")
    emit(kd_setup())
    a("s_mov_b32 s54, 0")
    a.label("L_fb_loop")
    emit(dma_k(0))
    a("s_waitcnt vmcnt(0)")
    emit(kreads(0))
    a("s_waitcnt lgkmcnt(0)")
    emit(qk(0, True) + qk(1, True))
    a("s_nop 15")
    for qb in range(2):
        for r in range(0, 16, 2):
            a(f"v_max3_f32 v{MS[qb]}, v{MS[qb]}, v{S0[qb]+r}, v{S0[qb]+r+1}")
    a(f"s_add_u32 s54, s54, {1 << TSH}")
    a(f"s_cmp_lt_u32 s54, {8 << TSH}")
    a("s_cbranch_scc1 L_fb_loop")
    a("s_nop 1")
    a(f"v_permlane32_swap_b32 v{MS[0]}, v{MS[1]}")
    a("s_lshl_b32 s51, s3, 2"); a(f"s_add_u32 s51, s51, {MISC+2048}")
    a(f"v_add_u32 v12, s51, v{VL16}")
    a(f"v_max_f32 v124, v{MS[0]}, v{MS[1]}")
    a("ds_write_b32 v12, v124")
    a("s_waitcnt lgkmcnt(0)"); a("s_barrier")
    a(f"ds_read_b128 v[16:19], v{VMX} offset:2048")
    a(f"ds_read_b128 v[20:23], v{VMX} offset:2560")
    a("s_waitcnt lgkmcnt(0)")
    for qb in range(2):
        a(f"v_max_f32 v{MS[qb]}, v{16+4*qb}, v{17+4*qb}")
        a(f"v_max3_f32 v{MS[qb]}, v{18+4*qb}, v{19+4*qb}, v{MS[qb]}")
    a("s_mov_b64 s[60:61], s[62:63]")
    emit(nexttile() + dma_k(0) + dma_v(0))
    if EB: emit(nexttile() + dma_k(1)[:5*EB])
    for k in range(4): a(f"v_mov_b32 v{VZ+k}, 0")
    a("s_nop 1")
    emit(zmf)
    a("s_waitcnt vmcnt(0)")
    a("s_branch L_att")
    return a.text()

def build(opt, fname):
    k = NAME + "_kernel"
    hdr = f"""; GQA block (B=8, Sq=64, D=512, Hq=32, Hkv=8, Sk=1024, Dh=128) as one fused kernel:
;   -> output projection split 4 ways over k, partial sums exchanged through d_ws.
; d_ws: [0,4M) O fragments, [4M,7M) output partials, [8M, 8M+48K) flags.  All hand-offs are device scope and carry a per-launch tag.
; @launch grid=(256,1,1) block=(256,1,1) lds=163840
.amdgcn_target "amdgcn-amd-amdhsa--gfx950"
"""
    txt = hdr + kernel_header(k) + gen(opt)
    txt += '.section .rodata,"a"\n.p2align 6\n' + kernel_desc(k, 512, 102, 256)
    open(fname, "w").write(txt)

L = [order(range(8))]*4
P = [order([0,1,2,3,4,5,6,7]), order([4,5,6,7,0,1,2,3])]*2
K6 = [order([0,1,2,3,4,5,6,7]), order([6,7,2,3,4,5,0,1])]*2
K5 = [order([0,1,2,3,4,5,6,7]), order([5,6,7,3,4,0,1,2])]*2
if __name__ == "__main__":
    B = {"orders": K5}
    B = dict(B, rot=2)
    W = lambda i6, f1, f2, f4: {"i6": i6, "f1": f1, "f2": f2, "f4": f4}
    B = dict(B, nb=6)
    K7 = [order([0,1,2,3,4,5,6,7]), order([7,1,2,3,4,5,6,0])]*2
    K6s = [order([0,1,2,3,4,5,6,7]), order([6,1,2,7,4,5,0,3])]*2
    K6l = [order([0,1,2,3,4,5,6,7]), order([0,1,2,3,6,7,4,5])]*2
    K5s = [order([0,1,2,3,4,5,6,7]), order([5,1,6,3,7,0,2,4])]*2
    R1 = [order(x) for x in ([0,2,1,3,4,6,5,7], [0,1,3,2,4,5,7,6], [1,0,2,4,3,5,6,7], [1,0,2,3,5,4,6,7])]
    R2 = [order(x) for x in ([0,2,1,6,3,4,5,7], [0,1,4,2,3,5,6,7], [1,3,0,7,2,4,5,6], [1,0,5,2,3,4,6,7])]
    R3 = [order(x) for x in ([0,2,1,3,6,4,5,7], [0,1,4,2,3,5,6,7], [1,3,0,2,4,7,5,6], [1,0,2,5,3,4,6,7])]
    R4 = [order(x) for x in ([0,3,1,2,4,7,5,6], [0,1,4,2,3,5,6,7], [1,0,2,5,3,4,6,7], [2,0,1,3,6,4,5,7])]
    R5 = [order(x) for x in ([0,4,1,2,3,5,6,7], [1,0,5,2,3,4,6,7], [2,0,1,6,3,4,5,7], [3,0,1,2,7,4,5,6])]
    R6 = [order(x) for x in ([0,1,4,2,3,5,6,7], [1,0,2,5,3,4,6,7], [2,0,1,3,6,4,5,7], [3,0,1,2,4,7,5,6])]
    B = dict(B, orders=R1)
    W = lambda i6, f1, f2, f4: {"i6": i6, "f1": f1, "f2": f2, "f4": f4}
    A0, A1, A2, A3 = R1
    R8 = [order(x) for x in ([0,2,1,3,6,4,5,7], [0,1,3,2,4,7,5,6], [1,0,2,4,3,5,6,7], [1,0,2,3,5,4,6,7])]
    R9 = [order(x) for x in ([0,2,1,3,4,6,5,7], [0,1,3,2,4,7,5,6], [1,0,2,4,3,5,6,7], [1,0,2,3,5,4,6,7])]
    P1 = [A0, A2, A1, A3]
    W5 = W([(1, 5), (24, 28), (28, 32)], 0, 0, 1)
    C = dict(B, orders=P1, wpos=W5, late_a=0, nb=4, nlag=6, pp=2)
    W0 = W([(2, 10), (12, 20), (22, 30)], 0, 0, 1)
    D_ = dict(C, wpos=W0, hp=1, pp=0, odepth=12)
    D_ = dict(D_, orders=R1)
    Wm = W([(8, 14), (16, 22), (24, 30)], 0, 0, 1)
    Q_3 = dict(D_, qr=3, orders=R3)
    R12 = [order(x) for x in ([0,2,1,3,6,5,7,4], [0,1,4,2,3,6,5,7], [1,3,0,4,2,7,6,5], [1,0,2,5,4,3,7,6])]
    Q_4 = dict(Q_3, qm=1)
    KV1 = {5: ["K0a", "K0b"], 6: ["V0a"], 7: ["V0b"]}
    M = dict(Q_4, msum=1, n1=33)
    F_ = dict(M, n1=38, pa0=0, pa1=6, hp2=1)
    K2 = [1, 1, 2, 2, 3, 3, 4, 4]; K3 = [1, 1, 3, 3, 5, 5, 6, 7]; K4 = [1, 2, 2, 3, 4, 4, 5, 6]
    V2 = [17, 18, 19, 19, 20, 21, 21, 22, 23, 23, 24, 25, 26, 27, 27, 28]
    V3 = [17, 18, 19, 20, 21, 22, 23, 23, 24, 25, 26, 27, 27, 28, 29, 30]
    K5_ = [3, 3, 4, 4, 5, 5, 6, 6]; K6_ = [2, 2, 3, 3, 4, 4, 5, 5]; K7_ = [4, 4, 5, 5, 6, 7, 8, 9]
    V4 = [21, 21, 22, 23, 23, 24, 25, 25, 26, 27, 27, 28, 29, 29, 30, 31]
    V5 = [23, 23, 24, 24, 25, 25, 26, 26, 27, 27, 28, 29, 29, 30, 31, 32]
    V6 = [19, 20, 21, 21, 22, 23, 23, 24, 25, 26, 27, 28, 29, 30, 31, 32]
    G_ = dict(F_, kg=K2, lw=2)
    R7 = [order(x) for x in ([0,1,3,2,4,5,7,6], [0,1,2,4,3,5,6,7], [0,2,1,3,5,4,6,7], [0,2,1,3,4,6,5,7])]
    R13 = [order(x) for x in ([0,1,2,3,4,7,5,6], [0,1,4,2,3,5,6,7], [0,2,1,5,3,4,6,7], [0,3,1,2,6,4,5,7])]
    R14 = [order(x) for x in ([0,1,2,4,3,5,6,7], [0,1,2,3,5,4,6,7], [0,1,3,2,4,6,5,7], [0,1,3,2,4,5,7,6])]
    R15 = [order(x) for x in ([0,1,3,2,4,5,6,7], [0,1,2,5,3,4,6,7], [0,2,4,1,3,7,5,6], [0,2,1,3,6,4,5,7])]
    H_ = dict(G_, orders=R7)
    H_ = dict(H_, rot=6)
    kvs = {"kv2": {4: ["K0a"], 5: ["K0b"], 6: ["V0a"], 7: ["V0b"]}, "kv3": {3: ["K0a"], 5: ["K0b"], 7: ["V0a"], 8: ["V0b"]},
           "kv4": {4: ["K0a"], 5: ["K0b"], 7: ["V0a"], 8: ["V0b"]}, "kv5": {3: ["K0a"], 5: ["K0b"], 6: ["V0a"], 7: ["V0b"]},
           "kv6": {2: ["K0a"], 5: ["K0b"], 6: ["V0a"], 7: ["V0b"]}, "kv7": {3: ["K0a", "K0b"], 5: ["V0a"], 6: ["V0b"]}, "kv8": {1: ["K0a"], 5: ["K0b"], 6: ["V0a"], 7: ["V0b"]}}
    Z_ = dict(H_, late2={3: ["L4"], 5: ["L5"]})
    V = {"a": Z_, "t1": dict(Z_, tx=1), "t3": dict(Z_, tx=3), "t4": dict(Z_, tx=4), "t6": dict(Z_, tx=6), "t7": dict(Z_, tx=7), "ilt3": dict(Z_, tx=3, il=1), "ilt1": dict(Z_, tx=1, il=1)}
    build(V["a"], "final.s")
```

```python
import sys, math, struct
from asmlib import *

C_SCALE = math.log2(math.e) / math.sqrt(128.0)
def f2u(f): return struct.unpack("<I", struct.pack("<f", f))[0]
def R(p, lo, n=4): return f"{p}[{lo}:{lo+n-1}]"
def mf(d, a, b, c): return f"v_mfma_f32_16x16x32_bf16 {d}, {a}, {b}, {c}"

def Oi(h, p): return 128 + (h*4+p)*16
def Q_(qq, s): return R("a", 128 + (qq*4+s)*4)
def Kf(s, kb): return 192 + (s*2+kb)*4
def Vf(j): return 224 + 4*j
S0 = [16, 32]; NM = 48; P0 = [80, 88]
LA = 96; SEL = 116
VCNT = 98; VT = 99
VKR = 100; VVR = 104; VKD = 112; VVD = 120
MS = 76; VWA = 8; VOD0 = 1
ID = [2, 4]
VL16 = 13; VQR = 15; VMX = 96
VXD = 48; VWD = 50; VXR = 54; VWR = 56; VZ = 60; T = 64
XB = 131072; QAREA = XB; MISC = XB + 16384
X_OFF = 0x400000; FL_OFF = 0x800000; ST_OFF = 0x810000
PART = 16384
LIMIT = 2.0 ** 40

def spread(n, fillers):
    gaps = [[] for _ in range(n)]
    for (g0, g1, lst) in fillers:
        k = max(1, len(lst))
        for i, x in enumerate(lst):
            gaps[g0 + (i * (g1 - g0)) // k].append(x)
    return gaps
def fix_m0(seq):
    out = []
    for i, x in enumerate(seq):
        out.append(x)
        if " m0," in x and i + 1 < len(seq) and seq[i+1].startswith("buffer_load"): out.append("s_nop 0")
    return out
def cost(x): return 8 if x.startswith(("v_exp", "v_rcp")) else 4
def merge(slots, gaps, pre=None, post=None):
    s = []
    for i, ms in enumerate(slots):
        if pre and i in pre: s += pre[i]
        if "|" in gaps[i]:
            k_ = gaps[i].index("|")
            s += [ms[0]] + gaps[i][:k_] + [ms[1]] + gaps[i][k_+1:]
            if post and i in post: s += post[i]
            continue
        items = list(gaps[i]); tot = sum(sum(map(cost, x)) if isinstance(x, list) else cost(x) for x in items)
        for k, m in enumerate(ms):
            s.append(m)
            if k == len(ms) - 1:
                take = items; items = []
            else:
                take = []; c = 0; lim = max(8, tot / len(ms))
                while items:
                    cc = sum(map(cost, items[0])) if isinstance(items[0], list) else cost(items[0])
                    if c + cc > lim: break
                    c += cc; take.append(items.pop(0))
            for x in take: s += x if isinstance(x, list) else [x]
        if post and i in post: s += post[i]
    return s
def order(l):
    v = 0
    for i, t in enumerate(l): v |= t << (4*i)
    return v

def gen(opt):
    a = Asm()
    fine = opt.get("fine")
    clk = "s_memtime" if fine == 2 else "s_memrealtime"
    def fs(sync=False, last=False):
        if not fine or (fine == 3 and not last): return []
        return (["s_waitcnt lgkmcnt(0)"] if sync else []) + ["s_mov_b32 s89, m0", "s_mov_b32 m0, s92", "s_add_u32 s92, s92, 1", "v_writelane_b32 v127, s90, m0", clk + " s[90:91]", "s_mov_b32 m0, s89"]
    def emit(l):
        for x in fix_m0(l): a(x)
    LATEP = opt.get("late2", {})
    moved = {b for v in LATEP.values() for b in v}
    blocks = {}; saved = []
    def beg(n):
        if n in moved: saved.append(a.lines); a.lines = blocks.setdefault(n, [])
    def end(n):
        if n in moved: a.lines = saved.pop()

    a.c("workgroups past the 256 that carry data leave at once")
    a("s_cmp_ge_u32 s2, 256")
    a("s_cbranch_scc1 L_end")
    a("s_load_dwordx8 s[4:11], s[0:1], 0")
    a("s_load_dwordx8 s[12:19], s[0:1], 32")
    a("s_memrealtime s[74:75]")
    if fine:
        a(clk + " s[90:91]"); a("s_mov_b32 s92, 0"); a("v_mov_b32 v127, 0"); a("s_mov_b32 m0, 0")
    a(f"v_lshrrev_b32 v{T}, 6, v0")
    a("v_and_b32 v0, 63, v0")
    a(f"v_readfirstlane_b32 s3, v{T}")
    a.c("id -> kv head s40 (= id & 7), batch s41, head-in-group s42, q head s43; wave index s3, lane v0")
    a("s_and_b32 s40, s2, 7"); a("s_lshr_b32 s41, s2, 5"); a("s_bfe_u32 s42, s2, 0x20003")
    a("s_lshl_b32 s43, s40, 2"); a("s_add_u32 s43, s43, s42")
    a.c("per-lane source offsets of the LDS-DMA tile loads (bank swizzle applied on the source side)")
    r4, c16, vp, r8, c8, t0, t1, cc8, l4 = T+1, T+2, T+3, T+4, T+5, T+6, T+7, T+8, T+9
    a(f"v_lshrrev_b32 v{r4}, 4, v0")
    a(f"v_and_b32 v{c16}, 15, v0")
    a(f"v_lshlrev_b32 v{vp}, 1, v{r4}")
    a(f"v_xor_b32 v{vp}, v{c16}, v{vp}")
    a(f"v_lshlrev_b32 v{vp}, 4, v{vp}")
    a(f"v_lshl_add_u32 v{VWD}, v{r4}, 13, v{vp}")
    a(f"v_xor_b32 v{t0}, 128, v{VWD}")
    a(f"v_add_u32 v{VWD+1}, 31744, v{VWD}")
    a(f"v_add_u32 v{VWD+2}, {31744*2}, v{t0}")
    a(f"v_add_u32 v{VWD+3}, {31744*3}, v{t0}")
    a(f"v_lshrrev_b32 v{r8}, 3, v0")
    a(f"v_and_b32 v{c8}, 7, v0")
    a(f"v_xor_b32 v{t0}, v{c8}, v{r4}")
    a(f"v_lshlrev_b32 v{t0}, 4, v{t0}")
    a(f"v_lshl_add_u32 v{VXD}, v{r8}, 10, v{t0}")
    a(f"v_xor_b32 v{t0}, 64, v{VXD}")
    a(f"v_add_u32 v{VXD+1}, {8192-1024}, v{t0}")
    a("s_add_u32 s44, s42, s41"); a("s_mul_i32 s45, s44, 86"); a("s_lshr_b32 s45, s45, 8"); a("s_mul_i32 s45, s45, 3"); a("s_sub_u32 s44, s44, s45"); a("s_mul_i32 s58, s44, 3")
    a("s_lshl_b32 s46, s3, 11"); a(f"s_add_u32 s46, s46, {XB}")
    a("s_lshl_b32 s47, s3, 12"); a("s_add_u32 s47, s47, 16384")
    a("s_lshl_b32 s49, s3, 15")
    a("s_lshl_b32 s44, s41, 16"); a("s_lshl_b32 s45, s3, 14"); a("s_add_u32 s44, s44, s45")
    a("s_lshl_b32 s48, s43, 8"); a("s_lshl_b32 s45, s3, 17"); a("s_add_u32 s48, s48, s45")
    a("s_sub_u32 s22, 0x80000, s44"); a("s_mov_b32 s23, 0x20000")
    a("s_sub_u32 s34, 0x400000, s48"); a("s_mov_b32 s35, 0x20000")
    a("s_waitcnt lgkmcnt(0)")
    a("s_add_u32 s20, s4, s44"); a("s_addc_u32 s21, s5, 0"); a("s_and_b32 s21, s21, 0xffff")
    a("s_add_u32 s32, s10, s48"); a("s_addc_u32 s33, s11, 0"); a("s_and_b32 s33, s33, 0xffff")

    def qdma(c):
        j = c % 4
        out = [f"s_lshl_b32 s59, s58, 7", f"s_add_u32 m0, s46, {j*8192}", "s_lshl_b32 s57, s58, 19"]
        out += [f"buffer_load_dwordx4 v{VXD+i}, s[20:23], s59 offen offset:{1024*i} lds" for i in range(2)]
        out += [f"s_add_u32 m0, s47, {j*32768}", "s_add_u32 s58, s58, 1"]
        out += [f"buffer_load_dwordx4 v{VWD+i}, s[32:35], s57 offen offset:{1024*i} lds" for i in range(4)]
        out.append("s_and_b32 s58, s58, 7")
        return out
    def nexttile(): return ["s_and_b32 s54, s60, 0x1e000", "s_lshr_b64 s[60:61], s[60:61], 4"]
    def dma_k(slot):
        out = []
        for hh in range(2):
            out.append(f"s_add_u32 m0, s49, {slot*16384 + hh*4096}")
            out += [f"buffer_load_dwordx4 v{VKD+4*hh+i}, s[24:27], s54 offen offset:{1024*i} lds" for i in range(4)]
        return out
    def dma_v(slot):
        out = []
        for hh in range(2):
            out.append(f"s_add_u32 m0, s49, {slot*16384 + 8192 + hh*4096}")
            out += [f"buffer_load_dwordx4 v{VVD+2*hh+(i&1)}, s[28:31], s54 offen offset:{1024*i} lds" for i in range(4)]
        return out
    a.c("---- q projection: Q^T[128 x 64] = Wq_h^T x_b^T, 8 k-chunks of 64 through a 4-deep LDS ring ----")
    vm = []
    emit(qdma(0)); vm += ["c0"]*6
    if opt.get("pf"):
        a.c("pull this kernel's code into L2 ahead of the instruction fetch (one dword per 64 B, 4 KB per wave)")
        a("s_getpc_b64 s[100:101]")
        a("s_and_b32 s100, s100, 0xffffff00")
        a(f"v_lshlrev_b32 v{T+10}, 6, v0")
        a("s_lshl_b32 s51, s3, 12")
        a(f"v_add_u32 v{T+10}, s51, v{T+10}")
        a(f"s_cmp_ge_u32 s41, {opt['pf']}"); a("s_cbranch_scc1 L_nopf")
        a(f"global_load_dword v{T+11}, v{T+10}, s[100:101]")
        a.label("L_nopf")
    a.c("remaining address / descriptor setup, overlapped with the first loads")
    def kd_setup(): return [f"v_xor_b32 v{VKD+i}, {64*i}, v{VKD}" for i in range(1, 4)]
    a(f"v_xor_b32 v{t0}, v{c16}, v{r4}"); a(f"v_lshlrev_b32 v{t0}, 4, v{t0}")
    a(f"v_lshl_add_u32 v{VKD}, v{r4}, 8, v{t0}")
    a(f"v_lshl_add_u32 v{t0}, v{c16}, 8, v{t0}")
    a(f"v_add_u32 v{VKR}, s49, v{t0}")
    def kr_setup(): return [f"v_xor_b32 v{VKR+s}, {64*s}, v{VKR}" for s in range(1, 4)]
    emit(kd_setup() + kr_setup())
    for i in range(4): a(f"v_add_u32 v{VKD+4+i}, 4096, v{VKD+i}")
    a(f"v_lshl_add_u32 v{VVD}, v{r4}, 8, v{vp}")
    a(f"v_xor_b32 v{VVD+1}, 128, v{VVD}")
    a(f"v_add_u32 v{VVD+2}, 4096, v{VVD}"); a(f"v_add_u32 v{VVD+3}, 4096, v{VVD+1}")
    a(f"v_lshlrev_b32 v{t0}, 1, v{r4}"); a(f"v_xor_b32 v{t0}, v{t0}, v{c8}"); a(f"v_lshlrev_b32 v{t0}, 4, v{t0}")
    a(f"v_lshl_add_u32 v{VOD0}, v{r8}, 10, v{t0}")
    a.c("order in which this workgroup visits its 8 key tiles (the 4 heads of a kv group take turns fetching from HBM)")
    orders = opt["orders"]
    a(f"s_mov_b32 s62, {hex(orders[0])}")
    for rr_ in range(1, 4):
        a(f"s_cmp_eq_u32 s42, {rr_}"); a(f"s_cselect_b32 s62, {hex(orders[rr_])}, s62")
    a("s_mov_b32 s63, 0")
    a("s_lshl_b64 s[62:63], s[62:63], 13")
    a("s_mov_b64 s[60:61], s[62:63]")
    a("s_lshl_b32 s50, s41, 3"); a("s_add_u32 s50, s50, s40"); a("s_lshl_b32 s50, s50, 2"); a("s_add_u32 s50, s50, s3")
    a("s_lshl_b32 s50, s50, 16")
    a("s_mov_b32 s26, 0x10000"); a("s_mov_b32 s27, 0x20000"); a("s_mov_b32 s30, 0x10000"); a("s_mov_b32 s31, 0x20000")
    a("s_add_u32 s24, s6, s50"); a("s_addc_u32 s25, s7, 0"); a("s_and_b32 s25, s25, 0xffff")
    a("s_add_u32 s28, s8, s50"); a("s_addc_u32 s29, s9, 0"); a("s_and_b32 s29, s29, 0xffff")
    srd(a, 64, 18, ST_OFF + (0x40000 if fine else 0))
    srd(a, 68, 16, 256)
    a(f"v_mov_b32 v{VT}, 0")
    a("s_lshl_b32 s72, s41, 5")
    a.c("hand-off tag of this launch: q head 0 of each batch publishes its clock value in d_debug (zero at launch)")
    a("s_or_b32 s51, s43, s3")
    a("s_cbranch_scc1 L_nolead")
    a("s_or_b32 s74, s74, 1")
    a(f"v_mov_b32 v{VCNT}, s74")
    a("s_mov_b64 exec, 1")
    a(f"buffer_store_dword v{VCNT}, v{VT}, s[68:71], s72 offen sc1")
    a("s_mov_b64 exec, -1")
    a.label("L_nolead")
    emit(qdma(1)); vm += ["c1"]*6
    a(f"v_lshrrev_b32 v{t0}, 1, v{c16}"); a(f"v_xor_b32 v{t0}, v{t0}, v{r4}"); a(f"v_lshlrev_b32 v{t0}, 4, v{t0}")
    a(f"v_lshl_add_u32 v{t0}, v{c16}, 7, v{t0}")
    a(f"v_add_u32 v{VXR}, {XB}, v{t0}"); a(f"v_xor_b32 v{VXR+1}, 64, v{VXR}")
    a(f"v_and_b32 v{cc8}, 3, v0"); a(f"v_lshlrev_b32 v{cc8}, 3, v{cc8}")
    a(f"v_lshrrev_b32 v{l4}, 2, v0")
    a("s_lshl_b32 s52, s3, 1")
    a(f"v_and_b32 v{t1}, 7, v{l4}"); a(f"v_xor_b32 v{t1}, s52, v{t1}")
    a(f"v_lshl_add_u32 v{t1}, v{t1}, 5, v{cc8}")
    a(f"v_lshl_add_u32 v{t0}, v{r4}, 2, v{l4}")
    a(f"v_lshl_add_u32 v{t0}, v{t0}, 8, v{t1}")
    a(f"v_add_u32 v{VWR}, 16384, v{t0}"); a(f"v_xor_b32 v{VWR+1}, 32, v{VWR}")
    a(f"v_add_u32 v{VWR+2}, 65536, v{VWR}"); a(f"v_add_u32 v{VWR+3}, 65536, v{VWR+1}")
    a(f"v_lshl_add_u32 v{t0}, v{l4}, 8, v{t1}")
    a(f"v_add_u32 v{VVR}, s49, v{t0}")
    def vr_setup(): return [f"v_xor_b32 v{VVR+j}, {32*j}, v{VVR}" for j in range(1, 8)]
    emit(vr_setup())
    a("s_and_b32 s51, s40, 2"); a("s_and_b32 s52, s3, 1"); a("s_or_b32 s51, s51, s52")
    a(f"v_and_b32 v{t0}, 3, v{r8}"); a(f"v_xor_b32 v{t0}, s51, v{t0}")
    a(f"v_lshl_add_u32 v{t0}, v{t0}, 5, v{cc8}")
    a(f"v_lshl_add_u32 v{t0}, v{l4}, 7, v{t0}")
    a(f"v_add_u32 v{VWA}, s49, v{t0}")
    for k in range(1, 4): a(f"v_xor_b32 v{VWA+k}, {32*k}, v{VWA}")
    a(f"v_lshlrev_b32 v{VL16}, 4, v0")
    a(f"v_add_u32 v{VQR}, {QAREA}, v{VL16}")
    a(f"v_lshlrev_b32 v{VMX}, 4, v{c16}"); a(f"v_add_u32 v{VMX}, {MISC}, v{VMX}")
    for k in range(4): a(f"v_mov_b32 v{MS+k}, 0xff800000")
    a("s_mov_b32 s76, 0")
    a("s_lshl_b32 s51, s41, 5"); a("s_add_u32 s51, s51, s43"); a("s_lshl_b32 s51, s51, 2"); a("s_add_u32 s51, s51, s3")
    a("s_lshl_b32 s51, s51, 3"); a(f"s_add_u32 s77, s51, {FL_OFF}")
    a("s_andn2_b32 s51, s2, 6"); a("s_lshl_b32 s51, s51, 7"); a("s_lshl_b32 s52, s3, 5"); a("s_add_u32 s51, s51, s52"); a(f"s_add_u32 s86, s51, {FL_OFF + 0x4000}")
    a("s_and_b32 s78, s40, 6"); a("s_lshl_b32 s78, s78, 2"); a("s_lshl_b32 s51, s3, 1"); a("s_add_u32 s78, s78, s51")
    a("s_and_b32 s79, s43, 7")
    a("s_lshl_b32 s51, s78, 17"); a("s_lshl_b32 s52, s79, 7"); a("s_add_u32 s51, s51, s52")
    a("s_add_u32 s36, s12, s51"); a("s_addc_u32 s37, s13, 0"); a("s_and_b32 s37, s37, 0xffff")
    a("s_sub_u32 s38, 0x400000, s51"); a("s_mov_b32 s39, 0x20000")
    for k in range(4): a(f"v_mov_b32 v{VZ+k}, 0")
    emit([f"v_mov_b32 v14, {hex(f2u(C_SCALE))}", f"v_lshrrev_b32 v12, 1, v{r4}", f"v_lshl_add_u32 v12, v12, 4, v{c16}", "v_lshlrev_b32 v12, 4, v12",
          f"v_and_b32 v{t0}, 1, v{r4}", f"v_lshl_add_u32 v12, v{t0}, 3, v12", "s_lshl_b32 s51, s3, 10", f"s_add_u32 s51, s51, {QAREA}", "v_add_u32 v12, s51, v12"])
    beg("L4")
    a.c("constants used after the q projection: identity A fragments (v2..v7) for the bf16 cross-wave reduction,")
    a.c("selector fragment (a116..a119) for the row sums, scalar offsets of the later phases")
    a(f"v_lshrrev_b32 v{t0}, 2, v{c16}"); a(f"v_xor_b32 v{t0}, v{t0}, v{r4}")
    a(f"v_bfe_u32 v{t1}, v0, 1, 1"); a(f"v_lshl_add_u32 v{t0}, v{t0}, 1, v{t1}")
    a(f"v_and_b32 v{t1}, 1, v0"); a(f"v_lshlrev_b32 v{t1}, 4, v{t1}")
    a(f"v_mov_b32 v4, 0x3f80"); a(f"v_lshlrev_b32 v{t1}, v{t1}, v4")
    a(f"v_cmp_eq_u32 s[80:81], 0, v{t0}"); a(f"v_cmp_eq_u32 s[82:83], 1, v{t0}"); a(f"v_cmp_eq_u32 s[84:85], 0, v{c16}")
    a("v_mov_b32 v4, 0"); a("v_mov_b32 v5, 0"); a(f"v_mov_b32 v{t0}, 0x3f803f80")
    a(f"v_cndmask_b32 v2, 0, v{t1}, s[80:81]"); a(f"v_cndmask_b32 v3, 0, v{t1}, s[82:83]"); a(f"v_cndmask_b32 v{t0}, 0, v{t0}, s[84:85]")
    a("v_mov_b32 v6, v2"); a("v_mov_b32 v7, v3")
    for k in range(4): a(f"v_accvgpr_write_b32 a{SEL+k}, v{t0}")
    a("s_mul_i32 s51, s41, 86"); a("s_lshr_b32 s51, s51, 8"); a("s_mul_i32 s51, s51, 3"); a("s_sub_u32 s80, s41, s51"); a("s_mul_i32 s80, s80, 3")
    a("s_lshl_b32 s87, s3, 12"); a(f"s_add_u32 s87, s87, {XB}"); a("s_sub_u32 s88, s87, s49")
    a("s_lshl_b32 s51, s41, 9"); a("s_lshl_b32 s52, s43, 3"); a("s_add_u32 s51, s51, s52"); a("s_lshl_b32 s52, s3, 1"); a("s_add_u32 s51, s51, s52")
    a("s_lshl_b32 s4, s51, 10"); a("s_add_u32 s5, s4, 262144"); a(f"s_mov_b32 s53, {hex(f2u(LIMIT))}")
    a("s_lshl_b32 s51, s41, 5"); a("s_add_u32 s51, s51, s78"); a("s_lshl_b32 s51, s51, 5"); a(f"s_add_u32 s55, s51, {FL_OFF}")
    a("s_lshl_b32 s51, s41, 9"); a("s_lshl_b32 s52, s78, 3"); a("s_add_u32 s51, s51, s52"); a("s_lshl_b32 s51, s51, 10")
    a("s_add_u32 s8, s18, s51"); a("s_addc_u32 s9, s19, 0"); a("s_and_b32 s9, s9, 0xffff"); a("s_mov_b32 s10, 0x44000"); a("s_mov_b32 s11, 0x20000")
    for j in range(1, 4):
        a(f"s_xor_b32 s51, s2, {2*j}"); a("s_mul_i32 s51, s51, 12288"); a(f"s_add_u32 s{93+j}, s51, {X_OFF + (j-1)*4096}")
    a("s_mul_i32 s51, s2, 12288"); a(f"s_add_u32 s97, s51, {X_OFF}"); a("s_add_u32 s98, s97, 4096"); a("s_add_u32 s99, s97, 8192")
    a("s_mov_b32 s12, s14"); a("s_and_b32 s13, s15, 0xffff"); a("s_mov_b32 s14, 0x80000"); a("s_mov_b32 s15, 0x20000")
    emit(["s_lshl_b32 s50, s41, 16", "s_and_b32 s51, s40, 4", "s_and_b32 s52, s3, 2", "s_or_b32 s51, s51, s52", "s_lshl_b32 s51, s51, 13", "s_add_u32 s50, s50, s51",
          "s_lshl_b32 s51, s79, 7", "s_add_u32 s50, s50, s51", "s_and_b32 s51, s40, 2", "s_and_b32 s52, s3, 1", "s_or_b32 s51, s51, s52", "s_lshl_b32 s51, s51, 5", "s_add_u32 s50, s50, s51",
          "s_and_b32 s52, s2, 6", "s_lshl_b32 s74, s52, 1", "s_add_u32 s75, s86, s74",
          "s_and_b32 s52, s40, 4", "s_lshl_b32 s52, s52, 16", "s_and_b32 s51, s3, 2", "s_lshl_b32 s51, s51, 9", "s_or_b32 s16, s52, s51", "s_lshl_b32 s17, s3, 10"])
    end("L4")
    z = R("v", VZ)
    zmf = [f"v_mfma_f32_32x32x16_bf16 {R('v', 128+16*i, 16)}, {z}, {z}, 0" for i in range(8)]
    beg("L5"); a.c("O accumulators v128..v255 := 0"); emit(zmf); end("L5")
    emit(qdma(2)); vm += ["c2"]*6

    kvq = opt.get("kvq", {5: ["K0a"], 6: ["K0b"], 7: ["V0a"], 8: ["V0b"]})
    K0 = dma_k(0); V0 = dma_v(0)
    grp = {"K0a": nexttile() + K0[:5], "K0b": K0[5:], "V0a": V0[:5], "V0b": V0[5:]}
    def kv(c):
        out = []
        for g in kvq.get(c, []): out += grp[g]; vm.extend([g[:2]]*4)
        return out
    def qreads(c):
        j = c % 4; base = (c % 2) * 48; out = []
        for s in range(2):
            b = base + 24*s
            for d in range(2):
                for u in range(2):
                    out.append(f"ds_read_b64_tr_b16 a[{b+4*d+2*u}:{b+4*d+2*u+1}], v{VWR + 2*(j >> 1) + d} offset:{(j & 1)*32768 + (32*s+4*u)*256}")
            for qq in range(4):
                out.append(f"ds_read_b128 {R('a', b+8+4*qq)}, v{VXR+s} offset:{j*8192 + qq*2048}")
        return out
    def qslot(c, s, qq):
        b = (c % 2) * 48 + 24*s
        return [mf(R("v", 16+8*qq+4*d), R("a", b+4*d), R("a", b+8+4*qq), "0" if (c == 0 and s == 0) else R("v", 16+8*qq+4*d)) for d in range(2)]
    def nwait(tag): return len(vm) - 1 - max(i for i, x in enumerate(vm) if x == tag)
    emit(fs())
    for c in range(8):
        a(f"s_waitcnt vmcnt({nwait(f'c{c}')})")
        a("s_barrier")
        emit(fs(c == 0))
        seq = qreads(c); ld = []
        if c + 3 < 8: ld += qdma(c + 3); vm += [f"c{c+3}"]*6
        ld += kv(c)
        if c == 0: emit(seq + ld)
        else:
            n0 = opt.get("q0", 4)
            emit(seq[:n0] + merge([qslot(c-1, s, qq) for s in range(2) for qq in range(4)], spread(8, [(0, opt.get("q1", 4), seq[n0:]), (0, 7, ld)])))
        for b_ in LATEP.get(c, []): a.lines += blocks[b_]
        a("s_waitcnt lgkmcnt(0)")
    a.c("scale Q by log2(e)/sqrt(128), round to bf16, exchange the fragments through LDS")
    def qfin(qq, pk=False):
        b = 16 + 8*qq
        out = [f"v_mul_f32 v{b+r}, v14, v{b+r}" for r in range(8)]
        if pk: out = [f"v_pk_mul_f32 v[{b+r}:{b+r+1}], v[{b+r}:{b+r+1}], v[14:15] op_sel_hi:[1,0]" for r in range(0, 8, 2)]
        out += [f"v_cvt_pk_bf16_f32 v{80+4*qq+i}, v{b+2*i}, v{b+2*i+1}" for i in range(4)]
        out += [f"ds_write_b64 v12, v[{80+4*qq+2*d}:{81+4*qq+2*d}] offset:{qq*4096 + d*512}" for d in range(2)]
        return out
    qini = [f"v_mov_b32 v14, {hex(f2u(C_SCALE))}", f"v_lshrrev_b32 v12, 1, v{r4}", f"v_lshl_add_u32 v12, v12, 4, v{c16}", "v_lshlrev_b32 v12, 4, v12",
            f"v_and_b32 v{t0}, 1, v{r4}", f"v_lshl_add_u32 v12, v{t0}, 3, v12", "s_lshl_b32 s51, s3, 10", f"s_add_u32 s51, s51, {QAREA}", "v_add_u32 v12, s51, v12"]
    f01 = qfin(0) + qfin(1)
    nf = opt.get("nf", 22)
    emit(merge([qslot(7, s, qq) for qq in range(4) for s in range(2)], spread(8, [(3, 8, f01[:nf])])))
    emit(f01[nf:] + qfin(2, True) + qfin(3, True))
    emit(kv(8))

    def kreads(slot): return [f"ds_read_b128 {R('a', Kf(s, kb))}, v{VKR+s} offset:{slot*16384 + kb*4096}" for s in range(4) for kb in range(2)]
    def vreads(slot): return [f"ds_read_b64_tr_b16 a[{Vf(j)+2*u}:{Vf(j)+2*u+1}], v{VVR+j} offset:{slot*16384 + 8192 + u*4096}" for j in range(8) for u in range(2)]
    def qk(h, first=False):
        out = []
        for q in range(2):
            for s in range(4):
                sl = []
                for kb in range(2):
                    d = R("v", S0[h] + 8*q + 4*kb)
                    sl.append(mf(d, R("a", Kf(s, kb)), Q_(2*h+q, s), (("0" if first else R("v", NM + 4*(2*h+q))) if s == 0 else d)))
                out.append(sl)
        return out
    def pv(h, js=range(8)):
        return [[mf(R("v", Oi(h, j >> 1) + 8*q + 4*(j & 1)), R("a", Vf(j)), R("v", P0[h] + 4*q), R("v", Oi(h, j >> 1) + 8*q + 4*(j & 1))) for q in range(2)] for j in js]
    def msum(h, q): return mf(R("a", LA + 4*(2*h+q)), R("a", SEL), R("v", P0[h] + 4*q), R("a", LA + 4*(2*h+q)))
    def ex(h, r): return f"v_exp_f32 v{S0[h]+r}, v{S0[h]+r}"
    def cv(h, i): return f"v_cvt_pk_bf16_f32 v{P0[h]+i}, v{S0[h]+2*i}, v{S0[h]+2*i+1}"
    def smx(h):
        o = []
        for r in range(16):
            o.append(ex(h, r))
            if r >= 2 and r % 2 == 0: o.append(cv(h, (r-2)//2))
        return o

    emit(fs(True))
    a("s_waitcnt lgkmcnt(0)")
    a.c("---- attention: wave w owns keys [256w, 256w+256), all 64 query rows; S^T = K Q^T, O^T += V^T P^T ----")
    a.label("L_att")
    a("s_barrier")
    qr = [f"ds_read_b128 {Q_(qq,s)}, v{VQR} offset:{(qq*4+s)*1024}" for qq in range(4) for s in range(4)]
    emit(qr[:8])
    a(f"s_waitcnt vmcnt({nwait('K0')})")
    emit(fs())
    emit(kreads(0))
    K1 = nexttile() + dma_k(1); V1 = dma_v(1)
    MX = 64
    def inmax(qq):
        s = 16 + 8*qq; t = MX + qq
        return [f"v_max3_f32 v{t}, v{s}, v{s+1}, v{s+2}", f"v_max3_f32 v{t}, v{t}, v{s+3}, v{s+4}", f"v_max3_f32 v{t}, v{t}, v{s+5}, v{s+6}", f"v_max_f32 v{t}, v{t}, v{s+7}"]
    def xred(m):
        return [f"v_permlane32_swap_b32 v{m}, v{m+2}", f"v_permlane32_swap_b32 v{m+1}, v{m+3}", "s_nop 0",
                f"v_max_f32 v{m}, v{m}, v{m+2}", f"v_max_f32 v{m+1}, v{m+1}, v{m+3}", "s_nop 1",
                f"v_permlane16_swap_b32 v{m}, v{m+1}", "s_nop 0", f"v_max_f32 v{m}, v{m}, v{m+1}"]
    vr0 = vreads(0)
    emit(K1[:4])
    gaps = spread(16, [(0, 4, qr[8:]), (0, 14, K1[4:]), (4, 6, [f"v_accvgpr_write_b32 a{LA+4*k}, 0" for k in range(4)]), (6, 8, inmax(0)), (8, 10, ["s_lshl_b32 s51, s3, 2", f"s_add_u32 s51, s51, {MISC}", f"v_add_u32 v12, s51, v{VL16}"]), (10, 12, inmax(1)), (14, 16, inmax(2))])
    emit(merge(qk(0, True) + qk(1, True), gaps, pre={0: ["s_waitcnt lgkmcnt(4)"], 2: ["s_waitcnt lgkmcnt(4)"], 8: ["s_waitcnt lgkmcnt(0)"]}))
    a.c("softmax shift m = true row max over the first key tile of all 4 waves (or the exact row max v76..v79 after the fallback);")
    a.c("it enters every later QK tile as the MFMA C operand (-m); the row sums are checked at the end")
    emit(V1[:2])
    a("s_nop 3")
    emit(inmax(3))
    a("s_nop 1")
    emit(xred(MX))
    a(f"ds_write_b32 v12, v{MX}")
    emit(V1[2:3])
    a("s_waitcnt lgkmcnt(0)"); a("s_barrier")
    for qq in range(4): a(f"ds_read_b128 {R('v', NM+4*qq)}, v{VMX} offset:{256*qq}")
    emit(fs())
    a(f"s_waitcnt vmcnt({nwait('V0') + 10})")
    emit(vr0[:8])
    a("s_waitcnt lgkmcnt(8)")
    for qq in range(4):
        n = NM + 4*qq
        a(f"v_max3_f32 v{MX+qq}, v{n}, v{n+1}, v{MS+qq}")
    for qq in range(4):
        n = NM + 4*qq
        a(f"v_max3_f32 v{MX+qq}, v{n+2}, v{n+3}, v{MX+qq}")
    for qq in range(4):
        for k in range(2): a(f"v_sub_f32 v{NM+4*qq+k}, 0, v{MX+qq}")
    def sub(qq): return [f"v_pk_add_f32 v[{16+8*qq+r}:{17+8*qq+r}], v[{16+8*qq+r}:{17+8*qq+r}], v[{NM+4*qq}:{NM+4*qq+1}]" for r in range(0, 8, 2)]
    body_a = sub(0) + sub(1) + smx(0) + sub(2) + [cv(0, 7)] + sub(3) + smx(1)[:4]
    body_a += [f"v_pk_mov_b32 v[{NM+4*qq+2}:{NM+4*qq+3}], v[{NM+4*qq}:{NM+4*qq+1}], v[{NM+4*qq}:{NM+4*qq+1}]" for qq in range(4)]
    body_a += [f"v_add_u32 v12, s49, v{VL16}", "s_lshl_b32 s51, s3, 2", f"s_add_u32 s51, s51, {MISC+1024}", f"v_add_u32 v14, s51, v{VL16}", "s_lshl_b32 s84, s80, 15"]
    n = len(body_a)
    emit(merge([[x] for x in body_a], spread(n, [(0, n - 4, V1[3:]), (4, 30, vr0[8:15])])))

    wo_slot = [0, 4096, 8192, 12288, "X", 28672, 0, 4096]
    def wo_group(g):
        out = [f"s_add_u32 m0, s49, {wo_slot[g]}" if wo_slot[g] != "X" else "s_mov_b32 m0, s87"]
        out += [f"buffer_load_dwordx4 v{VKD+i}, s[36:39], s84 offen offset:{1024*i} lds" for i in range(4)]
        out += ["s_add_u32 s84, s84, 0x8000", "s_and_b32 s84, s84, 0x3ffff"]
        return out
    def wo_reads(g):
        X = wo_slot[g] == "X"
        return [f"ds_read_b64_tr_b16 a[{(g*4+cs)*4+2*u}:{(g*4+cs)*4+2*u+1}], v{(116 if X else VWA)+cs} offset:{(0 if X else wo_slot[g]) + u*2048}" for cs in range(4) for u in range(2)]
    wcnt = [0]
    def wnext(n=1):
        out = []
        for _ in range(n): out += wo_group(wcnt[0]); wcnt[0] += 1
        return out

    def body(par, kind):
        slots = pv(0) + qk(0) + pv(1) + qk(1)
        G = [[] for _ in range(32)]
        for r in range(16): G[(29 + r) % 32].append(ex(1, r)); G[13 + r].append(ex(0, r))
        vr_prev = vreads(par); vr = vreads(1 - par); kr = kreads(1 - par)
        kg = opt.get("kg", [1, 2, 3, 4, 5, 6, 7, 8])
        G[0].append(vr_prev[15])
        for s in range(8): G[kg[s]].append(kr[s])
        vg = opt.get("vg", list(range(17, 32)))
        for i in range(15): G[vg[i]].append(vr[i])
        for i in range(8): G[(31 + 2*i) % 32].append(cv(1, i)); G[15 + 2*i].append(cv(0, i))
        cnt = lambda g_: sum(1 for s in range(8) if kg[s] < g_)
        kw = opt.get("kw", 10)
        pre = {0: ["s_waitcnt lgkmcnt(7)"], 4: [f"s_waitcnt lgkmcnt({cnt(4)})"], 8: [f"s_waitcnt lgkmcnt({max(0, cnt(8) - 2*(kw - 8))})"]}
        if cnt(8) > 2*(kw - 8): pre[kw] = ["s_waitcnt lgkmcnt(0)"]
        post = {}
        mp = opt.get("mp", [0, 3, 16, 24])
        for (p_, h_, q_) in zip(mp, (0, 0, 1, 1), (0, 1, 0, 1)): post[p_] = [msum(h_, q_)]
        def put(g_, x):
            (post[g_] if g_ in post else G[g_]).append(x)
        put(0, "WAITK")
        if kind == "dma":
            dk = dma_k(par); dv = dma_v(par)
            pre[0] = ["s_and_b32 s54, s60, 0x1e000"] + pre[0]
            put(0, dk[0]); G[9].append(dk[5]); G[11].append("s_lshr_b64 s[60:61], s[60:61], 4")
            for i in range(4): G[2 + 2*i].append(dk[1 + i]); G[10 + 2*i].append(dk[6 + i])
            put(16, "WAITV"); put(16, dv[0])
            for i in range(4): G[18 + 2*i].append(dv[1 + i])
            put(24, dv[5])
            for i, g_ in enumerate(opt.get("dv", [26, 28, 30, 31])): G[g_].append(dv[6 + i])
            if par == 1:
                G[13].append(f"buffer_load_dword v{VCNT}, v{VT}, s[68:71], s72 offen sc1")
                G[15].append("s_add_u32 s56, s56, 1")
        else:
            pat = [f"v_mov_b32 v{VKD}, v{VOD0}"] + [f"v_add_u32 v{VKD+i}, {7168*i}, v{VOD0}" for i in range(1, 4)]
            adr = [f"v_xor_b32 v{100+j}, {j << 15}, v12" for j in range(1, 4)]
            gw = spread(32, [(0, 2, pat), (9, 12, adr), (20, 21, [f"v_readfirstlane_b32 s73, v{VCNT}"])] + [(g0, g1, wnext()) for (g0, g1) in opt.get("wi6", [(2, 10), (12, 20), (22, 30)])])
            for i in range(32): G[i] += gw[i]
            put(16, "WAITV")
        arr = opt.get("arr", "A")
        if arr != "A":
            for g_ in range(32):
                e = [x for x in G[g_] if x.startswith("v_exp")]; d = [x for x in G[g_] if x.startswith("ds_")]
                o = [x for x in G[g_] if x not in e and x not in d]
                isd = any(x.startswith("buffer") for x in o)
                if arr == "B": G[g_] = d + o + ["|"] + e
                elif arr == "C": G[g_] = d + e + ["|"] + o
                elif arr == "D": G[g_] = (d + e + ["|"] + o) if isd else (e + ["|"] + d + o)
                elif arr == "E": G[g_] = e + ["|"] + o + d
                elif arr == "F": G[g_] = (e + d + ["|"] + o) if isd else (e + ["|"] + d + o)
        issued = 0; out = []
        for x in fs() + merge(slots, G, pre, post):
            if x == "WAITK": out.append(f"s_waitcnt vmcnt({8 + issued})")
            elif x == "WAITV": out.append(f"s_waitcnt vmcnt({issued})")
            else:
                if x.startswith("buffer_load"): issued += 1
                out.append(x)
        return out
    a("s_mov_b64 exec, 1")
    a(f"buffer_atomic_or v{VT}, v{VT}, s[64:67], s77 offen sc1")
    a(f"buffer_atomic_or v{VT}, v{VT}, s[64:67], s86 offen sc1")
    a("s_mov_b64 exec, -1")
    a("s_mov_b32 s56, 0")
    a.c("steady loop, two tiles per trip: PVa(t) QKa(t+1) PVb(t) QKb(t+1); exp/pack, K/V DMA and fragment reads sit in the MFMA gaps,")
    a.c("the MFMAs into a96..a111 accumulate the row sums of P")
    a.label("L_loop")
    emit(body(0, "dma")); emit(body(1, "dma"))
    a("s_cmp_lt_u32 s56, 3")
    a("s_cbranch_scc1 L_loop")
    a.c("tile 6 / QK of tile 7; the Wo slice starts streaming into free ring slots")
    emit(body(0, "wo"))
    emit(fs())
    a.c("last PV, then reduce O across the 4 waves (bf16 partials via LDS, added by identity MFMAs)")
    jo = [2, 3, 4, 5, 6, 7, 0, 1]
    sb = smx(1)[4:]
    G = spread(8, [(0, 1, [vreads(1)[15]]), (0, 7, sb), (7, 8, [cv(1, 7)])])
    emit(merge(pv(0, jo), G, {0: ["s_waitcnt lgkmcnt(7)"], 2: ["s_waitcnt lgkmcnt(1)"], 5: ["s_waitcnt lgkmcnt(0)"]}, {6: [msum(0, 0)], 7: [msum(0, 1)]}))
    def pack(h, p): return [f"v_cvt_pk_bf16_f32 v{Oi(h,p)+i}, v{Oi(h,p)+2*i}, v{Oi(h,p)+2*i+1}" for i in range(8)]
    def send(h, p): return [f"ds_write_b128 v12, {R('v', Oi(h,p)+4*q)} offset:{PART + ((p-1)*4 + h*2 + q)*1024}" for q in range(2)]
    def psend(h, p):
        x = pack(h, p); w_ = send(h, p)
        return x[:4] + [w_[0]] + x[4:] + [w_[1]]
    lst = [["s_mov_b64 exec, 0xffff"] + [f"ds_write_b32 v14, a{LA+4*k} offset:{256*k}" for k in range(4)] + ["s_mov_b64 exec, -1"]]
    pa = psend(0, 1) + psend(0, 2) + psend(0, 3)
    G = spread(8, [(0, opt.get("pa1", 6), pa), (opt.get("lg", 6), opt.get("lg", 6) + 1, lst), (opt.get("pb0", 6), 8, pack(1, 1) + pack(1, 2) + (pack(1, 3) if opt.get("h3") else []))])
    emit(merge(pv(1, jo), G, {0: [msum(1, 0)]}, {0: [msum(1, 1)]}))
    a("s_waitcnt lgkmcnt(0)")
    emit(fs())
    a("s_barrier")
    def rb(h, p, q): return 16 + ((h*3 + p-1)*2 + q)*4
    def prd(h): return [f"ds_read_b128 {R('v', rb(h,p,q))}, v{100+p} offset:{PART + ((p-1)*4 + h*2 + q)*1024}" for p in range(1, 4) for q in range(2)]
    def red(h): return [[mf(R("v", Oi(h,0)+8*q+4*d), R("v", ID[d]), R("v", rb(h,p,q)), R("v", Oi(h,0)+8*q+4*d)) for d in range(2)] for p in range(1, 4) for q in range(2)]
    LB = 80
    emit(prd(0))
    for qq in range(4): a(f"ds_read_b128 {R('v', LB+4*qq)}, v{VMX} offset:{1024 + 256*qq}")
    wb = send(1, 1) + send(1, 2) + send(1, 3)
    n0 = 2 if opt.get("h3") else 4
    emit(wb[:n0])
    lsum = [f"v_add_f32 v{LB+4*qq+k}, v{LB+4*qq+k}, v{LB+4*qq+k+1}" for qq in range(4) for k in (0, 2)]
    lsum += [f"v_add_f32 v{LB+4*qq}, v{LB+4*qq}, v{LB+4*qq+2}" for qq in range(4)]
    lsum += [f"v_add_f32 v{LB+1}, v{LB}, v{LB+4}", f"v_add_f32 v{LB+2}, v{LB+8}, v{LB+12}", f"v_rcp_f32 v{LB}, v{LB}", f"v_add_f32 v{LB+1}, v{LB+1}, v{LB+2}",
             f"v_rcp_f32 v{LB+4}, v{LB+4}", f"v_cmp_nlt_f32 vcc, v{LB+1}, s53", f"v_rcp_f32 v{LB+8}, v{LB+8}", f"v_rcp_f32 v{LB+12}, v{LB+12}"]
    nb = opt.get("nb", 4)
    if opt.get("h3"):
        G = spread(6, [(0, min(nb, 4), wb[2:]), (opt.get("ls0", nb), 6, lsum)])
    else:
        G = spread(6, [(0, 2, pack(1, 3) + wb[4:]), (opt.get("ls0", 2), 6, lsum)])
    emit(merge(red(0), G, {0: [f"s_waitcnt lgkmcnt({n0})"]}, {nb - 1: ["s_waitcnt lgkmcnt(0)", "s_barrier"] + prd(1)}))
    emit(wnext(opt.get("wf4", 1)))
    a.c("row sum >= 2^40 or not finite: the shift was unsafe -> redo with the exact row max")
    emit(["s_cmp_eq_u32 s76, 0", "s_cselect_b64 s[6:7], vcc, 0", "s_cmp_lg_u64 s[6:7], 0", "s_cbranch_scc1 L_fallback"])
    def fin(h, pk):
        o = Oi(h, 0)
        if pk: out = [f"v_pk_mul_f32 v[{o+r}:{o+r+1}], v[{o+r}:{o+r+1}], v[{LB+8*h+4*(r>>3)}:{LB+8*h+4*(r>>3)+1}] op_sel_hi:[1,0]" for r in range(0, 16, 2)]
        else: out = [f"v_mul_f32 v{o+r}, v{LB+8*h+4*(r>>3)}, v{o+r}" for r in range(16)]
        out += pack(h, 0)
        out += [f"buffer_store_dwordx4 {R('v', o+4*q)}, v{VL16}, s[64:67], s{4+h} offen offset:{q*1024} sc1" for q in range(2)]
        return out
    emit(merge(red(1), spread(6, [(0, 6, fin(0, False))]), {0: ["s_waitcnt lgkmcnt(4)"], 2: ["s_waitcnt lgkmcnt(0)"]}))
    for k in range(4): a(f"v_add_u32 v{116+k}, s88, v{VWA+k}")
    a("v_and_b32 v14, 1, v0"); a("v_sub_u32 v14, 0, v14")
    emit(fin(1, True))
    emit(fs())
    npre = wcnt[0]
    a.c("O (normalised, bf16, MFMA fragment layout) was stored write-through; publish a flag after the stores are acknowledged")
    a("s_mov_b32 s93, 0x40000")
    a.label("L_tag")
    a("s_cmp_lg_u32 s73, 0")
    a("s_cbranch_scc1 L_tagok")
    a(f"buffer_load_dword v{VCNT}, v{VT}, s[68:71], s72 offen sc1")
    a("s_waitcnt vmcnt(0)")
    a(f"v_readfirstlane_b32 s73, v{VCNT}")
    a("s_sub_u32 s93, s93, 1")
    a("s_cbranch_scc0 L_tag")
    a.label("L_tagok")
    a("s_waitcnt vmcnt(4)")
    for g in range(2): emit(wo_reads(g))
    a("v_xor_b32 v14, s73, v14")
    a("v_and_b32 v124, 15, v0"); a("v_lshlrev_b32 v124, 2, v124")
    emit(["v_mov_b32 v80, 0xff", "s_lshr_b32 s81, s73, 8", "s_lshr_b32 s82, s73, 16", "s_lshr_b32 s83, s73, 24", f"v_add_u32 v81, s17, v{VL16}",
          "v_lshlrev_b32 v82, 8, v124", "v_lshrrev_b32 v83, 4, v0", "v_lshl_add_u32 v82, v83, 3, v82", "v_mov_b32 v84, 0x0c0c0400", "v_mov_b32 v85, 0x05040100",
          "v_add_u32 v86, 1, v0", "v_lshlrev_b32 v86, 2, v86", "v_xor_b32 v86, s74, v86",
          "v_cmp_eq_u32 vcc, 0, v0", "v_mov_b32 v87, s73", "v_add_u32 v88, 16, v86", "v_cndmask_b32 v86, v86, v88, vcc"])
    for g in range(8):
        a(f"s_add_u32 s51, s80, {g}"); a("s_and_b32 s51, s51, 7"); a(f"s_lshl_b32 s{20+g}, s51, 11")
    a(f"v_add_u32 v104, s16, v{VL16}"); a("v_xor_b32 v105, 0x400, v104"); a("v_xor_b32 v106, 0x40000, v104"); a("v_xor_b32 v107, 0x40400, v104")
    a("v_mov_b32 v125, 0")
    a("s_waitcnt vmcnt(0)")
    a("s_mov_b64 exec, 3")
    a("buffer_atomic_swap v14, v124, s[64:67], s77 offen sc1")
    a("s_mov_b64 exec, 0xffff")
    a("buffer_atomic_or v125, v124, s[64:67], s55 offen sc0 sc1")
    a("s_mov_b64 exec, -1")
    emit(fs(True))
    nrest = 8 - npre
    a("s_waitcnt lgkmcnt(0)")
    emit(wnext(nrest))
    for g in range(2, npre): emit(wo_reads(g))
    a("s_mov_b32 s93, 0x40000")
    a(f"s_waitcnt vmcnt({4*nrest})")
    a("s_mov_b64 exec, 0xffff")
    a.label("L_poll")
    a("v_cmp_ne_u32 vcc, v14, v125")
    a("s_cbranch_vccz L_pollend")
    a("v_mov_b32 v125, 0")
    a("buffer_atomic_or v125, v124, s[64:67], s55 offen sc0 sc1")
    a("s_sub_u32 s93, s93, 1")
    a("s_waitcnt vmcnt(0)")
    a("s_cbranch_scc0 L_poll")
    a.label("L_pollend")
    a("s_mov_b64 exec, -1")
    emit(fs(True))
    a.c("---- output projection: tile 64 tokens x 64 cols x 1024 k per workgroup (wave = 2 heads); 4 workgroups share a tile ----")
    def oload(i):
        q = 1 - i // 16; s_ = i % 16
        o = [f"buffer_load_dwordx4 {R('v', 128+4*i)}, v{104 + 2*q + (s_ & 1)}, s[8:11], s{20 + (s_ >> 1)} offen sc1"]
        return o
    D = opt.get("odepth", 12)
    for i in range(D): emit(oload(i))
    late_reads = []
    for g in range(npre, 8): late_reads += wo_reads(g)
    def omf(j, s_):
        i = (0 if j >> 1 else 16) + s_; g = s_ >> 1
        return [mf(R("v", 16+16*j+8*(s_&1)+4*ci), R("a", (g*4 + 2*(j&1) + ci)*4), R("v", 128+4*i), "0" if g == 0 else R("v", 16+16*j+8*(s_&1)+4*ci)) for ci in range(2)]
    NL = opt.get("nlag", 6)
    sched = []
    for s_ in range(16): sched += [(omf(3, s_), s_), (omf(2, s_), s_)]
    for s_ in range(16):
        sched.append((omf(1, s_), 16 + s_))
        if s_ < 16 - NL: sched.append((omf(0, s_), 16 + s_))
    nfirst = len(sched)
    for s_ in range(16 - NL, 16): sched.append((omf(0, s_), 16 + s_))
    def wr(j): return [f"ds_write_b128 v12, {R('v', 16+16*j+4*k)} offset:{(j*3 + k-1)*1024}" for k in range(1, 4)]
    def rdd(j): return [f"ds_read_b128 {R('v', 16+16*j+4*k)}, v{100+k} offset:{(j*3 + k-1)*1024}" for k in range(1, 4)]
    tg = ["s73", "s81", "s82", "s83"]
    def summ(j, pk):
        b = 16 + 16*j; out = []
        if pk:
            for p in (0, 2): out += [f"v_pk_add_f32 v[{b+p}:{b+p+1}], v[{b+p}:{b+p+1}], v[{b+4+p}:{b+5+p}]", f"v_pk_add_f32 v[{b+8+p}:{b+9+p}], v[{b+8+p}:{b+9+p}], v[{b+12+p}:{b+13+p}]"]
            for p in (0, 2): out += [f"v_pk_add_f32 v[{b+p}:{b+p+1}], v[{b+p}:{b+p+1}], v[{b+8+p}:{b+9+p}]"]
        else:
            for i in range(4): out += [f"v_add_f32 v{b+i}, v{b+i}, v{b+4+i}", f"v_add_f32 v{b+8+i}, v{b+8+i}, v{b+12+i}"]
            for i in range(4): out += [f"v_add_f32 v{b+i}, v{b+i}, v{b+8+i}"]
        if j:
            out += [f"v_bfi_b32 v{b+i}, v80, {tg[i]}, v{b+i}" for i in range(4)]
            out += [f"buffer_store_dwordx4 {R('v', b)}, v81, s[64:67], s{93+j} offen sc1"]
        return out
    def hint(off): return [["s_mov_b64 exec, 1", f"buffer_atomic_swap v87, v{VT}, s[64:67], s75 offen offset:{off} sc1", "s_mov_b64 exec, -1"]]
    n = len(sched)
    G = spread(n, [(0, opt.get('lr', 13), late_reads), (33, 37, wr(3) + wr(2)),
                   (42, 52, ["s_waitcnt lgkmcnt(0)"] + summ(3, False) + summ(2, False)), (nfirst + 1, nfirst + 2, wr(1))])
    G[15].append("s_waitcnt lgkmcnt(8)" if opt.get('lr', 13) > 13 else "s_waitcnt lgkmcnt(0)")
    if opt.get('lr', 13) > 13: G[23].append("s_waitcnt lgkmcnt(0)")
    G[39] += ["s_waitcnt lgkmcnt(0)", "s_barrier"] + rdd(3) + rdd(2)
    G[52] += hint(0)
    G[min(n - 1, nfirst + 3)] += ["s_waitcnt lgkmcnt(0)", "s_barrier"] + rdd(1)
    gg = spread(n, [(min(n - 1, nfirst + 5), n, ["s_waitcnt lgkmcnt(0)"] + summ(1, False))])
    for i in range(n): G[i] += gg[i]
    G[n-1] += hint(16)
    vmq = [("ld", i) for i in range(D)]
    issued = D; seen = -1
    for i, (m, need) in enumerate(sched):
        g_ = list(G[i])
        if need > seen:
            a(f"s_waitcnt vmcnt({len(vmq) - 1 - vmq.index(('ld', need))})" + (" lgkmcnt(0)" if i == 0 else ""))
            seen = need
            if issued < 32:
                g_ = oload(issued) + g_; vmq.append(("ld", issued)); issued += 1
        for x in G[i]:
            if any(y.startswith("buffer_") for y in (x if isinstance(x, list) else [x])): vmq.append(("st", 0))
        emit(merge([m], [g_]))
    emit(fs(True))
    a.c("own 32x32 block: reduce over waves; partner partials arrive tagged (low byte of every word), hints only avoid early reads")
    a("v_mov_b32 v88, 0")
    a("s_mov_b64 exec, 7")
    a("buffer_atomic_or v88, v86, s[64:67], s86 offen sc0 sc1")
    a("s_mov_b64 exec, -1")
    emit(wr(0))
    a("s_waitcnt lgkmcnt(0)"); a("s_barrier")
    emit(rdd(0))
    a("s_waitcnt lgkmcnt(0)")
    emit(summ(0, True))
    emit(fs(True))
    a("s_mov_b32 s93, 0x40000")
    a("s_mov_b64 exec, 7")
    a("v_mov_b32 v89, 0")
    a.label("L_h")
    for x, y in ((89, 88), (88, 89)):
        a(f"buffer_atomic_or v{x}, v86, s[64:67], s86 offen sc0 sc1")
        a("s_waitcnt vmcnt(1)")
        a(f"v_cmp_ne_u32 vcc, v87, v{y}")
        a("s_cbranch_vccz L_hend")
        a(f"v_mov_b32 v{y}, 0")
    a("s_sub_u32 s93, s93, 1")
    a("s_cbranch_scc0 L_h")
    a.label("L_hend")
    a("s_mov_b64 exec, -1")
    emit(fs(True))
    a("s_mov_b32 s93, 0x40000")
    a.label("L_x")
    for j in range(3): a(f"buffer_load_dwordx4 {R('v', 32+4*j)}, v81, s[64:67], s{97+j} offen sc1")
    a("s_waitcnt vmcnt(0)")
    for j in range(3):
        b = 32 + 4*j
        a(f"v_perm_b32 v{44+2*j}, v{b+1}, v{b}, v84"); a(f"v_perm_b32 v{45+2*j}, v{b+3}, v{b+2}, v84")
    for j in range(3): a(f"v_perm_b32 v{44+2*j}, v{45+2*j}, v{44+2*j}, v85")
    for j in range(3): a(f"v_xor_b32 v{44+2*j}, s73, v{44+2*j}")
    a("v_or3_b32 v44, v44, v46, v48")
    a("v_cmp_ne_u32 vcc, 0, v44")
    a("s_cbranch_vccz L_xend")
    a("s_sub_u32 s93, s93, 1")
    a("s_cbranch_scc0 L_x")
    a.label("L_xend")
    emit(fs(True))
    for i in range(12): a(f"v_and_b32 v{32+i}, 0xffffff00, v{32+i}")
    for p in range(2):
        a(f"v_pk_add_f32 v[{16+2*p}:{17+2*p}], v[{16+2*p}:{17+2*p}], v[{32+2*p}:{33+2*p}]")
        a(f"v_pk_add_f32 v[{36+2*p}:{37+2*p}], v[{36+2*p}:{37+2*p}], v[{40+2*p}:{41+2*p}]")
    for p in range(2): a(f"v_pk_add_f32 v[{16+2*p}:{17+2*p}], v[{16+2*p}:{17+2*p}], v[{36+2*p}:{37+2*p}]")
    a("v_cvt_pk_bf16_f32 v16, v16, v17")
    a("v_cvt_pk_bf16_f32 v17, v18, v19")
    a("buffer_store_dwordx2 v[16:17], v82, s[12:15], s50 offen")
    if fine:
        a("s_waitcnt vmcnt(0)")
        emit(fs(True, True)); emit(fs(True, True))
        a("s_lshl_b32 s51, s2, 2"); a("s_add_u32 s51, s51, s3"); a("s_lshl_b32 s51, s51, 8"); a(f"s_add_u32 s51, s51, {ST_OFF}")
        a("v_lshlrev_b32 v6, 2, v0")
        a("buffer_store_dword v127, v6, s[64:67], s51 offen")
    a.label("L_end")
    a("s_endpgm")

    a.c("---- rare path: exact row max over all 1024 keys, then the attention is run again with it ----")
    a.label("L_fallback")
    a("s_mov_b32 s76, 1")
    a("s_waitcnt vmcnt(0) lgkmcnt(0)")
    a("s_barrier")
    emit(kr_setup())
    for qq in range(4):
        for s_ in range(4): a(f"ds_write_b128 v{VQR}, {Q_(qq,s_)} offset:{(qq*4+s_)*1024}")
    a(f"v_subrev_u32 v{VKD}, 4096, v{VKD+4}")
    emit(kd_setup())
    a("s_mov_b32 s54, 0")
    a.label("L_fb_loop")
    emit(dma_k(0))
    a("s_waitcnt vmcnt(0)")
    emit(kreads(0))
    a("s_waitcnt lgkmcnt(0)")
    for sl in qk(0, True) + qk(1, True): emit(sl)
    a("s_nop 7")
    for qq in range(4):
        for r in range(0, 8, 2): a(f"v_max3_f32 v{MS+qq}, v{MS+qq}, v{16+8*qq+r}, v{17+8*qq+r}")
    a("s_add_u32 s54, s54, 8192")
    a("s_cmp_lt_u32 s54, 65536")
    a("s_cbranch_scc1 L_fb_loop")
    emit(xred(MS))
    a("s_lshl_b32 s51, s3, 2"); a(f"s_add_u32 s51, s51, {MISC+2048}")
    a(f"v_add_u32 v12, s51, v{VL16}")
    a(f"ds_write_b32 v12, v{MS}")
    a("s_waitcnt lgkmcnt(0)"); a("s_barrier")
    for qq in range(4): a(f"ds_read_b128 {R('v', 16+4*qq)}, v{VMX} offset:{2048 + 256*qq}")
    a("s_waitcnt lgkmcnt(0)")
    for qq in range(4):
        a(f"v_max_f32 v{MS+qq}, v{16+4*qq}, v{17+4*qq}")
        a(f"v_max3_f32 v{MS+qq}, v{18+4*qq}, v{19+4*qq}, v{MS+qq}")
    a("s_mov_b64 s[60:61], s[62:63]")
    emit(nexttile() + dma_k(0) + dma_v(0))
    for k in range(4): a(f"v_mov_b32 v{VZ+k}, 0")
    a("s_nop 1")
    emit(zmf)
    a("s_waitcnt vmcnt(0)")
    a("s_branch L_att")
    if opt.get("pf"): a(".fill 256, 4, 0xbf810000")
    return a.text()

def build(opt, fname):
    k = NAME + "_kernel"
    hdr = f"""; GQA block (B=8, Sq=64, D=512, Hq=32, Hkv=8, Sk=1024, Dh=128) as one fused kernel:
; @launch grid=(256,1,1) block=(256,1,1) lds=163840
.amdgcn_target "amdgcn-amd-amdhsa--gfx950"
"""
    open(fname, "w").write(hdr + kernel_header(k) + gen(opt) + '.section .rodata,"a"\n.p2align 6\n' + kernel_desc(k, 512, 102, 256))

R1 = [order(x) for x in ([0,2,1,3,4,6,5,7], [0,1,3,2,4,5,7,6], [1,0,2,4,3,5,6,7], [1,0,2,3,5,4,6,7])]
R3 = [order(x) for x in ([0,2,1,3,6,4,5,7], [0,1,4,2,3,5,6,7], [1,3,0,2,4,7,5,6], [1,0,2,5,3,4,6,7])]
R7 = [order(x) for x in ([0,1,3,2,4,5,7,6], [0,1,2,4,3,5,6,7], [0,2,1,3,5,4,6,7], [0,2,1,3,4,6,5,7])]
if __name__ == "__main__":
    B = {"orders": R7}
    KO = [1, 1, 3, 3, 5, 5, 7, 7]; VO = [17, 17, 19, 19, 21, 21, 23, 23, 25, 25, 27, 27, 29, 29, 31]
    D_ = dict(B, arr="D")
    H_ = dict(D_, h3=1, nb=4, ls0=0)
    N_ = dict(H_, orders=R1)
    N_ = dict(N_, nf=16)
    P7 = [R7[1], R7[2], R7[3], R7[0]]
    Z_ = dict(N_, late2={5: ["L5"]})
    V = {"z": Z_, "pf": dict(Z_, pf=1), "r1": N_}
    for n, o in V.items():
        build(o, f"v56_{n}.s")
        build(dict(o, fine=3), f"v56_{n}_m.s")
```

```python
import sys, math, struct
from asmlib import *

C_SCALE = math.log2(math.e) / math.sqrt(128.0)
def f2u(f): return struct.unpack("<I", struct.pack("<f", f))[0]
def R(p, lo, n=4): return f"{p}[{lo}:{lo+n-1}]"
def mf(d, a, b, c): return f"v_mfma_f32_16x16x32_bf16 {d}, {a}, {b}, {c}"

def Oi(h, p): return 128 + (h*4+p)*16
def Q_(qq, s): return R("a", 128 + (qq*4+s)*4)
def Kf(s, kb): return 192 + (s*2+kb)*4
def Vf(j): return 224 + 4*j
S0 = [16, 32]; NM = 48; P0 = [80, 88]
LA = 96; SEL = 116
VCNT = 98; VT = 99
VKR = 100; VVR = 104; VKD = 112; VVD = 120
MS = 76; VWA = 8; VOD0 = 1
ID = [2, 4]
VL16 = 13; VQR = 15; VMX = 96
VXD = 48; VWD = 50; VXR = 54; VWR = 56; VZ = 60; T = 64
XB = 131072; QAREA = XB; MISC = XB + 16384
X_OFF = 0x400000; FL_OFF = 0x800000; ST_OFF = 0x810000
PART = 16384
LIMIT = 2.0 ** 40

def spread(n, fillers):
    gaps = [[] for _ in range(n)]
    for (g0, g1, lst) in fillers:
        k = max(1, len(lst))
        for i, x in enumerate(lst):
            gaps[g0 + (i * (g1 - g0)) // k].append(x)
    return gaps
def fix_m0(seq):
    out = []
    for i, x in enumerate(seq):
        out.append(x)
        if " m0," in x and i + 1 < len(seq) and seq[i+1].startswith("buffer_load"): out.append("s_nop 0")
    return out
def cost(x): return 8 if x.startswith(("v_exp", "v_rcp")) else 4
def merge(slots, gaps, pre=None, post=None):
    s = []
    for i, ms in enumerate(slots):
        if pre and i in pre: s += pre[i]
        if "|" in gaps[i]:
            k_ = gaps[i].index("|")
            s += [ms[0]] + gaps[i][:k_] + [ms[1]] + gaps[i][k_+1:]
            if post and i in post: s += post[i]
            continue
        items = list(gaps[i]); tot = sum(sum(map(cost, x)) if isinstance(x, list) else cost(x) for x in items)
        for k, m in enumerate(ms):
            s.append(m)
            if k == len(ms) - 1:
                take = items; items = []
            else:
                take = []; c = 0; lim = max(8, tot / len(ms))
                while items:
                    cc = sum(map(cost, items[0])) if isinstance(items[0], list) else cost(items[0])
                    if c + cc > lim: break
                    c += cc; take.append(items.pop(0))
            for x in take: s += x if isinstance(x, list) else [x]
        if post and i in post: s += post[i]
    return s
def order(l):
    v = 0
    for i, t in enumerate(l): v |= t << (4*i)
    return v

def gen(opt):
    a = Asm()
    fine = opt.get("fine")
    clk = "s_memtime" if fine == 2 else "s_memrealtime"
    def fs(sync=False, last=False):
        if not fine or (fine == 3 and not last): return []
        return (["s_waitcnt lgkmcnt(0)"] if sync else []) + ["s_mov_b32 s89, m0", "s_mov_b32 m0, s92", "s_add_u32 s92, s92, 1", "v_writelane_b32 v127, s90, m0", clk + " s[90:91]", "s_mov_b32 m0, s89"]
    def emit(l):
        for x in fix_m0(l): a(x)
    LATEP = opt.get("late2", {})
    moved = {b for v in LATEP.values() for b in v}
    blocks = {}; saved = []
    def beg(n):
        if n in moved: saved.append(a.lines); a.lines = blocks.setdefault(n, [])
    def end(n):
        if n in moved: a.lines = saved.pop()

    a.c("workgroups past the 256 that carry data leave at once")
    a("s_cmp_ge_u32 s2, 256")
    a("s_cbranch_scc1 L_end")
    a("s_load_dwordx8 s[4:11], s[0:1], 0")
    a("s_load_dwordx8 s[12:19], s[0:1], 32")
    a("s_memrealtime s[74:75]")
    if fine:
        a(clk + " s[90:91]"); a("s_mov_b32 s92, 0"); a("v_mov_b32 v127, 0"); a("s_mov_b32 m0, 0")
    a(f"v_lshrrev_b32 v{T}, 6, v0")
    a("v_and_b32 v0, 63, v0")
    a(f"v_readfirstlane_b32 s3, v{T}")
    a.c("id -> kv head s40 (= id & 7), batch s41, head-in-group s42, q head s43; wave index s3, lane v0")
    a("s_and_b32 s40, s2, 7"); a("s_lshr_b32 s41, s2, 5"); a("s_bfe_u32 s42, s2, 0x20003")
    a("s_lshl_b32 s43, s40, 2"); a("s_add_u32 s43, s43, s42")
    a.c("per-lane source offsets of the LDS-DMA tile loads (bank swizzle applied on the source side)")
    r4, c16, vp, r8, c8, t0, t1, cc8, l4 = T+1, T+2, T+3, T+4, T+5, T+6, T+7, T+8, T+9
    a(f"v_lshrrev_b32 v{r4}, 4, v0")
    a(f"v_and_b32 v{c16}, 15, v0")
    a(f"v_lshlrev_b32 v{vp}, 1, v{r4}")
    a(f"v_xor_b32 v{vp}, v{c16}, v{vp}")
    a(f"v_lshlrev_b32 v{vp}, 4, v{vp}")
    a(f"v_lshl_add_u32 v{VWD}, v{r4}, 13, v{vp}")
    a(f"v_xor_b32 v{t0}, 128, v{VWD}")
    a(f"v_add_u32 v{VWD+1}, 31744, v{VWD}")
    a(f"v_add_u32 v{VWD+2}, {31744*2}, v{t0}")
    a(f"v_add_u32 v{VWD+3}, {31744*3}, v{t0}")
    a(f"v_lshrrev_b32 v{r8}, 3, v0")
    a(f"v_and_b32 v{c8}, 7, v0")
    a(f"v_xor_b32 v{t0}, v{c8}, v{r4}")
    a(f"v_lshlrev_b32 v{t0}, 4, v{t0}")
    a(f"v_lshl_add_u32 v{VXD}, v{r8}, 10, v{t0}")
    a(f"v_xor_b32 v{t0}, 64, v{VXD}")
    a(f"v_add_u32 v{VXD+1}, {8192-1024}, v{t0}")
    a("s_add_u32 s44, s42, s41"); a("s_mul_i32 s45, s44, 86"); a("s_lshr_b32 s45, s45, 8"); a("s_mul_i32 s45, s45, 3"); a("s_sub_u32 s44, s44, s45"); a("s_mul_i32 s58, s44, 3")
    a("s_lshl_b32 s46, s3, 11"); a(f"s_add_u32 s46, s46, {XB}")
    a("s_lshl_b32 s47, s3, 12"); a("s_add_u32 s47, s47, 16384")
    a("s_lshl_b32 s49, s3, 15")
    a("s_lshl_b32 s44, s41, 16"); a("s_lshl_b32 s45, s3, 14"); a("s_add_u32 s44, s44, s45")
    a("s_lshl_b32 s48, s43, 8"); a("s_lshl_b32 s45, s3, 17"); a("s_add_u32 s48, s48, s45")
    a("s_sub_u32 s22, 0x80000, s44"); a("s_mov_b32 s23, 0x20000")
    a("s_sub_u32 s34, 0x400000, s48"); a("s_mov_b32 s35, 0x20000")
    a("s_waitcnt lgkmcnt(0)")
    a("s_add_u32 s20, s4, s44"); a("s_addc_u32 s21, s5, 0"); a("s_and_b32 s21, s21, 0xffff")
    a("s_add_u32 s32, s10, s48"); a("s_addc_u32 s33, s11, 0"); a("s_and_b32 s33, s33, 0xffff")

    def qdma(c):
        j = c % 4
        out = [f"s_lshl_b32 s59, s58, 7", f"s_add_u32 m0, s46, {j*8192}", "s_lshl_b32 s57, s58, 19"]
        out += [f"buffer_load_dwordx4 v{VXD+i}, s[20:23], s59 offen offset:{1024*i} lds" for i in range(2)]
        out += [f"s_add_u32 m0, s47, {j*32768}", "s_add_u32 s58, s58, 1"]
        out += [f"buffer_load_dwordx4 v{VWD+i}, s[32:35], s57 offen offset:{1024*i} lds" for i in range(4)]
        out.append("s_and_b32 s58, s58, 7")
        return out
    def nexttile(): return ["s_and_b32 s54, s60, 0x1e000", "s_lshr_b64 s[60:61], s[60:61], 4"]
    def dma_k(slot):
        out = []
        for hh in range(2):
            out.append(f"s_add_u32 m0, s49, {slot*16384 + hh*4096}")
            out += [f"buffer_load_dwordx4 v{VKD+4*hh+i}, s[24:27], s54 offen offset:{1024*i} lds" for i in range(4)]
        return out
    def dma_v(slot):
        out = []
        for hh in range(2):
            out.append(f"s_add_u32 m0, s49, {slot*16384 + 8192 + hh*4096}")
            out += [f"buffer_load_dwordx4 v{VVD+2*hh+(i&1)}, s[28:31], s54 offen offset:{1024*i} lds" for i in range(4)]
        return out
    a.c("---- q projection: Q^T[128 x 64] = Wq_h^T x_b^T, 8 k-chunks of 64 through a 4-deep LDS ring ----")
    vm = []
    emit(qdma(0)); vm += ["c0"]*6
    if opt.get("pf"):
        a.c("pull this kernel's code into L2 ahead of the instruction fetch (one dword per 64 B, 4 KB per wave)")
        a("s_getpc_b64 s[100:101]")
        a("s_and_b32 s100, s100, 0xffffff00")
        a(f"v_lshlrev_b32 v{T+10}, 6, v0")
        a("s_lshl_b32 s51, s3, 12")
        a(f"v_add_u32 v{T+10}, s51, v{T+10}")
        a(f"s_cmp_ge_u32 s41, {opt['pf']}"); a("s_cbranch_scc1 L_nopf")
        a(f"global_load_dword v{T+11}, v{T+10}, s[100:101]")
        a.label("L_nopf")
    a.c("remaining address / descriptor setup, overlapped with the first loads")
    def kd_setup(): return [f"v_xor_b32 v{VKD+i}, {64*i}, v{VKD}" for i in range(1, 4)]
    a(f"v_xor_b32 v{t0}, v{c16}, v{r4}"); a(f"v_lshlrev_b32 v{t0}, 4, v{t0}")
    a(f"v_lshl_add_u32 v{VKD}, v{r4}, 8, v{t0}")
    a(f"v_lshl_add_u32 v{t0}, v{c16}, 8, v{t0}")
    a(f"v_add_u32 v{VKR}, s49, v{t0}")
    def kr_setup(): return [f"v_xor_b32 v{VKR+s}, {64*s}, v{VKR}" for s in range(1, 4)]
    emit(kd_setup() + kr_setup())
    for i in range(4): a(f"v_add_u32 v{VKD+4+i}, 4096, v{VKD+i}")
    a(f"v_lshl_add_u32 v{VVD}, v{r4}, 8, v{vp}")
    a(f"v_xor_b32 v{VVD+1}, 128, v{VVD}")
    a(f"v_add_u32 v{VVD+2}, 4096, v{VVD}"); a(f"v_add_u32 v{VVD+3}, 4096, v{VVD+1}")
    a(f"v_lshlrev_b32 v{t0}, 1, v{r4}"); a(f"v_xor_b32 v{t0}, v{t0}, v{c8}"); a(f"v_lshlrev_b32 v{t0}, 4, v{t0}")
    a(f"v_lshl_add_u32 v{VOD0}, v{r8}, 10, v{t0}")
    a.c("order in which this workgroup visits its 8 key tiles (the 4 heads of a kv group take turns fetching from HBM)")
    orders = opt["orders"]
    a(f"s_mov_b32 s62, {hex(orders[0])}")
    for rr_ in range(1, 4):
        a(f"s_cmp_eq_u32 s42, {rr_}"); a(f"s_cselect_b32 s62, {hex(orders[rr_])}, s62")
    a("s_mov_b32 s63, 0")
    a("s_lshl_b64 s[62:63], s[62:63], 13")
    a("s_mov_b64 s[60:61], s[62:63]")
    a("s_lshl_b32 s50, s41, 3"); a("s_add_u32 s50, s50, s40"); a("s_lshl_b32 s50, s50, 2"); a("s_add_u32 s50, s50, s3")
    a("s_lshl_b32 s50, s50, 16")
    a("s_mov_b32 s26, 0x10000"); a("s_mov_b32 s27, 0x20000"); a("s_mov_b32 s30, 0x10000"); a("s_mov_b32 s31, 0x20000")
    a("s_add_u32 s24, s6, s50"); a("s_addc_u32 s25, s7, 0"); a("s_and_b32 s25, s25, 0xffff")
    a("s_add_u32 s28, s8, s50"); a("s_addc_u32 s29, s9, 0"); a("s_and_b32 s29, s29, 0xffff")
    srd(a, 64, 18, ST_OFF + (0x40000 if fine else 0))
    srd(a, 68, 16, 256)
    a(f"v_mov_b32 v{VT}, 0")
    a("s_lshl_b32 s72, s41, 5")
    a.c("hand-off tag of this launch: q head 0 of each batch publishes its clock value in d_debug (zero at launch)")
    a("s_or_b32 s51, s43, s3")
    a("s_cbranch_scc1 L_nolead")
    a("s_or_b32 s74, s74, 1")
    a(f"v_mov_b32 v{VCNT}, s74")
    a("s_mov_b64 exec, 1")
    a(f"buffer_store_dword v{VCNT}, v{VT}, s[68:71], s72 offen sc1")
    a("s_mov_b64 exec, -1")
    a.label("L_nolead")
    emit(qdma(1)); vm += ["c1"]*6
    a(f"v_lshrrev_b32 v{t0}, 1, v{c16}"); a(f"v_xor_b32 v{t0}, v{t0}, v{r4}"); a(f"v_lshlrev_b32 v{t0}, 4, v{t0}")
    a(f"v_lshl_add_u32 v{t0}, v{c16}, 7, v{t0}")
    a(f"v_add_u32 v{VXR}, {XB}, v{t0}"); a(f"v_xor_b32 v{VXR+1}, 64, v{VXR}")
    a(f"v_and_b32 v{cc8}, 3, v0"); a(f"v_lshlrev_b32 v{cc8}, 3, v{cc8}")
    a(f"v_lshrrev_b32 v{l4}, 2, v0")
    a("s_lshl_b32 s52, s3, 1")
    a(f"v_and_b32 v{t1}, 7, v{l4}"); a(f"v_xor_b32 v{t1}, s52, v{t1}")
    a(f"v_lshl_add_u32 v{t1}, v{t1}, 5, v{cc8}")
    a(f"v_lshl_add_u32 v{t0}, v{r4}, 2, v{l4}")
    a(f"v_lshl_add_u32 v{t0}, v{t0}, 8, v{t1}")
    a(f"v_add_u32 v{VWR}, 16384, v{t0}"); a(f"v_xor_b32 v{VWR+1}, 32, v{VWR}")
    a(f"v_add_u32 v{VWR+2}, 65536, v{VWR}"); a(f"v_add_u32 v{VWR+3}, 65536, v{VWR+1}")
    a(f"v_lshl_add_u32 v{t0}, v{l4}, 8, v{t1}")
    a(f"v_add_u32 v{VVR}, s49, v{t0}")
    def vr_setup(): return [f"v_xor_b32 v{VVR+j}, {32*j}, v{VVR}" for j in range(1, 8)]
    emit(vr_setup())
    a("s_and_b32 s51, s40, 2"); a("s_and_b32 s52, s3, 1"); a("s_or_b32 s51, s51, s52")
    a(f"v_and_b32 v{t0}, 3, v{r8}"); a(f"v_xor_b32 v{t0}, s51, v{t0}")
    a(f"v_lshl_add_u32 v{t0}, v{t0}, 5, v{cc8}")
    a(f"v_lshl_add_u32 v{t0}, v{l4}, 7, v{t0}")
    a(f"v_add_u32 v{VWA}, s49, v{t0}")
    for k in range(1, 4): a(f"v_xor_b32 v{VWA+k}, {32*k}, v{VWA}")
    a(f"v_lshlrev_b32 v{VL16}, 4, v0")
    a(f"v_add_u32 v{VQR}, {QAREA}, v{VL16}")
    a(f"v_lshlrev_b32 v{VMX}, 4, v{c16}"); a(f"v_add_u32 v{VMX}, {MISC}, v{VMX}")
    for k in range(4): a(f"v_mov_b32 v{MS+k}, 0xff800000")
    a("s_mov_b32 s76, 0")
    a("s_lshl_b32 s51, s41, 5"); a("s_add_u32 s51, s51, s43"); a("s_lshl_b32 s51, s51, 2"); a("s_add_u32 s51, s51, s3")
    a("s_lshl_b32 s51, s51, 3"); a(f"s_add_u32 s77, s51, {FL_OFF}")
    a("s_andn2_b32 s51, s2, 6"); a("s_lshl_b32 s51, s51, 7"); a("s_lshl_b32 s52, s3, 5"); a("s_add_u32 s51, s51, s52"); a(f"s_add_u32 s86, s51, {FL_OFF + 0x4000}")
    a("s_and_b32 s78, s40, 6"); a("s_lshl_b32 s78, s78, 2"); a("s_lshl_b32 s51, s3, 1"); a("s_add_u32 s78, s78, s51")
    a("s_and_b32 s79, s43, 7")
    a("s_lshl_b32 s51, s78, 17"); a("s_lshl_b32 s52, s79, 7"); a("s_add_u32 s51, s51, s52")
    a("s_add_u32 s36, s12, s51"); a("s_addc_u32 s37, s13, 0"); a("s_and_b32 s37, s37, 0xffff")
    a("s_sub_u32 s38, 0x400000, s51"); a("s_mov_b32 s39, 0x20000")
    for k in range(4): a(f"v_mov_b32 v{VZ+k}, 0")
    emit([f"v_mov_b32 v14, {hex(f2u(C_SCALE))}", f"v_lshrrev_b32 v12, 1, v{r4}", f"v_lshl_add_u32 v12, v12, 4, v{c16}", "v_lshlrev_b32 v12, 4, v12",
          f"v_and_b32 v{t0}, 1, v{r4}", f"v_lshl_add_u32 v12, v{t0}, 3, v12", "s_lshl_b32 s51, s3, 10", f"s_add_u32 s51, s51, {QAREA}", "v_add_u32 v12, s51, v12"])
    beg("L4")
    a.c("constants used after the q projection: identity A fragments (v2..v7) for the bf16 cross-wave reduction,")
    a.c("selector fragment (a116..a119) for the row sums, scalar offsets of the later phases")
    a(f"v_lshrrev_b32 v{t0}, 2, v{c16}"); a(f"v_xor_b32 v{t0}, v{t0}, v{r4}")
    a(f"v_bfe_u32 v{t1}, v0, 1, 1"); a(f"v_lshl_add_u32 v{t0}, v{t0}, 1, v{t1}")
    a(f"v_and_b32 v{t1}, 1, v0"); a(f"v_lshlrev_b32 v{t1}, 4, v{t1}")
    a(f"v_mov_b32 v4, 0x3f80"); a(f"v_lshlrev_b32 v{t1}, v{t1}, v4")
    a(f"v_cmp_eq_u32 s[80:81], 0, v{t0}"); a(f"v_cmp_eq_u32 s[82:83], 1, v{t0}"); a(f"v_cmp_eq_u32 s[84:85], 0, v{c16}")
    a("v_mov_b32 v4, 0"); a("v_mov_b32 v5, 0"); a(f"v_mov_b32 v{t0}, 0x3f803f80")
    a(f"v_cndmask_b32 v2, 0, v{t1}, s[80:81]"); a(f"v_cndmask_b32 v3, 0, v{t1}, s[82:83]"); a(f"v_cndmask_b32 v{t0}, 0, v{t0}, s[84:85]")
    a("v_mov_b32 v6, v2"); a("v_mov_b32 v7, v3")
    for k in range(4): a(f"v_accvgpr_write_b32 a{SEL+k}, v{t0}")
    if opt.get("rot", 6) == 6:
        a("s_mul_i32 s51, s41, 86"); a("s_lshr_b32 s51, s51, 8"); a("s_mul_i32 s51, s51, 3"); a("s_sub_u32 s80, s41, s51"); a("s_mul_i32 s80, s80, 3")
    elif opt["rot"] == 2:
        a("s_lshl_b32 s80, s42, 1"); a("s_add_u32 s80, s80, s41"); a("s_and_b32 s80, s80, 7")
    elif opt["rot"] == 4:
        a("s_lshl_b32 s80, s41, 1"); a("s_and_b32 s80, s80, 7")
    a("s_lshl_b32 s87, s3, 12"); a(f"s_add_u32 s87, s87, {XB}"); a("s_sub_u32 s88, s87, s49")
    a("s_lshl_b32 s51, s41, 9"); a("s_lshl_b32 s52, s43, 3"); a("s_add_u32 s51, s51, s52"); a("s_lshl_b32 s52, s3, 1"); a("s_add_u32 s51, s51, s52")
    a("s_lshl_b32 s4, s51, 10"); a("s_add_u32 s5, s4, 262144"); a(f"s_mov_b32 s53, {hex(f2u(LIMIT))}")
    a("s_lshl_b32 s51, s41, 5"); a("s_add_u32 s51, s51, s78"); a("s_lshl_b32 s51, s51, 5"); a(f"s_add_u32 s55, s51, {FL_OFF}")
    a("s_lshl_b32 s51, s41, 9"); a("s_lshl_b32 s52, s78, 3"); a("s_add_u32 s51, s51, s52"); a("s_lshl_b32 s51, s51, 10")
    a("s_add_u32 s8, s18, s51"); a("s_addc_u32 s9, s19, 0"); a("s_and_b32 s9, s9, 0xffff"); a("s_mov_b32 s10, 0x44000"); a("s_mov_b32 s11, 0x20000")
    for j in range(1, 4):
        a(f"s_xor_b32 s51, s2, {2*j}"); a("s_mul_i32 s51, s51, 12288"); a(f"s_add_u32 s{93+j}, s51, {X_OFF + (j-1)*4096}")
    a("s_mul_i32 s51, s2, 12288"); a(f"s_add_u32 s97, s51, {X_OFF}"); a("s_add_u32 s98, s97, 4096"); a("s_add_u32 s99, s97, 8192")
    a("s_mov_b32 s12, s14"); a("s_and_b32 s13, s15, 0xffff"); a("s_mov_b32 s14, 0x80000"); a("s_mov_b32 s15, 0x20000")
    emit(["s_lshl_b32 s50, s41, 16", "s_and_b32 s51, s40, 4", "s_and_b32 s52, s3, 2", "s_or_b32 s51, s51, s52", "s_lshl_b32 s51, s51, 13", "s_add_u32 s50, s50, s51",
          "s_lshl_b32 s51, s79, 7", "s_add_u32 s50, s50, s51", "s_and_b32 s51, s40, 2", "s_and_b32 s52, s3, 1", "s_or_b32 s51, s51, s52", "s_lshl_b32 s51, s51, 5", "s_add_u32 s50, s50, s51",
          "s_and_b32 s52, s2, 6", "s_lshl_b32 s74, s52, 1", "s_add_u32 s75, s86, s74",
          "s_and_b32 s52, s40, 4", "s_lshl_b32 s52, s52, 16", "s_and_b32 s51, s3, 2", "s_lshl_b32 s51, s51, 9", "s_or_b32 s16, s52, s51", "s_lshl_b32 s17, s3, 10"])
    end("L4")
    z = R("v", VZ)
    zmf = [f"v_mfma_f32_32x32x16_bf16 {R('v', 128+16*i, 16)}, {z}, {z}, 0" for i in range(8)]
    beg("L5"); a.c("O accumulators v128..v255 := 0"); emit(zmf); end("L5")
    ASY = opt.get("asy", [])
    if ASY:
        a("s_bitcmp1_b32 s2, 2"); a("s_cbranch_scc0 L_as0")
        for b_ in ASY: a.lines += blocks[b_]
        a.label("L_as0")
    emit(qdma(2)); vm += ["c2"]*6

    kvq = opt.get("kvq", {5: ["K0a"], 6: ["K0b"], 7: ["V0a"], 8: ["V0b"]})
    K0 = dma_k(0); V0 = dma_v(0)
    grp = {"K0a": nexttile() + K0[:5], "K0b": K0[5:], "V0a": V0[:5], "V0b": V0[5:]}
    def kv(c):
        out = []
        for g in kvq.get(c, []): out += grp[g]; vm.extend([g[:2]]*4)
        return out
    def qreads(c):
        j = c % 4; base = (c % 2) * 48; out = []
        for s in range(2):
            b = base + 24*s
            for d in range(2):
                for u in range(2):
                    out.append(f"ds_read_b64_tr_b16 a[{b+4*d+2*u}:{b+4*d+2*u+1}], v{VWR + 2*(j >> 1) + d} offset:{(j & 1)*32768 + (32*s+4*u)*256}")
            for qq in range(4):
                out.append(f"ds_read_b128 {R('a', b+8+4*qq)}, v{VXR+s} offset:{j*8192 + qq*2048}")
        return out
    def qslot(c, s, qq):
        b = (c % 2) * 48 + 24*s
        return [mf(R("v", 16+8*qq+4*d), R("a", b+4*d), R("a", b+8+4*qq), "0" if (c == 0 and s == 0) else R("v", 16+8*qq+4*d)) for d in range(2)]
    def nwait(tag): return len(vm) - 1 - max(i for i, x in enumerate(vm) if x == tag)
    emit(fs())
    for c in range(8):
        a(f"s_waitcnt vmcnt({nwait(f'c{c}')})")
        a("s_barrier")
        emit(fs(c == 0))
        seq = qreads(c); ld = []
        if c + 3 < 8: ld += qdma(c + 3); vm += [f"c{c+3}"]*6
        ld += kv(c)
        if c == 0: emit(seq + ld)
        else:
            n0 = opt.get("q0", 4)
            emit(seq[:n0] + merge([qslot(c-1, s, qq) for s in range(2) for qq in range(4)], spread(8, [(0, opt.get("q1", 4), seq[n0:]), (0, 7, ld)])))
        for b_ in LATEP.get(c, []):
            if b_ in ASY:
                a("s_bitcmp1_b32 s2, 2"); a(f"s_cbranch_scc1 L_as{b_}")
                a.lines += blocks[b_]
                a.label(f"L_as{b_}")
            else: a.lines += blocks[b_]
        a("s_waitcnt lgkmcnt(0)")
    a.c("scale Q by log2(e)/sqrt(128), round to bf16, exchange the fragments through LDS")
    def qfin(qq, pk=False):
        b = 16 + 8*qq
        out = [f"v_mul_f32 v{b+r}, v14, v{b+r}" for r in range(8)]
        if pk: out = [f"v_pk_mul_f32 v[{b+r}:{b+r+1}], v[{b+r}:{b+r+1}], v[14:15] op_sel_hi:[1,0]" for r in range(0, 8, 2)]
        out += [f"v_cvt_pk_bf16_f32 v{80+4*qq+i}, v{b+2*i}, v{b+2*i+1}" for i in range(4)]
        out += [f"ds_write_b64 v12, v[{80+4*qq+2*d}:{81+4*qq+2*d}] offset:{qq*4096 + d*512}" for d in range(2)]
        return out
    qini = [f"v_mov_b32 v14, {hex(f2u(C_SCALE))}", f"v_lshrrev_b32 v12, 1, v{r4}", f"v_lshl_add_u32 v12, v12, 4, v{c16}", "v_lshlrev_b32 v12, 4, v12",
            f"v_and_b32 v{t0}, 1, v{r4}", f"v_lshl_add_u32 v12, v{t0}, 3, v12", "s_lshl_b32 s51, s3, 10", f"s_add_u32 s51, s51, {QAREA}", "v_add_u32 v12, s51, v12"]
    f01 = qfin(0) + qfin(1)
    nf = opt.get("nf", 22)
    emit(merge([qslot(7, s, qq) for qq in range(4) for s in range(2)], spread(8, [(3, 8, f01[:nf])])))
    emit(f01[nf:] + qfin(2, True) + qfin(3, True))
    emit(kv(8))

    def kreads(slot): return [f"ds_read_b128 {R('a', Kf(s, kb))}, v{VKR+s} offset:{slot*16384 + kb*4096}" for s in range(4) for kb in range(2)]
    def vreads(slot): return [f"ds_read_b64_tr_b16 a[{Vf(j)+2*u}:{Vf(j)+2*u+1}], v{VVR+j} offset:{slot*16384 + 8192 + u*4096}" for j in range(8) for u in range(2)]
    def qk(h, first=False):
        out = []
        for q in range(2):
            for s in range(4):
                sl = []
                for kb in range(2):
                    d = R("v", S0[h] + 8*q + 4*kb)
                    sl.append(mf(d, R("a", Kf(s, kb)), Q_(2*h+q, s), (("0" if first else R("v", NM + 4*(2*h+q))) if s == 0 else d)))
                out.append(sl)
        return out
    def pv(h, js=range(8)):
        return [[mf(R("v", Oi(h, j >> 1) + 8*q + 4*(j & 1)), R("a", Vf(j)), R("v", P0[h] + 4*q), R("v", Oi(h, j >> 1) + 8*q + 4*(j & 1))) for q in range(2)] for j in js]
    def msum(h, q): return mf(R("a", LA + 4*(2*h+q)), R("a", SEL), R("v", P0[h] + 4*q), R("a", LA + 4*(2*h+q)))
    def ex(h, r): return f"v_exp_f32 v{S0[h]+r}, v{S0[h]+r}"
    def cv(h, i): return f"v_cvt_pk_bf16_f32 v{P0[h]+i}, v{S0[h]+2*i}, v{S0[h]+2*i+1}"
    def smx(h):
        o = []
        for r in range(16):
            o.append(ex(h, r))
            if r >= 2 and r % 2 == 0: o.append(cv(h, (r-2)//2))
        return o

    emit(fs(True))
    a("s_waitcnt lgkmcnt(0)")
    a.c("---- attention: wave w owns keys [256w, 256w+256), all 64 query rows; S^T = K Q^T, O^T += V^T P^T ----")
    a.label("L_att")
    a("s_barrier")
    qr = [f"ds_read_b128 {Q_(qq,s)}, v{VQR} offset:{(qq*4+s)*1024}" for qq in range(4) for s in range(4)]
    emit(qr[:8])
    a(f"s_waitcnt vmcnt({nwait('K0')})")
    emit(fs())
    emit(kreads(0))
    K1 = nexttile() + dma_k(1); V1 = dma_v(1)
    MX = 64
    def inmax(qq):
        s = 16 + 8*qq; t = MX + qq
        return [f"v_max3_f32 v{t}, v{s}, v{s+1}, v{s+2}", f"v_max3_f32 v{t}, v{t}, v{s+3}, v{s+4}", f"v_max3_f32 v{t}, v{t}, v{s+5}, v{s+6}", f"v_max_f32 v{t}, v{t}, v{s+7}"]
    def xred(m):
        return [f"v_permlane32_swap_b32 v{m}, v{m+2}", f"v_permlane32_swap_b32 v{m+1}, v{m+3}", "s_nop 0",
                f"v_max_f32 v{m}, v{m}, v{m+2}", f"v_max_f32 v{m+1}, v{m+1}, v{m+3}", "s_nop 1",
                f"v_permlane16_swap_b32 v{m}, v{m+1}", "s_nop 0", f"v_max_f32 v{m}, v{m}, v{m+1}"]
    vr0 = vreads(0)
    emit(K1[:4])
    gaps = spread(16, [(0, 4, qr[8:]), (0, 14, K1[4:]), (4, 6, [f"v_accvgpr_write_b32 a{LA+4*k}, 0" for k in range(4)]), (6, 8, inmax(0)), (8, 10, ["s_lshl_b32 s51, s3, 2", f"s_add_u32 s51, s51, {MISC}", f"v_add_u32 v12, s51, v{VL16}"]), (10, 12, inmax(1)), (14, 16, inmax(2))])
    emit(merge(qk(0, True) + qk(1, True), gaps, pre={0: ["s_waitcnt lgkmcnt(4)"], 2: ["s_waitcnt lgkmcnt(4)"], 8: ["s_waitcnt lgkmcnt(0)"]}))
    a.c("softmax shift m = true row max over the first key tile of all 4 waves (or the exact row max v76..v79 after the fallback);")
    a.c("it enters every later QK tile as the MFMA C operand (-m); the row sums are checked at the end")
    emit(V1[:2])
    a("s_nop 3")
    emit(inmax(3))
    a("s_nop 1")
    emit(xred(MX))
    a(f"ds_write_b32 v12, v{MX}")
    emit(V1[2:3])
    a("s_waitcnt lgkmcnt(0)"); a("s_barrier")
    for qq in range(4): a(f"ds_read_b128 {R('v', NM+4*qq)}, v{VMX} offset:{256*qq}")
    emit(fs())
    a(f"s_waitcnt vmcnt({nwait('V0') + 10})")
    emit(vr0[:8])
    a("s_waitcnt lgkmcnt(8)")
    for qq in range(4):
        n = NM + 4*qq
        a(f"v_max3_f32 v{MX+qq}, v{n}, v{n+1}, v{MS+qq}")
    for qq in range(4):
        n = NM + 4*qq
        a(f"v_max3_f32 v{MX+qq}, v{n+2}, v{n+3}, v{MX+qq}")
    for qq in range(4):
        for k in range(2): a(f"v_sub_f32 v{NM+4*qq+k}, 0, v{MX+qq}")
    def sub(qq): return [f"v_pk_add_f32 v[{16+8*qq+r}:{17+8*qq+r}], v[{16+8*qq+r}:{17+8*qq+r}], v[{NM+4*qq}:{NM+4*qq+1}]" for r in range(0, 8, 2)]
    body_a = sub(0) + sub(1) + smx(0) + sub(2) + [cv(0, 7)] + sub(3) + smx(1)[:4]
    body_a += [f"v_pk_mov_b32 v[{NM+4*qq+2}:{NM+4*qq+3}], v[{NM+4*qq}:{NM+4*qq+1}], v[{NM+4*qq}:{NM+4*qq+1}]" for qq in range(4)]
    body_a += [f"v_add_u32 v12, s49, v{VL16}", "s_lshl_b32 s51, s3, 2", f"s_add_u32 s51, s51, {MISC+1024}", f"v_add_u32 v14, s51, v{VL16}", "s_lshl_b32 s84, s80, 15"]
    n = len(body_a)
    emit(merge([[x] for x in body_a], spread(n, [(0, n - 4, V1[3:]), (4, 30, vr0[8:15])])))

    wo_slot = [0, 4096, 8192, 12288, "X", 28672, 0, 4096]
    def wo_group(g):
        out = [f"s_add_u32 m0, s49, {wo_slot[g]}" if wo_slot[g] != "X" else "s_mov_b32 m0, s87"]
        out += [f"buffer_load_dwordx4 v{VKD+i}, s[36:39], s84 offen offset:{1024*i} lds" for i in range(4)]
        out += ["s_add_u32 s84, s84, 0x8000", "s_and_b32 s84, s84, 0x3ffff"]
        return out
    def wo_reads(g):
        X = wo_slot[g] == "X"
        return [f"ds_read_b64_tr_b16 a[{(g*4+cs)*4+2*u}:{(g*4+cs)*4+2*u+1}], v{(116 if X else VWA)+cs} offset:{(0 if X else wo_slot[g]) + u*2048}" for cs in range(4) for u in range(2)]
    wcnt = [0]
    def wnext(n=1):
        out = []
        for _ in range(n): out += wo_group(wcnt[0]); wcnt[0] += 1
        return out

    def body(par, kind):
        slots = pv(0) + qk(0) + pv(1) + qk(1)
        G = [[] for _ in range(32)]
        for r in range(16): G[(29 + r) % 32].append(ex(1, r)); G[13 + r].append(ex(0, r))
        vr_prev = vreads(par); vr = vreads(1 - par); kr = kreads(1 - par)
        kg = opt.get("kg", [1, 2, 3, 4, 5, 6, 7, 8])
        G[0].append(vr_prev[15])
        for s in range(8): G[kg[s]].append(kr[s])
        vg = opt.get("vg", list(range(17, 32)))
        for i in range(15): G[vg[i]].append(vr[i])
        for i in range(8): G[(31 + 2*i) % 32].append(cv(1, i)); G[15 + 2*i].append(cv(0, i))
        cnt = lambda g_: sum(1 for s in range(8) if kg[s] < g_)
        kw = opt.get("kw", 10)
        pre = {0: ["s_waitcnt lgkmcnt(7)"], 4: [f"s_waitcnt lgkmcnt({cnt(4)})"], 8: [f"s_waitcnt lgkmcnt({max(0, cnt(8) - 2*(kw - 8))})"]}
        if cnt(8) > 2*(kw - 8): pre[kw] = ["s_waitcnt lgkmcnt(0)"]
        post = {}
        mp = opt.get("mp", [0, 3, 16, 24])
        for (p_, h_, q_) in zip(mp, (0, 0, 1, 1), (0, 1, 0, 1)): post[p_] = [msum(h_, q_)]
        def put(g_, x):
            (post[g_] if g_ in post else G[g_]).append(x)
        put(0, "WAITK")
        if kind == "dma":
            dk = dma_k(par); dv = dma_v(par)
            pre[0] = ["s_and_b32 s54, s60, 0x1e000"] + pre[0]
            put(0, dk[0]); G[9].append(dk[5]); G[11].append("s_lshr_b64 s[60:61], s[60:61], 4")
            for i in range(4): G[2 + 2*i].append(dk[1 + i]); G[10 + 2*i].append(dk[6 + i])
            put(16, "WAITV"); put(16, dv[0])
            for i in range(4): G[18 + 2*i].append(dv[1 + i])
            put(24, dv[5])
            for i, g_ in enumerate(opt.get("dv", [26, 28, 30, 31])): G[g_].append(dv[6 + i])
            if par == 1:
                if not opt.get("tl"): G[13].append(f"buffer_load_dword v{VCNT}, v{VT}, s[68:71], s72 offen sc1")
                G[15].append("s_add_u32 s56, s56, 1")
        else:
            pat = [f"v_mov_b32 v{VKD}, v{VOD0}"] + [f"v_add_u32 v{VKD+i}, {7168*i}, v{VOD0}" for i in range(1, 4)]
            adr = [f"v_xor_b32 v{100+j}, {j << 15}, v12" for j in range(1, 4)]
            gw = spread(32, [(0, 2, pat), (9, 12, adr), ((1, 2, [f"buffer_load_dword v{VCNT}, v{VT}, s[68:71], s72 offen sc1"]) if opt.get("tl") else (20, 21, [f"v_readfirstlane_b32 s73, v{VCNT}"]))] + [(g0, g1, wnext()) for (g0, g1) in opt.get("wi6", [(2, 10), (12, 20), (22, 30)])])
            for i in range(32): G[i] += gw[i]
            put(16, "WAITV")
        arr = opt.get("arr", "A")
        if arr != "A":
            for g_ in range(32):
                e = [x for x in G[g_] if x.startswith("v_exp")]; d = [x for x in G[g_] if x.startswith("ds_")]
                o = [x for x in G[g_] if x not in e and x not in d]
                isd = any(x.startswith("buffer") for x in o)
                if arr == "B": G[g_] = d + o + ["|"] + e
                elif arr == "C": G[g_] = d + e + ["|"] + o
                elif arr == "D": G[g_] = (d + e + ["|"] + o) if isd else (e + ["|"] + d + o)
                elif arr == "E": G[g_] = e + ["|"] + o + d
                elif arr == "F": G[g_] = (e + d + ["|"] + o) if isd else (e + ["|"] + d + o)
        issued = 0; out = []
        for x in fs() + merge(slots, G, pre, post):
            if x == "WAITK": out.append(f"s_waitcnt vmcnt({8 + issued})")
            elif x == "WAITV": out.append(f"s_waitcnt vmcnt({issued})")
            else:
                if x.startswith("buffer_load"): issued += 1
                out.append(x)
        return out
    a("s_mov_b64 exec, 1")
    a(f"buffer_atomic_or v{VT}, v{VT}, s[64:67], s77 offen sc1")
    a(f"buffer_atomic_or v{VT}, v{VT}, s[64:67], s86 offen sc1")
    a("s_mov_b64 exec, -1")
    a("s_mov_b32 s56, 0")
    a.c("steady loop, two tiles per trip: PVa(t) QKa(t+1) PVb(t) QKb(t+1); exp/pack, K/V DMA and fragment reads sit in the MFMA gaps,")
    a.c("the MFMAs into a96..a111 accumulate the row sums of P")
    a.label("L_loop")
    emit(body(0, "dma")); emit(body(1, "dma"))
    a("s_cmp_lt_u32 s56, 3")
    a("s_cbranch_scc1 L_loop")
    a.c("tile 6 / QK of tile 7; the Wo slice starts streaming into free ring slots")
    emit(body(0, "wo"))
    emit(fs())
    a.c("last PV, then reduce O across the 4 waves (bf16 partials via LDS, added by identity MFMAs)")
    jo = [2, 3, 4, 5, 6, 7, 0, 1]
    sb = smx(1)[4:]
    def pack(h, p): return [f"v_cvt_pk_bf16_f32 v{Oi(h,p)+i}, v{Oi(h,p)+2*i}, v{Oi(h,p)+2*i+1}" for i in range(8)]
    def send(h, p): return [f"ds_write_b128 v12, {R('v', Oi(h,p)+4*q)} offset:{PART + ((p-1)*4 + h*2 + q)*1024}" for q in range(2)]
    def psend(h, p):
        x = pack(h, p); w_ = send(h, p)
        return x[:4] + [w_[0]] + x[4:] + [w_[1]]
    G = spread(8, [(0, 1, [vreads(1)[15]]), (0, 7, sb), (7, 8, [cv(1, 7)]), (opt.get("e0", 5), 8, (psend(0, 1) + psend(0, 2) + psend(0, 3))[:opt.get("e1", 0)])])
    nw5 = sum(1 for g_ in range(5) for x in G[g_] if x.startswith("ds_write"))
    emit(merge(pv(0, jo), G, {0: ["s_waitcnt lgkmcnt(7)"], 2: ["s_waitcnt lgkmcnt(1)"], 5: [f"s_waitcnt lgkmcnt({nw5})"]}, {opt.get("m0", 6): [msum(0, 0)], opt.get("m1", 7): [msum(0, 1)]}))
    def pack(h, p): return [f"v_cvt_pk_bf16_f32 v{Oi(h,p)+i}, v{Oi(h,p)+2*i}, v{Oi(h,p)+2*i+1}" for i in range(8)]
    def send(h, p): return [f"ds_write_b128 v12, {R('v', Oi(h,p)+4*q)} offset:{PART + ((p-1)*4 + h*2 + q)*1024}" for q in range(2)]
    def psend(h, p):
        x = pack(h, p); w_ = send(h, p)
        return x[:4] + [w_[0]] + x[4:] + [w_[1]]
    lst = [["s_mov_b64 exec, 0xffff"] + [f"ds_write_b32 v14, a{LA+4*k} offset:{256*k}" for k in range(4)] + ["s_mov_b64 exec, -1"]]
    if opt.get("sb"):
        def rb(h, p, q): return 16 + ((h*3 + p-1)*2 + q)*4
        def prd(h): return [f"ds_read_b128 {R('v', rb(h,p,q))}, v{100+p} offset:{PART + ((p-1)*4 + h*2 + q)*1024}" for p in range(1, 4) for q in range(2)]
        def red(h): return [[mf(R("v", Oi(h,0)+8*q+4*d), R("v", ID[d]), R("v", rb(h,p,q)), R("v", Oi(h,0)+8*q+4*d)) for d in range(2)] for p in range(1, 4) for q in range(2)]
        LB = 80
        allp = psend(0, 1) + psend(0, 2) + psend(0, 3) + psend(1, 1) + psend(1, 2) + psend(1, 3)
        allp = allp[opt.get("e1", 0):]
        ns = opt.get("ns", 40)
        G = spread(8, [(0, 8, allp[:ns]), (opt.get("lg", 3), opt.get("lg", 3) + 1, lst)])
        emit(merge(pv(1, jo), G, {0: [msum(1, 0)]}, {0: [msum(1, 1)]}))
        emit(allp[ns:])
        a("s_waitcnt lgkmcnt(0)")
        emit(fs())
        a("s_barrier")
        if opt.get("qm"):
            def rd1(h, q): return [prd(h)[2*p + q] for p in range(3)]
            def red1(h, q): return [red(h)[2*p + q] for p in range(3)]
            def ls1(qq):
                b = LB + 4*qq
                return [f"v_add_f32 v{b}, v{b}, v{b+1}", f"v_add_f32 v{b+2}, v{b+2}, v{b+3}", f"v_add_f32 v{b+1}, v{b}, v{b+2}", f"v_rcp_f32 v{b}, v{b+1}"]
            def fin1(h, q, pk=False):
                o = Oi(h, 0) + 8*q; g = LB + 8*h + 4*q
                if pk: out = [f"v_pk_mul_f32 v[{o+r}:{o+r+1}], v[{o+r}:{o+r+1}], v[{g}:{g+1}] op_sel_hi:[1,0]" for r in range(0, 8, 2)]
                else: out = [f"v_mul_f32 v{o+r}, v{g}, v{o+r}" for r in range(8)]
                out += [f"v_cvt_pk_bf16_f32 v{o+i}, v{o+2*i}, v{o+2*i+1}" for i in range(4)]
                out += [f"buffer_store_dwordx4 {R('v', o)}, v{VL16}, s[64:67], s{4+h} offen offset:{q*1024} sc1"]
                return out
            lrd = [f"ds_read_b128 {R('v', LB+4*qq)}, v{VMX} offset:{1024 + 256*qq}" for qq in range(4)]
            emit(rd1(0, 0) + lrd + rd1(0, 1) + rd1(1, 0))
            emit(wnext(opt.get("wf4", 1)))
            G = spread(12, [(0, 1, rd1(1, 1)), (1, 4, ls1(0) + ls1(1) + ls1(2)), (4, 7, fin1(0, 0)), (7, 10, fin1(0, 1)), (9, 10, ls1(3)), (10, 12, fin1(1, 0)[:opt.get("f3", 9)])])
            emit(merge(red1(0, 0) + red1(0, 1) + red1(1, 0) + red1(1, 1), G, {0: ["s_waitcnt lgkmcnt(10)"], 1: ["s_waitcnt lgkmcnt(9)"], 3: ["s_waitcnt lgkmcnt(6)"], 6: ["s_waitcnt lgkmcnt(0)"]}))
            emit(fin1(1, 0)[opt.get("f3", 9):])
            emit([f"v_add_f32 v{LB+1}, v{LB+1}, v{LB+5}", f"v_add_f32 v{LB+9}, v{LB+9}, v{LB+13}"])
            emit(fin1(1, 1, True))
            emit([f"v_add_f32 v{LB+1}, v{LB+1}, v{LB+9}", f"v_cmp_nlt_f32 vcc, v{LB+1}, s53"])
            a.c("row sum >= 2^40 or not finite: the shift was unsafe -> redo with the exact row max (nothing has been published yet)")
            emit(["s_cmp_eq_u32 s76, 0", "s_cselect_b64 s[6:7], vcc, 0", "s_cmp_lg_u64 s[6:7], 0", "s_cbranch_scc1 L_fallback"])
            def fin(h, pk): return []
        else:
            emit(prd(0)[:2])
            for qq in range(4): a(f"ds_read_b128 {R('v', LB+4*qq)}, v{VMX} offset:{1024 + 256*qq}")
            emit(prd(0)[2:] + prd(1)[:4])
            emit(wnext(opt.get("wf4", 1)))
            lsum = [f"v_add_f32 v{LB+4*qq+k}, v{LB+4*qq+k}, v{LB+4*qq+k+1}" for qq in range(4) for k in (0, 2)]
            lsum += [f"v_add_f32 v{LB+4*qq}, v{LB+4*qq}, v{LB+4*qq+2}" for qq in range(4)]
            lsum += [f"v_add_f32 v{LB+1}, v{LB}, v{LB+4}", f"v_add_f32 v{LB+2}, v{LB+8}, v{LB+12}", f"v_rcp_f32 v{LB}, v{LB}", f"v_add_f32 v{LB+1}, v{LB+1}, v{LB+2}",
                     f"v_rcp_f32 v{LB+4}, v{LB+4}", f"v_cmp_nlt_f32 vcc, v{LB+1}, s53", f"v_rcp_f32 v{LB+8}, v{LB+8}", f"v_rcp_f32 v{LB+12}, v{LB+12}"]
            def fin(h, pk):
                o = Oi(h, 0)
                if pk: out = [f"v_pk_mul_f32 v[{o+r}:{o+r+1}], v[{o+r}:{o+r+1}], v[{LB+8*h+4*(r>>3)}:{LB+8*h+4*(r>>3)+1}] op_sel_hi:[1,0]" for r in range(0, 16, 2)]
                else: out = [f"v_mul_f32 v{o+r}, v{LB+8*h+4*(r>>3)}, v{o+r}" for r in range(16)]
                out += pack(h, 0)
                out += [f"buffer_store_dwordx4 {R('v', o+4*q)}, v{VL16}, s[64:67], s{4+h} offen offset:{q*1024} sc1" for q in range(2)]
                return out
            G = spread(6, [(0, 1, prd(1)[4:]), (1, 6, lsum)])
            emit(merge(red(0), G, {0: ["s_waitcnt lgkmcnt(12)"], 1: ["s_waitcnt lgkmcnt(10)"], 2: ["s_waitcnt lgkmcnt(6)"]}))
            a.c("row sum >= 2^40 or not finite: the shift was unsafe -> redo with the exact row max")
            emit(["s_cmp_eq_u32 s76, 0", "s_cselect_b64 s[6:7], vcc, 0", "s_cmp_lg_u64 s[6:7], 0", "s_cbranch_scc1 L_fallback"])
            emit(merge(red(1), spread(6, [(0, 6, fin(0, False))]), {0: ["s_waitcnt lgkmcnt(0)"]}))
    else:
        pa = psend(0, 1) + psend(0, 2) + psend(0, 3)
        G = spread(8, [(0, opt.get("pa1", 6), pa), (opt.get("lg", 6), opt.get("lg", 6) + 1, lst), (opt.get("pb0", 6), 8, pack(1, 1) + pack(1, 2) + (pack(1, 3) if opt.get("h3") else []))])
        emit(merge(pv(1, jo), G, {0: [msum(1, 0)]}, {0: [msum(1, 1)]}))
        a("s_waitcnt lgkmcnt(0)")
        emit(fs())
        a("s_barrier")
        def rb(h, p, q): return 16 + ((h*3 + p-1)*2 + q)*4
        def prd(h): return [f"ds_read_b128 {R('v', rb(h,p,q))}, v{100+p} offset:{PART + ((p-1)*4 + h*2 + q)*1024}" for p in range(1, 4) for q in range(2)]
        def red(h): return [[mf(R("v", Oi(h,0)+8*q+4*d), R("v", ID[d]), R("v", rb(h,p,q)), R("v", Oi(h,0)+8*q+4*d)) for d in range(2)] for p in range(1, 4) for q in range(2)]
        LB = 80
        emit(prd(0))
        for qq in range(4): a(f"ds_read_b128 {R('v', LB+4*qq)}, v{VMX} offset:{1024 + 256*qq}")
        wb = send(1, 1) + send(1, 2) + send(1, 3)
        n0 = 2 if opt.get("h3") else 4
        emit(wb[:n0])
        lsum = [f"v_add_f32 v{LB+4*qq+k}, v{LB+4*qq+k}, v{LB+4*qq+k+1}" for qq in range(4) for k in (0, 2)]
        lsum += [f"v_add_f32 v{LB+4*qq}, v{LB+4*qq}, v{LB+4*qq+2}" for qq in range(4)]
        lsum += [f"v_add_f32 v{LB+1}, v{LB}, v{LB+4}", f"v_add_f32 v{LB+2}, v{LB+8}, v{LB+12}", f"v_rcp_f32 v{LB}, v{LB}", f"v_add_f32 v{LB+1}, v{LB+1}, v{LB+2}",
                 f"v_rcp_f32 v{LB+4}, v{LB+4}", f"v_cmp_nlt_f32 vcc, v{LB+1}, s53", f"v_rcp_f32 v{LB+8}, v{LB+8}", f"v_rcp_f32 v{LB+12}, v{LB+12}"]
        nb = opt.get("nb", 4)
        if opt.get("h3"):
            G = spread(6, [(0, min(nb, 4), wb[2:]), (opt.get("ls0", nb), 6, lsum)])
        else:
            G = spread(6, [(0, 2, pack(1, 3) + wb[4:]), (opt.get("ls0", 2), 6, lsum)])
        emit(merge(red(0), G, {0: [f"s_waitcnt lgkmcnt({n0})"]}, {nb - 1: ["s_waitcnt lgkmcnt(0)", "s_barrier"] + prd(1)}))
        emit(wnext(opt.get("wf4", 1)))
        a.c("row sum >= 2^40 or not finite: the shift was unsafe -> redo with the exact row max")
        emit(["s_cmp_eq_u32 s76, 0", "s_cselect_b64 s[6:7], vcc, 0", "s_cmp_lg_u64 s[6:7], 0", "s_cbranch_scc1 L_fallback"])
        def fin(h, pk):
            o = Oi(h, 0)
            if pk: out = [f"v_pk_mul_f32 v[{o+r}:{o+r+1}], v[{o+r}:{o+r+1}], v[{LB+8*h+4*(r>>3)}:{LB+8*h+4*(r>>3)+1}] op_sel_hi:[1,0]" for r in range(0, 16, 2)]
            else: out = [f"v_mul_f32 v{o+r}, v{LB+8*h+4*(r>>3)}, v{o+r}" for r in range(16)]
            out += pack(h, 0)
            out += [f"buffer_store_dwordx4 {R('v', o+4*q)}, v{VL16}, s[64:67], s{4+h} offen offset:{q*1024} sc1" for q in range(2)]
            return out
        emit(merge(red(1), spread(6, [(0, 6, fin(0, False))]), {0: ["s_waitcnt lgkmcnt(4)"], 2: ["s_waitcnt lgkmcnt(0)"]}))
    for k in range(4): a(f"v_add_u32 v{116+k}, s88, v{VWA+k}")
    a("v_and_b32 v14, 1, v0"); a("v_sub_u32 v14, 0, v14")
    emit(fin(1, True))
    emit(fs())
    npre = wcnt[0]
    a.c("O (normalised, bf16, MFMA fragment layout) was stored write-through; publish a flag after the stores are acknowledged")
    if opt.get("tl"):
        a("s_waitcnt vmcnt(4)")
        a(f"v_readfirstlane_b32 s73, v{VCNT}")
    a("s_mov_b32 s93, 0x40000")
    a.label("L_tag")
    a("s_cmp_lg_u32 s73, 0")
    a("s_cbranch_scc1 L_tagok")
    a(f"buffer_load_dword v{VCNT}, v{VT}, s[68:71], s72 offen sc1")
    a("s_waitcnt vmcnt(0)")
    a(f"v_readfirstlane_b32 s73, v{VCNT}")
    a("s_sub_u32 s93, s93, 1")
    a("s_cbranch_scc0 L_tag")
    a.label("L_tagok")
    a("s_waitcnt vmcnt(4)")
    for g in range(2): emit(wo_reads(g))
    a("v_xor_b32 v14, s73, v14")
    a("v_and_b32 v124, 15, v0"); a("v_lshlrev_b32 v124, 2, v124")
    emit(["v_mov_b32 v80, 0xff", "s_lshr_b32 s81, s73, 8", "s_lshr_b32 s82, s73, 16", "s_lshr_b32 s83, s73, 24", f"v_add_u32 v81, s17, v{VL16}",
          "v_lshlrev_b32 v82, 8, v124", "v_lshrrev_b32 v83, 4, v0", "v_lshl_add_u32 v82, v83, 3, v82", "v_mov_b32 v84, 0x0c0c0400", "v_mov_b32 v85, 0x05040100",
          "v_add_u32 v86, 1, v0", "v_lshlrev_b32 v86, 2, v86", "v_xor_b32 v86, s74, v86",
          "v_cmp_eq_u32 vcc, 0, v0", "v_mov_b32 v87, s73", "v_add_u32 v88, 16, v86", "v_cndmask_b32 v86, v86, v88, vcc"])
    for g in range(8):
        a(f"s_add_u32 s51, s80, {g}"); a("s_and_b32 s51, s51, 7"); a(f"s_lshl_b32 s{20+g}, s51, 11")
    a(f"v_add_u32 v104, s16, v{VL16}"); a("v_xor_b32 v105, 0x400, v104"); a("v_xor_b32 v106, 0x40000, v104"); a("v_xor_b32 v107, 0x40400, v104")
    a("v_mov_b32 v125, 0")
    a("s_waitcnt vmcnt(0)")
    a("s_mov_b64 exec, 3")
    a("buffer_atomic_swap v14, v124, s[64:67], s77 offen sc1")
    a("s_mov_b64 exec, 0xffff")
    a("buffer_atomic_or v125, v124, s[64:67], s55 offen sc0 sc1")
    a("s_mov_b64 exec, -1")
    emit(fs(True))
    nrest = 8 - npre
    a("s_waitcnt lgkmcnt(0)")
    emit(wnext(nrest))
    for g in range(2, npre): emit(wo_reads(g))
    a("s_mov_b32 s93, 0x40000")
    a(f"s_waitcnt vmcnt({4*nrest})")
    a("s_mov_b64 exec, 0xffff")
    a.label("L_poll")
    a("v_cmp_ne_u32 vcc, v14, v125")
    a("s_cbranch_vccz L_pollend")
    a("v_mov_b32 v125, 0")
    a("buffer_atomic_or v125, v124, s[64:67], s55 offen sc0 sc1")
    a("s_sub_u32 s93, s93, 1")
    a("s_waitcnt vmcnt(0)")
    a("s_cbranch_scc0 L_poll")
    a.label("L_pollend")
    a("s_mov_b64 exec, -1")
    emit(fs(True))
    a.c("---- output projection: tile 64 tokens x 64 cols x 1024 k per workgroup (wave = 2 heads); 4 workgroups share a tile ----")
    def oload(i):
        q = 1 - i // 16; s_ = i % 16
        o = [f"buffer_load_dwordx4 {R('v', 128+4*i)}, v{104 + 2*q + (s_ & 1)}, s[8:11], s{20 + (s_ >> 1)} offen sc1"]
        return o
    D = opt.get("odepth", 12)
    for i in range(D): emit(oload(i))
    late_reads = []
    for g in range(npre, 8): late_reads += wo_reads(g)
    def omf(j, s_):
        i = (0 if j >> 1 else 16) + s_; g = s_ >> 1
        return [mf(R("v", 16+16*j+8*(s_&1)+4*ci), R("a", (g*4 + 2*(j&1) + ci)*4), R("v", 128+4*i), "0" if g == 0 else R("v", 16+16*j+8*(s_&1)+4*ci)) for ci in range(2)]
    NL = opt.get("nlag", 6)
    sched = []
    for s_ in range(16): sched += [(omf(3, s_), s_), (omf(2, s_), s_)]
    for s_ in range(16):
        sched.append((omf(1, s_), 16 + s_))
        if s_ < 16 - NL: sched.append((omf(0, s_), 16 + s_))
    nfirst = len(sched)
    for s_ in range(16 - NL, 16): sched.append((omf(0, s_), 16 + s_))
    def wr(j): return [f"ds_write_b128 v12, {R('v', 16+16*j+4*k)} offset:{(j*3 + k-1)*1024}" for k in range(1, 4)]
    def rdd(j): return [f"ds_read_b128 {R('v', 16+16*j+4*k)}, v{100+k} offset:{(j*3 + k-1)*1024}" for k in range(1, 4)]
    tg = ["s73", "s81", "s82", "s83"]
    def summ(j, pk):
        b = 16 + 16*j; out = []
        if pk:
            for p in (0, 2): out += [f"v_pk_add_f32 v[{b+p}:{b+p+1}], v[{b+p}:{b+p+1}], v[{b+4+p}:{b+5+p}]", f"v_pk_add_f32 v[{b+8+p}:{b+9+p}], v[{b+8+p}:{b+9+p}], v[{b+12+p}:{b+13+p}]"]
            for p in (0, 2): out += [f"v_pk_add_f32 v[{b+p}:{b+p+1}], v[{b+p}:{b+p+1}], v[{b+8+p}:{b+9+p}]"]
        else:
            for i in range(4): out += [f"v_add_f32 v{b+i}, v{b+i}, v{b+4+i}", f"v_add_f32 v{b+8+i}, v{b+8+i}, v{b+12+i}"]
            for i in range(4): out += [f"v_add_f32 v{b+i}, v{b+i}, v{b+8+i}"]
        if j:
            out += [f"v_bfi_b32 v{b+i}, v80, {tg[i]}, v{b+i}" for i in range(4)]
            out += [f"buffer_store_dwordx4 {R('v', b)}, v81, s[64:67], s{93+j} offen sc1"]
        return out
    def hint(off): return [["s_mov_b64 exec, 1", f"buffer_atomic_swap v87, v{VT}, s[64:67], s75 offen offset:{off} sc1", "s_mov_b64 exec, -1"]]
    n = len(sched)
    G = spread(n, [(0, opt.get('lr', 13), late_reads), (33, opt.get("w1", 37), wr(3) + wr(2)),
                   (opt.get("w1", 37) + 5, opt.get("w3", 52), ["s_waitcnt lgkmcnt(0)"] + summ(3, False) + summ(2, False)), (nfirst + 1, nfirst + 2, wr(1))])
    G[15].append("s_waitcnt lgkmcnt(8)" if opt.get('lr', 13) > 13 else "s_waitcnt lgkmcnt(0)")
    if opt.get('lr', 13) > 13: G[23].append("s_waitcnt lgkmcnt(0)")
    G[opt.get("w1", 37) + 2] += ["s_waitcnt lgkmcnt(0)", "s_barrier"] + rdd(3) + rdd(2)
    G[opt.get("w3", 52)] += hint(0)
    G[min(n - 1, nfirst + 3)] += ["s_waitcnt lgkmcnt(0)", "s_barrier"] + rdd(1)
    gg = spread(n, [(min(n - 1, nfirst + 5), n, ["s_waitcnt lgkmcnt(0)"] + summ(1, False))])
    for i in range(n): G[i] += gg[i]
    G[n-1] += hint(16)
    vmq = [("ld", i) for i in range(D)]
    issued = D; seen = -1
    for i, (m, need) in enumerate(sched):
        g_ = list(G[i])
        if need > seen:
            a(f"s_waitcnt vmcnt({len(vmq) - 1 - vmq.index(('ld', need))})" + (" lgkmcnt(0)" if i == 0 else ""))
            seen = need
            if issued < 32:
                g_ = oload(issued) + g_; vmq.append(("ld", issued)); issued += 1
        for x in G[i]:
            if any(y.startswith("buffer_") for y in (x if isinstance(x, list) else [x])): vmq.append(("st", 0))
        emit(merge([m], [g_]))
    emit(fs(True))
    a.c("own 32x32 block: reduce over waves; partner partials arrive tagged (low byte of every word), hints only avoid early reads")
    a("v_mov_b32 v88, 0")
    a("s_mov_b64 exec, 7")
    a("buffer_atomic_or v88, v86, s[64:67], s86 offen sc0 sc1")
    a("s_mov_b64 exec, -1")
    emit(wr(0))
    a("s_waitcnt lgkmcnt(0)"); a("s_barrier")
    emit(rdd(0))
    a("s_waitcnt lgkmcnt(0)")
    emit(summ(0, True))
    emit(fs(True))
    a("s_mov_b32 s93, 0x40000")
    a("s_mov_b64 exec, 7")
    a("v_mov_b32 v89, 0")
    a.label("L_h")
    for x, y in ((89, 88), (88, 89)):
        a(f"buffer_atomic_or v{x}, v86, s[64:67], s86 offen sc0 sc1")
        a("s_waitcnt vmcnt(1)")
        a(f"v_cmp_ne_u32 vcc, v87, v{y}")
        a("s_cbranch_vccz L_hend")
        a(f"v_mov_b32 v{y}, 0")
    a("s_sub_u32 s93, s93, 1")
    a("s_cbranch_scc0 L_h")
    a.label("L_hend")
    a("s_mov_b64 exec, -1")
    emit(fs(True))
    a("s_mov_b32 s93, 0x40000")
    a.label("L_x")
    for j in range(3): a(f"buffer_load_dwordx4 {R('v', 32+4*j)}, v81, s[64:67], s{97+j} offen sc1")
    a("s_waitcnt vmcnt(0)")
    for j in range(3):
        b = 32 + 4*j
        a(f"v_perm_b32 v{44+2*j}, v{b+1}, v{b}, v84"); a(f"v_perm_b32 v{45+2*j}, v{b+3}, v{b+2}, v84")
    for j in range(3): a(f"v_perm_b32 v{44+2*j}, v{45+2*j}, v{44+2*j}, v85")
    for j in range(3): a(f"v_xor_b32 v{44+2*j}, s73, v{44+2*j}")
    a("v_or3_b32 v44, v44, v46, v48")
    a("v_cmp_ne_u32 vcc, 0, v44")
    a("s_cbranch_vccz L_xend")
    a("s_sub_u32 s93, s93, 1")
    a("s_cbranch_scc0 L_x")
    a.label("L_xend")
    emit(fs(True))
    for i in range(12): a(f"v_and_b32 v{32+i}, 0xffffff00, v{32+i}")
    for p in range(2):
        a(f"v_pk_add_f32 v[{16+2*p}:{17+2*p}], v[{16+2*p}:{17+2*p}], v[{32+2*p}:{33+2*p}]")
        a(f"v_pk_add_f32 v[{36+2*p}:{37+2*p}], v[{36+2*p}:{37+2*p}], v[{40+2*p}:{41+2*p}]")
    for p in range(2): a(f"v_pk_add_f32 v[{16+2*p}:{17+2*p}], v[{16+2*p}:{17+2*p}], v[{36+2*p}:{37+2*p}]")
    a("v_cvt_pk_bf16_f32 v16, v16, v17")
    a("v_cvt_pk_bf16_f32 v17, v18, v19")
    a("buffer_store_dwordx2 v[16:17], v82, s[12:15], s50 offen")
    if fine:
        a("s_waitcnt vmcnt(0)")
        emit(fs(True, True)); emit(fs(True, True))
        a("s_lshl_b32 s51, s2, 2"); a("s_add_u32 s51, s51, s3"); a("s_lshl_b32 s51, s51, 8"); a(f"s_add_u32 s51, s51, {ST_OFF}")
        a("v_lshlrev_b32 v6, 2, v0")
        a("buffer_store_dword v127, v6, s[64:67], s51 offen")
    a.label("L_end")
    a("s_endpgm")

    a.c("---- rare path: exact row max over all 1024 keys, then the attention is run again with it ----")
    a.label("L_fallback")
    a("s_mov_b32 s76, 1")
    a("s_waitcnt vmcnt(0) lgkmcnt(0)")
    a("s_barrier")
    emit(kr_setup())
    for qq in range(4):
        for s_ in range(4): a(f"ds_write_b128 v{VQR}, {Q_(qq,s_)} offset:{(qq*4+s_)*1024}")
    a(f"v_subrev_u32 v{VKD}, 4096, v{VKD+4}")
    emit(kd_setup())
    a("s_mov_b32 s54, 0")
    a.label("L_fb_loop")
    emit(dma_k(0))
    a("s_waitcnt vmcnt(0)")
    emit(kreads(0))
    a("s_waitcnt lgkmcnt(0)")
    for sl in qk(0, True) + qk(1, True): emit(sl)
    a("s_nop 7")
    for qq in range(4):
        for r in range(0, 8, 2): a(f"v_max3_f32 v{MS+qq}, v{MS+qq}, v{16+8*qq+r}, v{17+8*qq+r}")
    a("s_add_u32 s54, s54, 8192")
    a("s_cmp_lt_u32 s54, 65536")
    a("s_cbranch_scc1 L_fb_loop")
    emit(xred(MS))
    a("s_lshl_b32 s51, s3, 2"); a(f"s_add_u32 s51, s51, {MISC+2048}")
    a(f"v_add_u32 v12, s51, v{VL16}")
    a(f"ds_write_b32 v12, v{MS}")
    a("s_waitcnt lgkmcnt(0)"); a("s_barrier")
    for qq in range(4): a(f"ds_read_b128 {R('v', 16+4*qq)}, v{VMX} offset:{2048 + 256*qq}")
    a("s_waitcnt lgkmcnt(0)")
    for qq in range(4):
        a(f"v_max_f32 v{MS+qq}, v{16+4*qq}, v{17+4*qq}")
        a(f"v_max3_f32 v{MS+qq}, v{18+4*qq}, v{19+4*qq}, v{MS+qq}")
    a("s_mov_b64 s[60:61], s[62:63]")
    emit(nexttile() + dma_k(0) + dma_v(0))
    for k in range(4): a(f"v_mov_b32 v{VZ+k}, 0")
    a("s_nop 1")
    emit(zmf)
    a("s_waitcnt vmcnt(0)")
    a("s_branch L_att")
    if opt.get("pf"): a(".fill 256, 4, 0xbf810000")
    return a.text()

def build(opt, fname):
    k = NAME + "_kernel"
    hdr = f"""; GQA block (B=8, Sq=64, D=512, Hq=32, Hkv=8, Sk=1024, Dh=128) as one fused kernel:
; @launch grid=(256,1,1) block=(256,1,1) lds=163840
.amdgcn_target "amdgcn-amd-amdhsa--gfx950"
"""
    open(fname, "w").write(hdr + kernel_header(k) + gen(opt) + '.section .rodata,"a"\n.p2align 6\n' + kernel_desc(k, 512, 102, 256))

R1 = [order(x) for x in ([0,2,1,3,4,6,5,7], [0,1,3,2,4,5,7,6], [1,0,2,4,3,5,6,7], [1,0,2,3,5,4,6,7])]
R3 = [order(x) for x in ([0,2,1,3,6,4,5,7], [0,1,4,2,3,5,6,7], [1,3,0,2,4,7,5,6], [1,0,2,5,3,4,6,7])]
R7 = [order(x) for x in ([0,1,3,2,4,5,7,6], [0,1,2,4,3,5,6,7], [0,2,1,3,5,4,6,7], [0,2,1,3,4,6,5,7])]
if __name__ == "__main__":
    B = {"orders": R7}
    KO = [1, 1, 3, 3, 5, 5, 7, 7]; VO = [17, 17, 19, 19, 21, 21, 23, 23, 25, 25, 27, 27, 29, 29, 31]
    D_ = dict(B, arr="D")
    H_ = dict(D_, h3=1, nb=4, ls0=0)
    N_ = dict(H_, orders=R1)
    N_ = dict(N_, nf=16)
    P7 = [R7[1], R7[2], R7[3], R7[0]]
    Z_ = dict(N_, late2={5: ["L5"]})
    KV1 = {5: ["K0a", "K0b"], 6: ["V0a"], 7: ["V0b"]}
    KV4 = {4: ["K0a"], 5: ["K0b"], 7: ["V0a"], 8: ["V0b"]}
    KV3 = {3: ["K0a"], 5: ["K0b"], 7: ["V0a"], 8: ["V0b"]}
    KV5 = {3: ["K0a"], 5: ["K0b"], 6: ["V0a"], 7: ["V0b"]}
    L_ = dict(N_, late2={3: ["L4"]})
    S_ = dict(L_, sb=1, ns=40, e1=10)
    Q0 = dict(S_, qm=1, ns=30, e1=0, f3=6)
    E_ = dict(Q0, e0=3, e1=20, ns=35)
    T_ = dict(E_, tl=1)
    V = {"e": E_, "n": dict(E_, late2={}), "a1": dict(E_, asy=["L4"]), "a2": dict(E_, late2={3: ["L4"], 5: ["L5"]}, asy=["L4", "L5"]), "a3": dict(E_, late2={3: ["L4", "L5"]}, asy=["L4", "L5"]),
         "a4": dict(E_, late2={3: ["L4"], 5: ["L5"]}, asy=["L4"])}
    for n, o in V.items():
        build(o, f"v65_{n}.s")
        for k in (1, 2): build(dict(o, fine=3), f"v65_{n}_{k}_m.s")
```

```python
import sys, math, struct
from asmlib import *

C_SCALE = math.log2(math.e) / math.sqrt(128.0)
def f2u(f): return struct.unpack("<I", struct.pack("<f", f))[0]
def R(p, lo, n=4): return f"{p}[{lo}:{lo+n-1}]"
def mf(d, a, b, c): return f"v_mfma_f32_16x16x32_bf16 {d}, {a}, {b}, {c}"

def Oi(h, p): return 128 + (h*4+p)*16
def Q_(qq, s): return R("a", 128 + (qq*4+s)*4)
def Kf(s, kb): return 192 + (s*2+kb)*4
def Vf(j): return 224 + 4*j
S0 = [16, 32]; NM = 48; P0 = [80, 88]
LA = 96; SEL = 116
VCNT = 98; VT = 99
VKR = 100; VVR = 104; VKD = 112; VVD = 120
MS = 76; VWA = 8; VOD0 = 1
ID = [2, 4]
VL16 = 13; VQR = 15; VMX = 96
VXD = 48; VWD = 50; VXR = 54; VWR = 56; VZ = 60; T = 64
XB = 131072; QAREA = XB; MISC = XB + 16384
X_OFF = 0x400000; FL_OFF = 0x800000; ST_OFF = 0x810000
PART = 16384
LIMIT = 2.0 ** 40

def spread(n, fillers):
    gaps = [[] for _ in range(n)]
    for (g0, g1, lst) in fillers:
        k = max(1, len(lst))
        for i, x in enumerate(lst):
            gaps[g0 + (i * (g1 - g0)) // k].append(x)
    return gaps
def fix_m0(seq):
    out = []
    for i, x in enumerate(seq):
        out.append(x)
        if " m0," in x and i + 1 < len(seq) and seq[i+1].startswith("buffer_load"): out.append("s_nop 0")
    return out
def cost(x): return 8 if x.startswith(("v_exp", "v_rcp")) else 4
def merge(slots, gaps, pre=None, post=None):
    s = []
    for i, ms in enumerate(slots):
        if pre and i in pre: s += pre[i]
        if "|" in gaps[i]:
            k_ = gaps[i].index("|")
            s += [ms[0]] + gaps[i][:k_] + [ms[1]] + gaps[i][k_+1:]
            if post and i in post: s += post[i]
            continue
        items = list(gaps[i]); tot = sum(sum(map(cost, x)) if isinstance(x, list) else cost(x) for x in items)
        for k, m in enumerate(ms):
            s.append(m)
            if k == len(ms) - 1:
                take = items; items = []
            else:
                take = []; c = 0; lim = max(8, tot / len(ms))
                while items:
                    cc = sum(map(cost, items[0])) if isinstance(items[0], list) else cost(items[0])
                    if c + cc > lim: break
                    c += cc; take.append(items.pop(0))
            for x in take: s += x if isinstance(x, list) else [x]
        if post and i in post: s += post[i]
    return s
def order(l):
    v = 0
    for i, t in enumerate(l): v |= t << (4*i)
    return v

def gen(opt):
    a = Asm()
    fine = opt.get("fine")
    clk = "s_memtime" if fine == 2 else "s_memrealtime"
    def fs(sync=False, last=False):
        if not fine or (fine == 3 and not last): return []
        return (["s_waitcnt lgkmcnt(0)"] if sync else []) + ["s_mov_b32 s89, m0", "s_mov_b32 m0, s92", "s_add_u32 s92, s92, 1", "v_writelane_b32 v127, s90, m0", clk + " s[90:91]", "s_mov_b32 m0, s89"]
    def emit(l):
        for x in fix_m0(l): a(x)
    LATEP = opt.get("late2", {})
    moved = {b for v in LATEP.values() for b in v}
    blocks = {}; saved = []
    def beg(n):
        if n in moved: saved.append(a.lines); a.lines = blocks.setdefault(n, [])
    def end(n):
        if n in moved: a.lines = saved.pop()

    a.c("workgroups past the 256 that carry data leave at once")
    a("s_cmp_ge_u32 s2, 256")
    a("s_cbranch_scc1 L_end")
    a("s_load_dwordx8 s[4:11], s[0:1], 0")
    a("s_load_dwordx8 s[12:19], s[0:1], 32")
    a("s_memrealtime s[74:75]")
    if fine:
        a(clk + " s[90:91]"); a("s_mov_b32 s92, 0"); a("v_mov_b32 v127, 0"); a("s_mov_b32 m0, 0")
    a(f"v_lshrrev_b32 v{T}, 6, v0")
    a("v_and_b32 v0, 63, v0")
    a(f"v_readfirstlane_b32 s3, v{T}")
    a.c("id -> kv head s40 (= id & 7), batch s41, head-in-group s42, q head s43; wave index s3, lane v0")
    a("s_and_b32 s40, s2, 7"); a("s_lshr_b32 s41, s2, 5"); a("s_bfe_u32 s42, s2, 0x20003")
    a("s_lshl_b32 s43, s40, 2"); a("s_add_u32 s43, s43, s42")
    a.c("per-lane source offsets of the LDS-DMA tile loads (bank swizzle applied on the source side)")
    r4, c16, vp, r8, c8, t0, t1, cc8, l4 = T+1, T+2, T+3, T+4, T+5, T+6, T+7, T+8, T+9
    a(f"v_lshrrev_b32 v{r4}, 4, v0")
    a(f"v_and_b32 v{c16}, 15, v0")
    a(f"v_lshlrev_b32 v{vp}, 1, v{r4}")
    a(f"v_xor_b32 v{vp}, v{c16}, v{vp}")
    a(f"v_lshlrev_b32 v{vp}, 4, v{vp}")
    a(f"v_lshl_add_u32 v{VWD}, v{r4}, 13, v{vp}")
    a(f"v_xor_b32 v{t0}, 128, v{VWD}")
    a(f"v_add_u32 v{VWD+1}, 31744, v{VWD}")
    a(f"v_add_u32 v{VWD+2}, {31744*2}, v{t0}")
    a(f"v_add_u32 v{VWD+3}, {31744*3}, v{t0}")
    a(f"v_lshrrev_b32 v{r8}, 3, v0")
    a(f"v_and_b32 v{c8}, 7, v0")
    a(f"v_xor_b32 v{t0}, v{c8}, v{r4}")
    a(f"v_lshlrev_b32 v{t0}, 4, v{t0}")
    a(f"v_lshl_add_u32 v{VXD}, v{r8}, 10, v{t0}")
    a(f"v_xor_b32 v{t0}, 64, v{VXD}")
    a(f"v_add_u32 v{VXD+1}, {8192-1024}, v{t0}")
    a("s_add_u32 s44, s42, s41"); a("s_mul_i32 s45, s44, 86"); a("s_lshr_b32 s45, s45, 8"); a("s_mul_i32 s45, s45, 3"); a("s_sub_u32 s44, s44, s45"); a("s_mul_i32 s58, s44, 3")
    a("s_lshl_b32 s46, s3, 11"); a(f"s_add_u32 s46, s46, {XB}")
    a("s_lshl_b32 s47, s3, 12"); a("s_add_u32 s47, s47, 16384")
    a("s_lshl_b32 s49, s3, 15")
    a("s_lshl_b32 s44, s41, 16"); a("s_lshl_b32 s45, s3, 14"); a("s_add_u32 s44, s44, s45")
    a("s_lshl_b32 s48, s43, 8"); a("s_lshl_b32 s45, s3, 17"); a("s_add_u32 s48, s48, s45")
    a("s_sub_u32 s22, 0x80000, s44"); a("s_mov_b32 s23, 0x20000")
    a("s_sub_u32 s34, 0x400000, s48"); a("s_mov_b32 s35, 0x20000")
    a("s_waitcnt lgkmcnt(0)")
    a("s_add_u32 s20, s4, s44"); a("s_addc_u32 s21, s5, 0"); a("s_and_b32 s21, s21, 0xffff")
    a("s_add_u32 s32, s10, s48"); a("s_addc_u32 s33, s11, 0"); a("s_and_b32 s33, s33, 0xffff")

    def qdma(c):
        j = c % 4
        out = [f"s_lshl_b32 s59, s58, 7", f"s_add_u32 m0, s46, {j*8192}", "s_lshl_b32 s57, s58, 19"]
        out += [f"buffer_load_dwordx4 v{VXD+i}, s[20:23], s59 offen offset:{1024*i} lds" for i in range(2)]
        out += [f"s_add_u32 m0, s47, {j*32768}", "s_add_u32 s58, s58, 1"]
        out += [f"buffer_load_dwordx4 v{VWD+i}, s[32:35], s57 offen offset:{1024*i} lds" for i in range(4)]
        out.append("s_and_b32 s58, s58, 7")
        return out
    def nexttile(): return ["s_and_b32 s54, s60, 0x1e000", "s_lshr_b64 s[60:61], s[60:61], 4"]
    def dma_k(slot):
        out = []
        for hh in range(2):
            out.append(f"s_add_u32 m0, s49, {slot*16384 + hh*4096}")
            out += [f"buffer_load_dwordx4 v{VKD+4*hh+i}, s[24:27], s54 offen offset:{1024*i} lds" for i in range(4)]
        return out
    def dma_v(slot):
        out = []
        for hh in range(2):
            out.append(f"s_add_u32 m0, s49, {slot*16384 + 8192 + hh*4096}")
            out += [f"buffer_load_dwordx4 v{VVD+2*hh+(i&1)}, s[28:31], s54 offen offset:{1024*i} lds" for i in range(4)]
        return out
    a.c("---- q projection: Q^T[128 x 64] = Wq_h^T x_b^T, 8 k-chunks of 64 through a 4-deep LDS ring ----")
    vm = []
    emit(qdma(0)); vm += ["c0"]*6
    if opt.get("pf"):
        a.c("pull this kernel's code into L2 ahead of the instruction fetch (one dword per 64 B, 4 KB per wave)")
        a("s_getpc_b64 s[100:101]")
        a("s_and_b32 s100, s100, 0xffffff00")
        a(f"v_lshlrev_b32 v{T+10}, 6, v0")
        a("s_lshl_b32 s51, s3, 12")
        a(f"v_add_u32 v{T+10}, s51, v{T+10}")
        a(f"s_cmp_ge_u32 s41, {opt['pf']}"); a("s_cbranch_scc1 L_nopf")
        a(f"global_load_dword v{T+11}, v{T+10}, s[100:101]")
        a.label("L_nopf")
    a.c("remaining address / descriptor setup, overlapped with the first loads")
    def kd_setup(): return [f"v_xor_b32 v{VKD+i}, {64*i}, v{VKD}" for i in range(1, 4)]
    a(f"v_xor_b32 v{t0}, v{c16}, v{r4}"); a(f"v_lshlrev_b32 v{t0}, 4, v{t0}")
    a(f"v_lshl_add_u32 v{VKD}, v{r4}, 8, v{t0}")
    a(f"v_lshl_add_u32 v{t0}, v{c16}, 8, v{t0}")
    a(f"v_add_u32 v{VKR}, s49, v{t0}")
    def kr_setup(): return [f"v_xor_b32 v{VKR+s}, {64*s}, v{VKR}" for s in range(1, 4)]
    emit(kd_setup() + kr_setup())
    for i in range(4): a(f"v_add_u32 v{VKD+4+i}, 4096, v{VKD+i}")
    a(f"v_lshl_add_u32 v{VVD}, v{r4}, 8, v{vp}")
    a(f"v_xor_b32 v{VVD+1}, 128, v{VVD}")
    a(f"v_add_u32 v{VVD+2}, 4096, v{VVD}"); a(f"v_add_u32 v{VVD+3}, 4096, v{VVD+1}")
    a(f"v_lshlrev_b32 v{t0}, 1, v{r4}"); a(f"v_xor_b32 v{t0}, v{t0}, v{c8}"); a(f"v_lshlrev_b32 v{t0}, 4, v{t0}")
    a(f"v_lshl_add_u32 v{VOD0}, v{r8}, 10, v{t0}")
    a.c("order in which this workgroup visits its 8 key tiles (the 4 heads of a kv group take turns fetching from HBM)")
    orders = opt["orders"]
    a(f"s_mov_b32 s62, {hex(orders[0])}")
    for rr_ in range(1, 4):
        a(f"s_cmp_eq_u32 s42, {rr_}"); a(f"s_cselect_b32 s62, {hex(orders[rr_])}, s62")
    a("s_mov_b32 s63, 0")
    a("s_lshl_b64 s[62:63], s[62:63], 13")
    a("s_mov_b64 s[60:61], s[62:63]")
    a("s_lshl_b32 s50, s41, 3"); a("s_add_u32 s50, s50, s40"); a("s_lshl_b32 s50, s50, 2"); a("s_add_u32 s50, s50, s3")
    a("s_lshl_b32 s50, s50, 16")
    a("s_mov_b32 s26, 0x10000"); a("s_mov_b32 s27, 0x20000"); a("s_mov_b32 s30, 0x10000"); a("s_mov_b32 s31, 0x20000")
    a("s_add_u32 s24, s6, s50"); a("s_addc_u32 s25, s7, 0"); a("s_and_b32 s25, s25, 0xffff")
    a("s_add_u32 s28, s8, s50"); a("s_addc_u32 s29, s9, 0"); a("s_and_b32 s29, s29, 0xffff")
    srd(a, 64, 18, ST_OFF + (0x40000 if fine else 0))
    srd(a, 68, 16, 256)
    a(f"v_mov_b32 v{VT}, 0")
    a("s_lshl_b32 s72, s41, 5")
    a.c("hand-off tag of this launch: q head 0 of each batch publishes its clock value in d_debug (zero at launch)")
    a("s_or_b32 s51, s43, s3")
    a("s_cbranch_scc1 L_nolead")
    a("s_or_b32 s74, s74, 1")
    a(f"v_mov_b32 v{VCNT}, s74")
    a("s_mov_b64 exec, 1")
    a(f"buffer_store_dword v{VCNT}, v{VT}, s[68:71], s72 offen sc1")
    a("s_mov_b64 exec, -1")
    a.label("L_nolead")
    emit(qdma(1)); vm += ["c1"]*6
    a(f"v_lshrrev_b32 v{t0}, 1, v{c16}"); a(f"v_xor_b32 v{t0}, v{t0}, v{r4}"); a(f"v_lshlrev_b32 v{t0}, 4, v{t0}")
    a(f"v_lshl_add_u32 v{t0}, v{c16}, 7, v{t0}")
    a(f"v_add_u32 v{VXR}, {XB}, v{t0}"); a(f"v_xor_b32 v{VXR+1}, 64, v{VXR}")
    a(f"v_and_b32 v{cc8}, 3, v0"); a(f"v_lshlrev_b32 v{cc8}, 3, v{cc8}")
    a(f"v_lshrrev_b32 v{l4}, 2, v0")
    a("s_lshl_b32 s52, s3, 1")
    a(f"v_and_b32 v{t1}, 7, v{l4}"); a(f"v_xor_b32 v{t1}, s52, v{t1}")
    a(f"v_lshl_add_u32 v{t1}, v{t1}, 5, v{cc8}")
    a(f"v_lshl_add_u32 v{t0}, v{r4}, 2, v{l4}")
    a(f"v_lshl_add_u32 v{t0}, v{t0}, 8, v{t1}")
    a(f"v_add_u32 v{VWR}, 16384, v{t0}"); a(f"v_xor_b32 v{VWR+1}, 32, v{VWR}")
    a(f"v_add_u32 v{VWR+2}, 65536, v{VWR}"); a(f"v_add_u32 v{VWR+3}, 65536, v{VWR+1}")
    a(f"v_lshl_add_u32 v{t0}, v{l4}, 8, v{t1}")
    a(f"v_add_u32 v{VVR}, s49, v{t0}")
    def vr_setup(): return [f"v_xor_b32 v{VVR+j}, {32*j}, v{VVR}" for j in range(1, 8)]
    emit(vr_setup())
    a("s_and_b32 s51, s40, 2"); a("s_and_b32 s52, s3, 1"); a("s_or_b32 s51, s51, s52")
    a(f"v_and_b32 v{t0}, 3, v{r8}"); a(f"v_xor_b32 v{t0}, s51, v{t0}")
    a(f"v_lshl_add_u32 v{t0}, v{t0}, 5, v{cc8}")
    a(f"v_lshl_add_u32 v{t0}, v{l4}, 7, v{t0}")
    a(f"v_add_u32 v{VWA}, s49, v{t0}")
    for k in range(1, 4): a(f"v_xor_b32 v{VWA+k}, {32*k}, v{VWA}")
    a(f"v_lshlrev_b32 v{VL16}, 4, v0")
    a(f"v_add_u32 v{VQR}, {QAREA}, v{VL16}")
    a(f"v_lshlrev_b32 v{VMX}, 4, v{c16}"); a(f"v_add_u32 v{VMX}, {MISC}, v{VMX}")
    for k in range(4): a(f"v_mov_b32 v{MS+k}, 0xff800000")
    a("s_mov_b32 s76, 0")
    a("s_lshl_b32 s51, s41, 5"); a("s_add_u32 s51, s51, s43"); a("s_lshl_b32 s51, s51, 2"); a("s_add_u32 s51, s51, s3")
    a("s_lshl_b32 s51, s51, 3"); a(f"s_add_u32 s77, s51, {FL_OFF}")
    a("s_andn2_b32 s51, s2, 6"); a("s_lshl_b32 s51, s51, 7"); a("s_lshl_b32 s52, s3, 5"); a("s_add_u32 s51, s51, s52"); a(f"s_add_u32 s86, s51, {FL_OFF + 0x4000}")
    a("s_and_b32 s78, s40, 6"); a("s_lshl_b32 s78, s78, 2"); a("s_lshl_b32 s51, s3, 1"); a("s_add_u32 s78, s78, s51")
    a("s_and_b32 s79, s43, 7")
    a("s_lshl_b32 s51, s78, 17"); a("s_lshl_b32 s52, s79, 7"); a("s_add_u32 s51, s51, s52")
    a("s_add_u32 s36, s12, s51"); a("s_addc_u32 s37, s13, 0"); a("s_and_b32 s37, s37, 0xffff")
    a("s_sub_u32 s38, 0x400000, s51"); a("s_mov_b32 s39, 0x20000")
    for k in range(4): a(f"v_mov_b32 v{VZ+k}, 0")
    emit([f"v_mov_b32 v14, {hex(f2u(C_SCALE))}", f"v_lshrrev_b32 v12, 1, v{r4}", f"v_lshl_add_u32 v12, v12, 4, v{c16}", "v_lshlrev_b32 v12, 4, v12",
          f"v_and_b32 v{t0}, 1, v{r4}", f"v_lshl_add_u32 v12, v{t0}, 3, v12", "s_lshl_b32 s51, s3, 10", f"s_add_u32 s51, s51, {QAREA}", "v_add_u32 v12, s51, v12"])
    beg("L4")
    a.c("constants used after the q projection: identity A fragments (v2..v7) for the bf16 cross-wave reduction,")
    a.c("selector fragment (a116..a119) for the row sums, scalar offsets of the later phases")
    a(f"v_lshrrev_b32 v{t0}, 2, v{c16}"); a(f"v_xor_b32 v{t0}, v{t0}, v{r4}")
    a(f"v_bfe_u32 v{t1}, v0, 1, 1"); a(f"v_lshl_add_u32 v{t0}, v{t0}, 1, v{t1}")
    a(f"v_and_b32 v{t1}, 1, v0"); a(f"v_lshlrev_b32 v{t1}, 4, v{t1}")
    a(f"v_mov_b32 v4, 0x3f80"); a(f"v_lshlrev_b32 v{t1}, v{t1}, v4")
    a(f"v_cmp_eq_u32 s[80:81], 0, v{t0}"); a(f"v_cmp_eq_u32 s[82:83], 1, v{t0}"); a(f"v_cmp_eq_u32 s[84:85], 0, v{c16}")
    a("v_mov_b32 v4, 0"); a("v_mov_b32 v5, 0"); a(f"v_mov_b32 v{t0}, 0x3f803f80")
    a(f"v_cndmask_b32 v2, 0, v{t1}, s[80:81]"); a(f"v_cndmask_b32 v3, 0, v{t1}, s[82:83]"); a(f"v_cndmask_b32 v{t0}, 0, v{t0}, s[84:85]")
    a("v_mov_b32 v6, v2"); a("v_mov_b32 v7, v3")
    for k in range(4): a(f"v_accvgpr_write_b32 a{SEL+k}, v{t0}")
    if opt.get("rot", 6) == 6:
        a("s_mul_i32 s51, s41, 86"); a("s_lshr_b32 s51, s51, 8"); a("s_mul_i32 s51, s51, 3"); a("s_sub_u32 s80, s41, s51"); a("s_mul_i32 s80, s80, 3")
    elif opt["rot"] == 2:
        a("s_lshl_b32 s80, s42, 1"); a("s_add_u32 s80, s80, s41"); a("s_and_b32 s80, s80, 7")
    elif opt["rot"] == 4:
        a("s_lshl_b32 s80, s41, 1"); a("s_and_b32 s80, s80, 7")
    a("s_lshl_b32 s87, s3, 12"); a(f"s_add_u32 s87, s87, {XB}"); a("s_sub_u32 s88, s87, s49")
    a("s_lshl_b32 s51, s41, 9"); a("s_lshl_b32 s52, s43, 3"); a("s_add_u32 s51, s51, s52"); a("s_lshl_b32 s52, s3, 1"); a("s_add_u32 s51, s51, s52")
    a("s_lshl_b32 s4, s51, 10"); a("s_add_u32 s5, s4, 262144"); a(f"s_mov_b32 s53, {hex(f2u(LIMIT))}")
    a("s_lshl_b32 s51, s41, 5"); a("s_add_u32 s51, s51, s78"); a("s_lshl_b32 s51, s51, 5"); a(f"s_add_u32 s55, s51, {FL_OFF}")
    a("s_lshl_b32 s51, s41, 9"); a("s_lshl_b32 s52, s78, 3"); a("s_add_u32 s51, s51, s52"); a("s_lshl_b32 s51, s51, 10")
    a("s_add_u32 s8, s18, s51"); a("s_addc_u32 s9, s19, 0"); a("s_and_b32 s9, s9, 0xffff"); a("s_mov_b32 s10, 0x44000"); a("s_mov_b32 s11, 0x20000")
    for j in range(1, 4):
        a(f"s_xor_b32 s51, s2, {2*j}"); a("s_mul_i32 s51, s51, 12288"); a(f"s_add_u32 s{93+j}, s51, {X_OFF + (j-1)*4096}")
    a("s_mul_i32 s51, s2, 12288"); a(f"s_add_u32 s97, s51, {X_OFF}"); a("s_add_u32 s98, s97, 4096"); a("s_add_u32 s99, s97, 8192")
    a("s_mov_b32 s12, s14"); a("s_and_b32 s13, s15, 0xffff"); a("s_mov_b32 s14, 0x80000"); a("s_mov_b32 s15, 0x20000")
    emit(["s_lshl_b32 s50, s41, 16", "s_and_b32 s51, s40, 4", "s_and_b32 s52, s3, 2", "s_or_b32 s51, s51, s52", "s_lshl_b32 s51, s51, 13", "s_add_u32 s50, s50, s51",
          "s_lshl_b32 s51, s79, 7", "s_add_u32 s50, s50, s51", "s_and_b32 s51, s40, 2", "s_and_b32 s52, s3, 1", "s_or_b32 s51, s51, s52", "s_lshl_b32 s51, s51, 5", "s_add_u32 s50, s50, s51",
          "s_and_b32 s52, s2, 6", "s_lshl_b32 s74, s52, 1", "s_add_u32 s75, s86, s74",
          "s_and_b32 s52, s40, 4", "s_lshl_b32 s52, s52, 16", "s_and_b32 s51, s3, 2", "s_lshl_b32 s51, s51, 9", "s_or_b32 s16, s52, s51", "s_lshl_b32 s17, s3, 10"])
    end("L4")
    z = R("v", VZ)
    zmf = [f"v_mfma_f32_32x32x16_bf16 {R('v', 128+16*i, 16)}, {z}, {z}, 0" for i in range(8)]
    beg("L5"); a.c("O accumulators v128..v255 := 0"); emit(zmf); end("L5")
    ASY = opt.get("asy", [])
    if ASY:
        a("s_bitcmp1_b32 s2, 2"); a("s_cbranch_scc0 L_as0")
        for b_ in ASY: a.lines += blocks[b_]
        a.label("L_as0")
    emit(qdma(2)); vm += ["c2"]*6

    kvq = opt.get("kvq", {5: ["K0a"], 6: ["K0b"], 7: ["V0a"], 8: ["V0b"]})
    K0 = dma_k(0); V0 = dma_v(0)
    grp = {"K0a": nexttile() + K0[:5], "K0b": K0[5:], "V0a": V0[:5], "V0b": V0[5:]}
    def kv(c):
        out = []
        for g in kvq.get(c, []): out += grp[g]; vm.extend([g[:2]]*4)
        return out
    def qreads(c):
        j = c % 4; base = (c % 2) * 48; out = []
        for s in range(2):
            b = base + 24*s
            for d in range(2):
                for u in range(2):
                    out.append(f"ds_read_b64_tr_b16 a[{b+4*d+2*u}:{b+4*d+2*u+1}], v{VWR + 2*(j >> 1) + d} offset:{(j & 1)*32768 + (32*s+4*u)*256}")
            for qq in range(4):
                out.append(f"ds_read_b128 {R('a', b+8+4*qq)}, v{VXR+s} offset:{j*8192 + qq*2048}")
        return out
    def qslot(c, s, qq):
        b = (c % 2) * 48 + 24*s
        return [mf(R("v", 16+8*qq+4*d), R("a", b+4*d), R("a", b+8+4*qq), "0" if (c == 0 and s == 0) else R("v", 16+8*qq+4*d)) for d in range(2)]
    def nwait(tag): return len(vm) - 1 - max(i for i, x in enumerate(vm) if x == tag)
    emit(fs())
    for c in range(8):
        a(f"s_waitcnt vmcnt({nwait(f'c{c}')})")
        a("s_barrier")
        emit(fs(c == 0))
        seq = qreads(c); ld = []
        if c + 3 < 8: ld += qdma(c + 3); vm += [f"c{c+3}"]*6
        ld += kv(c)
        if c == 0: emit(seq + ld)
        else:
            n0 = opt.get("q0", 4)
            emit(seq[:n0] + merge([qslot(c-1, s, qq) for s in range(2) for qq in range(4)], spread(8, [(0, opt.get("q1", 4), seq[n0:]), (0, 7, ld)])))
        for b_ in LATEP.get(c, []):
            if b_ in ASY:
                a("s_bitcmp1_b32 s2, 2"); a(f"s_cbranch_scc1 L_as{b_}")
                a.lines += blocks[b_]
                a.label(f"L_as{b_}")
            else: a.lines += blocks[b_]
        a("s_waitcnt lgkmcnt(0)")
    a.c("scale Q by log2(e)/sqrt(128), round to bf16, exchange the fragments through LDS")
    def qfin(qq, pk=False):
        b = 16 + 8*qq
        out = [f"v_mul_f32 v{b+r}, v14, v{b+r}" for r in range(8)]
        if pk: out = [f"v_pk_mul_f32 v[{b+r}:{b+r+1}], v[{b+r}:{b+r+1}], v[14:15] op_sel_hi:[1,0]" for r in range(0, 8, 2)]
        out += [f"v_cvt_pk_bf16_f32 v{80+4*qq+i}, v{b+2*i}, v{b+2*i+1}" for i in range(4)]
        out += [f"ds_write_b64 v12, v[{80+4*qq+2*d}:{81+4*qq+2*d}] offset:{qq*4096 + d*512}" for d in range(2)]
        return out
    qini = [f"v_mov_b32 v14, {hex(f2u(C_SCALE))}", f"v_lshrrev_b32 v12, 1, v{r4}", f"v_lshl_add_u32 v12, v12, 4, v{c16}", "v_lshlrev_b32 v12, 4, v12",
            f"v_and_b32 v{t0}, 1, v{r4}", f"v_lshl_add_u32 v12, v{t0}, 3, v12", "s_lshl_b32 s51, s3, 10", f"s_add_u32 s51, s51, {QAREA}", "v_add_u32 v12, s51, v12"]
    f01 = qfin(0) + qfin(1)
    nf = opt.get("nf", 22)
    emit(merge([qslot(7, s, qq) for qq in range(4) for s in range(2)], spread(8, [(3, 8, f01[:nf])])))
    emit(f01[nf:] + qfin(2, True) + qfin(3, True))
    emit(kv(8))

    def kreads(slot): return [f"ds_read_b128 {R('a', Kf(s, kb))}, v{VKR+s} offset:{slot*16384 + kb*4096}" for s in range(4) for kb in range(2)]
    def vreads(slot): return [f"ds_read_b64_tr_b16 a[{Vf(j)+2*u}:{Vf(j)+2*u+1}], v{VVR+j} offset:{slot*16384 + 8192 + u*4096}" for j in range(8) for u in range(2)]
    def qk(h, first=False):
        out = []
        for q in range(2):
            for s in range(4):
                sl = []
                for kb in range(2):
                    d = R("v", S0[h] + 8*q + 4*kb)
                    sl.append(mf(d, R("a", Kf(s, kb)), Q_(2*h+q, s), (("0" if first else R("v", NM + 4*(2*h+q))) if s == 0 else d)))
                out.append(sl)
        return out
    def pv(h, js=range(8)):
        return [[mf(R("v", Oi(h, j >> 1) + 8*q + 4*(j & 1)), R("a", Vf(j)), R("v", P0[h] + 4*q), R("v", Oi(h, j >> 1) + 8*q + 4*(j & 1))) for q in range(2)] for j in js]
    def msum(h, q): return mf(R("a", LA + 4*(2*h+q)), R("a", SEL), R("v", P0[h] + 4*q), R("a", LA + 4*(2*h+q)))
    def ex(h, r): return f"v_exp_f32 v{S0[h]+r}, v{S0[h]+r}"
    def cv(h, i): return f"v_cvt_pk_bf16_f32 v{P0[h]+i}, v{S0[h]+2*i}, v{S0[h]+2*i+1}"
    def smx(h):
        o = []
        for r in range(16):
            o.append(ex(h, r))
            if r >= 2 and r % 2 == 0: o.append(cv(h, (r-2)//2))
        return o

    emit(fs(True))
    a("s_waitcnt lgkmcnt(0)")
    a.c("---- attention: wave w owns keys [256w, 256w+256), all 64 query rows; S^T = K Q^T, O^T += V^T P^T ----")
    a.label("L_att")
    a("s_barrier")
    qr = [f"ds_read_b128 {Q_(qq,s)}, v{VQR} offset:{(qq*4+s)*1024}" for qq in range(4) for s in range(4)]
    emit(qr[:8])
    a(f"s_waitcnt vmcnt({nwait('K0')})")
    emit(fs())
    emit(kreads(0))
    K1 = nexttile() + dma_k(1); V1 = dma_v(1)
    MX = 64
    def inmax(qq):
        s = 16 + 8*qq; t = MX + qq
        return [f"v_max3_f32 v{t}, v{s}, v{s+1}, v{s+2}", f"v_max3_f32 v{t}, v{t}, v{s+3}, v{s+4}", f"v_max3_f32 v{t}, v{t}, v{s+5}, v{s+6}", f"v_max_f32 v{t}, v{t}, v{s+7}"]
    def xred(m):
        return [f"v_permlane32_swap_b32 v{m}, v{m+2}", f"v_permlane32_swap_b32 v{m+1}, v{m+3}", "s_nop 0",
                f"v_max_f32 v{m}, v{m}, v{m+2}", f"v_max_f32 v{m+1}, v{m+1}, v{m+3}", "s_nop 1",
                f"v_permlane16_swap_b32 v{m}, v{m+1}", "s_nop 0", f"v_max_f32 v{m}, v{m}, v{m+1}"]
    vr0 = vreads(0)
    emit(K1[:4])
    gaps = spread(16, [(0, 4, qr[8:]), (0, 14, K1[4:]), (4, 6, [f"v_accvgpr_write_b32 a{LA+4*k}, 0" for k in range(4)]), (6, 8, inmax(0)), (8, 10, ["s_lshl_b32 s51, s3, 2", f"s_add_u32 s51, s51, {MISC}", f"v_add_u32 v12, s51, v{VL16}"]), (10, 12, inmax(1)), (14, 16, inmax(2))])
    emit(merge(qk(0, True) + qk(1, True), gaps, pre={0: ["s_waitcnt lgkmcnt(4)"], 2: ["s_waitcnt lgkmcnt(4)"], 8: ["s_waitcnt lgkmcnt(0)"]}))
    a.c("softmax shift m = true row max over the first key tile of all 4 waves (or the exact row max v76..v79 after the fallback);")
    a.c("it enters every later QK tile as the MFMA C operand (-m); the row sums are checked at the end")
    emit(V1[:2])
    a("s_nop 3")
    emit(inmax(3))
    a("s_nop 1")
    emit(xred(MX))
    a(f"ds_write_b32 v12, v{MX}")
    emit(V1[2:3])
    a("s_waitcnt lgkmcnt(0)"); a("s_barrier")
    for qq in range(4): a(f"ds_read_b128 {R('v', NM+4*qq)}, v{VMX} offset:{256*qq}")
    emit(fs())
    a(f"s_waitcnt vmcnt({nwait('V0') + 10})")
    emit(vr0[:8])
    a("s_waitcnt lgkmcnt(8)")
    for qq in range(4):
        n = NM + 4*qq
        a(f"v_max3_f32 v{MX+qq}, v{n}, v{n+1}, v{MS+qq}")
    for qq in range(4):
        n = NM + 4*qq
        a(f"v_max3_f32 v{MX+qq}, v{n+2}, v{n+3}, v{MX+qq}")
    for qq in range(4):
        for k in range(2): a(f"v_sub_f32 v{NM+4*qq+k}, 0, v{MX+qq}")
    def sub(qq): return [f"v_pk_add_f32 v[{16+8*qq+r}:{17+8*qq+r}], v[{16+8*qq+r}:{17+8*qq+r}], v[{NM+4*qq}:{NM+4*qq+1}]" for r in range(0, 8, 2)]
    body_a = sub(0) + sub(1) + smx(0) + sub(2) + [cv(0, 7)] + sub(3) + smx(1)[:4]
    body_a += [f"v_pk_mov_b32 v[{NM+4*qq+2}:{NM+4*qq+3}], v[{NM+4*qq}:{NM+4*qq+1}], v[{NM+4*qq}:{NM+4*qq+1}]" for qq in range(4)]
    body_a += [f"v_add_u32 v12, s49, v{VL16}", "s_lshl_b32 s51, s3, 2", f"s_add_u32 s51, s51, {MISC+1024}", f"v_add_u32 v14, s51, v{VL16}", "s_lshl_b32 s84, s80, 15"]
    n = len(body_a)
    emit(merge([[x] for x in body_a], spread(n, [(0, n - 4, V1[3:]), (4, 30, vr0[8:15])])))

    wo_slot = [0, 4096, 8192, 12288, "X", 28672, 0, 4096]
    def wo_group(g):
        out = [f"s_add_u32 m0, s49, {wo_slot[g]}" if wo_slot[g] != "X" else "s_mov_b32 m0, s87"]
        out += [f"buffer_load_dwordx4 v{VKD+i}, s[36:39], s84 offen offset:{1024*i} lds" for i in range(4)]
        out += ["s_add_u32 s84, s84, 0x8000", "s_and_b32 s84, s84, 0x3ffff"]
        return out
    def wo_reads(g):
        X = wo_slot[g] == "X"
        return [f"ds_read_b64_tr_b16 a[{(g*4+cs)*4+2*u}:{(g*4+cs)*4+2*u+1}], v{(116 if X else VWA)+cs} offset:{(0 if X else wo_slot[g]) + u*2048}" for cs in range(4) for u in range(2)]
    wcnt = [0]
    def wnext(n=1):
        out = []
        for _ in range(n): out += wo_group(wcnt[0]); wcnt[0] += 1
        return out

    def body(par, kind):
        slots = pv(0) + qk(0) + pv(1) + qk(1)
        G = [[] for _ in range(32)]
        for r in range(16): G[(29 + r) % 32].append(ex(1, r)); G[13 + r].append(ex(0, r))
        vr_prev = vreads(par); vr = vreads(1 - par); kr = kreads(1 - par)
        kg = opt.get("kg", [1, 2, 3, 4, 5, 6, 7, 8])
        G[0].append(vr_prev[15])
        for s in range(8): G[kg[s]].append(kr[s])
        vg = opt.get("vg", list(range(17, 32)))
        for i in range(15): G[vg[i]].append(vr[i])
        for i in range(8): G[(31 + 2*i) % 32].append(cv(1, i)); G[15 + 2*i].append(cv(0, i))
        cnt = lambda g_: sum(1 for s in range(8) if kg[s] < g_)
        kw = opt.get("kw", 10)
        pre = {0: ["s_waitcnt lgkmcnt(7)"], 4: [f"s_waitcnt lgkmcnt({cnt(4)})"], 8: [f"s_waitcnt lgkmcnt({max(0, cnt(8) - 2*(kw - 8))})"]}
        if cnt(8) > 2*(kw - 8): pre[kw] = ["s_waitcnt lgkmcnt(0)"]
        post = {}
        mp = opt.get("mp", [0, 3, 16, 24])
        for (p_, h_, q_) in zip(mp, (0, 0, 1, 1), (0, 1, 0, 1)): post[p_] = [msum(h_, q_)]
        def put(g_, x):
            (post[g_] if g_ in post else G[g_]).append(x)
        put(0, "WAITK")
        if kind == "dma":
            dk = dma_k(par); dv = dma_v(par)
            pre[0] = ["s_and_b32 s54, s60, 0x1e000"] + pre[0]
            put(0, dk[0]); G[9].append(dk[5]); G[11].append("s_lshr_b64 s[60:61], s[60:61], 4")
            for i in range(4): G[2 + 2*i].append(dk[1 + i]); G[10 + 2*i].append(dk[6 + i])
            put(16, "WAITV"); put(16, dv[0])
            for i in range(4): G[18 + 2*i].append(dv[1 + i])
            put(24, dv[5])
            for i, g_ in enumerate(opt.get("dv", [26, 28, 30, 31])): G[g_].append(dv[6 + i])
            if par == 1:
                if not opt.get("tl"): G[13].append(f"buffer_load_dword v{VCNT}, v{VT}, s[68:71], s72 offen sc1")
                G[15].append("s_add_u32 s56, s56, 1")
        else:
            pat = [f"v_mov_b32 v{VKD}, v{VOD0}"] + [f"v_add_u32 v{VKD+i}, {7168*i}, v{VOD0}" for i in range(1, 4)]
            adr = [f"v_xor_b32 v{100+j}, {j << 15}, v12" for j in range(1, 4)]
            gw = spread(32, [(0, 2, pat), (9, 12, adr), ((1, 2, [f"buffer_load_dword v{VCNT}, v{VT}, s[68:71], s72 offen sc1"]) if opt.get("tl") else (20, 21, [f"v_readfirstlane_b32 s73, v{VCNT}"]))] + [(g0, g1, wnext()) for (g0, g1) in opt.get("wi6", [(2, 10), (12, 20), (22, 30)])])
            for i in range(32): G[i] += gw[i]
            put(16, "WAITV")
        arr = opt.get("arr", "A")
        if arr != "A":
            for g_ in range(32):
                e = [x for x in G[g_] if x.startswith("v_exp")]; d = [x for x in G[g_] if x.startswith("ds_")]
                o = [x for x in G[g_] if x not in e and x not in d]
                isd = any(x.startswith("buffer") for x in o)
                if arr == "B": G[g_] = d + o + ["|"] + e
                elif arr == "C": G[g_] = d + e + ["|"] + o
                elif arr == "D": G[g_] = (d + e + ["|"] + o) if isd else (e + ["|"] + d + o)
                elif arr == "E": G[g_] = e + ["|"] + o + d
                elif arr == "F": G[g_] = (e + d + ["|"] + o) if isd else (e + ["|"] + d + o)
        issued = 0; out = []
        for x in fs() + merge(slots, G, pre, post):
            if x == "WAITK": out.append(f"s_waitcnt vmcnt({8 + issued})")
            elif x == "WAITV": out.append(f"s_waitcnt vmcnt({issued})")
            else:
                if x.startswith("buffer_load"): issued += 1
                out.append(x)
        return out
    a("s_mov_b64 exec, 1")
    a(f"buffer_atomic_or v{VT}, v{VT}, s[64:67], s77 offen sc1")
    a(f"buffer_atomic_or v{VT}, v{VT}, s[64:67], s86 offen sc1")
    a("s_mov_b64 exec, -1")
    a("s_mov_b32 s56, 0")
    a.c("steady loop, two tiles per trip: PVa(t) QKa(t+1) PVb(t) QKb(t+1); exp/pack, K/V DMA and fragment reads sit in the MFMA gaps,")
    a.c("the MFMAs into a96..a111 accumulate the row sums of P")
    a.label("L_loop")
    emit(body(0, "dma")); emit(body(1, "dma"))
    a("s_cmp_lt_u32 s56, 3")
    a("s_cbranch_scc1 L_loop")
    a.c("tile 6 / QK of tile 7; the Wo slice starts streaming into free ring slots")
    emit(body(0, "wo"))
    emit(fs())
    a.c("last PV, then reduce O across the 4 waves (bf16 partials via LDS, added by identity MFMAs)")
    jo = [2, 3, 4, 5, 6, 7, 0, 1]
    sb = smx(1)[4:]
    def pack(h, p): return [f"v_cvt_pk_bf16_f32 v{Oi(h,p)+i}, v{Oi(h,p)+2*i}, v{Oi(h,p)+2*i+1}" for i in range(8)]
    def send(h, p): return [f"ds_write_b128 v12, {R('v', Oi(h,p)+4*q)} offset:{PART + ((p-1)*4 + h*2 + q)*1024}" for q in range(2)]
    def psend(h, p):
        x = pack(h, p); w_ = send(h, p)
        return x[:4] + [w_[0]] + x[4:] + [w_[1]]
    G = spread(8, [(0, 1, [vreads(1)[15]]), (0, 7, sb), (7, 8, [cv(1, 7)]), (opt.get("e0", 5), 8, (psend(0, 1) + psend(0, 2) + psend(0, 3))[:opt.get("e1", 0)])])
    nw5 = sum(1 for g_ in range(5) for x in G[g_] if x.startswith("ds_write"))
    emit(merge(pv(0, jo), G, {0: ["s_waitcnt lgkmcnt(7)"], 2: ["s_waitcnt lgkmcnt(1)"], 5: [f"s_waitcnt lgkmcnt({nw5})"]}, {opt.get("m0", 6): [msum(0, 0)], opt.get("m1", 7): [msum(0, 1)]}))
    def pack(h, p): return [f"v_cvt_pk_bf16_f32 v{Oi(h,p)+i}, v{Oi(h,p)+2*i}, v{Oi(h,p)+2*i+1}" for i in range(8)]
    def send(h, p): return [f"ds_write_b128 v12, {R('v', Oi(h,p)+4*q)} offset:{PART + ((p-1)*4 + h*2 + q)*1024}" for q in range(2)]
    def psend(h, p):
        x = pack(h, p); w_ = send(h, p)
        return x[:4] + [w_[0]] + x[4:] + [w_[1]]
    lst = [["s_mov_b64 exec, 0xffff"] + [f"ds_write_b32 v14, a{LA+4*k} offset:{256*k}" for k in range(4)] + ["s_mov_b64 exec, -1"]]
    if opt.get("sb"):
        def rb(h, p, q): return 16 + ((h*3 + p-1)*2 + q)*4
        def prd(h): return [f"ds_read_b128 {R('v', rb(h,p,q))}, v{100+p} offset:{PART + ((p-1)*4 + h*2 + q)*1024}" for p in range(1, 4) for q in range(2)]
        def red(h): return [[mf(R("v", Oi(h,0)+8*q+4*d), R("v", ID[d]), R("v", rb(h,p,q)), R("v", Oi(h,0)+8*q+4*d)) for d in range(2)] for p in range(1, 4) for q in range(2)]
        LB = 80
        allp = psend(0, 1) + psend(0, 2) + psend(0, 3) + psend(1, 1) + psend(1, 2) + psend(1, 3)
        allp = allp[opt.get("e1", 0):]
        ns = opt.get("ns", 40)
        G = spread(8, [(0, 8, allp[:ns]), (opt.get("lg", 3), opt.get("lg", 3) + 1, lst)])
        emit(merge(pv(1, jo), G, {0: [msum(1, 0)]}, {0: [msum(1, 1)]}))
        emit(allp[ns:])
        a("s_waitcnt lgkmcnt(0)")
        emit(fs())
        a("s_barrier")
        if opt.get("qm"):
            def rd1(h, q): return [prd(h)[2*p + q] for p in range(3)]
            def red1(h, q): return [red(h)[2*p + q] for p in range(3)]
            def ls1(qq):
                b = LB + 4*qq
                return [f"v_add_f32 v{b}, v{b}, v{b+1}", f"v_add_f32 v{b+2}, v{b+2}, v{b+3}", f"v_add_f32 v{b+1}, v{b}, v{b+2}", f"v_rcp_f32 v{b}, v{b+1}"]
            def fin1(h, q, pk=False):
                o = Oi(h, 0) + 8*q; g = LB + 8*h + 4*q
                if pk: out = [f"v_pk_mul_f32 v[{o+r}:{o+r+1}], v[{o+r}:{o+r+1}], v[{g}:{g+1}] op_sel_hi:[1,0]" for r in range(0, 8, 2)]
                else: out = [f"v_mul_f32 v{o+r}, v{g}, v{o+r}" for r in range(8)]
                out += [f"v_cvt_pk_bf16_f32 v{o+i}, v{o+2*i}, v{o+2*i+1}" for i in range(4)]
                out += [f"buffer_store_dwordx4 {R('v', o)}, v{VL16}, s[64:67], s{4+h} offen offset:{q*1024} sc1"]
                return out
            lrd = [f"ds_read_b128 {R('v', LB+4*qq)}, v{VMX} offset:{1024 + 256*qq}" for qq in range(4)]
            emit(rd1(0, 0) + lrd + rd1(0, 1) + rd1(1, 0))
            emit(wnext(opt.get("wf4", 1)))
            G = spread(12, [(0, 1, rd1(1, 1)), (1, 4, ls1(0) + ls1(1) + ls1(2)), (4, 7, fin1(0, 0)), (7, 10, fin1(0, 1)), (9, 10, ls1(3)), (10, 12, fin1(1, 0)[:opt.get("f3", 9)])])
            emit(merge(red1(0, 0) + red1(0, 1) + red1(1, 0) + red1(1, 1), G, {0: ["s_waitcnt lgkmcnt(10)"], 1: ["s_waitcnt lgkmcnt(9)"], 3: ["s_waitcnt lgkmcnt(6)"], 6: ["s_waitcnt lgkmcnt(0)"]}))
            emit(fin1(1, 0)[opt.get("f3", 9):])
            emit([f"v_add_f32 v{LB+1}, v{LB+1}, v{LB+5}", f"v_add_f32 v{LB+9}, v{LB+9}, v{LB+13}"])
            emit(fin1(1, 1, True))
            emit([f"v_add_f32 v{LB+1}, v{LB+1}, v{LB+9}", f"v_cmp_nlt_f32 vcc, v{LB+1}, s53"])
            a.c("row sum >= 2^40 or not finite: the shift was unsafe -> redo with the exact row max (nothing has been published yet)")
            emit(["s_cmp_eq_u32 s76, 0", "s_cselect_b64 s[6:7], vcc, 0", "s_cmp_lg_u64 s[6:7], 0", "s_cbranch_scc1 L_fallback"])
            def fin(h, pk): return []
        else:
            emit(prd(0)[:2])
            for qq in range(4): a(f"ds_read_b128 {R('v', LB+4*qq)}, v{VMX} offset:{1024 + 256*qq}")
            emit(prd(0)[2:] + prd(1)[:4])
            emit(wnext(opt.get("wf4", 1)))
            lsum = [f"v_add_f32 v{LB+4*qq+k}, v{LB+4*qq+k}, v{LB+4*qq+k+1}" for qq in range(4) for k in (0, 2)]
            lsum += [f"v_add_f32 v{LB+4*qq}, v{LB+4*qq}, v{LB+4*qq+2}" for qq in range(4)]
            lsum += [f"v_add_f32 v{LB+1}, v{LB}, v{LB+4}", f"v_add_f32 v{LB+2}, v{LB+8}, v{LB+12}", f"v_rcp_f32 v{LB}, v{LB}", f"v_add_f32 v{LB+1}, v{LB+1}, v{LB+2}",
                     f"v_rcp_f32 v{LB+4}, v{LB+4}", f"v_cmp_nlt_f32 vcc, v{LB+1}, s53", f"v_rcp_f32 v{LB+8}, v{LB+8}", f"v_rcp_f32 v{LB+12}, v{LB+12}"]
            def fin(h, pk):
                o = Oi(h, 0)
                if pk: out = [f"v_pk_mul_f32 v[{o+r}:{o+r+1}], v[{o+r}:{o+r+1}], v[{LB+8*h+4*(r>>3)}:{LB+8*h+4*(r>>3)+1}] op_sel_hi:[1,0]" for r in range(0, 16, 2)]
                else: out = [f"v_mul_f32 v{o+r}, v{LB+8*h+4*(r>>3)}, v{o+r}" for r in range(16)]
                out += pack(h, 0)
                out += [f"buffer_store_dwordx4 {R('v', o+4*q)}, v{VL16}, s[64:67], s{4+h} offen offset:{q*1024} sc1" for q in range(2)]
                return out
            G = spread(6, [(0, 1, prd(1)[4:]), (1, 6, lsum)])
            emit(merge(red(0), G, {0: ["s_waitcnt lgkmcnt(12)"], 1: ["s_waitcnt lgkmcnt(10)"], 2: ["s_waitcnt lgkmcnt(6)"]}))
            a.c("row sum >= 2^40 or not finite: the shift was unsafe -> redo with the exact row max")
            emit(["s_cmp_eq_u32 s76, 0", "s_cselect_b64 s[6:7], vcc, 0", "s_cmp_lg_u64 s[6:7], 0", "s_cbranch_scc1 L_fallback"])
            emit(merge(red(1), spread(6, [(0, 6, fin(0, False))]), {0: ["s_waitcnt lgkmcnt(0)"]}))
    else:
        pa = psend(0, 1) + psend(0, 2) + psend(0, 3)
        G = spread(8, [(0, opt.get("pa1", 6), pa), (opt.get("lg", 6), opt.get("lg", 6) + 1, lst), (opt.get("pb0", 6), 8, pack(1, 1) + pack(1, 2) + (pack(1, 3) if opt.get("h3") else []))])
        emit(merge(pv(1, jo), G, {0: [msum(1, 0)]}, {0: [msum(1, 1)]}))
        a("s_waitcnt lgkmcnt(0)")
        emit(fs())
        a("s_barrier")
        def rb(h, p, q): return 16 + ((h*3 + p-1)*2 + q)*4
        def prd(h): return [f"ds_read_b128 {R('v', rb(h,p,q))}, v{100+p} offset:{PART + ((p-1)*4 + h*2 + q)*1024}" for p in range(1, 4) for q in range(2)]
        def red(h): return [[mf(R("v", Oi(h,0)+8*q+4*d), R("v", ID[d]), R("v", rb(h,p,q)), R("v", Oi(h,0)+8*q+4*d)) for d in range(2)] for p in range(1, 4) for q in range(2)]
        LB = 80
        emit(prd(0))
        for qq in range(4): a(f"ds_read_b128 {R('v', LB+4*qq)}, v{VMX} offset:{1024 + 256*qq}")
        wb = send(1, 1) + send(1, 2) + send(1, 3)
        n0 = 2 if opt.get("h3") else 4
        emit(wb[:n0])
        lsum = [f"v_add_f32 v{LB+4*qq+k}, v{LB+4*qq+k}, v{LB+4*qq+k+1}" for qq in range(4) for k in (0, 2)]
        lsum += [f"v_add_f32 v{LB+4*qq}, v{LB+4*qq}, v{LB+4*qq+2}" for qq in range(4)]
        lsum += [f"v_add_f32 v{LB+1}, v{LB}, v{LB+4}", f"v_add_f32 v{LB+2}, v{LB+8}, v{LB+12}", f"v_rcp_f32 v{LB}, v{LB}", f"v_add_f32 v{LB+1}, v{LB+1}, v{LB+2}",
                 f"v_rcp_f32 v{LB+4}, v{LB+4}", f"v_cmp_nlt_f32 vcc, v{LB+1}, s53", f"v_rcp_f32 v{LB+8}, v{LB+8}", f"v_rcp_f32 v{LB+12}, v{LB+12}"]
        nb = opt.get("nb", 4)
        if opt.get("h3"):
            G = spread(6, [(0, min(nb, 4), wb[2:]), (opt.get("ls0", nb), 6, lsum)])
        else:
            G = spread(6, [(0, 2, pack(1, 3) + wb[4:]), (opt.get("ls0", 2), 6, lsum)])
        emit(merge(red(0), G, {0: [f"s_waitcnt lgkmcnt({n0})"]}, {nb - 1: ["s_waitcnt lgkmcnt(0)", "s_barrier"] + prd(1)}))
        emit(wnext(opt.get("wf4", 1)))
        a.c("row sum >= 2^40 or not finite: the shift was unsafe -> redo with the exact row max")
        emit(["s_cmp_eq_u32 s76, 0", "s_cselect_b64 s[6:7], vcc, 0", "s_cmp_lg_u64 s[6:7], 0", "s_cbranch_scc1 L_fallback"])
        def fin(h, pk):
            o = Oi(h, 0)
            if pk: out = [f"v_pk_mul_f32 v[{o+r}:{o+r+1}], v[{o+r}:{o+r+1}], v[{LB+8*h+4*(r>>3)}:{LB+8*h+4*(r>>3)+1}] op_sel_hi:[1,0]" for r in range(0, 16, 2)]
            else: out = [f"v_mul_f32 v{o+r}, v{LB+8*h+4*(r>>3)}, v{o+r}" for r in range(16)]
            out += pack(h, 0)
            out += [f"buffer_store_dwordx4 {R('v', o+4*q)}, v{VL16}, s[64:67], s{4+h} offen offset:{q*1024} sc1" for q in range(2)]
            return out
        emit(merge(red(1), spread(6, [(0, 6, fin(0, False))]), {0: ["s_waitcnt lgkmcnt(4)"], 2: ["s_waitcnt lgkmcnt(0)"]}))
    for k in range(4): a(f"v_add_u32 v{116+k}, s88, v{VWA+k}")
    a("v_and_b32 v14, 1, v0"); a("v_sub_u32 v14, 0, v14")
    emit(fin(1, True))
    emit(fs())
    npre = wcnt[0]
    a.c("O (normalised, bf16, MFMA fragment layout) was stored write-through; publish a flag after the stores are acknowledged")
    if opt.get("tl"):
        a("s_waitcnt vmcnt(4)")
        a(f"v_readfirstlane_b32 s73, v{VCNT}")
    a("s_mov_b32 s93, 0x40000")
    a.label("L_tag")
    a("s_cmp_lg_u32 s73, 0")
    a("s_cbranch_scc1 L_tagok")
    a(f"buffer_load_dword v{VCNT}, v{VT}, s[68:71], s72 offen sc1")
    a("s_waitcnt vmcnt(0)")
    a(f"v_readfirstlane_b32 s73, v{VCNT}")
    a("s_sub_u32 s93, s93, 1")
    a("s_cbranch_scc0 L_tag")
    a.label("L_tagok")
    a("s_waitcnt vmcnt(4)")
    for g in range(2): emit(wo_reads(g))
    a("v_xor_b32 v14, s73, v14")
    a("v_and_b32 v124, 15, v0"); a("v_lshlrev_b32 v124, 2, v124")
    emit(["v_mov_b32 v80, 0xff", "s_lshr_b32 s81, s73, 8", "s_lshr_b32 s82, s73, 16", "s_lshr_b32 s83, s73, 24", f"v_add_u32 v81, s17, v{VL16}",
          "v_lshlrev_b32 v82, 8, v124", "v_lshrrev_b32 v83, 4, v0", "v_lshl_add_u32 v82, v83, 3, v82", "v_mov_b32 v84, 0x0c0c0400", "v_mov_b32 v85, 0x05040100",
          "v_add_u32 v86, 1, v0", "v_lshlrev_b32 v86, 2, v86", "v_xor_b32 v86, s74, v86",
          "v_cmp_eq_u32 vcc, 0, v0", "v_mov_b32 v87, s73", "v_add_u32 v88, 16, v86", "v_cndmask_b32 v86, v86, v88, vcc"])
    for g in range(8):
        a(f"s_add_u32 s51, s80, {g}"); a("s_and_b32 s51, s51, 7"); a(f"s_lshl_b32 s{20+g}, s51, 11")
    a(f"v_add_u32 v104, s16, v{VL16}"); a("v_xor_b32 v105, 0x400, v104"); a("v_xor_b32 v106, 0x40000, v104"); a("v_xor_b32 v107, 0x40400, v104")
    a("v_mov_b32 v125, 0")
    a("s_waitcnt vmcnt(0)")
    a("s_mov_b64 exec, 3")
    a("buffer_atomic_swap v14, v124, s[64:67], s77 offen sc1")
    a("s_mov_b64 exec, 0xffff")
    a("buffer_atomic_or v125, v124, s[64:67], s55 offen sc0 sc1")
    a("s_mov_b64 exec, -1")
    emit(fs(True))
    nrest = 8 - npre
    a("s_waitcnt lgkmcnt(0)")
    emit(wnext(nrest))
    for g in range(2, npre): emit(wo_reads(g))
    a("s_mov_b32 s93, 0x40000")
    a(f"s_waitcnt vmcnt({4*nrest})")
    a("s_mov_b64 exec, 0xffff")
    a.label("L_poll")
    a("v_cmp_ne_u32 vcc, v14, v125")
    a("s_cbranch_vccz L_pollend")
    a("v_mov_b32 v125, 0")
    a("buffer_atomic_or v125, v124, s[64:67], s55 offen sc0 sc1")
    a("s_sub_u32 s93, s93, 1")
    a("s_waitcnt vmcnt(0)")
    a("s_cbranch_scc0 L_poll")
    a.label("L_pollend")
    a("s_mov_b64 exec, -1")
    emit(fs(True))
    a.c("---- output projection: tile 64 tokens x 64 cols x 1024 k per workgroup (wave = 2 heads); 4 workgroups share a tile ----")
    def oload(i):
        q = 1 - i // 16; s_ = i % 16
        o = [f"buffer_load_dwordx4 {R('v', 128+4*i)}, v{104 + 2*q + (s_ & 1)}, s[8:11], s{20 + (s_ >> 1)} offen sc1"]
        return o
    D = opt.get("odepth", 12)
    for i in range(D): emit(oload(i))
    late_reads = []
    for g in range(npre, 8): late_reads += wo_reads(g)
    def omf(j, s_):
        i = (0 if j >> 1 else 16) + s_; g = s_ >> 1
        return [mf(R("v", 16+16*j+8*(s_&1)+4*ci), R("a", (g*4 + 2*(j&1) + ci)*4), R("v", 128+4*i), "0" if g == 0 else R("v", 16+16*j+8*(s_&1)+4*ci)) for ci in range(2)]
    NL = opt.get("nlag", 6)
    sched = []
    for s_ in range(16): sched += [(omf(3, s_), s_), (omf(2, s_), s_)]
    for s_ in range(16):
        sched.append((omf(1, s_), 16 + s_))
        if s_ < 16 - NL: sched.append((omf(0, s_), 16 + s_))
    nfirst = len(sched)
    for s_ in range(16 - NL, 16): sched.append((omf(0, s_), 16 + s_))
    def wr(j): return [f"ds_write_b128 v12, {R('v', 16+16*j+4*k)} offset:{(j*3 + k-1)*1024}" for k in range(1, 4)]
    def rdd(j): return [f"ds_read_b128 {R('v', 16+16*j+4*k)}, v{100+k} offset:{(j*3 + k-1)*1024}" for k in range(1, 4)]
    tg = ["s73", "s81", "s82", "s83"]
    def summ(j, pk):
        b = 16 + 16*j; out = []
        if pk:
            for p in (0, 2): out += [f"v_pk_add_f32 v[{b+p}:{b+p+1}], v[{b+p}:{b+p+1}], v[{b+4+p}:{b+5+p}]", f"v_pk_add_f32 v[{b+8+p}:{b+9+p}], v[{b+8+p}:{b+9+p}], v[{b+12+p}:{b+13+p}]"]
            for p in (0, 2): out += [f"v_pk_add_f32 v[{b+p}:{b+p+1}], v[{b+p}:{b+p+1}], v[{b+8+p}:{b+9+p}]"]
        else:
            for i in range(4): out += [f"v_add_f32 v{b+i}, v{b+i}, v{b+4+i}", f"v_add_f32 v{b+8+i}, v{b+8+i}, v{b+12+i}"]
            for i in range(4): out += [f"v_add_f32 v{b+i}, v{b+i}, v{b+8+i}"]
        if j:
            out += [f"v_bfi_b32 v{b+i}, v80, {tg[i]}, v{b+i}" for i in range(4)]
            out += [f"buffer_store_dwordx4 {R('v', b)}, v81, s[64:67], s{93+j} offen sc1"]
        return out
    def hint(off): return [["s_mov_b64 exec, 1", f"buffer_atomic_swap v87, v{VT}, s[64:67], s75 offen offset:{off} sc1", "s_mov_b64 exec, -1"]]
    n = len(sched)
    G = spread(n, [(0, opt.get('lr', 13), late_reads), (33, opt.get("w1", 37), wr(3) + wr(2)),
                   (opt.get("w1", 37) + 5, opt.get("w3", 52), ["s_waitcnt lgkmcnt(0)"] + summ(3, False) + summ(2, False)), (nfirst + 1, nfirst + 2, wr(1))])
    G[15].append("s_waitcnt lgkmcnt(8)" if opt.get('lr', 13) > 13 else "s_waitcnt lgkmcnt(0)")
    if opt.get('lr', 13) > 13: G[23].append("s_waitcnt lgkmcnt(0)")
    G[opt.get("w1", 37) + 2] += ["s_waitcnt lgkmcnt(0)", "s_barrier"] + rdd(3) + rdd(2)
    G[opt.get("w3", 52)] += hint(0)
    G[min(n - 1, nfirst + 3)] += ["s_waitcnt lgkmcnt(0)", "s_barrier"] + rdd(1)
    gg = spread(n, [(min(n - 1, nfirst + 5), n, ["s_waitcnt lgkmcnt(0)"] + summ(1, False))])
    for i in range(n): G[i] += gg[i]
    G[n-1] += hint(16)
    vmq = [("ld", i) for i in range(D)]
    issued = D; seen = -1
    for i, (m, need) in enumerate(sched):
        g_ = list(G[i])
        if need > seen:
            a(f"s_waitcnt vmcnt({len(vmq) - 1 - vmq.index(('ld', need))})" + (" lgkmcnt(0)" if i == 0 else ""))
            seen = need
            if issued < 32:
                g_ = oload(issued) + g_; vmq.append(("ld", issued)); issued += 1
        for x in G[i]:
            if any(y.startswith("buffer_") for y in (x if isinstance(x, list) else [x])): vmq.append(("st", 0))
        emit(merge([m], [g_]))
    emit(fs(True))
    a.c("own 32x32 block: reduce over waves; partner partials arrive tagged (low byte of every word), hints only avoid early reads")
    a("v_mov_b32 v88, 0")
    a("s_mov_b64 exec, 7")
    a("buffer_atomic_or v88, v86, s[64:67], s86 offen sc0 sc1")
    a("s_mov_b64 exec, -1")
    emit(wr(0))
    a("s_waitcnt lgkmcnt(0)"); a("s_barrier")
    emit(rdd(0))
    a("s_waitcnt lgkmcnt(0)")
    emit(summ(0, True))
    emit(fs(True))
    a("s_mov_b32 s93, 0x40000")
    a("s_mov_b64 exec, 7")
    a("v_mov_b32 v89, 0")
    a.label("L_h")
    for x, y in ((89, 88), (88, 89)):
        a(f"buffer_atomic_or v{x}, v86, s[64:67], s86 offen sc0 sc1")
        a("s_waitcnt vmcnt(1)")
        a(f"v_cmp_ne_u32 vcc, v87, v{y}")
        a("s_cbranch_vccz L_hend")
        a(f"v_mov_b32 v{y}, 0")
    a("s_sub_u32 s93, s93, 1")
    a("s_cbranch_scc0 L_h")
    a.label("L_hend")
    a("s_mov_b64 exec, -1")
    emit(fs(True))
    a("s_mov_b32 s93, 0x40000")
    a.label("L_x")
    for j in range(3): a(f"buffer_load_dwordx4 {R('v', 32+4*j)}, v81, s[64:67], s{97+j} offen sc1")
    a("s_waitcnt vmcnt(0)")
    for j in range(3):
        b = 32 + 4*j
        a(f"v_perm_b32 v{44+2*j}, v{b+1}, v{b}, v84"); a(f"v_perm_b32 v{45+2*j}, v{b+3}, v{b+2}, v84")
    for j in range(3): a(f"v_perm_b32 v{44+2*j}, v{45+2*j}, v{44+2*j}, v85")
    for j in range(3): a(f"v_xor_b32 v{44+2*j}, s73, v{44+2*j}")
    a("v_or3_b32 v44, v44, v46, v48")
    a("v_cmp_ne_u32 vcc, 0, v44")
    a("s_cbranch_vccz L_xend")
    a("s_sub_u32 s93, s93, 1")
    a("s_cbranch_scc0 L_x")
    a.label("L_xend")
    emit(fs(True))
    for i in range(12): a(f"v_and_b32 v{32+i}, 0xffffff00, v{32+i}")
    for p in range(2):
        a(f"v_pk_add_f32 v[{16+2*p}:{17+2*p}], v[{16+2*p}:{17+2*p}], v[{32+2*p}:{33+2*p}]")
        a(f"v_pk_add_f32 v[{36+2*p}:{37+2*p}], v[{36+2*p}:{37+2*p}], v[{40+2*p}:{41+2*p}]")
    for p in range(2): a(f"v_pk_add_f32 v[{16+2*p}:{17+2*p}], v[{16+2*p}:{17+2*p}], v[{36+2*p}:{37+2*p}]")
    a("v_cvt_pk_bf16_f32 v16, v16, v17")
    a("v_cvt_pk_bf16_f32 v17, v18, v19")
    a("buffer_store_dwordx2 v[16:17], v82, s[12:15], s50 offen")
    if fine:
        a("s_waitcnt vmcnt(0)")
        emit(fs(True, True)); emit(fs(True, True))
        a("s_lshl_b32 s51, s2, 2"); a("s_add_u32 s51, s51, s3"); a("s_lshl_b32 s51, s51, 8"); a(f"s_add_u32 s51, s51, {ST_OFF}")
        a("v_lshlrev_b32 v6, 2, v0")
        a("buffer_store_dword v127, v6, s[64:67], s51 offen")
    a.label("L_end")
    a("s_endpgm")

    a.c("---- rare path: exact row max over all 1024 keys, then the attention is run again with it ----")
    a.label("L_fallback")
    a("s_mov_b32 s76, 1")
    a("s_waitcnt vmcnt(0) lgkmcnt(0)")
    a("s_barrier")
    emit(kr_setup())
    for qq in range(4):
        for s_ in range(4): a(f"ds_write_b128 v{VQR}, {Q_(qq,s_)} offset:{(qq*4+s_)*1024}")
    a(f"v_subrev_u32 v{VKD}, 4096, v{VKD+4}")
    emit(kd_setup())
    a("s_mov_b32 s54, 0")
    a.label("L_fb_loop")
    emit(dma_k(0))
    a("s_waitcnt vmcnt(0)")
    emit(kreads(0))
    a("s_waitcnt lgkmcnt(0)")
    for sl in qk(0, True) + qk(1, True): emit(sl)
    a("s_nop 7")
    for qq in range(4):
        for r in range(0, 8, 2): a(f"v_max3_f32 v{MS+qq}, v{MS+qq}, v{16+8*qq+r}, v{17+8*qq+r}")
    a("s_add_u32 s54, s54, 8192")
    a("s_cmp_lt_u32 s54, 65536")
    a("s_cbranch_scc1 L_fb_loop")
    emit(xred(MS))
    a("s_lshl_b32 s51, s3, 2"); a(f"s_add_u32 s51, s51, {MISC+2048}")
    a(f"v_add_u32 v12, s51, v{VL16}")
    a(f"ds_write_b32 v12, v{MS}")
    a("s_waitcnt lgkmcnt(0)"); a("s_barrier")
    for qq in range(4): a(f"ds_read_b128 {R('v', 16+4*qq)}, v{VMX} offset:{2048 + 256*qq}")
    a("s_waitcnt lgkmcnt(0)")
    for qq in range(4):
        a(f"v_max_f32 v{MS+qq}, v{16+4*qq}, v{17+4*qq}")
        a(f"v_max3_f32 v{MS+qq}, v{18+4*qq}, v{19+4*qq}, v{MS+qq}")
    a("s_mov_b64 s[60:61], s[62:63]")
    emit(nexttile() + dma_k(0) + dma_v(0))
    for k in range(4): a(f"v_mov_b32 v{VZ+k}, 0")
    a("s_nop 1")
    emit(zmf)
    a("s_waitcnt vmcnt(0)")
    a("s_branch L_att")
    if opt.get("pf"): a(".fill 256, 4, 0xbf810000")
    return a.text()

def build(opt, fname):
    k = NAME + "_kernel"
    hdr = f"""; GQA block (B=8, Sq=64, D=512, Hq=32, Hkv=8, Sk=1024, Dh=128) as one fused kernel:
; @launch grid=(256,1,1) block=(256,1,1) lds=163840
.amdgcn_target "amdgcn-amd-amdhsa--gfx950"
"""
    open(fname, "w").write(hdr + kernel_header(k) + gen(opt) + '.section .rodata,"a"\n.p2align 6\n' + kernel_desc(k, 512, 102, 256))

R1 = [order(x) for x in ([0,2,1,3,4,6,5,7], [0,1,3,2,4,5,7,6], [1,0,2,4,3,5,6,7], [1,0,2,3,5,4,6,7])]
R3 = [order(x) for x in ([0,2,1,3,6,4,5,7], [0,1,4,2,3,5,6,7], [1,3,0,2,4,7,5,6], [1,0,2,5,3,4,6,7])]
R7 = [order(x) for x in ([0,1,3,2,4,5,7,6], [0,1,2,4,3,5,6,7], [0,2,1,3,5,4,6,7], [0,2,1,3,4,6,5,7])]
if __name__ == "__main__":
    B = {"orders": R7}
    KO = [1, 1, 3, 3, 5, 5, 7, 7]; VO = [17, 17, 19, 19, 21, 21, 23, 23, 25, 25, 27, 27, 29, 29, 31]
    D_ = dict(B, arr="D")
    H_ = dict(D_, h3=1, nb=4, ls0=0)
    N_ = dict(H_, orders=R1)
    N_ = dict(N_, nf=16)
    P7 = [R7[1], R7[2], R7[3], R7[0]]
    Z_ = dict(N_, late2={5: ["L5"]})
    KV1 = {5: ["K0a", "K0b"], 6: ["V0a"], 7: ["V0b"]}
    KV4 = {4: ["K0a"], 5: ["K0b"], 7: ["V0a"], 8: ["V0b"]}
    KV3 = {3: ["K0a"], 5: ["K0b"], 7: ["V0a"], 8: ["V0b"]}
    KV5 = {3: ["K0a"], 5: ["K0b"], 6: ["V0a"], 7: ["V0b"]}
    L_ = dict(N_, late2={3: ["L4"]})
    S_ = dict(L_, sb=1, ns=40, e1=10)
    Q0 = dict(S_, qm=1, ns=30, e1=0, f3=6)
    E_ = dict(Q0, e0=3, e1=20, ns=35)
    T_ = dict(E_, tl=1)
    V = {"i0": dict(E_, late2={}), "i1": E_, "i2": dict(E_, late2={3: ["L4"], 5: ["L5"]}), "i3": dict(E_, orders=R7), "i4": dict(E_, orders=R7, late2={3: ["L4"], 5: ["L5"]}),
         "i5": dict(E_, orders=R7, late2={2: ["L5"], 4: ["L4"]}, kvq=KV3)}
    for n, o in V.items():
        build(o, f"v66_{n}.s")
        build(dict(o, fine=3), f"v66_{n}_m.s")
```

```python
import sys, math, struct
from asmlib import *

C_SCALE = math.log2(math.e) / math.sqrt(128.0)
def f2u(f): return struct.unpack("<I", struct.pack("<f", f))[0]
def R(p, lo, n=4): return f"{p}[{lo}:{lo+n-1}]"
def mf(d, a, b, c): return f"v_mfma_f32_16x16x32_bf16 {d}, {a}, {b}, {c}"

def Oi(h, p): return 128 + (h*4+p)*16
def Q_(qq, s): return R("a", 128 + (qq*4+s)*4)
def Kf(s, kb): return 192 + (s*2+kb)*4
def Vf(j): return 224 + 4*j
S0 = [16, 32]; NM = 48; P0 = [80, 88]
LA = 96; SEL = 116
VCNT = 98; VT = 99
VKR = 100; VVR = 104; VKD = 112; VVD = 120
MS = 76; VWA = 8; VOD0 = 1
ID = [2, 4]
VL16 = 13; VQR = 15; VMX = 96
VXD = 48; VWD = 50; VXR = 54; VWR = 56; VZ = 60; T = 64
XB = 131072; QAREA = XB; MISC = XB + 16384
X_OFF = 0x400000; FL_OFF = 0x700000; ST_OFF = 0x810000
PART = 16384
LIMIT = 2.0 ** 40

def spread(n, fillers):
    gaps = [[] for _ in range(n)]
    for (g0, g1, lst) in fillers:
        k = max(1, len(lst))
        for i, x in enumerate(lst):
            gaps[g0 + (i * (g1 - g0)) // k].append(x)
    return gaps
def fix_m0(seq):
    out = []
    for i, x in enumerate(seq):
        out.append(x)
        if " m0," in x and i + 1 < len(seq) and seq[i+1].startswith("buffer_load"): out.append("s_nop 0")
    return out
def cost(x): return 8 if x.startswith(("v_exp", "v_rcp")) else 4
def merge(slots, gaps, pre=None, post=None):
    s = []
    for i, ms in enumerate(slots):
        if pre and i in pre: s += pre[i]
        if "|" in gaps[i]:
            k_ = gaps[i].index("|")
            s += [ms[0]] + gaps[i][:k_] + [ms[1]] + gaps[i][k_+1:]
            if post and i in post: s += post[i]
            continue
        items = list(gaps[i]); tot = sum(sum(map(cost, x)) if isinstance(x, list) else cost(x) for x in items)
        for k, m in enumerate(ms):
            s.append(m)
            if k == len(ms) - 1:
                take = items; items = []
            else:
                take = []; c = 0; lim = max(8, tot / len(ms))
                while items:
                    cc = sum(map(cost, items[0])) if isinstance(items[0], list) else cost(items[0])
                    if c + cc > lim: break
                    c += cc; take.append(items.pop(0))
            for x in take: s += x if isinstance(x, list) else [x]
        if post and i in post: s += post[i]
    return s
def order(l):
    v = 0
    for i, t in enumerate(l): v |= t << (4*i)
    return v

def gen(opt):
    a = Asm()
    fine = opt.get("fine")
    clk = "s_memtime" if fine == 2 else "s_memrealtime"
    def fs(sync=False, last=False):
        if not fine or (fine == 3 and not last): return []
        return (["s_waitcnt lgkmcnt(0)"] if sync else []) + ["s_mov_b32 s89, m0", "s_mov_b32 m0, s92", "s_add_u32 s92, s92, 1", "v_writelane_b32 v127, s90, m0", clk + " s[90:91]", "s_mov_b32 m0, s89"]
    def emit(l):
        for x in fix_m0(l): a(x)
    LATEP = opt.get("late2", {})
    moved = {b for v in LATEP.values() for b in v}
    blocks = {}; saved = []
    def beg(n):
        if n in moved: saved.append(a.lines); a.lines = blocks.setdefault(n, [])
    def end(n):
        if n in moved: a.lines = saved.pop()

    a.c("workgroups past the 256 that carry data leave at once")
    a("s_cmp_ge_u32 s2, 256")
    a("s_cbranch_scc1 L_end")
    a("s_load_dwordx8 s[4:11], s[0:1], 0")
    a("s_load_dwordx8 s[12:19], s[0:1], 32")
    a("s_memrealtime s[74:75]")
    if fine:
        a(clk + " s[90:91]"); a("s_mov_b32 s92, 0"); a("v_mov_b32 v127, 0"); a("s_mov_b32 m0, 0")
    a(f"v_lshrrev_b32 v{T}, 6, v0")
    a("v_and_b32 v0, 63, v0")
    a(f"v_readfirstlane_b32 s3, v{T}")
    a.c("id -> kv head s40 (= id & 7), batch s41, head-in-group s42, q head s43; wave index s3, lane v0")
    a("s_and_b32 s40, s2, 7"); a("s_lshr_b32 s41, s2, 5"); a("s_bfe_u32 s42, s2, 0x20003")
    a("s_lshl_b32 s43, s40, 2"); a("s_add_u32 s43, s43, s42")
    a.c("per-lane source offsets of the LDS-DMA tile loads (bank swizzle applied on the source side)")
    r4, c16, vp, r8, c8, t0, t1, cc8, l4 = T+1, T+2, T+3, T+4, T+5, T+6, T+7, T+8, T+9
    a(f"v_lshrrev_b32 v{r4}, 4, v0")
    a(f"v_and_b32 v{c16}, 15, v0")
    a(f"v_lshlrev_b32 v{vp}, 1, v{r4}")
    a(f"v_xor_b32 v{vp}, v{c16}, v{vp}")
    a(f"v_lshlrev_b32 v{vp}, 4, v{vp}")
    a(f"v_lshl_add_u32 v{VWD}, v{r4}, 13, v{vp}")
    a(f"v_xor_b32 v{t0}, 128, v{VWD}")
    a(f"v_add_u32 v{VWD+1}, 31744, v{VWD}")
    a(f"v_add_u32 v{VWD+2}, {31744*2}, v{t0}")
    a(f"v_add_u32 v{VWD+3}, {31744*3}, v{t0}")
    a(f"v_lshrrev_b32 v{r8}, 3, v0")
    a(f"v_and_b32 v{c8}, 7, v0")
    a(f"v_xor_b32 v{t0}, v{c8}, v{r4}")
    a(f"v_lshlrev_b32 v{t0}, 4, v{t0}")
    a(f"v_lshl_add_u32 v{VXD}, v{r8}, 10, v{t0}")
    a(f"v_xor_b32 v{t0}, 64, v{VXD}")
    a(f"v_add_u32 v{VXD+1}, {8192-1024}, v{t0}")
    a("s_add_u32 s44, s42, s41"); a("s_mul_i32 s45, s44, 86"); a("s_lshr_b32 s45, s45, 8"); a("s_mul_i32 s45, s45, 3"); a("s_sub_u32 s44, s44, s45"); a("s_mul_i32 s58, s44, 3")
    a("s_lshl_b32 s46, s3, 11"); a(f"s_add_u32 s46, s46, {XB}")
    a("s_lshl_b32 s47, s3, 12"); a("s_add_u32 s47, s47, 16384")
    a("s_lshl_b32 s49, s3, 15")
    a("s_lshl_b32 s44, s41, 16"); a("s_lshl_b32 s45, s3, 14"); a("s_add_u32 s44, s44, s45")
    a("s_lshl_b32 s48, s43, 8"); a("s_lshl_b32 s45, s3, 17"); a("s_add_u32 s48, s48, s45")
    a("s_sub_u32 s22, 0x80000, s44"); a("s_mov_b32 s23, 0x20000")
    a("s_sub_u32 s34, 0x400000, s48"); a("s_mov_b32 s35, 0x20000")
    a("s_waitcnt lgkmcnt(0)")
    a("s_add_u32 s20, s4, s44"); a("s_addc_u32 s21, s5, 0"); a("s_and_b32 s21, s21, 0xffff")
    a("s_add_u32 s32, s10, s48"); a("s_addc_u32 s33, s11, 0"); a("s_and_b32 s33, s33, 0xffff")

    def qdma(c):
        j = c % 4
        out = [f"s_lshl_b32 s59, s58, 7", f"s_add_u32 m0, s46, {j*8192}", "s_lshl_b32 s57, s58, 19"]
        out += [f"buffer_load_dwordx4 v{VXD+i}, s[20:23], s59 offen offset:{1024*i} lds" for i in range(2)]
        out += [f"s_add_u32 m0, s47, {j*32768}", "s_add_u32 s58, s58, 1"]
        out += [f"buffer_load_dwordx4 v{VWD+i}, s[32:35], s57 offen offset:{1024*i} lds" for i in range(4)]
        out.append("s_and_b32 s58, s58, 7")
        return out
    def nexttile(): return ["s_and_b32 s54, s60, 0x1e000", "s_lshr_b64 s[60:61], s[60:61], 4"]
    def dma_k(slot):
        out = []
        for hh in range(2):
            out.append(f"s_add_u32 m0, s49, {slot*16384 + hh*4096}")
            out += [f"buffer_load_dwordx4 v{VKD+4*hh+i}, s[24:27], s54 offen offset:{1024*i} lds" for i in range(4)]
        return out
    def dma_v(slot):
        out = []
        for hh in range(2):
            out.append(f"s_add_u32 m0, s49, {slot*16384 + 8192 + hh*4096}")
            out += [f"buffer_load_dwordx4 v{VVD+2*hh+(i&1)}, s[28:31], s54 offen offset:{1024*i} lds" for i in range(4)]
        return out
    a.c("---- q projection: Q^T[128 x 64] = Wq_h^T x_b^T, 8 k-chunks of 64 through a 4-deep LDS ring ----")
    vm = []
    emit(qdma(0)); vm += ["c0"]*6
    if opt.get("pf"):
        a.c("pull this kernel's code into L2 ahead of the instruction fetch (one dword per 64 B, 4 KB per wave)")
        a("s_getpc_b64 s[100:101]")
        a("s_and_b32 s100, s100, 0xffffff00")
        a(f"v_lshlrev_b32 v{T+10}, 6, v0")
        a("s_lshl_b32 s51, s3, 12")
        a(f"v_add_u32 v{T+10}, s51, v{T+10}")
        a(f"s_cmp_ge_u32 s41, {opt['pf']}"); a("s_cbranch_scc1 L_nopf")
        a(f"global_load_dword v{T+11}, v{T+10}, s[100:101]")
        a.label("L_nopf")
    a.c("remaining address / descriptor setup, overlapped with the first loads")
    def kd_setup(): return [f"v_xor_b32 v{VKD+i}, {64*i}, v{VKD}" for i in range(1, 4)]
    a(f"v_xor_b32 v{t0}, v{c16}, v{r4}"); a(f"v_lshlrev_b32 v{t0}, 4, v{t0}")
    a(f"v_lshl_add_u32 v{VKD}, v{r4}, 8, v{t0}")
    a(f"v_lshl_add_u32 v{t0}, v{c16}, 8, v{t0}")
    a(f"v_add_u32 v{VKR}, s49, v{t0}")
    def kr_setup(): return [f"v_xor_b32 v{VKR+s}, {64*s}, v{VKR}" for s in range(1, 4)]
    emit(kd_setup() + kr_setup())
    for i in range(4): a(f"v_add_u32 v{VKD+4+i}, 4096, v{VKD+i}")
    a(f"v_lshl_add_u32 v{VVD}, v{r4}, 8, v{vp}")
    a(f"v_xor_b32 v{VVD+1}, 128, v{VVD}")
    a(f"v_add_u32 v{VVD+2}, 4096, v{VVD}"); a(f"v_add_u32 v{VVD+3}, 4096, v{VVD+1}")
    a(f"v_lshlrev_b32 v{t0}, 1, v{r4}"); a(f"v_xor_b32 v{t0}, v{t0}, v{c8}"); a(f"v_lshlrev_b32 v{t0}, 4, v{t0}")
    a(f"v_lshl_add_u32 v{VOD0}, v{r8}, 10, v{t0}")
    a.c("order in which this workgroup visits its 8 key tiles (the 4 heads of a kv group take turns fetching from HBM)")
    orders = opt["orders"]
    a(f"s_mov_b32 s62, {hex(orders[0])}")
    for rr_ in range(1, 4):
        a(f"s_cmp_eq_u32 s42, {rr_}"); a(f"s_cselect_b32 s62, {hex(orders[rr_])}, s62")
    a("s_mov_b32 s63, 0")
    a("s_lshl_b64 s[62:63], s[62:63], 13")
    a("s_mov_b64 s[60:61], s[62:63]")
    a("s_lshl_b32 s50, s41, 3"); a("s_add_u32 s50, s50, s40"); a("s_lshl_b32 s50, s50, 2"); a("s_add_u32 s50, s50, s3")
    a("s_lshl_b32 s50, s50, 16")
    a("s_mov_b32 s26, 0x10000"); a("s_mov_b32 s27, 0x20000"); a("s_mov_b32 s30, 0x10000"); a("s_mov_b32 s31, 0x20000")
    a("s_add_u32 s24, s6, s50"); a("s_addc_u32 s25, s7, 0"); a("s_and_b32 s25, s25, 0xffff")
    a("s_add_u32 s28, s8, s50"); a("s_addc_u32 s29, s9, 0"); a("s_and_b32 s29, s29, 0xffff")
    srd(a, 64, 18, ST_OFF + (0x40000 if fine else 0))
    srd(a, 68, 16, 256)
    a(f"v_mov_b32 v{VT}, 0")
    a("s_lshl_b32 s72, s41, 5")
    a.c("hand-off tag of this launch: q head 0 of each batch publishes its clock value in d_debug (zero at launch)")
    a("s_or_b32 s51, s43, s3")
    a("s_cbranch_scc1 L_nolead")
    a("s_or_b32 s74, s74, 1")
    a(f"v_mov_b32 v{VCNT}, s74")
    a("s_mov_b64 exec, 1")
    a(f"buffer_store_dword v{VCNT}, v{VT}, s[68:71], s72 offen sc1")
    a("s_mov_b64 exec, -1")
    a.label("L_nolead")
    emit(qdma(1)); vm += ["c1"]*6
    a(f"v_lshrrev_b32 v{t0}, 1, v{c16}"); a(f"v_xor_b32 v{t0}, v{t0}, v{r4}"); a(f"v_lshlrev_b32 v{t0}, 4, v{t0}")
    a(f"v_lshl_add_u32 v{t0}, v{c16}, 7, v{t0}")
    a(f"v_add_u32 v{VXR}, {XB}, v{t0}"); a(f"v_xor_b32 v{VXR+1}, 64, v{VXR}")
    a(f"v_and_b32 v{cc8}, 3, v0"); a(f"v_lshlrev_b32 v{cc8}, 3, v{cc8}")
    a(f"v_lshrrev_b32 v{l4}, 2, v0")
    a("s_lshl_b32 s52, s3, 1")
    a(f"v_and_b32 v{t1}, 7, v{l4}"); a(f"v_xor_b32 v{t1}, s52, v{t1}")
    a(f"v_lshl_add_u32 v{t1}, v{t1}, 5, v{cc8}")
    a(f"v_lshl_add_u32 v{t0}, v{r4}, 2, v{l4}")
    a(f"v_lshl_add_u32 v{t0}, v{t0}, 8, v{t1}")
    a(f"v_add_u32 v{VWR}, 16384, v{t0}"); a(f"v_xor_b32 v{VWR+1}, 32, v{VWR}")
    a(f"v_add_u32 v{VWR+2}, 65536, v{VWR}"); a(f"v_add_u32 v{VWR+3}, 65536, v{VWR+1}")
    a(f"v_lshl_add_u32 v{t0}, v{l4}, 8, v{t1}")
    a(f"v_add_u32 v{VVR}, s49, v{t0}")
    def vr_setup(): return [f"v_xor_b32 v{VVR+j}, {32*j}, v{VVR}" for j in range(1, 8)]
    emit(vr_setup())
    a(f"v_and_b32 v{t0}, 3, v{r8}"); a(f"v_xor_b32 v{t0}, s3, v{t0}")
    a(f"v_lshl_add_u32 v{t0}, v{t0}, 5, v{cc8}")
    a(f"v_lshl_add_u32 v{t0}, v{l4}, 7, v{t0}")
    a(f"v_add_u32 v{VWA}, s49, v{t0}")
    for k in range(1, 4): a(f"v_xor_b32 v{VWA+k}, {32*k}, v{VWA}")
    a(f"v_lshlrev_b32 v{VL16}, 4, v0")
    a(f"v_add_u32 v{VQR}, {QAREA}, v{VL16}")
    a(f"v_lshlrev_b32 v{VMX}, 4, v{c16}"); a(f"v_add_u32 v{VMX}, {MISC}, v{VMX}")
    for k in range(4): a(f"v_mov_b32 v{MS+k}, 0xff800000")
    a("s_mov_b32 s76, 0")
    a("s_lshl_b32 s51, s41, 5"); a("s_add_u32 s51, s51, s43"); a("s_lshl_b32 s51, s51, 2"); a("s_add_u32 s51, s51, s3")
    FS = opt.get("fsx", 0); HS = opt.get("hsx", 0)
    WGF = opt.get("wgf", 0)
    if WGF: a("s_lshr_b32 s51, s51, 2")
    a(f"s_lshl_b32 s51, s51, {3 + FS}"); a(f"s_add_u32 s77, s51, {FL_OFF}")
    a("s_andn2_b32 s51, s2, 6"); a(f"s_lshl_b32 s51, s51, {7 + HS}"); a(f"s_lshl_b32 s52, s3, {5 + HS}"); a("s_add_u32 s51, s51, s52"); a(f"s_add_u32 s86, s51, {FL_OFF + 0x80000}")
    a("s_and_b32 s78, s40, 6"); a("s_lshl_b32 s78, s78, 2"); a("s_lshl_b32 s51, s3, 1"); a("s_add_u32 s78, s78, s51")
    a("s_and_b32 s79, s43, 7")
    a("s_lshl_b32 s51, s78, 17"); a("s_lshl_b32 s52, s79, 7"); a("s_add_u32 s51, s51, s52")
    a("s_add_u32 s36, s12, s51"); a("s_addc_u32 s37, s13, 0"); a("s_and_b32 s37, s37, 0xffff")
    a("s_sub_u32 s38, 0x400000, s51"); a("s_mov_b32 s39, 0x20000")
    for k in range(4): a(f"v_mov_b32 v{VZ+k}, 0")
    emit([f"v_mov_b32 v14, {hex(f2u(C_SCALE))}", f"v_lshrrev_b32 v12, 1, v{r4}", f"v_lshl_add_u32 v12, v12, 4, v{c16}", "v_lshlrev_b32 v12, 4, v12",
          f"v_and_b32 v{t0}, 1, v{r4}", f"v_lshl_add_u32 v12, v{t0}, 3, v12", "s_lshl_b32 s51, s3, 10", f"s_add_u32 s51, s51, {QAREA}", "v_add_u32 v12, s51, v12"])
    beg("L4")
    a.c("constants used after the q projection: identity A fragments (v2..v7) for the bf16 cross-wave reduction,")
    a.c("selector fragment (a116..a119) for the row sums, scalar offsets of the later phases")
    a(f"v_lshrrev_b32 v{t0}, 2, v{c16}"); a(f"v_xor_b32 v{t0}, v{t0}, v{r4}")
    a(f"v_bfe_u32 v{t1}, v0, 1, 1"); a(f"v_lshl_add_u32 v{t0}, v{t0}, 1, v{t1}")
    a(f"v_and_b32 v{t1}, 1, v0"); a(f"v_lshlrev_b32 v{t1}, 4, v{t1}")
    a(f"v_mov_b32 v4, 0x3f80"); a(f"v_lshlrev_b32 v{t1}, v{t1}, v4")
    a(f"v_cmp_eq_u32 s[80:81], 0, v{t0}"); a(f"v_cmp_eq_u32 s[82:83], 1, v{t0}"); a(f"v_cmp_eq_u32 s[84:85], 0, v{c16}")
    a("v_mov_b32 v4, 0"); a("v_mov_b32 v5, 0"); a(f"v_mov_b32 v{t0}, 0x3f803f80")
    a(f"v_cndmask_b32 v2, 0, v{t1}, s[80:81]"); a(f"v_cndmask_b32 v3, 0, v{t1}, s[82:83]"); a(f"v_cndmask_b32 v{t0}, 0, v{t0}, s[84:85]")
    a("v_mov_b32 v6, v2"); a("v_mov_b32 v7, v3")
    for k in range(4): a(f"v_accvgpr_write_b32 a{SEL+k}, v{t0}")
    if opt.get("rot", 6) == 6:
        a("s_mul_i32 s51, s41, 86"); a("s_lshr_b32 s51, s51, 8"); a("s_mul_i32 s51, s51, 3"); a("s_sub_u32 s80, s41, s51"); a("s_mul_i32 s80, s80, 3")
    elif opt["rot"] == 2:
        a("s_lshl_b32 s80, s42, 1"); a("s_add_u32 s80, s80, s41"); a("s_and_b32 s80, s80, 7")
    elif opt["rot"] == 4:
        a("s_lshl_b32 s80, s41, 1"); a("s_and_b32 s80, s80, 7")
    a("s_lshl_b32 s87, s3, 12"); a(f"s_add_u32 s87, s87, {XB}"); a("s_sub_u32 s88, s87, s49")
    a("s_lshl_b32 s51, s41, 9"); a("s_lshl_b32 s52, s43, 3"); a("s_add_u32 s51, s51, s52"); a("s_lshl_b32 s52, s3, 1"); a("s_add_u32 s51, s51, s52")
    a("s_lshl_b32 s4, s51, 10"); a("s_add_u32 s5, s4, 262144"); a(f"s_mov_b32 s53, {hex(f2u(LIMIT))}")
    a("s_lshl_b32 s51, s41, 5"); a("s_add_u32 s51, s51, s78"); (a("s_andn2_b32 s51, s51, 7") if WGF == 2 else None); a(f"s_lshl_b32 s51, s51, {(3 if WGF else 5) + FS}"); a(f"s_add_u32 s55, s51, {FL_OFF}")
    a("s_lshl_b32 s51, s41, 9"); a("s_lshl_b32 s52, s78, 3"); a("s_add_u32 s51, s51, s52"); a("s_lshl_b32 s51, s51, 10")
    a("s_add_u32 s8, s18, s51"); a("s_addc_u32 s9, s19, 0"); a("s_and_b32 s9, s9, 0xffff"); a("s_mov_b32 s10, 0x44000"); a("s_mov_b32 s11, 0x20000")
    for j in range(1, 4):
        a(f"s_xor_b32 s51, s2, {2*j}"); a("s_mul_i32 s51, s51, 12288"); a(f"s_add_u32 s{93+j}, s51, {X_OFF + (j-1)*4096}")
    a("s_mul_i32 s51, s2, 12288"); a(f"s_add_u32 s97, s51, {X_OFF}"); a("s_add_u32 s98, s97, 4096"); a("s_add_u32 s99, s97, 8192")
    a("s_mov_b32 s12, s14"); a("s_and_b32 s13, s15, 0xffff"); a("s_mov_b32 s14, 0x80000"); a("s_mov_b32 s15, 0x20000")
    emit(["s_lshl_b32 s50, s41, 16", "s_and_b32 s51, s40, 6", "s_lshl_b32 s51, s51, 13", "s_add_u32 s50, s50, s51",
          "s_lshl_b32 s51, s79, 7", "s_add_u32 s50, s50, s51", "s_lshl_b32 s51, s3, 5", "s_add_u32 s50, s50, s51",
          "s_and_b32 s52, s2, 6", "s_lshl_b32 s74, s52, 1", "s_add_u32 s75, s86, s74",
          "s_and_b32 s52, s40, 4", "s_lshl_b32 s52, s52, 16", "s_and_b32 s51, s40, 2", "s_lshl_b32 s51, s51, 9", "s_or_b32 s16, s52, s51", "s_lshl_b32 s17, s3, 10"])
    end("L4")
    z = R("v", VZ)
    zmf = [f"v_mfma_f32_32x32x16_bf16 {R('v', 128+16*i, 16)}, {z}, {z}, 0" for i in range(8)]
    beg("L5"); a.c("O accumulators v128..v255 := 0"); emit(zmf); end("L5")
    ASY = opt.get("asy", [])
    if ASY:
        a("s_bitcmp1_b32 s2, 2"); a("s_cbranch_scc0 L_as0")
        for b_ in ASY: a.lines += blocks[b_]
        a.label("L_as0")
    emit(qdma(2)); vm += ["c2"]*6

    kvq = opt.get("kvq", {5: ["K0a"], 6: ["K0b"], 7: ["V0a"], 8: ["V0b"]})
    K0 = dma_k(0); V0 = dma_v(0)
    grp = {"K0a": nexttile() + K0[:5], "K0b": K0[5:], "V0a": V0[:5], "V0b": V0[5:]}
    def kv(c):
        out = []
        for g in kvq.get(c, []): out += grp[g]; vm.extend([g[:2]]*4)
        return out
    def qreads(c):
        j = c % 4; base = (c % 2) * 48; out = []
        for s in range(2):
            b = base + 24*s
            for d in range(2):
                for u in range(2):
                    out.append(f"ds_read_b64_tr_b16 a[{b+4*d+2*u}:{b+4*d+2*u+1}], v{VWR + 2*(j >> 1) + d} offset:{(j & 1)*32768 + (32*s+4*u)*256}")
            for qq in range(4):
                out.append(f"ds_read_b128 {R('a', b+8+4*qq)}, v{VXR+s} offset:{j*8192 + qq*2048}")
        return out
    def qslot(c, s, qq):
        b = (c % 2) * 48 + 24*s
        return [mf(R("v", 16+8*qq+4*d), R("a", b+4*d), R("a", b+8+4*qq), "0" if (c == 0 and s == 0) else R("v", 16+8*qq+4*d)) for d in range(2)]
    def nwait(tag): return len(vm) - 1 - max(i for i, x in enumerate(vm) if x == tag)
    emit(fs())
    for c in range(8):
        a(f"s_waitcnt vmcnt({nwait(f'c{c}')})")
        a("s_barrier")
        emit(fs(c == 0))
        seq = qreads(c); ld = []
        if c + 3 < 8: ld += qdma(c + 3); vm += [f"c{c+3}"]*6
        ld += kv(c)
        if c == 0: emit(seq + ld)
        else:
            n0 = opt.get("q0", 4)
            emit(seq[:n0] + merge([qslot(c-1, s, qq) for s in range(2) for qq in range(4)], spread(8, [(0, opt.get("q1", 4), seq[n0:]), (0, 7, ld)])))
        for b_ in LATEP.get(c, []):
            if b_ in ASY:
                a("s_bitcmp1_b32 s2, 2"); a(f"s_cbranch_scc1 L_as{b_}")
                a.lines += blocks[b_]
                a.label(f"L_as{b_}")
            else: a.lines += blocks[b_]
        a("s_waitcnt lgkmcnt(0)")
    a.c("scale Q by log2(e)/sqrt(128), round to bf16, exchange the fragments through LDS")
    def qfin(qq, pk=False):
        b = 16 + 8*qq
        out = [f"v_mul_f32 v{b+r}, v14, v{b+r}" for r in range(8)]
        if pk: out = [f"v_pk_mul_f32 v[{b+r}:{b+r+1}], v[{b+r}:{b+r+1}], v[14:15] op_sel_hi:[1,0]" for r in range(0, 8, 2)]
        out += [f"v_cvt_pk_bf16_f32 v{80+4*qq+i}, v{b+2*i}, v{b+2*i+1}" for i in range(4)]
        out += [f"ds_write_b64 v12, v[{80+4*qq+2*d}:{81+4*qq+2*d}] offset:{qq*4096 + d*512}" for d in range(2)]
        return out
    qini = [f"v_mov_b32 v14, {hex(f2u(C_SCALE))}", f"v_lshrrev_b32 v12, 1, v{r4}", f"v_lshl_add_u32 v12, v12, 4, v{c16}", "v_lshlrev_b32 v12, 4, v12",
            f"v_and_b32 v{t0}, 1, v{r4}", f"v_lshl_add_u32 v12, v{t0}, 3, v12", "s_lshl_b32 s51, s3, 10", f"s_add_u32 s51, s51, {QAREA}", "v_add_u32 v12, s51, v12"]
    f01 = qfin(0) + qfin(1)
    nf = opt.get("nf", 22)
    emit(merge([qslot(7, s, qq) for qq in range(4) for s in range(2)], spread(8, [(3, 8, f01[:nf])])))
    emit(f01[nf:] + qfin(2, True) + qfin(3, True))
    emit(kv(8))

    def kreads(slot): return [f"ds_read_b128 {R('a', Kf(s, kb))}, v{VKR+s} offset:{slot*16384 + kb*4096}" for s in range(4) for kb in range(2)]
    def vreads(slot): return [f"ds_read_b64_tr_b16 a[{Vf(j)+2*u}:{Vf(j)+2*u+1}], v{VVR+j} offset:{slot*16384 + 8192 + u*4096}" for j in range(8) for u in range(2)]
    def qk(h, first=False):
        out = []
        for q in range(2):
            for s in range(4):
                sl = []
                for kb in range(2):
                    d = R("v", S0[h] + 8*q + 4*kb)
                    sl.append(mf(d, R("a", Kf(s, kb)), Q_(2*h+q, s), (("0" if first else R("v", NM + 4*(2*h+q))) if s == 0 else d)))
                out.append(sl)
        return out
    def pv(h, js=range(8)):
        return [[mf(R("v", Oi(h, j >> 1) + 8*q + 4*(j & 1)), R("a", Vf(j)), R("v", P0[h] + 4*q), R("v", Oi(h, j >> 1) + 8*q + 4*(j & 1))) for q in range(2)] for j in js]
    def msum(h, q): return mf(R("a", LA + 4*(2*h+q)), R("a", SEL), R("v", P0[h] + 4*q), R("a", LA + 4*(2*h+q)))
    def ex(h, r): return f"v_exp_f32 v{S0[h]+r}, v{S0[h]+r}"
    def cv(h, i): return f"v_cvt_pk_bf16_f32 v{P0[h]+i}, v{S0[h]+2*i}, v{S0[h]+2*i+1}"
    def smx(h):
        o = []
        for r in range(16):
            o.append(ex(h, r))
            if r >= 2 and r % 2 == 0: o.append(cv(h, (r-2)//2))
        return o

    emit(fs(True))
    a("s_waitcnt lgkmcnt(0)")
    a.c("---- attention: wave w owns keys [256w, 256w+256), all 64 query rows; S^T = K Q^T, O^T += V^T P^T ----")
    a.label("L_att")
    a("s_barrier")
    qr = [f"ds_read_b128 {Q_(qq,s)}, v{VQR} offset:{(qq*4+s)*1024}" for qq in range(4) for s in range(4)]
    emit(qr[:8])
    a(f"s_waitcnt vmcnt({nwait('K0')})")
    emit(fs())
    emit(kreads(0))
    K1 = nexttile() + dma_k(1); V1 = dma_v(1)
    MX = 64
    def inmax(qq):
        s = 16 + 8*qq; t = MX + qq
        return [f"v_max3_f32 v{t}, v{s}, v{s+1}, v{s+2}", f"v_max3_f32 v{t}, v{t}, v{s+3}, v{s+4}", f"v_max3_f32 v{t}, v{t}, v{s+5}, v{s+6}", f"v_max_f32 v{t}, v{t}, v{s+7}"]
    def xred(m):
        return [f"v_permlane32_swap_b32 v{m}, v{m+2}", f"v_permlane32_swap_b32 v{m+1}, v{m+3}", "s_nop 0",
                f"v_max_f32 v{m}, v{m}, v{m+2}", f"v_max_f32 v{m+1}, v{m+1}, v{m+3}", "s_nop 1",
                f"v_permlane16_swap_b32 v{m}, v{m+1}", "s_nop 0", f"v_max_f32 v{m}, v{m}, v{m+1}"]
    vr0 = vreads(0)
    emit(K1[:4])
    gaps = spread(16, [(0, 4, qr[8:]), (0, 14, K1[4:]), (4, 6, [f"v_accvgpr_write_b32 a{LA+4*k}, 0" for k in range(4)]), (6, 8, inmax(0)), (8, 10, ["s_lshl_b32 s51, s3, 2", f"s_add_u32 s51, s51, {MISC}", f"v_add_u32 v12, s51, v{VL16}"]), (10, 12, inmax(1)), (14, 16, inmax(2))])
    emit(merge(qk(0, True) + qk(1, True), gaps, pre={0: ["s_waitcnt lgkmcnt(4)"], 2: ["s_waitcnt lgkmcnt(4)"], 8: ["s_waitcnt lgkmcnt(0)"]}))
    a.c("softmax shift m = true row max over the first key tile of all 4 waves (or the exact row max v76..v79 after the fallback);")
    a.c("it enters every later QK tile as the MFMA C operand (-m); the row sums are checked at the end")
    emit(V1[:2])
    a("s_nop 3")
    emit(inmax(3))
    a("s_nop 1")
    emit(xred(MX))
    a(f"ds_write_b32 v12, v{MX}")
    emit(V1[2:3])
    a("s_waitcnt lgkmcnt(0)"); a("s_barrier")
    for qq in range(4): a(f"ds_read_b128 {R('v', NM+4*qq)}, v{VMX} offset:{256*qq}")
    emit(fs())
    a(f"s_waitcnt vmcnt({nwait('V0') + 10})")
    emit(vr0[:8])
    a("s_waitcnt lgkmcnt(8)")
    for qq in range(4):
        n = NM + 4*qq
        a(f"v_max3_f32 v{MX+qq}, v{n}, v{n+1}, v{MS+qq}")
    for qq in range(4):
        n = NM + 4*qq
        a(f"v_max3_f32 v{MX+qq}, v{n+2}, v{n+3}, v{MX+qq}")
    for qq in range(4):
        for k in range(2): a(f"v_sub_f32 v{NM+4*qq+k}, 0, v{MX+qq}")
    def sub(qq): return [f"v_pk_add_f32 v[{16+8*qq+r}:{17+8*qq+r}], v[{16+8*qq+r}:{17+8*qq+r}], v[{NM+4*qq}:{NM+4*qq+1}]" for r in range(0, 8, 2)]
    body_a = sub(0) + sub(1) + smx(0) + sub(2) + [cv(0, 7)] + sub(3) + smx(1)[:4]
    body_a += [f"v_pk_mov_b32 v[{NM+4*qq+2}:{NM+4*qq+3}], v[{NM+4*qq}:{NM+4*qq+1}], v[{NM+4*qq}:{NM+4*qq+1}]" for qq in range(4)]
    body_a += [f"v_add_u32 v12, s49, v{VL16}", "s_lshl_b32 s51, s3, 2", f"s_add_u32 s51, s51, {MISC+1024}", f"v_add_u32 v14, s51, v{VL16}", "s_lshl_b32 s84, s80, 15"]
    n = len(body_a)
    emit(merge([[x] for x in body_a], spread(n, [(0, n - 4, V1[3:]), (4, 30, vr0[8:15])])))

    wo_slot = [0, 4096, 8192, 12288, "X", 28672, 0, 4096]
    def wo_group(g):
        out = [f"s_add_u32 m0, s49, {wo_slot[g]}" if wo_slot[g] != "X" else "s_mov_b32 m0, s87"]
        out += [f"buffer_load_dwordx4 v{VKD+i}, s[36:39], s84 offen offset:{1024*i} lds" for i in range(4)]
        out += ["s_add_u32 s84, s84, 0x8000", "s_and_b32 s84, s84, 0x3ffff"]
        return out
    def wo_reads(g):
        X = wo_slot[g] == "X"
        return [f"ds_read_b64_tr_b16 a[{(g*4+cs)*4+2*u}:{(g*4+cs)*4+2*u+1}], v{(116 if X else VWA)+cs} offset:{(0 if X else wo_slot[g]) + u*2048}" for cs in range(4) for u in range(2)]
    wcnt = [0]
    def wnext(n=1):
        out = []
        for _ in range(n): out += wo_group(wcnt[0]); wcnt[0] += 1
        return out

    def body(par, kind):
        slots = pv(0) + qk(0) + pv(1) + qk(1)
        G = [[] for _ in range(32)]
        for r in range(16): G[(29 + r) % 32].append(ex(1, r)); G[13 + r].append(ex(0, r))
        vr_prev = vreads(par); vr = vreads(1 - par); kr = kreads(1 - par)
        kg = opt.get("kg", [1, 2, 3, 4, 5, 6, 7, 8])
        G[0].append(vr_prev[15])
        for s in range(8): G[kg[s]].append(kr[s])
        vg = opt.get("vg", list(range(17, 32)))
        for i in range(15): G[vg[i]].append(vr[i])
        for i in range(8): G[(31 + 2*i) % 32].append(cv(1, i)); G[15 + 2*i].append(cv(0, i))
        cnt = lambda g_: sum(1 for s in range(8) if kg[s] < g_)
        kw = opt.get("kw", 10)
        pre = {0: ["s_waitcnt lgkmcnt(7)"], 4: [f"s_waitcnt lgkmcnt({cnt(4)})"], 8: [f"s_waitcnt lgkmcnt({max(0, cnt(8) - 2*(kw - 8))})"]}
        if cnt(8) > 2*(kw - 8): pre[kw] = ["s_waitcnt lgkmcnt(0)"]
        post = {}
        mp = opt.get("mp", [0, 3, 16, 24])
        for (p_, h_, q_) in zip(mp, (0, 0, 1, 1), (0, 1, 0, 1)): post[p_] = [msum(h_, q_)]
        def put(g_, x):
            (post[g_] if g_ in post else G[g_]).append(x)
        put(0, "WAITK")
        if kind == "dma":
            dk = dma_k(par); dv = dma_v(par)
            pre[0] = ["s_and_b32 s54, s60, 0x1e000"] + pre[0]
            put(0, dk[0]); G[9].append(dk[5]); G[11].append("s_lshr_b64 s[60:61], s[60:61], 4")
            for i in range(4): G[2 + 2*i].append(dk[1 + i]); G[10 + 2*i].append(dk[6 + i])
            put(16, "WAITV"); put(16, dv[0])
            for i in range(4): G[18 + 2*i].append(dv[1 + i])
            put(24, dv[5])
            for i, g_ in enumerate(opt.get("dv", [26, 28, 30, 31])): G[g_].append(dv[6 + i])
            if par == 1:
                if not opt.get("tl"): G[13].append(f"buffer_load_dword v{VCNT}, v{VT}, s[68:71], s72 offen sc1")
                G[15].append("s_add_u32 s56, s56, 1")
        else:
            pat = [f"v_mov_b32 v{VKD}, v{VOD0}"] + [f"v_add_u32 v{VKD+i}, {7168*i}, v{VOD0}" for i in range(1, 4)]
            adr = [f"v_xor_b32 v{100+j}, {j << 15}, v12" for j in range(1, 4)]
            gw = spread(32, [(0, 2, pat), (9, 12, adr), ((1, 2, [f"buffer_load_dword v{VCNT}, v{VT}, s[68:71], s72 offen sc1"]) if opt.get("tl") else (20, 21, [f"v_readfirstlane_b32 s73, v{VCNT}"]))] + [(g0, g1, wnext()) for (g0, g1) in opt.get("wi6", [(2, 10), (12, 20), (22, 30)])])
            for i in range(32): G[i] += gw[i]
            put(16, "WAITV")
        arr = opt.get("arr", "A")
        if arr != "A":
            for g_ in range(32):
                e = [x for x in G[g_] if x.startswith("v_exp")]; d = [x for x in G[g_] if x.startswith("ds_")]
                o = [x for x in G[g_] if x not in e and x not in d]
                isd = any(x.startswith("buffer") for x in o)
                if arr == "B": G[g_] = d + o + ["|"] + e
                elif arr == "C": G[g_] = d + e + ["|"] + o
                elif arr == "D": G[g_] = (d + e + ["|"] + o) if isd else (e + ["|"] + d + o)
                elif arr == "E": G[g_] = e + ["|"] + o + d
                elif arr == "F": G[g_] = (e + d + ["|"] + o) if isd else (e + ["|"] + d + o)
        issued = 0; out = []
        for x in fs() + merge(slots, G, pre, post):
            if x == "WAITK": out.append(f"s_waitcnt vmcnt({8 + issued})")
            elif x == "WAITV": out.append(f"s_waitcnt vmcnt({issued})")
            else:
                if x.startswith("buffer_load"): issued += 1
                out.append(x)
        return out
    a("s_mov_b64 exec, 1")
    a(f"buffer_atomic_or v{VT}, v{VT}, s[64:67], s77 offen sc1")
    a(f"buffer_atomic_or v{VT}, v{VT}, s[64:67], s86 offen sc1")
    a("s_mov_b64 exec, -1")
    a("s_mov_b32 s56, 0")
    a.c("steady loop, two tiles per trip: PVa(t) QKa(t+1) PVb(t) QKb(t+1); exp/pack, K/V DMA and fragment reads sit in the MFMA gaps,")
    a.c("the MFMAs into a96..a111 accumulate the row sums of P")
    a.label("L_loop")
    emit(body(0, "dma")); emit(body(1, "dma"))
    a("s_cmp_lt_u32 s56, 3")
    a("s_cbranch_scc1 L_loop")
    a.c("tile 6 / QK of tile 7; the Wo slice starts streaming into free ring slots")
    emit(body(0, "wo"))
    emit(fs())
    a.c("last PV, then reduce O across the 4 waves (bf16 partials via LDS, added by identity MFMAs)")
    jo = [2, 3, 4, 5, 6, 7, 0, 1]
    sb = smx(1)[4:]
    def pack(h, p): return [f"v_cvt_pk_bf16_f32 v{Oi(h,p)+i}, v{Oi(h,p)+2*i}, v{Oi(h,p)+2*i+1}" for i in range(8)]
    def send(h, p): return [f"ds_write_b128 v12, {R('v', Oi(h,p)+4*q)} offset:{PART + ((p-1)*4 + h*2 + q)*1024}" for q in range(2)]
    def psend(h, p):
        x = pack(h, p); w_ = send(h, p)
        return x[:4] + [w_[0]] + x[4:] + [w_[1]]
    G = spread(8, [(0, 1, [vreads(1)[15]]), (0, 7, sb), (7, 8, [cv(1, 7)]), (opt.get("e0", 5), 8, (psend(0, 1) + psend(0, 2) + psend(0, 3))[:opt.get("e1", 0)])])
    nw5 = sum(1 for g_ in range(5) for x in G[g_] if x.startswith("ds_write"))
    emit(merge(pv(0, jo), G, {0: ["s_waitcnt lgkmcnt(7)"], 2: ["s_waitcnt lgkmcnt(1)"], 5: [f"s_waitcnt lgkmcnt({nw5})"]}, {opt.get("m0", 6): [msum(0, 0)], opt.get("m1", 7): [msum(0, 1)]}))
    def pack(h, p): return [f"v_cvt_pk_bf16_f32 v{Oi(h,p)+i}, v{Oi(h,p)+2*i}, v{Oi(h,p)+2*i+1}" for i in range(8)]
    def send(h, p): return [f"ds_write_b128 v12, {R('v', Oi(h,p)+4*q)} offset:{PART + ((p-1)*4 + h*2 + q)*1024}" for q in range(2)]
    def psend(h, p):
        x = pack(h, p); w_ = send(h, p)
        return x[:4] + [w_[0]] + x[4:] + [w_[1]]
    lst = [["s_mov_b64 exec, 0xffff"] + [f"ds_write_b32 v14, a{LA+4*k} offset:{256*k}" for k in range(4)] + ["s_mov_b64 exec, -1"]]
    if opt.get("sb"):
        def rb(h, p, q): return 16 + ((h*3 + p-1)*2 + q)*4
        def prd(h): return [f"ds_read_b128 {R('v', rb(h,p,q))}, v{100+p} offset:{PART + ((p-1)*4 + h*2 + q)*1024}" for p in range(1, 4) for q in range(2)]
        def red(h): return [[mf(R("v", Oi(h,0)+8*q+4*d), R("v", ID[d]), R("v", rb(h,p,q)), R("v", Oi(h,0)+8*q+4*d)) for d in range(2)] for p in range(1, 4) for q in range(2)]
        LB = 80
        allp = psend(0, 1) + psend(0, 2) + psend(0, 3) + psend(1, 1) + psend(1, 2) + psend(1, 3)
        allp = allp[opt.get("e1", 0):]
        ns = opt.get("ns", 40)
        G = spread(8, [(0, 8, allp[:ns]), (opt.get("lg", 3), opt.get("lg", 3) + 1, lst)])
        emit(merge(pv(1, jo), G, {0: [msum(1, 0)]}, {0: [msum(1, 1)]}))
        emit(allp[ns:])
        a("s_waitcnt lgkmcnt(0)")
        emit(fs())
        a("s_barrier")
        if opt.get("qm"):
            def rd1(h, q): return [prd(h)[2*p + q] for p in range(3)]
            def red1(h, q): return [red(h)[2*p + q] for p in range(3)]
            def ls1(qq):
                b = LB + 4*qq
                return [f"v_add_f32 v{b}, v{b}, v{b+1}", f"v_add_f32 v{b+2}, v{b+2}, v{b+3}", f"v_add_f32 v{b+1}, v{b}, v{b+2}", f"v_rcp_f32 v{b}, v{b+1}"]
            def fin1(h, q, pk=False):
                o = Oi(h, 0) + 8*q; g = LB + 8*h + 4*q
                if pk: out = [f"v_pk_mul_f32 v[{o+r}:{o+r+1}], v[{o+r}:{o+r+1}], v[{g}:{g+1}] op_sel_hi:[1,0]" for r in range(0, 8, 2)]
                else: out = [f"v_mul_f32 v{o+r}, v{g}, v{o+r}" for r in range(8)]
                out += [f"v_cvt_pk_bf16_f32 v{o+i}, v{o+2*i}, v{o+2*i+1}" for i in range(4)]
                out += [f"buffer_store_dwordx4 {R('v', o)}, v{VL16}, s[64:67], s{4+h} offen offset:{q*1024} sc1"]
                return out
            lrd = [f"ds_read_b128 {R('v', LB+4*qq)}, v{VMX} offset:{1024 + 256*qq}" for qq in range(4)]
            emit(rd1(0, 0) + lrd + rd1(0, 1) + rd1(1, 0))
            emit(wnext(opt.get("wf4", 1)))
            G = spread(12, [(0, 1, rd1(1, 1)), (1, 4, ls1(0) + ls1(1) + ls1(2)), (4, 7, fin1(0, 0)), (7, 10, fin1(0, 1)), (9, 10, ls1(3)), (10, 12, fin1(1, 0)[:opt.get("f3", 9)])])
            emit(merge(red1(0, 0) + red1(0, 1) + red1(1, 0) + red1(1, 1), G, {0: ["s_waitcnt lgkmcnt(10)"], 1: ["s_waitcnt lgkmcnt(9)"], 3: ["s_waitcnt lgkmcnt(6)"], 6: ["s_waitcnt lgkmcnt(0)"]}))
            emit(fin1(1, 0)[opt.get("f3", 9):])
            emit([f"v_add_f32 v{LB+1}, v{LB+1}, v{LB+5}", f"v_add_f32 v{LB+9}, v{LB+9}, v{LB+13}"])
            emit(fin1(1, 1, True))
            emit([f"v_add_f32 v{LB+1}, v{LB+1}, v{LB+9}", f"v_cmp_nlt_f32 vcc, v{LB+1}, s53"])
            a.c("row sum >= 2^40 or not finite: the shift was unsafe -> redo with the exact row max (nothing has been published yet)")
            emit(["s_cmp_eq_u32 s76, 0", "s_cselect_b64 s[6:7], vcc, 0", "s_cmp_lg_u64 s[6:7], 0", "s_cbranch_scc1 L_fallback"])
            def fin(h, pk): return []
        else:
            emit(prd(0)[:2])
            for qq in range(4): a(f"ds_read_b128 {R('v', LB+4*qq)}, v{VMX} offset:{1024 + 256*qq}")
            emit(prd(0)[2:] + prd(1)[:4])
            emit(wnext(opt.get("wf4", 1)))
            lsum = [f"v_add_f32 v{LB+4*qq+k}, v{LB+4*qq+k}, v{LB+4*qq+k+1}" for qq in range(4) for k in (0, 2)]
            lsum += [f"v_add_f32 v{LB+4*qq}, v{LB+4*qq}, v{LB+4*qq+2}" for qq in range(4)]
            lsum += [f"v_add_f32 v{LB+1}, v{LB}, v{LB+4}", f"v_add_f32 v{LB+2}, v{LB+8}, v{LB+12}", f"v_rcp_f32 v{LB}, v{LB}", f"v_add_f32 v{LB+1}, v{LB+1}, v{LB+2}",
                     f"v_rcp_f32 v{LB+4}, v{LB+4}", f"v_cmp_nlt_f32 vcc, v{LB+1}, s53", f"v_rcp_f32 v{LB+8}, v{LB+8}", f"v_rcp_f32 v{LB+12}, v{LB+12}"]
            def fin(h, pk):
                o = Oi(h, 0)
                if pk: out = [f"v_pk_mul_f32 v[{o+r}:{o+r+1}], v[{o+r}:{o+r+1}], v[{LB+8*h+4*(r>>3)}:{LB+8*h+4*(r>>3)+1}] op_sel_hi:[1,0]" for r in range(0, 16, 2)]
                else: out = [f"v_mul_f32 v{o+r}, v{LB+8*h+4*(r>>3)}, v{o+r}" for r in range(16)]
                out += pack(h, 0)
                out += [f"buffer_store_dwordx4 {R('v', o+4*q)}, v{VL16}, s[64:67], s{4+h} offen offset:{q*1024} sc1" for q in range(2)]
                return out
            G = spread(6, [(0, 1, prd(1)[4:]), (1, 6, lsum)])
            emit(merge(red(0), G, {0: ["s_waitcnt lgkmcnt(12)"], 1: ["s_waitcnt lgkmcnt(10)"], 2: ["s_waitcnt lgkmcnt(6)"]}))
            a.c("row sum >= 2^40 or not finite: the shift was unsafe -> redo with the exact row max")
            emit(["s_cmp_eq_u32 s76, 0", "s_cselect_b64 s[6:7], vcc, 0", "s_cmp_lg_u64 s[6:7], 0", "s_cbranch_scc1 L_fallback"])
            emit(merge(red(1), spread(6, [(0, 6, fin(0, False))]), {0: ["s_waitcnt lgkmcnt(0)"]}))
    else:
        pa = psend(0, 1) + psend(0, 2) + psend(0, 3)
        G = spread(8, [(0, opt.get("pa1", 6), pa), (opt.get("lg", 6), opt.get("lg", 6) + 1, lst), (opt.get("pb0", 6), 8, pack(1, 1) + pack(1, 2) + (pack(1, 3) if opt.get("h3") else []))])
        emit(merge(pv(1, jo), G, {0: [msum(1, 0)]}, {0: [msum(1, 1)]}))
        a("s_waitcnt lgkmcnt(0)")
        emit(fs())
        a("s_barrier")
        def rb(h, p, q): return 16 + ((h*3 + p-1)*2 + q)*4
        def prd(h): return [f"ds_read_b128 {R('v', rb(h,p,q))}, v{100+p} offset:{PART + ((p-1)*4 + h*2 + q)*1024}" for p in range(1, 4) for q in range(2)]
        def red(h): return [[mf(R("v", Oi(h,0)+8*q+4*d), R("v", ID[d]), R("v", rb(h,p,q)), R("v", Oi(h,0)+8*q+4*d)) for d in range(2)] for p in range(1, 4) for q in range(2)]
        LB = 80
        emit(prd(0))
        for qq in range(4): a(f"ds_read_b128 {R('v', LB+4*qq)}, v{VMX} offset:{1024 + 256*qq}")
        wb = send(1, 1) + send(1, 2) + send(1, 3)
        n0 = 2 if opt.get("h3") else 4
        emit(wb[:n0])
        lsum = [f"v_add_f32 v{LB+4*qq+k}, v{LB+4*qq+k}, v{LB+4*qq+k+1}" for qq in range(4) for k in (0, 2)]
        lsum += [f"v_add_f32 v{LB+4*qq}, v{LB+4*qq}, v{LB+4*qq+2}" for qq in range(4)]
        lsum += [f"v_add_f32 v{LB+1}, v{LB}, v{LB+4}", f"v_add_f32 v{LB+2}, v{LB+8}, v{LB+12}", f"v_rcp_f32 v{LB}, v{LB}", f"v_add_f32 v{LB+1}, v{LB+1}, v{LB+2}",
                 f"v_rcp_f32 v{LB+4}, v{LB+4}", f"v_cmp_nlt_f32 vcc, v{LB+1}, s53", f"v_rcp_f32 v{LB+8}, v{LB+8}", f"v_rcp_f32 v{LB+12}, v{LB+12}"]
        nb = opt.get("nb", 4)
        if opt.get("h3"):
            G = spread(6, [(0, min(nb, 4), wb[2:]), (opt.get("ls0", nb), 6, lsum)])
        else:
            G = spread(6, [(0, 2, pack(1, 3) + wb[4:]), (opt.get("ls0", 2), 6, lsum)])
        emit(merge(red(0), G, {0: [f"s_waitcnt lgkmcnt({n0})"]}, {nb - 1: ["s_waitcnt lgkmcnt(0)", "s_barrier"] + prd(1)}))
        emit(wnext(opt.get("wf4", 1)))
        a.c("row sum >= 2^40 or not finite: the shift was unsafe -> redo with the exact row max")
        emit(["s_cmp_eq_u32 s76, 0", "s_cselect_b64 s[6:7], vcc, 0", "s_cmp_lg_u64 s[6:7], 0", "s_cbranch_scc1 L_fallback"])
        def fin(h, pk):
            o = Oi(h, 0)
            if pk: out = [f"v_pk_mul_f32 v[{o+r}:{o+r+1}], v[{o+r}:{o+r+1}], v[{LB+8*h+4*(r>>3)}:{LB+8*h+4*(r>>3)+1}] op_sel_hi:[1,0]" for r in range(0, 16, 2)]
            else: out = [f"v_mul_f32 v{o+r}, v{LB+8*h+4*(r>>3)}, v{o+r}" for r in range(16)]
            out += pack(h, 0)
            out += [f"buffer_store_dwordx4 {R('v', o+4*q)}, v{VL16}, s[64:67], s{4+h} offen offset:{q*1024} sc1" for q in range(2)]
            return out
        emit(merge(red(1), spread(6, [(0, 6, fin(0, False))]), {0: ["s_waitcnt lgkmcnt(4)"], 2: ["s_waitcnt lgkmcnt(0)"]}))
    for k in range(4): a(f"v_add_u32 v{116+k}, s88, v{VWA+k}")
    a("v_and_b32 v14, 1, v0"); a("v_sub_u32 v14, 0, v14")
    emit(fin(1, True))
    emit(fs())
    npre = wcnt[0]
    a.c("O (normalised, bf16, MFMA fragment layout) was stored write-through; publish a flag after the stores are acknowledged")
    if opt.get("tl"):
        a("s_waitcnt vmcnt(4)")
        a(f"v_readfirstlane_b32 s73, v{VCNT}")
    a("s_mov_b32 s93, 0x40000")
    a.label("L_tag")
    a("s_cmp_lg_u32 s73, 0")
    a("s_cbranch_scc1 L_tagok")
    a(f"buffer_load_dword v{VCNT}, v{VT}, s[68:71], s72 offen sc1")
    a("s_waitcnt vmcnt(0)")
    a(f"v_readfirstlane_b32 s73, v{VCNT}")
    a("s_sub_u32 s93, s93, 1")
    a("s_cbranch_scc0 L_tag")
    a.label("L_tagok")
    la = opt.get("la", 0)
    emit(wnext(la))
    a(f"s_waitcnt vmcnt({4 + 4*la})")
    for g in range(2): emit(wo_reads(g))
    a("v_xor_b32 v14, s73, v14")
    a("v_and_b32 v124, 15, v0"); a("v_lshlrev_b32 v124, 2, v124")
    emit(["v_mov_b32 v80, 0xff", "s_lshr_b32 s81, s73, 8", "s_lshr_b32 s82, s73, 16", "s_lshr_b32 s83, s73, 24", f"v_add_u32 v81, s17, v{VL16}",
          "v_lshlrev_b32 v82, 8, v124", "v_lshrrev_b32 v83, 4, v0", "v_lshl_add_u32 v82, v83, 3, v82", "v_mov_b32 v84, 0x0c0c0400", "v_mov_b32 v85, 0x05040100",
          "v_add_u32 v86, 1, v0", "v_lshlrev_b32 v86, 2, v86", "v_xor_b32 v86, s74, v86",
          "v_cmp_eq_u32 vcc, 0, v0", "v_mov_b32 v87, s73", "v_add_u32 v88, 16, v86", "v_cndmask_b32 v86, v86, v88, vcc"])
    for g in range(8):
        a(f"s_add_u32 s51, s80, {g}"); a("s_and_b32 s51, s51, 7"); a(f"s_lshl_b32 s{20+g}, s51, 11")
    a(f"v_add_u32 v104, s16, v{VL16}"); a("v_xor_b32 v105, 0x400, v104"); a("v_xor_b32 v106, 0x40000, v104"); a("v_xor_b32 v107, 0x40400, v104")
    if FS:
        a("v_and_b32 v126, 14, v0"); a(f"v_lshlrev_b32 v126, {2 + FS}, v126"); a("v_and_b32 v124, 4, v124"); a("v_or_b32 v124, v124, v126")
    a("v_mov_b32 v125, 0")
    if WGF:
        PM = "15" if WGF == 1 else "0xffff"
        a("s_waitcnt vmcnt(0)")
        a("s_barrier")
        a("s_cmp_lg_u32 s3, 0")
        a("s_cbranch_scc1 L_nosw")
        a("s_mov_b64 exec, 3")
        a("buffer_atomic_swap v14, v124, s[64:67], s77 offen sc1")
        if WGF == 2:
            a(f"s_mov_b64 exec, {PM}")
            a("buffer_atomic_or v125, v124, s[64:67], s55 offen sc0 sc1")
        a("s_mov_b64 exec, -1")
        a.label("L_nosw")
        if WGF == 1:
            a(f"s_mov_b64 exec, {PM}")
            a("buffer_atomic_or v125, v124, s[64:67], s55 offen sc0 sc1")
            a("s_mov_b64 exec, -1")
        nrest = 8 - wcnt[0]
        a("s_waitcnt lgkmcnt(0)")
        emit(wnext(nrest))
        for g in range(2, npre): emit(wo_reads(g))
        a("s_mov_b32 s93, 0x40000")
        if WGF == 2:
            a("s_cmp_lg_u32 s3, 0")
            a("s_cbranch_scc1 L_pollend")
        a(f"s_waitcnt vmcnt({4*nrest})")
        a(f"s_mov_b64 exec, {PM}")
        a.label("L_poll")
        a("v_cmp_ne_u32 vcc, v14, v125")
        a("s_cbranch_vccz L_pollend")
        a("v_mov_b32 v125, 0")
        a("buffer_atomic_or v125, v124, s[64:67], s55 offen sc0 sc1")
        a("s_sub_u32 s93, s93, 1")
        a("s_waitcnt vmcnt(0)")
        a("s_cbranch_scc0 L_poll")
    else:
        a(f"s_waitcnt vmcnt({4*la})")
        a("s_mov_b64 exec, 3")
        a("buffer_atomic_swap v14, v124, s[64:67], s77 offen sc1")
        FP = opt.get("fp", 0)
        if FP == 0:
            a("s_mov_b64 exec, 0xffff")
            a("buffer_atomic_or v125, v124, s[64:67], s55 offen sc0 sc1")
        a("s_mov_b64 exec, -1")
        emit(fs(True))
        nrest = 8 - wcnt[0]
        mp_ = opt.get("mpoll", [])
        pr = [125, 126, 97, 108]
        for k in range(len(mp_)): a(f"v_mov_b32 v{pr[k+1]}, 0")
        seq_ = ["p0"] if FP == 0 else []
        for g in range(nrest):
            if wcnt[0] == 6: a("s_waitcnt lgkmcnt(0)")
            if g == 0 and opt.get("rfirst"):
                for g2 in range(2, npre): emit(wo_reads(g2))
            emit(wnext(1)); seq_ += ["w"]*4
            if g + 1 == FP:
                a("s_mov_b64 exec, 0xffff"); a(f"buffer_atomic_or v125, v124, s[64:67], s55 offen sc0 sc1"); a("s_mov_b64 exec, -1")
                seq_.append("p0")
            if g + 1 in mp_:
                k = mp_.index(g + 1) + 1
                a("s_mov_b64 exec, 0xffff"); a(f"buffer_atomic_or v{pr[k]}, v124, s[64:67], s55 offen sc0 sc1"); a("s_mov_b64 exec, -1")
                seq_.append(f"p{k}")
        if not opt.get("rfirst"):
            for g in range(2, npre): emit(wo_reads(g))
        a("s_mov_b32 s93, 0x40000")
        a("s_mov_b64 exec, 0xffff")
        for k in range(len(mp_) + 1):
            a(f"s_waitcnt vmcnt({len(seq_) - 1 - seq_.index(f'p{k}')})")
            if k < len(mp_):
                a(f"v_cmp_ne_u32 vcc, v14, v{pr[k]}")
                a("s_cbranch_vccz L_pollend")
            elif k: a(f"v_mov_b32 v125, v{pr[k]}")
        a.label("L_poll")
        a("v_cmp_ne_u32 vcc, v14, v125")
        a("s_cbranch_vccz L_pollend")
        a("v_mov_b32 v125, 0")
        a("buffer_atomic_or v125, v124, s[64:67], s55 offen sc0 sc1")
        a("s_sub_u32 s93, s93, 1")
        a("s_waitcnt vmcnt(0)")
        a("s_cbranch_scc0 L_poll")
    a.label("L_pollend")
    a("s_mov_b64 exec, -1")
    if WGF == 2: a("s_barrier")
    emit(fs(True))
    a.c("---- output projection: tile 64 tokens x 64 cols x 1024 k per workgroup (wave = 2 heads); 4 workgroups share a tile ----")
    lseq = [(j, g) for g in range(8) for j in (3, 2)] + [(1, g) for g in range(8)] + [(0, g) for g in range(8)]
    def oload(i):
        j, g = lseq[i]
        return [f"buffer_load_dwordx4 {R('v', 128+4*i)}, v{104 + j}, s[8:11], s{20 + g} offen sc1"]
    D = opt.get("odepth", 12)
    for i in range(D): emit(oload(i))
    late_reads = []
    for g in range(npre, 8): late_reads += wo_reads(g)
    sched = []
    for i, (j, g) in enumerate(lseq):
        for cp in (1, 0):
            sched.append(([mf(R("v", 16+16*j+4*cs), R("a", (g*4 + cs)*4), R("v", 128+4*i), "0" if g == 0 else R("v", 16+16*j+4*cs)) for cs in (2*cp + 1, 2*cp)], i))
    nfirst = 48
    def wr(j): return [f"ds_write_b128 v12, {R('v', 16+16*j+4*k)} offset:{(j*3 + k-1)*1024}" for k in range(1, 4)]
    def rdd(j): return [f"ds_read_b128 {R('v', 16+16*j+4*k)}, v{100+k} offset:{(j*3 + k-1)*1024}" for k in range(1, 4)]
    tg = ["s73", "s81", "s82", "s83"]
    def summ(j, pk):
        b = 16 + 16*j; out = []
        if pk:
            for p in (0, 2): out += [f"v_pk_add_f32 v[{b+p}:{b+p+1}], v[{b+p}:{b+p+1}], v[{b+4+p}:{b+5+p}]", f"v_pk_add_f32 v[{b+8+p}:{b+9+p}], v[{b+8+p}:{b+9+p}], v[{b+12+p}:{b+13+p}]"]
            for p in (0, 2): out += [f"v_pk_add_f32 v[{b+p}:{b+p+1}], v[{b+p}:{b+p+1}], v[{b+8+p}:{b+9+p}]"]
        else:
            for i in range(4): out += [f"v_add_f32 v{b+i}, v{b+i}, v{b+4+i}", f"v_add_f32 v{b+8+i}, v{b+8+i}, v{b+12+i}"]
            for i in range(4): out += [f"v_add_f32 v{b+i}, v{b+i}, v{b+8+i}"]
        if j:
            out += [f"v_bfi_b32 v{b+i}, v80, {tg[i]}, v{b+i}" for i in range(4)]
            out += [f"buffer_store_dwordx4 {R('v', b)}, v81, s[64:67], s{93+j} offen sc1"]
        return out
    def hint(off): return [["s_mov_b64 exec, 1", f"buffer_atomic_swap v87, v{VT}, s[64:67], s75 offen offset:{off} sc1", "s_mov_b64 exec, -1"]]
    n = len(sched)
    w1 = opt.get("w1", 37); w3 = opt.get("w3", 48); x1 = opt.get("x1", 3); x2 = opt.get("x2", 5)
    G = spread(n, [(0, 13, late_reads), (33, w1, wr(3) + wr(2)), (w1 + 4, w3, ["s_waitcnt lgkmcnt(0)"] + summ(3, False) + summ(2, False)),
                   (nfirst + 1, nfirst + 3, wr(1)), (nfirst + x1 + 3, nfirst + x1 + 3 + x2, ["s_waitcnt lgkmcnt(0)"] + summ(1, False))])
    G[15].append("s_waitcnt lgkmcnt(0)")
    G[w1 + 1] += ["s_waitcnt lgkmcnt(0)", "s_barrier"] + rdd(3) + rdd(2)
    G[opt.get("ha", w3)] += hint(0)
    G[nfirst + x1] += ["s_waitcnt lgkmcnt(0)", "s_barrier"] + rdd(1)
    G[opt.get("hb", nfirst + x1 + 3 + x2)] += hint(16)
    P0_ = opt.get("p0")
    if P0_: G[P0_] += ["v_mov_b32 v88, 0", ["s_mov_b64 exec, 7", "buffer_atomic_or v88, v86, s[64:67], s86 offen sc0 sc1", "s_mov_b64 exec, -1"]]
    vmq = [("ld", i) for i in range(D)]
    issued = D; seen = -1
    for i, (m, need) in enumerate(sched):
        g_ = list(G[i])
        if need > seen:
            a(f"s_waitcnt vmcnt({len(vmq) - 1 - vmq.index(('ld', need))})" + (" lgkmcnt(0)" if i == 0 else ""))
            seen = need
            if issued < 32:
                g_ = oload(issued) + g_; vmq.append(("ld", issued)); issued += 1
        for x in G[i]:
            if any(y.startswith("buffer_atomic_or") for y in (x if isinstance(x, list) else [x])): vmq.append(("p0", 0))
            elif any(y.startswith("buffer_") for y in (x if isinstance(x, list) else [x])): vmq.append(("st", 0))
        emit(merge([m], [g_]))
    emit(fs(True))
    a.c("own 16-token block: reduce over waves; partner partials arrive tagged (low byte of every word), hints only avoid early reads")
    EX = opt.get("ex")
    xl_ = [f"buffer_load_dwordx4 {R('v', 48+4*j)}, v81, s[64:67], s{97+j} offen sc1" for j in range(3)]
    if EX:
        a("s_nop 3")
        emit([wr(0)[2], wr(0)[1], wr(0)[0]][:EX - 1])
        a(f"s_waitcnt vmcnt({len(vmq) - 1 - max(i for i, x in enumerate(vmq) if x == ('p0', 0))})")
        a("v_cmp_ne_u32 vcc, v87, v88")
        a("v_mov_b32 v88, 0")
        a("s_and_b32 s57, vcc_lo, 7")
        a("s_cbranch_scc1 L_nx")
        emit(xl_)
        a("s_branch L_nx2")
        a.label("L_nx")
        a("s_mov_b64 exec, 7")
        a("buffer_atomic_or v88, v86, s[64:67], s86 offen sc0 sc1")
        a("s_mov_b64 exec, -1")
        a.label("L_nx2")
        emit([wr(0)[2], wr(0)[1], wr(0)[0]][EX - 1:])
        a("s_waitcnt lgkmcnt(0)"); a("s_barrier")
        emit(rdd(0))
        a("s_waitcnt lgkmcnt(0)")
        emit(summ(0, True))
        emit(fs(True))
        a("s_mov_b32 s93, 0x40000")
        a("s_cmp_eq_u32 s57, 0")
        a("s_cbranch_scc1 L_xw")
    else:
        if not P0_:
            a("v_mov_b32 v88, 0")
            a("s_mov_b64 exec, 7")
            a("buffer_atomic_or v88, v86, s[64:67], s86 offen sc0 sc1")
            a("s_mov_b64 exec, -1")
        else:
            a("s_nop 3")
        emit([wr(0)[2], wr(0)[1], wr(0)[0]])
        a("s_waitcnt lgkmcnt(0)"); a("s_barrier")
        emit(rdd(0))
        a("s_waitcnt lgkmcnt(0)")
        emit(summ(0, True))
        emit(fs(True))
    a("s_mov_b32 s93, 0x40000")
    a("s_mov_b64 exec, 7")
    a("v_mov_b32 v89, 0")
    a.label("L_h")
    for x, y in ((89, 88), (88, 89)):
        a(f"buffer_atomic_or v{x}, v86, s[64:67], s86 offen sc0 sc1")
        a("s_waitcnt vmcnt(1)")
        a(f"v_cmp_ne_u32 vcc, v87, v{y}")
        a("s_cbranch_vccz L_hend")
        a(f"v_mov_b32 v{y}, 0")
    a("s_sub_u32 s93, s93, 1")
    a("s_cbranch_scc0 L_h")
    a.label("L_hend")
    a("s_mov_b64 exec, -1")
    emit(fs(True))
    a("s_mov_b32 s93, 0x40000")
    a.label("L_x")
    emit(xl_)
    a.label("L_xw")
    a("s_waitcnt vmcnt(0)")
    for j in range(3):
        b = 48 + 4*j
        a(f"v_perm_b32 v{60+2*j}, v{b+1}, v{b}, v84"); a(f"v_perm_b32 v{61+2*j}, v{b+3}, v{b+2}, v84")
    for j in range(3): a(f"v_perm_b32 v{60+2*j}, v{61+2*j}, v{60+2*j}, v85")
    for j in range(3): a(f"v_xor_b32 v{60+2*j}, s73, v{60+2*j}")
    a("v_or3_b32 v60, v60, v62, v64")
    a("v_cmp_ne_u32 vcc, 0, v60")
    a("s_cbranch_vccz L_xend")
    a("s_sub_u32 s93, s93, 1")
    a("s_cbranch_scc0 L_x")
    a.label("L_xend")
    emit(fs(True))
    for i in range(12): a(f"v_and_b32 v{48+i}, 0xffffff00, v{48+i}")
    for p in range(2):
        a(f"v_pk_add_f32 v[{16+2*p}:{17+2*p}], v[{16+2*p}:{17+2*p}], v[{48+2*p}:{49+2*p}]")
        a(f"v_pk_add_f32 v[{52+2*p}:{53+2*p}], v[{52+2*p}:{53+2*p}], v[{56+2*p}:{57+2*p}]")
    for p in range(2): a(f"v_pk_add_f32 v[{16+2*p}:{17+2*p}], v[{16+2*p}:{17+2*p}], v[{52+2*p}:{53+2*p}]")
    a("v_cvt_pk_bf16_f32 v16, v16, v17")
    a("v_cvt_pk_bf16_f32 v17, v18, v19")
    a("buffer_store_dwordx2 v[16:17], v82, s[12:15], s50 offen")
    if fine:
        a("s_waitcnt vmcnt(0)")
        emit(fs(True, True)); emit(fs(True, True))
        a("s_lshl_b32 s51, s2, 2"); a("s_add_u32 s51, s51, s3"); a("s_lshl_b32 s51, s51, 8"); a(f"s_add_u32 s51, s51, {ST_OFF}")
        a("v_lshlrev_b32 v6, 2, v0")
        a("buffer_store_dword v127, v6, s[64:67], s51 offen")
    a.label("L_end")
    a("s_endpgm")

    a.c("---- rare path: exact row max over all 1024 keys, then the attention is run again with it ----")
    a.label("L_fallback")
    a("s_mov_b32 s76, 1")
    a("s_waitcnt vmcnt(0) lgkmcnt(0)")
    a("s_barrier")
    emit(kr_setup())
    for qq in range(4):
        for s_ in range(4): a(f"ds_write_b128 v{VQR}, {Q_(qq,s_)} offset:{(qq*4+s_)*1024}")
    a(f"v_subrev_u32 v{VKD}, 4096, v{VKD+4}")
    emit(kd_setup())
    a("s_mov_b32 s54, 0")
    a.label("L_fb_loop")
    emit(dma_k(0))
    a("s_waitcnt vmcnt(0)")
    emit(kreads(0))
    a("s_waitcnt lgkmcnt(0)")
    for sl in qk(0, True) + qk(1, True): emit(sl)
    a("s_nop 7")
    for qq in range(4):
        for r in range(0, 8, 2): a(f"v_max3_f32 v{MS+qq}, v{MS+qq}, v{16+8*qq+r}, v{17+8*qq+r}")
    a("s_add_u32 s54, s54, 8192")
    a("s_cmp_lt_u32 s54, 65536")
    a("s_cbranch_scc1 L_fb_loop")
    emit(xred(MS))
    a("s_lshl_b32 s51, s3, 2"); a(f"s_add_u32 s51, s51, {MISC+2048}")
    a(f"v_add_u32 v12, s51, v{VL16}")
    a(f"ds_write_b32 v12, v{MS}")
    a("s_waitcnt lgkmcnt(0)"); a("s_barrier")
    for qq in range(4): a(f"ds_read_b128 {R('v', 16+4*qq)}, v{VMX} offset:{2048 + 256*qq}")
    a("s_waitcnt lgkmcnt(0)")
    for qq in range(4):
        a(f"v_max_f32 v{MS+qq}, v{16+4*qq}, v{17+4*qq}")
        a(f"v_max3_f32 v{MS+qq}, v{18+4*qq}, v{19+4*qq}, v{MS+qq}")
    a("s_mov_b64 s[60:61], s[62:63]")
    emit(nexttile() + dma_k(0) + dma_v(0))
    for k in range(4): a(f"v_mov_b32 v{VZ+k}, 0")
    a("s_nop 1")
    emit(zmf)
    a("s_waitcnt vmcnt(0)")
    a("s_branch L_att")
    if opt.get("pf"): a(".fill 256, 4, 0xbf810000")
    return a.text()

def build(opt, fname):
    k = NAME + "_kernel"
    hdr = f"""; GQA block (B=8, Sq=64, D=512, Hq=32, Hkv=8, Sk=1024, Dh=128) as one fused kernel:
; @launch grid=(256,1,1) block=(256,1,1) lds=163840
.amdgcn_target "amdgcn-amd-amdhsa--gfx950"
"""
    open(fname, "w").write(hdr + kernel_header(k) + gen(opt) + '.section .rodata,"a"\n.p2align 6\n' + kernel_desc(k, 512, 102, 256))

R1 = [order(x) for x in ([0,2,1,3,4,6,5,7], [0,1,3,2,4,5,7,6], [1,0,2,4,3,5,6,7], [1,0,2,3,5,4,6,7])]
R3 = [order(x) for x in ([0,2,1,3,6,4,5,7], [0,1,4,2,3,5,6,7], [1,3,0,2,4,7,5,6], [1,0,2,5,3,4,6,7])]
R7 = [order(x) for x in ([0,1,3,2,4,5,7,6], [0,1,2,4,3,5,6,7], [0,2,1,3,5,4,6,7], [0,2,1,3,4,6,5,7])]
if __name__ == "__main__":
    B = {"orders": R7}
    KO = [1, 1, 3, 3, 5, 5, 7, 7]; VO = [17, 17, 19, 19, 21, 21, 23, 23, 25, 25, 27, 27, 29, 29, 31]
    D_ = dict(B, arr="D")
    H_ = dict(D_, h3=1, nb=4, ls0=0)
    N_ = dict(H_, orders=R1)
    N_ = dict(N_, nf=16)
    P7 = [R7[1], R7[2], R7[3], R7[0]]
    Z_ = dict(N_, late2={5: ["L5"]})
    KV1 = {5: ["K0a", "K0b"], 6: ["V0a"], 7: ["V0b"]}
    KV4 = {4: ["K0a"], 5: ["K0b"], 7: ["V0a"], 8: ["V0b"]}
    KV3 = {3: ["K0a"], 5: ["K0b"], 7: ["V0a"], 8: ["V0b"]}
    KV5 = {3: ["K0a"], 5: ["K0b"], 6: ["V0a"], 7: ["V0b"]}
    L_ = dict(N_, late2={3: ["L4"]})
    S_ = dict(L_, sb=1, ns=40, e1=10)
    Q0 = dict(S_, qm=1, ns=30, e1=0, f3=6)
    E_ = dict(Q0, e0=3, e1=20, ns=35)
    T_ = dict(E_, tl=1)
    A_ = dict(E_, odepth=10)
    H_ = dict(A_, hb=49, p0=60)
    X_ = dict(H_, x1=4, x2=5, hb=50, p0=61, w1=38, w3=49)
    V = {"x": X_, "g1": dict(X_, wgf=1), "g2": dict(X_, wgf=2), "g1s": dict(X_, wgf=1, fsx=2), "g2s": dict(X_, wgf=2, fsx=1)}
    for n, o in V.items():
        build(o, f"v75_{n}.s")
        for k in (1, 2, 3): build(dict(o, fine=3), f"u{k}_{n}_m.s")
```
